```python
import torch

def _softmax(x, axis=-1):
    return torch.softmax(x, dim=axis)
def _gelu(x):
    return torch.nn.functional.gelu(x, approximate="tanh")
def _silu(x):
    return torch.nn.functional.silu(x)
def _sigmoid(x):
    return torch.sigmoid(x)
def _layernorm(x, axis=-1, eps=1e-5):
    m = x.mean(dim=axis, keepdim=True)
    v = x.var(dim=axis, keepdim=True, unbiased=False)
    return (x - m) / torch.sqrt(v + eps)
def _scatter_add(tgt, idx, src, axis=0):
    return tgt.clone().index_add_(axis, idx, src)
def _segment_sum(src, seg, n):
    out = torch.zeros((n,) + src.shape[1:], dtype=src.dtype)
    return out.index_add_(0, seg, src)
def _pad(x, pw):
    flat = tuple(v for pair in reversed(pw) for v in pair)
    return torch.nn.functional.pad(x, flat)

kernel_name = 'parallel_sum__linear_attn_block__swiglu_ffn__prompt'

def setup_inputs():

    _w = (lambda a: (lambda t: t.to(torch.bfloat16) if t.is_floating_point() else t)(torch.as_tensor(a)))
    def _A_setup():
        B, S, D = 1, 2048, 512
        return {
            "x": _w((lambda *s: torch.randn(*s, dtype=torch.bfloat16) * 0.05)(B, S, D)),
            "wqkv": _w((lambda *s: torch.randn(*s, dtype=torch.bfloat16) * 0.2)(D, 3 * D)),
            "wo": _w((lambda *s: torch.randn(*s, dtype=torch.bfloat16) * 0.2)(D, D)),
        }
    _A_in = _A_setup()

    def _B_setup():
        B, S, D, F = 1, 2048, 512, 1792
        return {
            "x": _w((lambda *s: torch.randn(*s, dtype=torch.bfloat16) * 0.05)(B, S, D)),
            "w_gate": _w((lambda *s: torch.randn(*s, dtype=torch.bfloat16) * 0.05)(D, F)),
            "w_up": _w((lambda *s: torch.randn(*s, dtype=torch.bfloat16) * 0.05)(D, F)),
            "w_down": _w((lambda *s: torch.randn(*s, dtype=torch.bfloat16) * 0.05)(F, D)),
        }
    _B_in = _B_setup()

    return {
        "A_x": _A_in["x"],
        "A_wqkv": _A_in["wqkv"],
        "A_wo": _A_in["wo"],
        "B_x": _B_in["x"],
        "B_w_gate": _B_in["w_gate"],
        "B_w_up": _B_in["w_up"],
        "B_w_down": _B_in["w_down"],
    }

def reference(A_x, A_wqkv, A_wo, B_x, B_w_gate, B_w_up, B_w_down):
    def _A_ref(x, wqkv, wo):
        B, S, D = x.shape
        H = 32; Dh = D // H
        qkv = (lambda x, *d: x.permute(*d))((x @ wqkv).reshape(B, S, 3, H, Dh), 2, 0, 3, 1, 4)
        q, k, v = qkv[0], qkv[1], qkv[2]
        phi = lambda t: torch.where(t > 0, t + 1, torch.exp(t)) + 1e-6
        pq, pk = phi(q), phi(k)
        kv = torch.einsum("bhsd,bhse->bhde", pk, v)
        z = torch.einsum("bhsd->bhd", pk)
        num = torch.einsum("bhqd,bhde->bhqe", pq, kv)
        den = torch.einsum("bhqd,bhd->bhq", pq, z)[..., None] + 1e-6
        o = num / den
        return (lambda x, *d: x.permute(*d))(o, 0, 2, 1, 3).reshape(B, S, D) @ wo

    def _B_ref(x, w_gate, w_up, w_down):
        g = _silu(x @ w_gate)
        u = x @ w_up
        return (g * u) @ w_down

    x = A_x
    xn = _layernorm(x, axis=-1)
    return x + _A_ref(xn, A_wqkv, A_wo) + _B_ref(xn, B_w_gate, B_w_up, B_w_down)
```

```python
import re

TRANS = ("v_exp_f32", "v_log_f32", "v_rcp_f32", "v_rsq_f32", "v_sqrt_f32", "v_sin_f32", "v_cos_f32")

def regs_of(tok):
    tok = tok.strip()
    tok = tok.lstrip("-")
    m = re.fullmatch(r"abs\((.*)\)|\|(.*)\|", tok)
    if m: tok = m.group(1) or m.group(2)
    m = re.fullmatch(r"([vsa])(\d+)", tok)
    if m: return {(m.group(1), int(m.group(2)))}
    m = re.fullmatch(r"([vsa])\[(\d+):(\d+)\]", tok)
    if m: return {(m.group(1), i) for i in range(int(m.group(2)), int(m.group(3)) + 1)}
    if tok in ("vcc", "vcc_lo", "vcc_hi"): return {("s", "vcc")}
    if tok in ("exec", "exec_lo", "exec_hi"): return {("s", "exec")}
    if tok == "m0": return {("s", "m0")}
    return set()

class I:
    __slots__ = ("text", "mn", "kind", "w", "r", "srcc", "passes", "wide", "dma", "trans", "dot", "states", "dstr")

def parse(text):
    t = text.split(";")[0].strip()
    parts = t.split(None, 1)
    mn = parts[0]
    rest = parts[1] if len(parts) > 1 else ""
    rest = re.sub(r" op_sel.*", "", rest)
    ops = [o.strip() for o in rest.split(",")] if rest else []
    mods = ""
    if ops:
        last = ops[-1].split(None, 1)
        ops[-1] = last[0]
        mods = last[1] if len(last) > 1 else ""
    i = I(); i.text = text; i.mn = mn; i.w = set(); i.r = set(); i.srcc = set(); i.passes = 0
    i.wide = False; i.dma = False; i.trans = False; i.dot = False; i.states = 1; i.dstr = None
    R = lambda lst: set().union(*[regs_of(o) for o in lst]) if lst else set()
    base = re.sub(r"_(e32|e64|sdwa|dpp)$", "", mn)
    if mn.startswith("v_mfma"):
        i.kind = "mfma"; i.w = regs_of(ops[0]); i.r = R(ops[1:]); i.srcc = regs_of(ops[3])
        i.passes = 8 if "32x32x16" in mn else 4
        i.dstr = (ops[0], ops[3], R(ops[1:3]))
    elif mn.startswith("ds_read"):
        i.kind = "ds"; i.w = regs_of(ops[0]); i.r = R(ops[1:])
    elif mn.startswith("ds_"):
        i.kind = "ds"; i.r = R(ops)
    elif mn.startswith("buffer_load"):
        i.kind = "vm"
        if re.search(r"\blds\b", mods):
            i.r = R(ops) | {("s", "m0")}; i.dma = True
        else:
            i.w = regs_of(ops[0]); i.r = R(ops[1:])
    elif mn.startswith("buffer_store") or mn.startswith("buffer_atomic"):
        i.kind = "vm"; i.r = R(ops)
        if mn.endswith("x4") or mn.endswith("x3"): i.wide = regs_of(ops[0])
    elif mn.startswith("global_load"):
        i.kind = "vm"; i.w = regs_of(ops[0]); i.r = R(ops[1:])
    elif mn.startswith("global_store"):
        i.kind = "vm"; i.r = R(ops)
        if mn.endswith("x4") or mn.endswith("x3"): i.wide = regs_of(ops[1])
    elif mn.startswith("v_"):
        i.kind = "valu"
        if "permlane" in mn:
            i.w = R(ops); i.r = R(ops)
        else:
            i.w = regs_of(ops[0]); i.r = R(ops[1:])
            if base in ("v_fmac_f32", "v_dot2c_f32_bf16", "v_writelane_b32") or "dpp" in mn or "row_" in mods or "quad_perm" in mods:
                i.r |= i.w
            if base.startswith("v_add_co") or base.startswith("v_addc_co") or base.startswith("v_sub_co"):
                i.w |= regs_of(ops[1])
        i.trans = base in TRANS
        i.dot = base.startswith("v_dot")
        if i.dot: i.srcc = regs_of(ops[3]) if len(ops) > 3 else set(i.w); i.dstr = R(ops[1:3])
        if "row_" in mods or "quad_perm" in mods or "dpp" in mn: i.dstr = "dpp"
    elif mn == "s_nop":
        i.kind = "nop"; i.states = int(ops[0], 0) + 1
    elif mn.startswith("s_load") or mn in ("s_memtime", "s_memrealtime"):
        i.kind = "smem"; i.w = regs_of(ops[0]); i.r = R(ops[1:])
    elif mn.startswith("s_"):
        i.kind = "salu"
        if mn.startswith(("s_cmp", "s_bitcmp", "s_cbranch", "s_branch", "s_waitcnt", "s_barrier", "s_sleep", "s_setprio", "s_endpgm", "s_setpc")):
            i.r = R(ops)
        else:
            i.w = regs_of(ops[0]); i.r = R(ops[1:])
            if mn in ("s_addk_i32", "s_mulk_i32"): i.r |= i.w
    else:
        raise ValueError("unknown instr " + text)
    return i

def need_states(p, c):
    n = 0
    vw = {x for x in p.w if x[0] == "v"}
    sw = {x for x in p.w if x[0] == "s"}
    if p.kind == "valu":
        if c.kind == "mfma" and vw & c.r: n = max(n, 3 if p.dot else 2)
        if c.kind == "valu":
            if "permlane" in c.mn and vw & c.r: n = max(n, 2)
            if c.dstr == "dpp" and vw & c.r: n = max(n, 2)
            if c.mn.startswith(("v_readlane", "v_readfirstlane")) and vw & c.r: n = max(n, 1)
            if p.trans and vw & c.r: n = max(n, 1)
            if sw & c.r: n = max(n, 2)
            if c.mn.startswith("v_cndmask") and ("s", "vcc") in sw: n = max(n, 2)
        if p.dot and vw & (c.r | c.w):
            if c.kind == "valu" and c.dot and c.mn == p.mn and not (vw & c.dstr): pass
            else: n = max(n, 3)
        if c.kind == "vm" and sw & c.r: n = max(n, 5)
    if p.kind == "mfma":
        big = p.passes == 8
        if c.kind == "mfma":
            if p.w & c.dstr[2]: n = max(n, 12 if big else 8)
            if p.w & c.srcc:
                if not (c.dstr[1] == p.dstr[0] and c.passes == p.passes): n = max(n, 10 if big else 6)
            elif p.w & c.w and c.passes != p.passes: n = max(n, 10 if big else 6)
        elif c.kind in ("valu", "ds", "vm"):
            if p.w & (c.r | c.w): n = max(n, 12 if big else 8)
            if c.kind == "valu" and p.srcc & c.w: n = max(n, 7 if big else 3)
    if p.kind == "salu" and ("s", "m0") in p.w and c.dma: n = max(n, 1)
    if p.kind == "vm" and p.wide and p.wide & c.w: n = max(n, 2 if c.kind in ("valu", "mfma") else 1)
    return n

class Asm:
    def __init__(self):
        self.out = []; self.stubs = []
        self.reset()
        self.count = 0; self.nops = 0; self.uid = 0; self.nvm = 0
    def reset(self):
        self.hist = []; self.lg = []; self.vm = []
    def raw(self, text):
        self.out.append(text)
    def label(self, name):
        self.out.append(name + ":")
    def newlabel(self, p="L"):
        self.uid += 1; return f"{p}_{self.uid}"
    def _push(self, i):
        self.out.append("    " + i.text); self.count += 1
        self.hist.append(i)
        if len(self.hist) > 24: self.hist.pop(0)
    def _pending(self, q, regs):
        idx = -1
        for n, e in enumerate(q):
            if e[0] & regs: idx = n
        return idx
    def wait(self, lg=None, vm=None):
        s = []
        if vm is not None and vm < len(self.vm):
            assert vm <= 63, vm
            s.append(f"vmcnt({vm})"); self.vm = self.vm[len(self.vm) - vm:] if vm else []
        if lg is not None and lg < len(self.lg):
            assert lg <= 15, lg
            s.append(f"lgkmcnt({lg})"); self.lg = self.lg[len(self.lg) - lg:] if lg else []
        if s: self._push(parse("s_waitcnt " + " ".join(s)))
    def need(self, *toks):
        regs = set().union(*[regs_of(t) for t in toks])
        self._need(regs)
    def _need(self, regs):
        a = self._pending(self.lg, regs); b = self._pending(self.vm, regs)
        self.wait(lg=(len(self.lg) - 1 - a) if a >= 0 else None, vm=(len(self.vm) - 1 - b) if b >= 0 else None)
    def wait_tag(self, tag):
        idx = -1
        for n, e in enumerate(self.vm):
            if e[1] == tag: idx = n
        if idx >= 0: self.wait(vm=len(self.vm) - 1 - idx)
    def e(self, text, tag=None):
        i = parse(text)
        if i.mn == "s_waitcnt":
            m = re.search(r"vmcnt\((\d+)\)", text)
            if m:
                k = int(m.group(1)); self.vm = self.vm[max(0, len(self.vm) - k):] if k else []
            m = re.search(r"lgkmcnt\((\d+)\)", text)
            if m:
                k = int(m.group(1)); self.lg = self.lg[max(0, len(self.lg) - k):] if k else []
            self._push(i); return
        self._need(i.r | i.w)
        if i.kind == "ds" and len(self.lg) >= 15: self.wait(lg=12)
        if i.kind == "vm" and len(self.vm) >= 63: self.wait(vm=56)
        d = 0; need = 0
        for p in reversed(self.hist):
            n = need_states(p, i)
            if n - d > need: need = n - d
            d += p.states
            if d >= 20: break
        if need > 0:
            self._push(parse(f"s_nop {need-1}")); self.nops += need
        self._push(i)
        if i.kind == "ds": self.lg.append((set(i.w), tag))
        if i.kind == "vm": self.vm.append((set(i.w), tag)); self.nvm += 1
    def __call__(self, *texts):
        for t in texts: self.e(t)
    def text(self):
        return "\n".join(self.out)
```

```python
import sys
from asmb import Asm

NAME = "parallel_sum__linear_attn_block__swiglu_ffn__prompt"

class Cfg:
    diag = 0
    lag = 4
    w2_first = 10
    w2_second = 10
    s_gather = 8 + 24 + 4
    timeout = 400000
    round_ln = True

FULL_OFF, FREE_OFF, KVR_OFF, ZR_OFF, OPR_OFF = 0, 1024, 2048, 6144, 6400
OP_OFF = KVR_OFF
PAGE0, NPAGES = 8192, 19
LDS_BYTES = PAGE0 + NPAGES * 8192
WS_FLAG, WS_KV, WS_A2, WS_DIAG, WS_SIZE = 0x1000, 0x100000, 0x200000, 0x1000000, 0x2000000
sC, sI, sTB, sCB, sW = "s4", "s5", "s6", "s7", "s3"
sT = "s37"
SRD = dict(x=40, qkv=44, gate=48, up=52, down=56, wo=60, ws=64, out=68, dbg=72)
PTR = dict(x=16, qkv=18, wo=20, gate=24, up=26, down=28, out=30, dbg=32, ws=34)
SIZE = dict(x=2097152, qkv=1572864, wo=524288, gate=1835008, up=1835008, down=1835008, out=2097152, dbg=256, ws=WS_SIZE)
def srd(n): return f"s[{SRD[n]}:{SRD[n]+3}]"
def mk_srd(a, n):
    b = SRD[n]
    a(f"s_mov_b32 s{b}, s{PTR[n]}", f"s_mov_b32 s{b+1}, s{PTR[n]+1}", f"s_mov_b32 s{b+2}, {SIZE[n]:#x}", f"s_mov_b32 s{b+3}, 0x20000")
def vr(b, n=1): return f"v{b}" if n == 1 else f"v[{b}:{b+n-1}]"

def make_items(cfg):
    it = []
    for s in range(8):
        for h in range(2): it.append(dict(k="x", s=s, h=h, rel=s + 1))
    for u in range(5):
        for i in range(8): it.append(dict(k="w1", u=u, i=i, rel=9 + 8 * u + i))
    W = lambda u: dict(k="w2", u=u, rel=50 + u)
    A = lambda u: dict(k="a2", u=u, rel=50 + u)
    it.append(dict(k="xres", rel=49))
    nw = 0
    for _ in range(cfg.w2_first): it.append(W(nw)); nw += 1
    for u in range(8): it.append(A(u))
    for _ in range(cfg.w2_second): it.append(W(nw)); nw += 1
    for u in range(8, 36):
        if u == 24:
            while nw < 36: it.append(W(nw)); nw += 1
        it.append(A(u))
        if nw < 36: it.append(W(nw)); nw += 1
    free = [(0, p) for p in range(NPAGES)]
    for n, x in enumerate(it):
        free.sort()
        need, p = free.pop(0)
        assert need < x["rel"], (n, x, need)
        x["page"] = p; x["need"] = need; x["n"] = n; x["addr"] = PAGE0 + 8192 * p
        free.append((x["rel"], p))
    return it

class Stamps:
    def __init__(self, a, cfg, regs):
        self.a, self.on, self.regs, self.n, self.names = a, cfg.diag, regs, 0, []
    def __call__(self, name):
        if not self.on: return
        r = self.regs[self.n]
        self.a.raw(f"    {'s_memrealtime' if self.on == 1 else 's_memtime'} s[{r}:{r+1}]")
        self.n += 1; self.names.append(name)
    def flush(self, vt, vz):
        if not self.on: return
        a = self.a
        a("s_waitcnt lgkmcnt(0)")
        a("s_lshl_b32 s76, s2, 3", f"s_add_u32 s76, s76, {sW}", "s_lshl_b32 s76, s76, 7", f"s_add_u32 s76, s76, {WS_DIAG:#x}")
        a(f"v_mov_b32 v{vz}, 0", "s_mov_b64 exec, 1")
        for i in range(self.n):
            a(f"v_mov_b32 v{vt}, s{self.regs[i]}")
            a(f"buffer_store_dword v{vt}, v{vz}, {srd('ws')}, s76 offen offset:{4*i}")
            a("s_waitcnt vmcnt(0)")

def timeout(a):
    a.raw(f"    s_sub_u32 {sT}, {sT}, 1")
    a.raw("    s_cbranch_scc1 L_end")

X0, P0, Q0, K0, WB0 = 128, 64, 96, 48, 24
vA0, vA1, vFa, vF, vRa, vOne, vL16, vR, vNM, vTag, vH, vL4 = 1, 2, 3, 4, 5, 6, 7, 8, 9, 10, 11, 20
vFl = 21
T0 = 12
sNL2E, sHI, sL2E, sEPS6 = "s38", "s39", "s76", "s77"
sA2, sFL, sKV, sTmp = "s78", "s79", "s80", "s81"
sM1, sM2, sM3 = "s[82:83]", "s[84:85]", "s[86:87]"

class Compute:
    def __init__(self, a, cfg, items, typ):
        self.a, self.cfg, self.it, self.typ = a, cfg, items, typ
        self.events = []; self.nfree = 0; self.checked = 0
        self.win = {vA0: 0, vA1: 0, vH: 0}
        self.st = Stamps(a, cfg, list(range(40, 64, 2)) + list(range(8, 30, 2)))
    def find(self, **kw):
        for x in self.it:
            if all(x.get(k) == v for k, v in kw.items()): return x
        raise KeyError(kw)
    def sample(self, off=FULL_OFF):
        self.a(f"ds_read_b32 v{vF}, v{vFa} offset:{off}")
    def check_stub(self, n, off=FULL_OFF):
        a = self.a
        L = a.newlabel("Ls"); C = a.newlabel("Lc")
        a(f"v_cmp_gt_u32 vcc, {n}, v{vF}")
        a(f"s_cbranch_vccnz {L}")
        a.label(C)
        a.stubs += [f"{L}:", f"    ds_read_b32 v{vF}, v{vFa} offset:{off}", f"    s_sub_u32 {sT}, {sT}, 1", "    s_cbranch_scc1 L_end",
                    "    s_waitcnt lgkmcnt(0)", f"    v_cmp_gt_u32 vcc, {n}, v{vF}", f"    s_cbranch_vccnz {L}", f"    s_branch {C}"]
        if off == FULL_OFF: self.events.append(("check", n)); self.checked = max(self.checked, n)
    def check_inline(self, n, off=FULL_OFF):
        a = self.a
        L = a.newlabel("Li")
        a.label(L)
        a("s_waitcnt lgkmcnt(0)")
        a(f"v_cmp_gt_u32 vcc, {n}, v{vF}")
        a(f"ds_read_b32 v{vF}, v{vFa} offset:{off}")
        timeout(a)
        a(f"s_cbranch_vccnz {L}")
        if off == FULL_OFF: self.events.append(("check", n)); self.checked = max(self.checked, n)
    def free(self, step):
        self.nfree += 1
        assert self.nfree == step, (self.nfree, step)
        self.a(f"ds_add_u32 v{vRa}, v{vOne}")
        self.events.append(("free", step))
    def tr(self, dst, areg, addr):
        if not (0 <= addr - self.win[areg] <= 65535):
            nw = addr & ~8191
            d = nw - self.win[areg]
            self.a(f"v_add_u32 v{areg}, {d & 0xffffffff:#x}, v{areg}")
            self.win[areg] = nw
        self.a(f"ds_read_b64_tr_b16 {vr(dst,2)}, v{areg} offset:{addr - self.win[areg]}")

    def step(self, n):
        u, ks = divmod(n, 32)
        buf = WB0 + 8 * (n % 3)
        it = self.it[16 + 8 * u + ks // 4]
        acc = P0 if u % 2 == 0 else Q0
        rd = []; mf = []
        if self.typ == "F" and u == 4:
            blk, kk = ks // 16, 2 * (ks % 16)
            for e in range(2):
                s = 2 * (ks % 4) + e
                rd.append([(buf + 4 * e + 2 * t, vH, it["addr"] + s * 1024 + t * 512) for t in range(2)])
                d = vr(acc + 16 * blk, 16)
                c = "0" if kk + e == 0 else d
                mf.append(f"v_mfma_f32_32x32x16_bf16 {d}, {vr(buf+4*e,4)}, {vr(X0+4*(kk+e),4)}, {c}")
        else:
            nt = self.typ == "A" and u < 2
            for b in range(2):
                rd.append([(buf + 4 * b + 2 * t, (vA0, vA1)[b], it["addr"] + (ks % 4) * 2048 + t * 1024) for t in range(2)])
                d = vr(acc + 16 * b, 16); c = "0" if ks == 0 else d
                w, x = vr(buf + 4 * b, 4), vr(X0 + 4 * ks, 4)
                mf.append(f"v_mfma_f32_32x32x16_bf16 {d}, {x if nt else w}, {w if nt else x}, {c}")
        return dict(it=it, rd=rd, mf=mf, first=(ks % 4 == 0), last=(ks % 4 == 3), buf=buf)
    def pre_reads(self, n):
        s = self.step(n)
        if s["first"] and s["it"]["n"] + 1 > self.checked:
            self.check_stub(min(s["it"]["n"] + 2, 56))
    def reads(self, n, half):
        if n >= 160: return
        s = self.step(n)
        if half == 0: self.pre_reads(n)
        for r in s["rd"][half]: self.tr(*r)
        if half == 1:
            if s["last"]: self.free(s["it"]["rel"])
            if n + 2 < 160:
                s2 = self.step(n + 2)
                if s2["first"] and s2["it"]["n"] + 1 > self.checked: self.sample()
    def run_fill(self, fl, budget):
        used = 0
        while fl and used < budget:
            f = fl[0]
            if isinstance(f, tuple) and f[0] == "gap":
                if self.gap < f[1]: break
                fl.pop(0); continue
            fl.pop(0)
            if callable(f): f(); used += 1
            else:
                if isinstance(f, tuple): self.a.e(f[0], tag=f[1]); f = f[0]
                else: self.a(f)
                used += 1.65 if f.startswith(("v_exp", "v_rcp")) else 1
        return used
    def unit(self, n0, nsteps, fl, rate=None, start=3):
        fl = list(fl)
        cost = sum(0 if (isinstance(f, tuple) and f[0] == "gap") else (1.65 if isinstance(f, str) and f.startswith(("v_exp", "v_rcp")) else 1) for f in fl)
        if rate is None: rate = max(3.0, cost / (2 * nsteps - start - 0.5))
        credit = 0.0; self.gap = 0
        for n in range(n0, n0 + nsteps):
            s = self.step(n)
            self.a.need(vr(s["buf"], 8))
            for h in range(2):
                self.a(s["mf"][h])
                self.reads(n + 2, h)
                if self.gap >= start:
                    credit = min(credit + rate, rate + 1)
                    credit -= self.run_fill(fl, credit - 0.3)
                self.gap += 1
        self.gap = 10 ** 9
        if fl:
            print(f"  [{self.typ}] unit at {n0}: {len(fl)} fillers left over", file=sys.stderr)
            self.run_fill(fl, 10 ** 9)

    def f_silu(self, src, n, pack):
        fl = []
        for g in range(0, n, 4):
            t = T0 + (g // 4 % 2) * 4
            fl += [f"v_mul_f32 v{t+i}, {sNL2E}, v{src+g+i}" for i in range(4)]
            fl += [f"v_exp_f32 v{t+i}, v{t+i}" for i in range(4)]
            fl += [f"v_add_f32 v{t+i}, 1.0, v{t+i}" for i in range(4)]
            fl += [f"v_rcp_f32 v{t+i}, v{t+i}" for i in range(4)]
            fl += [f"v_mul_f32 v{src+g+i}, v{src+g+i}, v{t+i}" for i in range(4)]
            if pack is not None:
                fl += [f"v_cvt_pk_bf16_f32 v{pack+g//2+i}, v{src+g+2*i}, v{src+g+2*i+1}" for i in range(2)]
        return fl
    def f_phi(self, src, n, pack):
        fl = []
        for g in range(0, n, 4):
            t = T0 + (g // 4 % 2) * 4
            fl += [f"v_mul_f32 v{t+i}, {sL2E}, v{src+g+i}" for i in range(4)]
            fl += [f"v_exp_f32_e64 v{t+i}, v{t+i} clamp" for i in range(4)]
            fl += [f"v_max_f32 v{src+g+i}, {sEPS6}, v{src+g+i}" for i in range(4)]
            fl += [f"v_add_f32 v{src+g+i}, v{src+g+i}, v{t+i}" for i in range(4)]
            fl += [f"v_cvt_pk_bf16_f32 v{pack+g//2+i}, v{src+g+2*i}, v{src+g+2*i+1}" for i in range(2)]
        return fl
    def f_finish(self, U, tag):
        fl = [f"s_add_u32 {sTmp}, {sA2}, {U*8192}"]
        for g in range(0, 16, 2):
            t = T0 + (g // 2 % 2) * 4
            for i in range(2):
                fl += [f"v_lshlrev_b32 v{t+2*i}, 16, v{K0+g+i}", f"v_and_b32 v{t+2*i+1}, {sHI}, v{K0+g+i}"]
            fl += [f"v_mul_f32 v{t+i}, v{t+i}, v{Q0+2*g+i}" for i in range(4)]
            fl += [f"v_cvt_pk_bf16_f32 v{K0+g+i}, v{t+2*i}, v{t+2*i+1}" for i in range(2)]
            if g % 4 == 2:
                ks = g // 4
                fl.append((f"buffer_store_dwordx4 {vr(K0+4*ks,4)}, v{vL16}, {srd('ws')}, {sTmp} offen offset:{ks*1024} sc1", tag))
        return fl
    def flag(self, U, tag):
        a = self.a
        a(f"s_add_u32 {sTmp}, {sFL}, {U*512}")
        a.wait_tag(tag)
        a(f"buffer_store_dword v{vTag}, v{vFl}, {srd('ws')}, {sTmp} offen sc1")
    def f_nonce(self):
        a = self.a
        def chk():
            L = a.newlabel("Ln"); C = a.newlabel("Lc")
            a(f"v_cmp_eq_u32 vcc, 0, v{vTag}")
            a(f"s_cbranch_vccnz {L}")
            a.label(C)
            a.stubs += [f"{L}:", f"    buffer_load_dword v{vTag}, off, {srd('dbg')}, 0 sc1", f"    s_sub_u32 {sT}, {sT}, 1", "    s_cbranch_scc1 L_end",
                        "    s_waitcnt vmcnt(0)", f"    v_cmp_eq_u32 vcc, 0, v{vTag}", f"    s_cbranch_vccnz {L}", f"    s_branch {C}"]
        return f"buffer_load_dword v{vTag}, off, {srd('dbg')}, 0 sc1", chk

    def prologue(self):
        a, cfg = self.a, self.cfg
        a("v_and_b32 v0, 63, v0")
        a(f"v_lshlrev_b32 v{vL16}, 4, v0", f"v_lshlrev_b32 v{vL4}, 2, v0")
        a("v_mov_b32 v12, 0", "v_mov_b32 v13, 0", "v_mov_b32 v14, 0", "v_mov_b32 v15, 0")
        a(f"s_lshl_b32 {sTmp}, {sW}, 11", f"v_add_u32 v16, {sTmp}, v{vL16}")
        a("ds_write_b128 v16, v[12:15]", "ds_write_b128 v16, v[12:15] offset:1024")
        a("s_waitcnt lgkmcnt(0)", "s_barrier")
        a.reset()
        for n in ("ws", "out", "dbg"): mk_srd(a, n)
        Lskip = a.newlabel("Lt")
        a(f"s_or_b32 {sTmp}, s2, {sW}", f"s_cmp_lg_u32 {sTmp}, 0", f"s_cbranch_scc1 {Lskip}")
        a(f"buffer_load_dword v12, off, {srd('ws')}, 0 sc1")
        a("s_waitcnt vmcnt(0)")
        a("v_add_u32 v12, 0x9e377902, v12", "v_or_b32 v12, 0x80000000, v12")
        a("s_mov_b64 exec, 1")
        a(f"buffer_store_dword v12, off, {srd('dbg')}, 0 sc1", f"buffer_store_dword v12, off, {srd('ws')}, 0 sc1")
        a("s_mov_b64 exec, -1")
        a.label(Lskip); a.reset()
        a(f"s_mov_b32 {sNL2E}, 0xbfb8aa3b", f"s_mov_b32 {sL2E}, 0x3fb8aa3b", f"s_mov_b32 {sHI}, 0xffff0000", f"s_mov_b32 {sEPS6}, 0x358637bd")
        a(f"v_mov_b32 v{vOne}, 1", f"v_mov_b32 v{vF}, 0")
        a("v_and_b32 v12, 3, v0", f"v_lshl_add_u32 v{vFa}, v12, 8, v{vL4}")
        a(f"s_lshl_b32 {sTmp}, {sW}, 8", f"s_add_u32 {sTmp}, {sTmp}, {FREE_OFF}", f"v_add_u32 v{vRa}, {sTmp}, v{vL4}")
        a("v_lshrrev_b32 v13, 5, v0", "v_bfe_u32 v14, v0, 2, 2", "v_lshl_add_u32 v15, v13, 2, v14")
        a("v_bfe_u32 v16, v0, 4, 1", "v_lshlrev_b32 v16, 5, v16", "v_lshl_add_u32 v16, v12, 3, v16")
        a(f"v_lshl_add_u32 v{vH}, v15, 6, v16")
        a("v_lshl_add_u32 v17, v15, 7, v16", "v_bfe_u32 v18, v0, 3, 1", f"v_lshl_add_u32 v{vA0}, v18, 6, v17", f"v_xor_b32 v{vA1}, 64, v{vA0}")
        a(f"v_lshl_add_u32 v{vFl}, v13, 30, v{vL4}")
        a("v_and_b32 v14, 31, v0", "v_lshlrev_b32 v15, 3, v13", "v_sub_u32 v15, v14, v15")
        a("v_and_b32 v16, 1, v15", "v_lshlrev_b32 v16, 4, v16", "v_mov_b32 v17, 0x3f80", "v_lshlrev_b32 v16, v16, v17", "v_lshrrev_b32 v15, 1, v15")
        for t in range(8):
            a(f"v_cmp_eq_u32 vcc, {t if t < 4 else t + 4}, v15", f"v_cndmask_b32 v{K0+t}, 0, v16, vcc")
        a("v_bfe_u32 v15, v0, 1, 3", "v_xor_b32 v15, v13, v15", "v_lshlrev_b32 v15, 4, v15", "v_lshl_add_u32 v15, v14, 7, v15")
        a(f"s_lshl_b32 {sTmp}, {sW}, 12", f"s_add_u32 {sTmp}, {sTmp}, {PAGE0}", f"v_add_u32 v{P0}, {sTmp}, v15")
        for s4 in range(1, 4): a(f"v_xor_b32 v{P0+s4}, {s4*32}, v{P0}")
        for s4 in range(4): a(f"v_add_u32 v{P0+4+s4}, 0x10000, v{P0+s4}")
        a(f"s_lshr_b32 {sTmp}, {sW}, 1", f"s_lshl_b32 {sA2}, {sC}, 1", f"s_add_u32 {sA2}, {sA2}, {sTmp}", f"s_mul_i32 {sA2}, {sA2}, 36",
          f"s_add_u32 {sA2}, {sA2}, {sI}", f"s_lshl_b32 {sA2}, {sA2}, 1", f"s_and_b32 {sTmp}, {sW}, 1", f"s_add_u32 {sA2}, {sA2}, {sTmp}")
        a(f"s_lshl_b32 {sFL}, {sA2}, 8", f"s_add_u32 {sFL}, {sFL}, {WS_FLAG:#x}", f"s_lshl_b32 {sA2}, {sA2}, 12", f"s_add_u32 {sA2}, {sA2}, {WS_A2:#x}")
        a("v_mov_b32 v22, 0x3f803f80")
        for i in range(4): a(f"v_mov_b32 v{T0+i}, 0")
    def xphase(self):
        a, cfg = self.a, self.cfg
        for s in range(8):
            assert self.it[2 * s]["page"] == 2 * s and self.it[2 * s + 1]["page"] == 2 * s + 1
            self.check_inline(2 * s + 2)
            if s == 0: self.st("x0")
            for s4 in range(4):
                off = s * 16384
                a(f"ds_read_b128 {vr(X0+16*s+4*s4,4)}, v{P0+s4+(4 if off >= 65536 else 0)} offset:{off & 65535}")
            self.free(s + 1)
            if s == 7:
                self.st("x7")
            for d in range(16):
                x = X0 + 16 * s + d
                a(f"v_dot2_f32_bf16 v{T0+d%2}, v{x}, v22, v{T0+d%2}", f"v_dot2_f32_bf16 v{T0+2+d%2}, v{x}, v{x}, v{T0+2+d%2}")
                if d == 11: self.sample()
        self.check_inline(18)
        for n in range(2):
            self.reads(n, 0); self.reads(n, 1)
        a(f"v_add_f32 v{T0}, v{T0}, v{T0+1}", f"v_add_f32 v{T0+2}, v{T0+2}, v{T0+3}")
        for p in range(2):
            for m in self.unpack(p): a(m)
        a(f"v_mov_b32 v{T0+1}, v{T0}", f"v_mov_b32 v{T0+3}, v{T0+2}")
        a(f"v_permlane32_swap_b32 v{T0}, v{T0+1}", f"v_permlane32_swap_b32 v{T0+2}, v{T0+3}")
        a(f"v_add_f32 v{T0}, v{T0}, v{T0+1}", f"v_add_f32 v{T0+2}, v{T0+2}, v{T0+3}")
        a(f"v_mul_f32 v{T0}, 0x3b000000, v{T0}", f"v_mul_f32 v{T0+2}, 0x3b000000, v{T0+2}")
        a(f"v_fma_f32 v{T0+2}, -v{T0}, v{T0}, v{T0+2}", f"v_max_f32 v{T0+2}, 0, v{T0+2}")
        if cfg.round_ln:
            a(f"v_cvt_pk_bf16_f32 v{T0+1}, v{T0}, v{T0+2}", f"v_and_b32 v{T0+2}, {sHI}, v{T0+1}", f"v_lshlrev_b32 v{T0}, 16, v{T0+1}")
            a(f"v_add_f32 v{T0+2}, 0x3727c5ac, v{T0+2}", f"v_cvt_pk_bf16_f32 v{T0+2}, v{T0+2}, v{T0+2}", f"v_lshlrev_b32 v{T0+2}, 16, v{T0+2}")
            a(f"v_sqrt_f32 v{T0+2}, v{T0+2}", f"v_cvt_pk_bf16_f32 v{T0+2}, v{T0+2}, v{T0+2}", f"v_lshlrev_b32 v{T0+2}, 16, v{T0+2}")
            a(f"v_rcp_f32 v{vR}, v{T0+2}")
        else:
            a(f"v_add_f32 v{T0+2}, 0x3727c5ac, v{T0+2}", f"v_rsq_f32 v{vR}, v{T0+2}")
        a(f"v_mul_f32_e64 v{vNM}, -v{T0}, v{vR}")
        for f in self.f_center(0): a(f)
    def unpack(self, p):
        d = vr(Q0 + 16 * (p % 2), 16)
        return [f"v_mfma_f32_32x32x16_bf16 {d}, {vr(K0,4)}, {vr(X0+8*p,4)}, 0",
                f"v_mfma_f32_32x32x16_bf16 {d}, {vr(K0+4,4)}, {vr(X0+8*p+4,4)}, {d}"]
    def f_center(self, p):
        d = Q0 + 16 * (p % 2); fl = []
        for g in range(0, 16, 4):
            fl += [f"v_fma_f32 v{d+g+i}, v{d+g+i}, v{vR}, v{vNM}" for i in range(4)]
            fl += [f"v_cvt_pk_bf16_f32 v{X0+8*p+g//2+i}, v{d+g+2*i}, v{d+g+2*i+1}" for i in range(2)]
        return fl
    def unit0(self):
        a = self.a
        self.gap = 0
        for p in range(16):
            fl = self.f_center(p + 1) if p + 1 < 16 else []
            up = self.unpack(p + 2) if p + 2 < 16 else None
            for e in range(2):
                n = 2 * p + e; s = self.step(n)
                if up:
                    a(up[e]); self.run_fill(fl, 5)
                a.need(vr(s["buf"], 8))
                for h in range(2):
                    a(s["mf"][h]); self.reads(n + 2, h)
                    self.run_fill(fl, (3 + h) if up else 6)
            assert not fl
    def typeA(self):
        a, cfg = self.a, self.cfg
        ld, chk = self.f_nonce()
        a("s_mov_b32 s82, 0xffff0000", "s_mov_b32 s83, 0", "s_mov_b32 s84, 0", "s_mov_b32 s85, 0xffff", "s_mov_b32 s86, 0", "s_mov_b32 s87, 0xffff0000")
        a(f"s_lshl_b32 {sKV}, {sI}, 2", f"s_add_u32 {sKV}, {sKV}, {sW}", f"s_lshl_b32 {sKV}, {sKV}, 4", f"s_add_u32 {sKV}, {sKV}, {sC}",
          f"s_mul_i32 {sKV}, {sKV}, 1152", f"s_add_u32 {sKV}, {sKV}, {WS_KV:#x}")
        self.xphase(); self.st("u0")
        self.unit0(); self.st("u1")
        sw = lambda b: [f"v_permlane16_swap_b32 v{b+8*k+t}, v{b+8*k+4+t}" for k in range(2) for t in range(4)]
        self.unit(32, 32, [ld] + self.f_phi(P0, 32, K0) + sw(K0) + [chk]); self.st("u2")
        fl = [f"v_cvt_pk_bf16_f32 v{Q0+t}, v{Q0+2*t}, v{Q0+2*t+1}" for t in range(16)]
        fl += [f"v_mov_b32 v{T0+i}, v22" for i in range(4)] + sw(Q0)
        fl += [f"s_lshl_b32 {sTmp}, {sW}, 10", f"v_add_u32 v{T0+4}, {sTmp}, v{vL4}"]
        fl += [f"v_mfma_f32_16x16x32_bf16 {vr(Q0+16+4*h,4)}, {vr(K0+4*h,4)}, {vr(Q0+4*h,4)}, 0" for h in range(4)]
        fl += [f"v_mfma_f32_16x16x32_bf16 {vr(Q0+4*h,4)}, {vr(T0,4)}, {vr(K0+4*h,4)}, 0" for h in range(4)]
        fl += [f"v_and_b32 v{T0+5}, 60, v{vL4}", f"s_lshl_b32 {sTmp}, {sW}, 6", f"v_add_u32 v{T0+5}, {sTmp}, v{T0+5}", f"v_mov_b32 v{T0+6}, 0xff"]
        fl += [f"ds_add_f32 v{vL4}, v{Q0+16+r} offset:{KVR_OFF+r*256}" for r in range(16)]
        fl += [f"v_cndmask_b32 v{Q0}, v{Q0}, v{Q0+4}, {sM1}", f"v_cndmask_b32 v{Q0}, v{Q0}, v{Q0+8}, {sM2}", f"v_cndmask_b32 v{Q0}, v{Q0}, v{Q0+12}, {sM3}"]
        fl += [f"ds_add_f32 v{vL4}, v{Q0} offset:{ZR_OFF}"]
        state = {}
        def mark(): state["s"] = self.nfree + 1
        def smp():
            assert self.nfree >= state["s"]
            a(f"ds_read_b32 v{T0+7}, v{vFa} offset:{FREE_OFF}")
        def chk2():
            L = a.newlabel("Lk"); C = a.newlabel("Lc"); n = state["s"]
            a(f"v_cmp_gt_u32 vcc, {n}, v{T0+7}", f"s_cbranch_vccnz {L}"); a.label(C)
            a.stubs += [f"{L}:", f"    ds_read_b32 v{T0+7}, v{vFa} offset:{FREE_OFF}", f"    s_sub_u32 {sT}, {sT}, 1", "    s_cbranch_scc1 L_end",
                        "    s_waitcnt lgkmcnt(0)", f"    v_cmp_gt_u32 vcc, {n}, v{T0+7}", f"    s_cbranch_vccnz {L}", f"    s_branch {C}"]
        fl += [mark, ("gap", 30), smp, ("gap", 32), chk2]
        fl += [f"ds_read_b32 v{Q0+r}, v{T0+4} offset:{KVR_OFF+r*256}" for r in range(4)] + [f"ds_read_b32 v{Q0+4}, v{T0+5} offset:{ZR_OFF}", ("gap", 37)]
        fl += [f"v_bfi_b32 v{Q0+r}, v{T0+6}, v{vTag}, v{Q0+r}" for r in range(5)]
        fl += [f"buffer_store_dwordx4 {vr(Q0,4)}, v{vL16}, {srd('ws')}, {sKV} offen sc1", f"buffer_store_dword v{Q0+4}, v{vFl}, {srd('ws')}, {sKV} offen offset:1024 sc1"]
        fl += [lambda: state.__setitem__("pub", self.nfree + 1)]
        self.unit(64, 32, fl); self.st("u3")
        assert state["pub"] <= cfg.s_gather, state
        self.unit(96, 32, self.f_silu(P0, 32, K0)); self.st("u4")
        self.unit(128, 32, self.f_finish(16, "h") + [("gap", 58), lambda: self.sample(OPR_OFF)]); self.st("fin")
        a(f"v_and_b32 v{T0}, 31, v0", f"v_min_u32 v{T0}, 16, v{T0}", f"v_lshrrev_b32 v{T0+1}, 5, v0", f"v_lshlrev_b32 v{T0+1}, 4, v{T0+1}", f"v_lshl_add_u32 v23, v{T0}, 5, v{T0+1}")
        a(f"s_add_u32 s88, {sA2}, {28*8192}")
        self.check_stub(1, OPR_OFF)
        for h in range(4): a(f"ds_read_b128 {vr(WB0+4*h,4)}, v23 offset:{OP_OFF+h*544}")
        self.sample()
        def post(h):
            d = Q0 + 16 * (h % 2)
            fl = [f"v_add_f32 v{d+8}, {sEPS6}, v{d+8}", f"v_rcp_f32 v{d+8}, v{d+8}"]
            fl += [f"v_mul_f32 v{d+i}, v{d+i}, v{d+8}" for i in range(8)]
            fl += [f"v_cvt_pk_bf16_f32 v{K0+4*h+i}, v{d+2*i}, v{d+2*i+1}" for i in range(4)]
            for f in fl: a(f)
            a.e(f"buffer_store_dwordx4 {vr(K0+4*h,4)}, v{vL16}, {srd('ws')}, s88 offen offset:{h*1024} sc1", tag="o")
        for h in range(4):
            for f in self.f_phi(P0 + 8 * h, 8, P0 + 8 * h): a(f)
            a(f"v_mfma_f32_32x32x16_bf16 {vr(Q0+16*(h%2),16)}, {vr(WB0+4*h,4)}, {vr(P0+8*h,4)}, 0")
            if h >= 1: post(h - 1)
        post(3)
        self.flag(16, "h")
        self.st("p2")
        self.phase2({8: lambda: self.flag(28, "o")})
    def typeF(self):
        a, cfg = self.a, self.cfg
        ld, chk = self.f_nonce()
        self.xphase(); self.st("u0")
        self.unit0(); self.st("u1")
        self.unit(32, 32, [ld] + self.f_silu(P0, 32, K0) + [chk]); self.st("u2")
        self.unit(64, 32, self.f_finish(0, "h1")); self.st("u3")
        fl = self.f_silu(P0, 32, K0)
        fl.insert(66, lambda: self.flag(0, "h1"))
        self.unit(96, 32, fl); self.st("u4")
        self.unit(128, 16, self.f_finish(8, "h2"))
        pre = [f"s_lshr_b32 s88, {sI}, 1", f"s_sub_u32 s88, s88, {sI}", "s_add_u32 s88, s88, 24", f"s_and_b32 s89, {sI}, 1",
               "s_lshl_b32 s90, s88, 13", "s_lshl_b32 s91, s89, 11", "s_add_u32 s90, s90, s91", f"s_add_u32 s90, s90, {sA2}",
               "s_lshl_b32 s88, s88, 9", "s_lshl_b32 s89, s89, 7", "s_add_u32 s88, s88, s89", f"s_add_u32 s89, s88, {sFL}"]
        self.unit(144, 16, self.f_silu(P0, 16, None)); self.st("fin")
        for f in pre: a(f)
        self.sample()
        for k in range(2):
            for i in range(8): a(f"v_mul_f32 v{P0+8*k+i}, v{P0+8*k+i}, v{P0+16+8*k+i}")
            for i in range(4): a(f"v_cvt_pk_bf16_f32 v{Q0+4*k+i}, v{P0+8*k+2*i}, v{P0+8*k+2*i+1}")
            a.e(f"buffer_store_dwordx4 {vr(Q0+4*k,4)}, v{vL16}, {srd('ws')}, s90 offen offset:{k*1024} sc1", tag="h3")
        def f3():
            a.wait_tag("h3")
            a(f"buffer_store_dword v{vTag}, v{vFl}, {srd('ws')}, s89 offen sc1")
        self.st("p2")
        self.phase2({3: lambda: self.flag(8, "h2"), 8: f3})
    def phase2(self, hooks):
        a, cfg = self.a, self.cfg
        B0 = 128; ACC = 192; vW, vB = 208, 212; vO = 216
        a(f"s_and_b32 s92, {sW}, 1", f"s_lshr_b32 s93, {sW}, 1")
        a("v_lshrrev_b32 v220, 5, v0", "v_bfe_u32 v221, v0, 2, 2", "v_lshl_add_u32 v221, v220, 2, v221")
        a("v_bfe_u32 v222, v0, 4, 1", "v_lshlrev_b32 v222, 5, v222", "v_and_b32 v223, 1, v0", "v_lshl_add_u32 v222, v223, 4, v222",
          "v_bfe_u32 v223, v0, 1, 1", "v_lshl_add_u32 v222, v223, 3, v222", "v_lshl_add_u32 v222, v221, 7, v222")
        a("v_bfe_u32 v223, v0, 3, 1", "v_xor_b32 v223, s93, v223", f"v_lshl_add_u32 v{vW}, v223, 6, v222")
        a("s_lshl_b32 s94, s92, 12", f"v_add_u32 v{vB}, s94, v{vL16}")
        for k in (1, 2): a(f"v_add_u32 v{vW+k}, {k*0x10000:#x}, v{vW}", f"v_add_u32 v{vB+k}, {k*0x10000:#x}, v{vB}")
        xr = self.find(k="xres")
        a("v_and_b32 v221, 31, v0", "v_bfe_u32 v222, v0, 1, 3", "v_xor_b32 v222, v220, v222", "s_lshl_b32 s95, s93, 2", "v_xor_b32 v222, s95, v222",
          "v_lshlrev_b32 v222, 4, v222", "v_lshl_add_u32 v222, v221, 7, v222", f"s_add_u32 s94, s94, {xr['addr']}", "v_add_u32 v222, s94, v222", "v_xor_b32 v223, 32, v222")
        a(f"s_lshl_b32 s94, {sTB}, 1", "s_add_u32 s94, s94, s92", "s_lshl_b32 s94, s94, 15", f"s_lshl_b32 s95, {sCB}, 1", "s_add_u32 s95, s95, s93",
          "s_lshl_b32 s95, s95, 6", "s_add_u32 s94, s94, s95", "v_lshlrev_b32 v220, 4, v220", f"v_lshl_add_u32 v{vO}, v221, 10, v220")
        def rds(u):
            w, x = self.find(k="w2", u=u), self.find(k="a2", u=u)
            out = []
            for s in range(4):
                b = B0 + 32 * (u % 2) + 8 * s
                ad = x["addr"] + s * 1024
                out.append(f"ds_read_b128 {vr(b,4)}, v{vB+(ad>>16)} offset:{ad&65535}")
                for t in range(2):
                    ad = w["addr"] + s * 2048 + t * 1024
                    out.append(f"ds_read_b64_tr_b16 {vr(b+4+2*t,2)}, v{vW+(ad>>16)} offset:{ad&65535}")
            return out, max(w["n"], x["n"]) + 1
        r, n = rds(0)
        self.check_inline(max(n, xr["n"] + 1))
        a("ds_read_b128 v[224:227], v222", "ds_read_b128 v[228:231], v223")
        self.free(49)
        for x in r[:6]: a(x)
        for i in range(8):
            a(f"v_lshlrev_b32 v{ACC+2*i}, 16, v{224+i}", f"v_and_b32 v{ACC+2*i+1}, {sHI}, v{224+i}")
        for x in r[6:]: a(x)
        self.free(50); self.sample()
        acc = vr(ACC, 16)
        for u in range(36):
            if u in hooks: hooks[u]()
            r = []
            if u + 1 < 36:
                r, n = rds(u + 1)
                if n > self.checked: self.check_inline(n)
                if u + 1 in (8, 24, 35): self.st(f"c{u+1}")
            for s in range(4):
                b = B0 + 32 * (u % 2) + 8 * s
                a(f"v_mfma_f32_32x32x16_bf16 {acc}, {vr(b+4,4)}, {vr(b,4)}, {acc}")
                for x in r[4 * s:4 * s + 4]: a(x)
                if s == 2 and r:
                    self.free(51 + u); self.sample()
        for i in range(8): a(f"v_cvt_pk_bf16_f32 v{224+i}, v{ACC+2*i}, v{ACC+2*i+1}")
        a(f"buffer_store_dwordx4 v[224:227], v{vO}, {srd('out')}, s94 offen", f"buffer_store_dwordx4 v[228:231], v{vO}, {srd('out')}, s94 offen offset:32")
        if cfg.diag:
            a("s_waitcnt vmcnt(0)"); self.st("end")
        self.st.flush(12, 13)
        a("s_endpgm")

class Loader:
    vX, vQ, vG, vD, vHh, vAa = 2, 4, 6, 8, 10, 12
    vFr, vFra, vC, vFa, vTag, vP, vPo, vPo2 = 13, 14, 15, 16, 17, 18, 19, 20
    def __init__(self, a, cfg, items, typ, events):
        self.a, self.cfg, self.it, self.typ = a, cfg, items, typ
        self.req = {0: 0}; m = 0
        for k, n in events:
            if k == "check": m = max(m, n)
            else: self.req[n] = m
        self.sig = 0; self.chk = 0; self.issued = 0
        self.st = Stamps(a, cfg, list(range(84, 102, 2)) + list(range(8, 16, 2)))
    def signal(self, n):
        if n <= self.sig: return
        a = self.a
        a(f"v_mov_b32 v{self.vC}, {n}")
        a.wait_tag(n - 1)
        a(f"ds_max_u32 v{self.vFa}, v{self.vC}")
        self.sig = n
    def wait_free(self, f):
        if f <= self.chk: return
        a = self.a
        assert self.req[f] <= self.issued, ("deadlock", f, self.req[f], self.issued)
        self.signal(self.req[f])
        L = a.newlabel("Lf"); a.label(L)
        a("s_waitcnt lgkmcnt(0)", f"v_cmp_gt_u32 vcc, {f}, v{self.vFr}", f"ds_read_b32 v{self.vFr}, v{self.vFra}")
        timeout(a)
        a(f"s_cbranch_vccnz {L}")
        self.chk = f
    def slow_poll(self, load, cmp):
        a = self.a
        C = a.newlabel("Lc"); L = a.newlabel("Lp")
        a(cmp, f"s_cbranch_vccz {C}")
        a.raw(f"    v_mov_b32 v{self.vC}, {self.issued}"); a.raw("    s_waitcnt vmcnt(0)"); a.raw(f"    ds_max_u32 v{self.vFa}, v{self.vC}")
        a.label(L)
        a.raw("    " + load); timeout(a); a.raw("    s_waitcnt vmcnt(0)"); a.raw("    " + cmp); a.raw(f"    s_cbranch_vccnz {L}")
        a.label(C)
    def prologue(self):
        a = self.a
        a("v_and_b32 v0, 63, v0", f"s_sub_u32 {sW}, {sW}, 4", f"s_lshl_b32 s77, {sW}, 11")
        a("v_lshrrev_b32 v21, 3, v0", f"s_lshl_b32 s78, {sW}, 4", "v_add_u32 v21, s78, v21")
        a("v_and_b32 v22, 7, v0", "v_lshrrev_b32 v23, 4, v0", "v_xor_b32 v24, v22, v23", "v_lshlrev_b32 v24, 4, v24")
        a(f"v_lshl_add_u32 v{self.vX}, v21, 10, v24", f"v_xor_b32 v{self.vX+1}, 64, v{self.vX}", f"v_add_u32 v{self.vX+1}, {8*1024-1024}, v{self.vX+1}")
        a(f"s_lshl_b32 s79, {sC}, 17")
        a("s_waitcnt lgkmcnt(0)")
        mk_srd(a, "x")
    def prologue2(self):
        a = self.a
        for n in ("qkv", "gate", "up", "down", "wo", "ws", "dbg"):
            if n == "qkv" and self.typ == "F": continue
            mk_srd(a, n)
        a("v_and_b32 v23, 1, v23", "v_lshlrev_b32 v23, 2, v23", "v_xor_b32 v24, v22, v23", "v_lshlrev_b32 v24, 4, v24")
        for reg, st in ((self.vQ, 3072), (self.vG, 3584), (self.vD, 1024)):
            a(f"v_mul_u32_u24 v25, {st}, v21", f"v_add_u32 v{reg}, v25, v24", f"v_add_u32 v{reg+1}, {8*st-1024}, v{reg}")
        a("v_lshrrev_b32 v25, 2, v0", f"s_lshl_b32 s78, {sW}, 5", "v_add_u32 v25, s78, v25", "v_mul_u32_u24 v25, 3584, v25", "v_and_b32 v26, 3, v0",
          f"v_lshl_add_u32 v{self.vHh}, v26, 4, v25", f"v_add_u32 v{self.vHh+1}, {16*3584-1024}, v{self.vHh}")
        a("v_lshlrev_b32 v27, 4, v0", f"v_add_u32 v{self.vAa}, s77, v27")
        a("v_lshlrev_b32 v28, 2, v0", f"v_lshl_add_u32 v{self.vFra}, v26, 8, v28", f"v_add_u32 v{self.vFra}, {FREE_OFF}, v{self.vFra}")
        a(f"s_lshl_b32 s78, {sW}, 8", f"v_add_u32 v{self.vFa}, s78, v28", f"v_mov_b32 v{self.vFr}, 0")
        a("v_and_b32 v25, 7, v0", f"s_and_b32 s78, {sW}, 2", "s_lshl_b32 s78, s78, 7", f"v_lshl_add_u32 v{self.vPo}, v25, 9, s78")
        a(f"s_lshl_b32 s78, {sW}, 7", f"v_lshl_add_u32 v{self.vPo2}, v26, 9, s78")
        a(f"s_lshl_b32 s80, {sI}, 7")
        a(f"s_lshl_b32 s81, {sCB}, 7")
        a(f"s_mul_i32 s82, {sTB}, {36*8192}", f"s_add_u32 s82, s82, {WS_A2:#x}")
        a(f"s_mul_i32 s83, {sTB}, {36*512}", f"s_add_u32 s83, s83, {WS_FLAG:#x}")
    def item(self, x):
        a = self.a; k = x["k"]; aux = ""
        self.wait_free(x["need"])
        if k == "x": s, v, base, off = "x", self.vX, "s79", x["h"] * 65536 + x["s"] * 128
        elif k == "xres":
            a(f"s_lshl_b32 s79, {sTB}, 16", "s_add_u32 s79, s79, s81")
            s, v, base, off = "x", self.vX, "s79", 0
        elif k == "w1":
            u, i = x["u"], x["i"]
            if self.typ == "A":
                s, v, st, col = [("qkv", self.vQ, 3072, 1024), ("qkv", self.vQ, 3072, 2048), ("gate", self.vG, 3584, 16 * 128),
                                 ("up", self.vG, 3584, 16 * 128), ("qkv", self.vQ, 3072, 0)][u]
                base, off = "s80", i * 64 * st + col
            elif u < 4:
                s, v, base, off = ("gate", "up")[u % 2], self.vG, "s80", i * 64 * 3584 + (u // 2) * 8 * 128
            else:
                if i == 0: a(f"s_lshl_b32 s79, {sI}, 6")
                s, v, base, off = ("gate", "up")[i // 4], self.vHh, "s79", (i % 4) * 128 * 3584 + 24 * 128
        elif k == "w2":
            u = x["u"]
            s, v, base, off = ("down", self.vD, "s81", u * 65536) if u < 28 else ("wo", self.vD, "s81", (u - 28) * 65536)
        elif k == "a2":
            s, v, base, off, aux = "ws", self.vAa, "s82", x["u"] * 8192, " sc1"
        a(f"s_add_u32 m0, s77, {x['addr']}", f"s_add_u32 s78, {base}, {off}")
        a.e(f"buffer_load_dwordx4 v{v}, {srd(s)}, s78 offen{aux} lds", tag=x["n"])
        a.e(f"buffer_load_dwordx4 v{v if k == 'a2' else v+1}, {srd(s)}, s78 offen offset:1024{aux} lds", tag=x["n"])
        self.issued = x["n"] + 1
    def gather(self):
        a = self.a; G = 64; Z = 128; S = 32; CK = 36
        self.wait_free(self.cfg.s_gather)
        self.st("g0")
        a(f"s_lshl_b32 s76, {sI}, 2", f"s_add_u32 s76, s76, {sW}", f"s_mul_i32 s76, s76, {16*1152}", f"s_add_u32 s76, s76, {WS_KV:#x}")
        a("v_lshrrev_b32 v40, 4, v0", "v_and_b32 v41, 15, v0", "v_mul_u32_u24 v42, 1152, v40", "v_lshl_add_u32 v42, v41, 2, v42")
        self.signal(self.issued)
        L = a.newlabel("Lg"); a.label(L)
        def ld(c):
            a(f"s_add_u32 s78, s76, {c*1152}", f"buffer_load_dwordx4 {vr(G+4*c,4)}, v27, {srd('ws')}, s78 offen sc1")
        for t in range(4):
            a(f"s_add_u32 s78, s76, {t*4*1152+1024}", f"buffer_load_dword v{Z+t}, v42, {srd('ws')}, s78 offen sc1")
        for c in range(8): ld(c)
        a(f"v_xor_b32 v{CK}, v{self.vTag}, v{Z}")
        for t in range(1, 4): a(f"v_bitop3_b32 v{CK}, v{CK}, v{Z+t}, v{self.vTag} bitop3:0xf6", f"v_add_f32 v{Z}, v{Z}, v{Z+t}")
        for c in range(16):
            for r in range(4):
                a(f"v_bitop3_b32 v{CK}, v{CK}, v{G+4*c+r}, v{self.vTag} bitop3:0xf6")
                if c == 1: a(f"v_add_f32 v{S+r}, v{G+r}, v{G+4+r}")
                elif c > 1: a(f"v_add_f32 v{S+r}, v{S+r}, v{G+4*c+r}")
            if c + 8 < 16: ld(c + 8)
        a(f"v_and_b32 v{CK}, 0xff, v{CK}", f"v_cmp_ne_u32 vcc, 0, v{CK}")
        timeout(a)
        a(f"s_cbranch_vccnz {L}")
        a(f"v_mov_b32 v{Z+1}, v{Z}", f"v_cvt_pk_bf16_f32 v{S}, v{S}, v{S+1}", f"v_cvt_pk_bf16_f32 v{S+1}, v{S+2}, v{S+3}")
        a(f"v_permlane32_swap_b32 v{Z}, v{Z+1}", f"v_add_f32 v{Z}, v{Z}, v{Z+1}", f"v_mov_b32 v{Z+1}, v{Z}")
        a("v_and_b32 v43, 1, v40", "v_lshlrev_b32 v43, 4, v43", "v_lshl_add_u32 v43, v41, 5, v43", "v_lshrrev_b32 v44, 1, v40", "v_lshl_add_u32 v43, v44, 3, v43")
        a(f"s_mul_i32 s78, {sW}, 544", "v_add_u32 v43, s78, v43")
        a(f"v_permlane16_swap_b32 v{Z}, v{Z+1}", f"v_add_f32 v{Z}, v{Z}, v{Z+1}", f"v_cvt_pk_bf16_f32 v{Z}, v{Z}, v{Z}")
        a("v_bfe_u32 v44, v41, 2, 1", "v_lshlrev_b32 v44, 4, v44", "v_lshrrev_b32 v45, 3, v41", "v_lshl_add_u32 v44, v45, 3, v44",
          "v_and_b32 v45, 3, v41", "v_lshl_add_u32 v44, v45, 1, v44", "v_add_u32 v44, s78, v44", "v_mov_b32 v45, 1")
        a(f"ds_write_b64 v43, {vr(S,2)} offset:{OP_OFF}", f"ds_write_b16 v44, v{Z} offset:{OP_OFF+512}", f"ds_write_b32 v{self.vFa}, v45 offset:{OPR_OFF}")
        self.st("g1")
    def run(self):
        a, cfg = self.a, self.cfg
        self.st("start")
        stages = {0: (0, self.vPo), 8: (8, self.vPo), 16: (16, self.vPo), 24: (24, self.vPo2), 28: (28, self.vPo)}
        first = {x["u"]: x["n"] for x in self.it if x["k"] == "a2" and x["u"] in stages}
        issue_at = {max(n - cfg.lag - 1, 0): u for u, n in first.items()}
        pload = lambda u: f"buffer_load_dword v{self.vP}, v{stages[u][1]}, {srd('ws')}, s76 offen sc1"
        nload = f"buffer_load_dword v{self.vTag}, off, {srd('dbg')}, 0 sc1"
        gathered = self.typ != "A"
        pend = None
        for x in self.it:
            n = x["n"]
            if n == cfg.lag:
                self.prologue2(); a("s_barrier")
            if n == 36: a(nload)
            if n == 42: self.slow_poll(nload, f"v_cmp_eq_u32 vcc, 0, v{self.vTag}")
            if not gathered and n >= 56 and (x["need"] >= cfg.s_gather or n in issue_at):
                self.gather(); gathered = True
            if x["k"] == "a2" and x["u"] in stages:
                u = x["u"]
                if pend != u:
                    a(f"s_add_u32 s76, s83, {u*512}", pload(u))
                self.slow_poll(pload(u), f"v_cmp_ne_u32 vcc, v{self.vTag}, v{self.vP}")
                pend = None
                self.st(f"f{u}")
            if n in issue_at and pend is None:
                pend = issue_at[n]
                a(f"s_add_u32 s76, s83, {pend*512}", pload(pend))
            self.item(x)
            if n >= cfg.lag: self.signal(n + 1 - cfg.lag)
        for n in range(self.sig + 1, len(self.it) + 1): self.signal(n)
        self.st("end")
        if cfg.diag: a(f"s_add_u32 {sW}, {sW}, 4")
        self.st.flush(30, 31)
        a("s_endpgm")

def generate(cfg):
    items = make_items(cfg)
    a = Asm()
    a("s_cmp_ge_u32 s2, 256", "s_cbranch_scc1 L_end")
    a("s_load_dwordx16 s[16:31], s[0:1], 0", "s_load_dwordx4 s[32:35], s[0:1], 64")
    a("v_lshrrev_b32 v1, 6, v0", f"v_readfirstlane_b32 {sW}, v1")
    a("s_and_b32 s8, s2, 1", "s_bfe_u32 s9, s2, 0x20001", "s_bfe_u32 s10, s2, 0x30003", "s_lshr_b32 s11, s2, 6")
    a(f"s_lshl_b32 {sC}, s8, 3", f"s_add_u32 {sC}, {sC}, s10")
    a("s_and_b32 s12, s11, 1", f"s_lshl_b32 {sI}, s9, 1", f"s_add_u32 {sI}, {sI}, s12")
    a(f"s_lshl_b32 {sTB}, s8, 2", f"s_add_u32 {sTB}, {sTB}, s9", f"s_lshl_b32 {sTB}, {sTB}, 2", f"s_add_u32 {sTB}, {sTB}, s11", f"s_mov_b32 {sCB}, s10")
    a(f"s_mov_b32 {sT}, {cfg.timeout}")
    a(f"s_cmp_lt_u32 {sW}, 4", "s_cbranch_scc1 L_compute")
    info = {}
    progs = {}
    for typ in "AF":
        b = Asm(); b.uid = 1000 if typ == "A" else 2000
        c = Compute(b, cfg, items, typ)
        (c.typeA if typ == "A" else c.typeF)()
        progs[typ] = (b, c); info["c" + typ] = c.st.names
    ld0 = Loader(a, cfg, items, "A", progs["A"][1].events)
    ld0.prologue()
    a("s_cmp_ge_u32 s2, 128", "s_cbranch_scc1 L_loadF")
    for typ in "AF":
        b = Asm(); b.uid = 3000 if typ == "A" else 4000
        l = Loader(b, cfg, items, typ, progs[typ][1].events); l.run()
        a.label("L_load" + typ); a.out += b.out; info["l" + typ] = l.st.names
        print(f"loader {typ}: {b.count} instrs, {b.nops} nop states", file=sys.stderr)
    a.label("L_end"); a.raw("    s_endpgm")
    a.label("L_compute"); a.reset()
    c0 = Compute(a, cfg, items, "A"); c0.prologue()
    a("s_cmp_ge_u32 s2, 128", "s_cbranch_scc1 L_compF")
    for typ in "AF":
        b = progs[typ][0]
        a.label("L_comp" + typ); a.out += b.out + b.stubs
        print(f"compute {typ}: {b.count} instrs, {b.nops} nop states", file=sys.stderr)
    head = open("cdna_kernels/" + NAME + ".s.ref").read().split("; Override launch")[0]
    txt = head + f"; @launch grid=(256,1,1) block=(512,1,1) lds={LDS_BYTES}\n"
    txt += f""".amdgcn_target "amdgcn-amd-amdhsa--gfx950"
.text
.globl {NAME}_kernel
.p2align 8
.type {NAME}_kernel,@function
{NAME}_kernel:
""" + a.text() + f"""
.section .rodata,"a"
.p2align 6
.amdhsa_kernel {NAME}_kernel
  .amdhsa_next_free_vgpr 256
  .amdhsa_next_free_sgpr 102
  .amdhsa_accum_offset 256
  .amdhsa_group_segment_fixed_size 0
  .amdhsa_kernarg_size 80
  .amdhsa_user_sgpr_count 2
  .amdhsa_user_sgpr_kernarg_segment_ptr 1
  .amdhsa_system_sgpr_workgroup_id_x 1
.end_amdhsa_kernel
"""
    return txt, info

if __name__ == "__main__":
    cfg = Cfg()
    out = sys.argv[1]
    for kv in sys.argv[2:]:
        k, v = kv.split("="); setattr(cfg, k, type(getattr(Cfg, k))(int(v)))
    txt, info = generate(cfg)
    open(out, "w").write(txt)
    info["mode"] = cfg.diag
    import json; json.dump(info, open(out + ".json", "w"))
```

```python
import sys, re
NAME = "parallel_sum__linear_attn_block__swiglu_ffn__prompt"
base = open("cdna_kernels/" + NAME + ".s").read()
def kd(n, vg=32): return f""".p2align 6
.amdhsa_kernel {n}
  .amdhsa_next_free_vgpr {vg}
  .amdhsa_next_free_sgpr 102
  .amdhsa_accum_offset {vg}
  .amdhsa_group_segment_fixed_size 0
  .amdhsa_kernarg_size 80
  .amdhsa_user_sgpr_count 2
  .amdhsa_user_sgpr_kernarg_segment_ptr 1
  .amdhsa_system_sgpr_workgroup_id_x 1
.end_amdhsa_kernel
"""
def mk(out, order, body, grid=1, block=64):
    main = f"; @launch kernel={NAME}_kernel grid=(256,1,1) block=(512,1,1) lds=163840"
    pr = f"; @launch kernel=probe_kernel grid=({grid},1,1) block=({block},1,1) lds=0"
    lines = "\n".join(main if c == "M" else pr for c in order)
    s = re.sub(r"; @launch grid.*", lines, base)
    code = f".p2align 8\n.type probe_kernel,@function\nprobe_kernel:\n{body}\n    s_endpgm\n"
    s = s.replace('.section .rodata,"a"', code + '.section .rodata,"a"') + kd("probe_kernel")
    open(out, "w").write(s)
def chase(ptr_off, n, stride, size):
    return f"""    s_cmp_ge_u32 s2, 1
    s_cbranch_scc1 P_end
    s_load_dwordx2 s[4:5], s[0:1], {ptr_off}
    s_waitcnt lgkmcnt(0)
    s_mov_b32 s6, {size}
    s_mov_b32 s7, 0x20000
    s_mov_b32 s8, 0
    v_mov_b32 v1, 0
P_loop:
    buffer_load_dword v2, v1, s[4:7], 0 offen
    s_waitcnt vmcnt(0)
    v_add_u32 v1, {stride}, v1
    s_add_u32 s8, s8, 1
    s_cmp_lt_u32 s8, {n}
    s_cbranch_scc1 P_loop
P_end:"""
mk("p_list.s", "M", "")
mk("p_empty.s", "PM", "")
mk("p_empty2.s", "PPPPPM", "")
mk("p_chase_bx.s", "PM", chase(24, 100, 20608, 2097152))
mk("p_chase_ws.s", "PM", chase(72, 100, 20608 , 0x10000000).replace("v_mov_b32 v1, 0", "v_mov_b32 v1, 0x4000000"))
mk("p_chase_same.s", "PM", chase(24, 100, 0, 2097152).replace("0 offen", "0 offen sc1"))
def bw(aux, n=9):
    L = f"""    s_cmp_ge_u32 s2, 256
    s_cbranch_scc1 P_end
    s_load_dwordx2 s[4:5], s[0:1], 72
    s_waitcnt lgkmcnt(0)
    s_mov_b32 s6, 0x10000000
    s_mov_b32 s7, 0x20000
    s_mul_i32 s8, s2, {n*8192}
    s_add_u32 s8, s8, 0x4000000
    v_lshlrev_b32 v1, 4, v0
"""
    for i in range(n):
        L += f"    buffer_load_dwordx4 v[{4+4*(i%6)}:{7+4*(i%6)}], v1, s[4:7], s8 offen {aux}\n    s_add_u32 s8, s8, 8192\n"
    return L + "    s_waitcnt vmcnt(0)\nP_end:"
mk("p_bw.s", "PM", bw(""), 256, 512)
mk("p_bwnt.s", "PM", bw("nt"), 256, 512)
mk("p_bw36.s", "PM", bw("", 36), 256, 512)
mk("p_bw36nt.s", "PM", bw("nt", 36), 256, 512)
mk("p_e256.s", "PM", "", 256, 512)
code = f"""    s_cmp_ge_u32 s2, 256
    s_cbranch_scc1 P_end
    s_getpc_b64 s[4:5]
P_pc:
    s_sub_u32 s4, s4, P_pc-{NAME}_kernel
    s_subb_u32 s5, s5, 0
    s_lshr_b32 s8, s2, 3
    s_mul_i32 s8, s8, 19*128
    v_min_u32 v1, 18, v0
    v_lshlrev_b32 v1, 7, v1
    v_add_u32 v1, s8, v1
    v_min_u32 v1, P_pc-{NAME}_kernel, v1
    global_load_dword v2, v1, s[4:5]
    s_waitcnt vmcnt(0)
P_end:"""
mk("p_code.s", "PM", code, 256, 64)
```

```python
import sys, re, json
NAME = "parallel_sum__linear_attn_block__swiglu_ffn__prompt"
from probe import kd
def mk(src, out, a, b, mult=10):
    base = open(src).read()
    lds = re.search(r"lds=(\d+)", base).group(1)
    lines = f"; @launch kernel={NAME}_kernel grid=(256,1,1) block=(512,1,1) lds={lds}\n; @launch kernel=probe_kernel grid=(1,1,1) block=(64,1,1) lds=0"
    s = re.sub(r"; @launch grid.*", lines, base)
    off = lambda t: 0x1000000 + (t[0] * 8 + t[1]) * 128 + t[2] * 4
    body = f"""    s_memrealtime s[10:11]
    s_cmp_ge_u32 s2, 1
    s_cbranch_scc1 P_end
    s_load_dwordx2 s[4:5], s[0:1], 72
    s_waitcnt lgkmcnt(0)
    s_mov_b32 s6, 0x2000000
    s_mov_b32 s7, 0x20000
    s_mov_b32 s8, {off(a) if a else 0}
    s_mov_b32 s9, {off(b)}
    buffer_load_dword v2, off, s[4:7], s8
    buffer_load_dword v3, off, s[4:7], s9
    s_waitcnt vmcnt(0)
    v_readfirstlane_b32 s12, v2
    v_readfirstlane_b32 s13, v3
    {"" if a else "s_mov_b32 s12, s10"}
    s_sub_u32 s12, s12, s13
    s_add_u32 s12, s12, 200
    s_min_u32 s12, s12, 20000
    s_mul_i32 s12, s12, {mult}
P_loop:
    s_memrealtime s[14:15]
    s_waitcnt lgkmcnt(0)
    s_sub_u32 s14, s14, s10
    s_cmp_lt_u32 s14, s12
    s_cbranch_scc1 P_loop
P_end:"""
    code = f".p2align 8\n.type probe_kernel,@function\nprobe_kernel:\n{body}\n    s_endpgm\n"
    s = s.replace('.section .rodata,"a"', code + '.section .rodata,"a"') + kd("probe_kernel")
    open(out, "w").write(s)
if __name__ == "__main__":
    src = sys.argv[1]
    info = json.load(open(src + ".json"))
    def ref(t):
        if t == "now": return None
        key, wg, name = t.split(".")
        return (int(wg), 4 if key[0] == "l" else 0, info[key].index(name))
    mk(src, "q0.s", (0, 4, 0), (0, 4, 0), 10)
    for i, spec in enumerate(sys.argv[2:]):
        a, b = spec.split("-")
        mk(src, f"q{i+1}.s", ref(a), ref(b))
```

```python
import sys
from asmb import Asm

NAME = "parallel_sum__linear_attn_block__swiglu_ffn__prompt"

class Cfg:
    diag = 0
    lead = 5
    c_x = 200
    c_1 = 170
    c_2 = 160
    lat = 700
    n_pre = 7
    p2_bar = 4
    D = 6
    timeout = 400000
    round_ln = 1
    rot = 1
    fin_rate = 20
    h2_flag = 70
    hA_gap = 112
    late_at = 5
    g_at = 112
    h1_flag = 30
    nofill = 0
    xq3 = 70
    xq4 = 50
    c_iss = 145
    gprio = 1
    xlead = 4
    pf_tlb = 0
    nstage = 17
    early24 = 0
    lat0 = 1900
    xscale = 140
    uscale = 104
    q_t1 = 4
    stage_from = 30
    pf1 = 24
    pf2 = 24
    pf_cost = 2300
    bdiag = 0
    cprio = 0
    lprio = 0
    pf_code = 1
    rot2 = 2

ZR_OFF, OP_OFF = 0, 1024
LDS_BYTES = 163840
WS_FLAG, WS_KV, WS_A2, WS_DIAG, WS_SIZE = 0x1000, 0x100000, 0x200000, 0x1000000, 0x2000000
sC, sI, sTB, sCB, sW, sROT = "s4", "s5", "s6", "s7", "s3", "s36"
sT = "s37"
SRD = dict(x=40, qkv=44, gate=48, up=52, down=56, wo=60, ws=64, out=68, dbg=72)
PTR = dict(x=16, qkv=18, wo=20, gate=24, up=26, down=28, out=30, dbg=32, ws=34)
SIZE = dict(x=2097152, qkv=1572864, wo=524288, gate=1835008, up=1835008, down=1835008, out=2097152, dbg=256, ws=WS_SIZE)
def srd(n): return f"s[{SRD[n]}:{SRD[n]+3}]"
def mk_srd(a, n):
    b = SRD[n]
    a(f"s_mov_b32 s{b}, s{PTR[n]}", f"s_mov_b32 s{b+1}, s{PTR[n]+1}", f"s_mov_b32 s{b+2}, {SIZE[n]:#x}", f"s_mov_b32 s{b+3}, 0x20000")
def vr(b, n=1): return f"v{b}" if n == 1 else f"v[{b}:{b+n-1}]"
M16 = lambda d, x, y, c: f"v_mfma_f32_16x16x32_bf16 {vr(d,4)}, {vr(x,4)}, {vr(y,4)}, {c if isinstance(c, str) else vr(c,4)}"

SCR_NEED, SCR_REL = 17 + 14, 17 + 20
STAGES = (0, 8, 16, 24, 28)
XORD = [(0, 0), (0, 1), (1, 0), (1, 1)] + [(0, s) for s in range(2, 8)] + [(1, s) for s in range(2, 8)]
def make_items(cfg, typ):
    it = []
    for i, (t, s) in enumerate(XORD): it.append(dict(k="x", s=s, t=t, rel=i + 1))
    for u in range(5):
        for i in range(8): it.append(dict(k="w1", u=u, i=i, rel=17 + 8 * u + i))
    for u in range(36): it.append(dict(k="w2", u=u, rel=57 + u))
    free = [(0, p) for p in range(1, 20)] + ([(0, 20)] if typ == "F" else [])
    scr = []
    for n, x in enumerate(it):
        free.sort()
        while typ == "A" and len(scr) < 2 and free[0][0] >= SCR_NEED - 1:
            need, p = free.pop(0); assert need <= SCR_NEED
            scr.append(8192 * p); free.append((SCR_REL, p)); free.sort()
        need, p = free.pop(0)
        assert need < x["rel"], (n, x, need)
        x["need"] = need; x["n"] = n; x["addr"] = 8192 * (p % 20)
        free.append((x["rel"], p))
    return it, scr

class Stamps:
    def __init__(self, a, cfg, regs):
        self.a, self.on, self.regs, self.n, self.names = a, cfg.diag, regs, 0, []
    def __call__(self, name):
        if not self.on: return
        r = self.regs[self.n]
        self.a.raw(f"    {'s_memrealtime' if self.on == 1 else 's_memtime'} s[{r}:{r+1}]")
        self.n += 1; self.names.append(name)
    def flush(self, vt, vz):
        if not self.on: return
        a = self.a
        a("s_waitcnt lgkmcnt(0)")
        a("s_lshl_b32 s76, s2, 3", f"s_add_u32 s76, s76, {sW}", "s_lshl_b32 s76, s76, 7", f"s_add_u32 s76, s76, {WS_DIAG:#x}")
        a(f"v_mov_b32 v{vz}, 0", "s_mov_b64 exec, 1")
        for i in range(self.n):
            a(f"v_mov_b32 v{vt+i}, s{self.regs[i]}")
            a(f"buffer_store_dword v{vt+i}, v{vz}, {srd('ws')}, s76 offen offset:{4*i}")

def timeout(a):
    a.raw(f"    s_sub_u32 {sT}, {sT}, 1")
    a.raw("    s_cbranch_scc1 L_end")

X0, P0, Q0, K0, WB0 = 128, 64, 96, 48, 24
vA, vH, vL16, vR, vNM, vTag, vFl, T0, ONES = 1, 5, 7, 8, 9, 10, 11, 12, 20
sNL2E, sHI, sL2E, sEPS6 = "s38", "s39", "s76", "s77"
sA2, sFL, sKV, sTmp = "s78", "s79", "s80", "s81"
sM1, sM2, sM3 = "s[82:83]", "s[84:85]", "s[86:87]"
def XF(t, s): return X0 + 64 * t + 4 * s
ACC = Q0 + 16
SLOT = [192 + 8 * i for i in range(8)] + [128 + 8 * i for i in range(8)] + [P0 + 8 * i for i in range(4)]

class Compute:
    def __init__(self, a, cfg, typ):
        self.a, self.cfg, self.typ = a, cfg, typ
        self.it, self.scr = make_items(cfg, typ)
        self.bars = []; self.full = 0; self.freed = 0; self.mark = 0; self.cur = -1
        self.win = {}
        self.st = Stamps(a, cfg, list(range(44, 64, 2)) + list(range(20, 36, 2)))
    def find(self, **kw):
        for x in self.it:
            if all(x.get(k) == v for k, v in kw.items()): return x
        raise KeyError(kw)
    def barrier(self, full, freed, extra=0, **kw):
        slots = pipe = 0
        for l in self.a.out[self.mark:]:
            l = l.strip()
            if l.endswith(":"): continue
            if l.startswith("v_mfma"): slots += 2; pipe += 32 if "32x32" in l else 16
            elif l.startswith(("v_exp", "v_rcp", "v_sqrt", "v_rsq")): slots += 2
            else: slots += 1
        self.a("s_barrier"); self.mark = len(self.a.out)
        self.full = max(self.full, full); self.freed = max(self.freed, freed)
        self.bars.append(dict(full=self.full, freed=self.freed, dur=max(4.2 * slots, pipe) + 40 + extra, step=self.cur, **kw))
    def lds(self, op, dst, areg, addr):
        w = self.win.setdefault(areg, 0)
        if not (0 <= addr - w <= 65535):
            nw = addr & ~8191
            self.a(f"v_add_u32 v{areg}, {(nw - w) & 0xffffffff:#x}, v{areg}")
            self.win[areg] = w = nw
        self.a(f"{op} {dst}, v{areg} offset:{addr - w}")

    def step(self, n):
        u, ks = divmod(n, 32)
        buf = WB0 + 8 * (n % 3)
        it = self.it[16 + n // 4]
        acc = P0 if u % 2 == 0 else Q0
        rd = []; mf = []
        order = ((0, 0), (0, 1), (1, 1), (1, 0))
        if self.typ == "F" and u == 4:
            blk, s = ks // 16, ks % 16
            rd = [(buf + 4 * e + 2 * t2, vH + e, it["addr"] + (ks % 4) * 2048 + t2 * 1024) for e in range(2) for t2 in range(2)]
            for e, t in order:
                d = acc + 16 * blk + 8 * t + 4 * e
                mf.append(M16(d, buf + 4 * e, XF(t, s), "0" if s == 0 else d))
        else:
            s, cp = ks // 2, ks % 2
            nt = self.typ == "A" and u < 2
            rd = [(buf + 4 * e + 2 * t2, vA + 2 * cp + e, it["addr"] + (s % 2) * 4096 + t2 * 2048) for e in range(2) for t2 in range(2)]
            for e, t in order:
                cb = 2 * cp + e
                d = acc + (8 * cb + 4 * t if nt else 16 * t + 4 * cb)
                w, x = buf + 4 * e, XF(t, s)
                mf.append(M16(d, x if nt else w, w if nt else x, "0" if s == 0 else d))
        return dict(it=it, rd=rd, mf=mf, buf=buf)
    BARS = [8, 16, 32, 48, 64, 80, 96, 112, 128, 144, 152]
    def freed_at(self, n):
        return 16 + (n + 1) // 4
    def read(self, n, j):
        if n >= 160: return
        s = self.step(n)
        if j == 0 and n in self.BARS:
            nxt = min([b for b in self.BARS if b > n] + [160])
            self.barrier(16 + nxt // 4, self.freed_at(n - 2))
        assert s["it"]["n"] < self.full, (n, self.full)
        d, r, ad = s["rd"][j]
        self.lds("ds_read_b64_tr_b16", vr(d, 2), r, ad)
    def cost(self, f):
        if isinstance(f, tuple) and f[0] == "gap": return 0
        if isinstance(f, str) and f.startswith(("v_exp", "v_rcp", "v_mfma")): return 2
        return 1
    def run_fill(self, fl, budget):
        used = 0
        while fl and used < budget:
            f = fl[0]
            if isinstance(f, tuple) and f[0] == "gap":
                if self.gap < f[1]: break
                fl.pop(0); continue
            fl.pop(0); used += self.cost(f)
            if callable(f): f()
            elif isinstance(f, tuple): self.a.e(f[0], tag=f[1])
            else: self.a(f)
        return used
    def unit(self, n0, nsteps, fl, rate=None, start=5):
        fl = list(fl)
        if self.cfg.nofill: fl = [f for f in fl if not (isinstance(f, str) and f.startswith(("v_mul_f32", "v_exp", "v_rcp", "v_add_f32", "v_max", "v_cvt", "v_lshlrev", "v_and_b32 v1")))]
        cost = sum(self.cost(f) for f in fl)
        if rate is None: rate = cost / (4 * nsteps - start - 1.5)
        credit = 0.0; self.gap = 0
        for n in range(n0, n0 + nsteps):
            s = self.step(n); self.cur = n
            self.a.need(vr(s["buf"], 8))
            for j in range(4):
                self.a(s["mf"][j])
                self.read(n + 2, j)
                if self.gap >= start:
                    credit = min(credit + rate, rate + 1.5)
                    credit -= self.run_fill(fl, credit - 0.5)
                self.gap += 1
        self.gap = 10 ** 9
        if fl:
            print(f"  [{self.typ}] unit at {n0}: {len(fl)} fillers left over", file=sys.stderr)
            self.run_fill(fl, 10 ** 9)

    def f_silu(self, src, n, pack):
        fl = []
        for g in range(0, n, 4):
            t = T0 + (g // 4 % 2) * 4
            fl += [f"v_mul_f32 v{t+i}, {sNL2E}, v{src+g+i}" for i in range(4)]
            fl += [f"v_exp_f32 v{t+i}, v{t+i}" for i in range(4)]
            fl += [f"v_add_f32 v{t+i}, 1.0, v{t+i}" for i in range(4)]
            fl += [f"v_rcp_f32 v{t+i}, v{t+i}" for i in range(4)]
            fl += [f"v_mul_f32 v{src+g+i}, v{src+g+i}, v{t+i}" for i in range(4)]
            if pack is not None:
                fl += [f"v_cvt_pk_bf16_f32 v{pack+g//2+i}, v{src+g+2*i}, v{src+g+2*i+1}" for i in range(2)]
        return fl
    def f_phi(self, src, n, pack):
        fl = []
        for g in range(0, n, 4):
            t = T0 + (g // 4 % 2) * 4
            fl += [f"v_mul_f32 v{t+i}, {sL2E}, v{src+g+i}" for i in range(4)]
            fl += [f"v_exp_f32_e64 v{t+i}, v{t+i} clamp" for i in range(4)]
            fl += [f"v_max_f32 v{src+g+i}, {sEPS6}, v{src+g+i}" for i in range(4)]
            fl += [f"v_add_f32 v{src+g+i}, v{src+g+i}, v{t+i}" for i in range(4)]
            fl += [f"v_cvt_pk_bf16_f32 v{pack+g//2+i}, v{src+g+2*i}, v{src+g+2*i+1}" for i in range(2)]
        return fl
    def f_finish(self, U, tag):
        fl = [f"s_add_u32 {sTmp}, {sA2}, {U*8192}"]
        for g in range(0, 16, 2):
            t = T0 + (g // 2 % 2) * 4
            for i in range(2):
                fl += [f"v_lshlrev_b32 v{t+2*i}, 16, v{K0+g+i}", f"v_and_b32 v{t+2*i+1}, {sHI}, v{K0+g+i}"]
            fl += [f"v_mul_f32 v{t+i}, v{t+i}, v{Q0+2*g+i}" for i in range(4)]
            fl += [f"v_cvt_pk_bf16_f32 v{K0+g+i}, v{t+2*i}, v{t+2*i+1}" for i in range(2)]
            if g % 4 == 2:
                q = g // 4
                fl.append((f"buffer_store_dwordx4 {vr(K0+4*q,4)}, v{vL16}, {srd('ws')}, {sTmp} offen offset:{(2*(q%2)+q//2)*1024} sc1", tag))
        return fl
    def flag(self, U, tag):
        a = self.a
        a(f"s_add_u32 {sTmp}, {sFL}, {U*512}")
        a.wait_tag(tag)
        a(f"buffer_store_dword v{vTag}, v{vFl}, {srd('ws')}, {sTmp} offen sc1")
    def f_nonce(self):
        a = self.a
        def chk():
            L = a.newlabel("Ln"); C = a.newlabel("Lc")
            a(f"v_cmp_eq_u32 vcc, 0, v{vTag}")
            a(f"s_cbranch_vccnz {L}")
            a.label(C)
            a.stubs += [f"{L}:", f"    buffer_load_dword v{vTag}, off, {srd('dbg')}, 0 sc1", f"    s_sub_u32 {sT}, {sT}, 1", "    s_cbranch_scc1 L_end",
                        "    s_waitcnt vmcnt(0)", f"    v_cmp_eq_u32 vcc, 0, v{vTag}", f"    s_cbranch_vccnz {L}", f"    s_branch {C}"]
        return f"buffer_load_dword v{vTag}, off, {srd('dbg')}, 0 sc1", chk

    def prologue(self):
        a, cfg = self.a, self.cfg
        a("v_and_b32 v0, 63, v0")
        if cfg.pf_code:
            a("s_getpc_b64 s[98:99]"); a.label("L_pc")
            a(f"s_sub_u32 s98, s98, L_pc-{NAME}_kernel", "s_subb_u32 s99, s99, 0")
            a("s_lshr_b32 s96, s2, 3", "s_lshl_b32 s96, s96, 2", f"s_add_u32 s96, s96, {sW}", "s_mul_i32 s96, s96, 5")
            a("v_min_u32 v12, 4, v0", "v_add_u32 v12, s96, v12", "v_lshlrev_b32 v12, 7, v12", f"v_min_u32 v12, L_last-{NAME}_kernel, v12")
            a.raw(f"    global_load_dword v{vNM}, v12, s[98:99]")
        if cfg.pf_tlb:
            a(f"s_cmp_lg_u32 {sW}, 1", "s_cbranch_scc1 L_tlb")
            for x in ("v_min_u32 v12, 9, v0", "v_lshlrev_b32 v13, 3, v12", f"global_load_dwordx2 v[{Q0}:{Q0+1}], v13, s[0:1]",
                      "v_min_u32 v13, 14, v0", "v_sub_u32 v13, v13, v12", "v_lshlrev_b32 v13, 21, v13", "s_waitcnt vmcnt(0)",
                      f"v_add_co_u32 v{Q0}, vcc, v{Q0}, v13", "s_nop 1", f"v_addc_co_u32 v{Q0+1}, vcc, 0, v{Q0+1}, vcc",
                      f"global_load_dword v{vR}, v[{Q0}:{Q0+1}], off"):
                a.raw("    " + x)
            a.label("L_tlb")
        if cfg.cprio: a(f"s_setprio {cfg.cprio}")
        a(f"v_lshlrev_b32 v{vL16}, 4, v0")
        a("v_and_b32 v12, 15, v0", "v_lshrrev_b32 v13, 4, v0", "v_lshrrev_b32 v14, 1, v12", "v_xor_b32 v14, v13, v14", "v_lshlrev_b32 v14, 4, v14",
          "v_lshl_add_u32 v14, v12, 7, v14", f"s_lshl_b32 {sTmp}, {sW}, 11", f"v_add_u32 v{P0}, {sTmp}, v14", f"v_xor_b32 v{P0+1}, 64, v{P0}")
        for i in range(4): a(f"v_mov_b32 v{ONES+i}, 0x3f803f80")
        a("v_lshlrev_b32 v14, 2, v13", "v_sub_u32 v14, v12, v14")
        for i in range(4): a(f"v_cmp_eq_u32 s[{88+2*i}:{89+2*i}], {i}, v14")
        a(f"s_mov_b32 {sNL2E}, 0xbfb8aa3b", f"s_mov_b32 {sL2E}, 0x3fb8aa3b", f"s_mov_b32 {sHI}, 0xffff0000", f"s_mov_b32 {sEPS6}, 0x358637bd")
        a("v_lshrrev_b32 v15, 5, v0", "v_bfe_u32 v16, v0, 2, 2", "v_lshl_add_u32 v16, v15, 2, v16", "v_and_b32 v17, 1, v13", "v_lshl_add_u32 v16, v17, 3, v16")
        a("v_and_b32 v18, 3, v0", "v_lshlrev_b32 v18, 3, v18", "v_lshl_add_u32 v19, v16, 6, v18", f"v_lshl_add_u32 v{vH}, v17, 5, v19", f"v_xor_b32 v{vH+1}, 32, v{vH}")
        a("v_lshl_add_u32 v19, v16, 7, v18", "v_bfe_u32 v18, v0, 3, 2", f"v_lshl_add_u32 v{vA}, v18, 5, v19")
        for cb in range(1, 4): a(f"v_xor_b32 v{vA+cb}, {cb*32}, v{vA}")
        a("v_lshlrev_b32 v18, 2, v0", f"v_lshl_add_u32 v{vFl}, v15, 30, v18")
        a("v_and_b32 v14, 31, v0", "v_lshlrev_b32 v15, 3, v15", "v_sub_u32 v15, v14, v15")
        a("v_and_b32 v16, 1, v15", "v_lshlrev_b32 v16, 4, v16", "v_mov_b32 v17, 0x3f80", "v_lshlrev_b32 v16, v16, v17", "v_lshrrev_b32 v15, 1, v15")
        for t in range(8):
            a(f"v_cmp_eq_u32 vcc, {t if t < 4 else t + 4}, v15", f"v_cndmask_b32 v{K0+t}, 0, v16, vcc")
        a(f"s_lshr_b32 {sTmp}, {sW}, 1", f"s_lshl_b32 {sA2}, {sC}, 1", f"s_add_u32 {sA2}, {sA2}, {sTmp}", f"s_mul_i32 {sA2}, {sA2}, 36",
          f"s_add_u32 {sA2}, {sA2}, {sI}", f"s_lshl_b32 {sA2}, {sA2}, 1", f"s_and_b32 {sTmp}, {sW}, 1", f"s_add_u32 {sA2}, {sA2}, {sTmp}")
        a(f"s_lshl_b32 {sFL}, {sA2}, 8", f"s_add_u32 {sFL}, {sFL}, {WS_FLAG:#x}", f"s_lshl_b32 {sA2}, {sA2}, 12", f"s_add_u32 {sA2}, {sA2}, {WS_A2:#x}")
        a("s_waitcnt lgkmcnt(0)")
        for n in ("ws", "out", "dbg", "x"): mk_srd(a, n)
        a(f"s_mul_i32 s96, {sTB}, {36*8192}", f"s_lshl_b32 s97, {sW}, 11", "s_add_u32 s96, s96, s97", f"s_add_u32 s96, s96, {WS_A2:#x}")
        for j in range(12):
            if cfg.rot2: a(f"s_add_u32 s97, {'s2' if cfg.rot2 == 1 else sCB}, {j%8}", f"s_and_b32 s97, s97, {7 if j < 8 else 3}", "s_lshl_b32 s97, s97, 13", f"s_add_u32 s{8+j}, s96, s97")
            else: a(f"s_add_u32 s{8+j}, s96, {(j%8)*8192}")
        a(f"s_lshl_b32 s99, {sTB}, 2", f"s_add_u32 s99, s99, {sW}", "s_lshl_b32 s99, s99, 14", f"s_lshl_b32 s97, {sCB}, 7", "s_add_u32 s99, s99, s97")
        a("s_mov_b32 s82, 0xffff0000", "s_mov_b32 s83, 0", "s_mov_b32 s84, 0", "s_mov_b32 s85, 0xffff", "s_mov_b32 s86, 0", "s_mov_b32 s87, 0xffff0000")
        a(f"s_lshl_b32 {sKV}, {sI}, 2", f"s_add_u32 {sKV}, {sKV}, {sW}", f"s_lshl_b32 {sKV}, {sKV}, 4", f"s_add_u32 {sKV}, {sKV}, {sC}",
          f"s_mul_i32 {sKV}, {sKV}, 1152", f"s_add_u32 {sKV}, {sKV}, {WS_KV:#x}")
        pA, pB = self.scr
        a(f"s_mov_b32 s97, {pA}", f"s_mov_b32 s98, {pB}", f"s_cmp_lt_u32 {sW}, 2", "s_cselect_b32 s97, s97, s98", f"s_and_b32 s98, {sW}, 1", "s_lshl_b32 s98, s98, 12", "s_add_u32 s97, s97, s98")
        a(f"s_lshr_b32 s96, {sI}, 1", f"s_sub_u32 s96, s96, {sI}", "s_add_u32 s96, s96, 24", "s_lshl_b32 s96, s96, 2", f"s_and_b32 s98, {sI}, 1", "s_add_u32 s96, s96, s98",
          "s_lshl_b32 s100, s96, 11", f"s_add_u32 s100, s100, {sA2}", "s_lshl_b32 s101, s96, 7", f"s_add_u32 s101, s101, {sFL}")
        L = "L_tag0"
        a(f"s_or_b32 s96, s2, {sW}", "s_cmp_lg_u32 s96, 0", f"s_cbranch_scc1 {L}")
        a.raw(f"    buffer_load_dword v{vTag}, off, {srd('ws')}, 0 sc1")
        a.label(L)
    def tag_publish(self):
        a = self.a
        L = "L_tag1"
        a("s_cmp_lg_u32 s96, 0", f"s_cbranch_scc1 {L}")
        for x in ("s_waitcnt vmcnt(0)", f"v_add_u32 v{vTag}, 0x9e377902, v{vTag}", f"v_or_b32 v{vTag}, 0x80000000, v{vTag}", "s_mov_b64 exec, 1",
                  f"buffer_store_dword v{vTag}, off, {srd('dbg')}, 0 sc1", f"buffer_store_dword v{vTag}, off, {srd('ws')}, 0 sc1", "s_mov_b64 exec, -1"):
            a.raw("    " + x)
        a.label(L)
    def stats_fin(self, S1, S2):
        t = T0
        fl = [f"v_cndmask_b32 v{t+2}, 0, v{S2}, s[88:89]"] + [f"v_cndmask_b32 v{t+2}, v{t+2}, v{S2+i}, s[{88+2*i}:{89+2*i}]" for i in range(1, 4)]
        fl += [f"v_mov_b32 v{t+3}, v{t+2}", f"v_mul_f32 v{t}, 0x3b000000, v{S1}", f"v_permlane32_swap_b32 v{t+2}, v{t+3}", f"v_add_f32 v{t+2}, v{t+2}, v{t+3}",
               f"v_mov_b32 v{t+3}, v{t+2}", f"v_mul_f32 v{t+1}, v{t}, v{t}", f"v_permlane16_swap_b32 v{t+2}, v{t+3}", f"v_add_f32 v{t+2}, v{t+2}, v{t+3}"]
        fl += [f"v_mul_f32 v{t+2}, 0x3b000000, v{t+2}", f"v_sub_f32 v{t+2}, v{t+2}, v{t+1}", f"v_max_f32 v{t+2}, 0, v{t+2}"]
        if self.cfg.round_ln:
            fl += [f"v_cvt_pk_bf16_f32 v{t+1}, v{t}, v{t+2}", f"v_and_b32 v{t+2}, {sHI}, v{t+1}", f"v_lshlrev_b32 v{t}, 16, v{t+1}",
                   f"v_add_f32 v{t+2}, 0x3727c5ac, v{t+2}", f"v_cvt_pk_bf16_f32 v{t+2}, v{t+2}, v{t+2}", f"v_lshlrev_b32 v{t+2}, 16, v{t+2}",
                   f"v_sqrt_f32 v{t+2}, v{t+2}", f"v_cvt_pk_bf16_f32 v{t+2}, v{t+2}, v{t+2}", f"v_lshlrev_b32 v{t+2}, 16, v{t+2}", f"v_rcp_f32 v{vR}, v{t+2}"]
        else:
            fl += [f"v_add_f32 v{t+2}, 0x3727c5ac, v{t+2}", f"v_rsq_f32 v{vR}, v{t+2}"]
        fl += [f"v_mul_f32_e64 v{vNM}, -v{t}, v{vR}"]
        return fl
    def unpack(self, t, p):
        d = vr(Q0 + 16 * (p % 2), 16)
        return [f"v_mfma_f32_32x32x16_bf16 {d}, {vr(K0,4)}, {vr(XF(t,2*p),4)}, 0",
                f"v_mfma_f32_32x32x16_bf16 {d}, {vr(K0+4,4)}, {vr(XF(t,2*p+1),4)}, {d}"]
    def f_center(self, t, p):
        d = Q0 + 16 * (p % 2); fl = []
        for g in range(0, 16, 4):
            fl += [f"v_fma_f32 v{d+g+i}, v{d+g+i}, v{vR}, v{vNM}" for i in range(4)]
            fl += [f"v_cvt_pk_bf16_f32 v{XF(t,2*p)+g//2+i}, v{d+g+2*i}, v{d+g+2*i+1}" for i in range(2)]
        return fl
    def xphase(self):
        a, cfg = self.a, self.cfg
        S = P0 + 4
        groups = [[0, 1], [2, 3, 4, 5], [6, 7], [8, 9], [10, 11, 12], [13, 14, 15]]
        bg = self.unpack(0, 0) + self.unpack(0, 1) + self.stats_fin(S, S + 4)
        for p in range(8):
            bg += self.f_center(0, p)
            if p + 2 < 8: bg += self.unpack(0, p + 2)
        bg += self.unpack(1, 0) + self.unpack(1, 1)
        self.gap = 0
        for gi, g in enumerate(groups):
            self.barrier(g[-1] + 1, g[0], phase="x")
            if gi == 0: self.st("x0")
            if gi == len(groups) - 1: self.st("x7")
            fr = []
            for i in g:
                t, s = XORD[i]
                for e in range(2):
                    self.lds("ds_read_b128", vr(XF(t, 2 * s + e), 4), P0 + e, self.it[i]["addr"]); fr.append((t, 2 * s + e))
            if gi == 1:
                a("s_waitcnt vmcnt(0)"); self.tag_publish()
            if gi >= 4: self.run_fill(bg, 24)
            for t, s in fr:
                x = XF(t, s)
                a(M16(S + 8 * t, ONES, x, "0" if s == 0 else S + 8 * t), M16(S + 8 * t + 4, x, x, "0" if s == 0 else S + 8 * t + 4))
                if gi >= 4: self.run_fill(bg, 4)
            if gi == 3: self.run_fill(bg, cfg.xq3)
            if gi == 4: self.run_fill(bg, cfg.xq4)
        self.run_fill(bg, 10 ** 9)
        assert not bg
        self.barrier(18, 16, phase="x")
        for n in range(2):
            for j in range(4): self.read(n, j)
        for f in self.stats_fin(S + 8, S + 12) + self.f_center(1, 0): a(f)
        self.st("u0")
        self.split = len(a.out)
    def unit0(self):
        a = self.a
        self.gap = 0
        for p in range(8):
            fl = self.f_center(1, p + 1) if p + 1 < 8 else []
            up = self.unpack(1, p + 2) if p + 2 < 8 else []
            for e in range(4):
                n = 4 * p + e; s = self.step(n); self.cur = n
                if up and e % 2 == 0:
                    a(up[e // 2]); self.run_fill(fl, 4)
                a.need(vr(s["buf"], 8))
                for j in range(4):
                    a(s["mf"][j]); self.read(n + 2, j)
                    self.run_fill(fl, 1 if up else 2)
            assert not fl
    def f_xres(self):
        t = vNM
        pre = [f"v_bfe_u32 v{t}, v0, 4, 1", f"v_lshrrev_b32 v{vR}, 5, v0", f"v_lshl_add_u32 v{vR}, v{t}, 1, v{vR}", f"v_lshlrev_b32 v{vR}, 4, v{vR}",
               f"v_and_b32 v{t}, 15, v0", f"v_lshl_add_u32 v{vR}, v{t}, 10, v{vR}",
               f"v_lshrrev_b32 v{t}, 5, v0", f"v_bfe_u32 v{ONES}, v0, 4, 1", f"v_sub_u32 v{t}, v{t}, v{ONES}", f"v_lshlrev_b32 v{t}, 9, v{t}",
               f"s_and_b32 s96, {sW}, 1", "s_lshl_b32 s96, s96, 10", f"v_add_u32 v{ONES+1}, s96, v{vL16}", f"v_xor_b32 v{ONES+2}, 0x400, v{ONES+1}",
               "s_lshl_b32 s96, s96, 2", f"v_add_u32 v{t}, s96, v{t}"]
        ld = [f"buffer_load_dwordx4 {vr(Q0+4*k,4)}, v{vR}, {srd('x')}, s99 offen offset:{64*k}" for k in range(2)]
        post = []
        for k in range(2): post += [f"v_permlane16_swap_b32 v{Q0+4*k}, v{Q0+4*k+2}", f"v_permlane16_swap_b32 v{Q0+4*k+1}, v{Q0+4*k+3}"]
        for i in range(8): post += [f"v_lshlrev_b32 v{ACC+2*i}, 16, v{Q0+i}", f"v_and_b32 v{ACC+2*i+1}, {sHI}, v{Q0+i}"]
        return pre, ld, post
    def a2_loads(self, u):
        S = max(x for x in STAGES if x <= u)
        r = f"s{8+u-S}" if S != 24 else f"s{16+u-S}"
        b = SLOT[u % 20]
        return [f"s_add_u32 {sTmp}, {r}, {S*8192}"] + [f"buffer_load_dwordx4 {vr(b+4*s,4)}, v{ONES+1+s}, {srd('ws')}, {sTmp} offen sc1" for s in range(2)]
    def typeA(self):
        a, cfg = self.a, self.cfg
        ld, chk = self.f_nonce()
        pA, pB = self.scr
        self.xphase()
        self.unit0(); self.st("u1")
        self.unit(32, 32, [ld] + self.f_phi(P0, 32, K0) + [chk]); self.st("u2")
        t = T0
        fl = [f"v_cvt_pk_bf16_f32 v{Q0+i}, v{Q0+2*i}, v{Q0+2*i+1}" for i in range(16)]
        fl += [f"v_add_u32 v{t}, s97, v{vL16}", f"s_lshl_b32 {sTmp}, {sW}, 8", f"v_lshrrev_b32 v{t+1}, 2, v{vL16}"]
        fl += [M16(Q0 + 16 + 4 * h, K0 + 4 * h, Q0 + 4 * h, "0") for h in range(4)]
        fl += [M16(Q0 + 4 * h, ONES, K0 + 4 * h, "0") for h in range(4)]
        fl += [f"v_and_b32 v{t+2}, 60, v{t+1}", f"v_add_u32 v{t+1}, {sTmp}, v{t+1}", f"s_lshl_b32 {sTmp}, {sW}, 6", f"v_add_u32 v{t+2}, {sTmp}, v{t+2}",
               f"s_lshl_b32 {sTmp}, {sW}, 10", f"v_add_u32 v{t+3}, {sTmp}, v{vL16}", f"v_add_u32 v{t+4}, {pB}, v{t+3}", f"v_add_u32 v{t+3}, {pA}, v{t+3}"]
        def wchk(): assert self.freed >= SCR_NEED, self.freed
        fl += [f"v_cndmask_b32 v{Q0}, v{Q0}, v{Q0+4}, {sM1}", f"v_cndmask_b32 v{Q0}, v{Q0}, v{Q0+8}, {sM2}", f"v_cndmask_b32 v{Q0}, v{Q0}, v{Q0+12}, {sM3}", wchk]
        fl += [f"ds_write_b128 v{t}, {vr(Q0+16+4*h,4)} offset:{h*1024}" for h in range(4)] + [(f"ds_write_b32 v{t+1}, v{Q0} offset:{ZR_OFF}", "kvw")]
        def xbar():
            assert not any(e[1] == "kvw" for e in a.lg)
            self.bars[-1]["quiet"] = True
            self.barrier(0, self.freed_at(self.cur))
        fl += [("gap", 45), xbar]
        fl += [f"ds_read_b128 {vr(Q0+4*s,4)}, v{t+3+s//2} offset:{(s%2)*4096}" for s in range(4)]
        fl += [f"ds_read_b32 v{Q0+16+s}, v{t+2} offset:{ZR_OFF+s*256}" for s in range(4)] + [f"v_mov_b32 v{t+5}, 0xff", ("gap", 57)]
        for s in range(1, 4): fl += [f"v_add_f32 v{Q0+r}, v{Q0+r}, v{Q0+4*s+r}" for r in range(4)] + [f"v_add_f32 v{Q0+16}, v{Q0+16}, v{Q0+16+s}"]
        fl += [f"v_bfi_b32 v{Q0+r}, v{t+5}, v{vTag}, v{Q0+r}" for r in (0, 16)]
        fl += [f"buffer_store_dwordx4 {vr(Q0,4)}, v{vL16}, {srd('ws')}, {sKV} offen sc1", f"buffer_store_dword v{Q0+16}, v{vFl}, {srd('ws')}, {sKV} offen offset:1024 sc1"]
        def rchk(): assert self.freed < SCR_REL, self.freed; self.st("kv")
        fl += [rchk]
        self.unit(64, 32, fl, rate=2); self.st("u3")
        self.unit(96, 32, self.f_silu(P0, 32, K0)); self.st("u4")
        xp, xl, xq = self.f_xres()
        self.unit(128, 32, self.f_finish(16, "h") + xp + xl + [("gap", cfg.hA_gap), lambda: self.flag(16, "h")] + xq, rate=cfg.fin_rate / 10); self.st("fin")
        OPK, OPZ, DEN, NUM = 128, 136, 144, (176, Q0)
        a(f"v_lshrrev_b32 v{t}, 1, v{vL16}", f"v_lshrrev_b32 v{t+1}, 4, v0", f"v_lshlrev_b32 v{t+1}, 3, v{t+1}", f"s_add_u32 s88, {sA2}, {28*8192}")
        self.cur = 160
        self.p2_plan()
        self.barrier(56 + self.p2b[0] + 1, 56, op=True, gate=0, quiet=True)
        for h in range(4):
            a(f"ds_read_b64 {vr(OPK+2*h,2)}, v{t} offset:{OP_OFF+h*576}", f"ds_read_b64 {vr(OPZ+2*h,2)}, v{t+1} offset:{OP_OFF+h*576+512}")
        def mm(tt):
            o = []
            for h in range(4):
                b = vr(P0 + 16 * tt + 2 * h, 2)
                o += [f"v_mfma_f32_16x16x16_bf16 {vr(DEN+16*tt+4*h,4)}, {vr(OPZ+2*h,2)}, {b}, 0", f"v_mfma_f32_16x16x16_bf16 {vr(NUM[tt]+4*h,4)}, {vr(OPK+2*h,2)}, {b}, 0"]
            return o
        def post(tt):
            n, d = NUM[tt], DEN + 16 * tt
            for h in range(4): a(f"v_add_f32 v{d+4*h}, {sEPS6}, v{d+4*h}")
            for h in range(4): a(f"v_rcp_f32 v{d+4*h}, v{d+4*h}")
            for s2 in range(2):
                for i in range(8): a(f"v_mul_f32 v{n+8*s2+i}, v{n+8*s2+i}, v{d+8*s2+4*(i//4)}")
                o = K0 + 8 * tt + 4 * s2
                for i in range(4): a(f"v_cvt_pk_bf16_f32 v{o+i}, v{n+8*s2+2*i}, v{n+8*s2+2*i+1}")
                a.e(f"buffer_store_dwordx4 {vr(o,4)}, v{vL16}, {srd('ws')}, s88 offen offset:{(2*s2+tt)*1024} sc1", tag="o")
        body = []
        for tt in range(2): body += self.f_phi(P0 + 16 * tt, 16, P0 + 16 * tt) + mm(tt)
        per = len(body) // (cfg.n_pre + 1)
        for i, f in enumerate(body):
            if i % per == 0 and i // per < cfg.n_pre:
                for x in self.a2_loads(i // per): a(x)
            a(f)
        post(0)
        self.p2_start()
        post(1)
        self.st("p2")
        self.phase2({cfg.late_at: lambda: self.flag(28, "o")})
    def typeF(self):
        a, cfg = self.a, self.cfg
        ld, chk = self.f_nonce()
        self.xphase()
        self.unit0(); self.st("u1")
        self.unit(32, 32, [ld] + self.f_silu(P0, 32, K0) + [chk]); self.st("u2")
        xp, xl, xq = self.f_xres()
        self.unit(64, 32, self.f_finish(0, "h1") + xp, rate=1.0); self.st("u3")
        fl = self.f_silu(P0, 32, K0)
        fl.insert(cfg.h1_flag, lambda: self.flag(0, "h1"))
        self.unit(96, 32, fl); self.st("u4")
        self.unit(128, 16, self.f_finish(8, "h2") + xl, rate=cfg.fin_rate / 10)
        fl = self.f_silu(P0, 16, None)
        fl.insert(cfg.h2_flag, lambda: self.flag(8, "h2"))
        self.unit(144, 16, fl); self.st("fin")
        self.cur = 160
        self.p2_plan()
        self.barrier(56 + self.p2b[0] + 1, 56, gate=0, quiet=True)
        for u in range(cfg.n_pre):
            for x in self.a2_loads(u): a(x)
            if u < 2:
                for i in range(8): a(f"v_mul_f32 v{P0+8*u+i}, v{P0+8*u+i}, v{P0+16+8*u+i}")
                for i in range(4): a(f"v_cvt_pk_bf16_f32 v{K0+4*u+i}, v{P0+8*u+2*i}, v{P0+8*u+2*i+1}")
            if u == 2:
                for x in xq: a(x)
        for k in range(2):
            a.e(f"buffer_store_dwordx4 {vr(K0+4*k,4)}, v{vL16}, {srd('ws')}, s100 offen offset:{k*1024} sc1", tag="h3")
        def f3():
            a.wait_tag("h3")
            a(f"buffer_store_dword v{vTag}, v{vFl}, {srd('ws')}, s101 offen sc1")
        self.p2_start()
        self.st("p2")
        self.phase2({cfg.late_at: f3})
    def p2_plan(self):
        cfg = self.cfg
        nxt = cfg.n_pre; self.p2l = {}; self.p2g = {}; bars = []
        last_w = max(x["need"] for x in self.it) - 57
        for u in range(36):
            ld = []
            while nxt < 36 and nxt <= u + cfg.D and len(ld) < 2:
                if nxt in STAGES: self.p2g[u] = nxt
                ld.append(nxt); nxt += 1
            self.p2l[u] = ld
        prev = -1
        for u in range(36):
            nextg = min([g for g in self.p2g if g >= u] + [99])
            if u in self.p2g or (u - prev >= cfg.p2_bar and nextg - u >= 2 and prev <= last_w + 8):
                bars.append(u); prev = u
        self.p2b = bars + [35]
    def p2_read(self, m, j):
        if m >= 72: return
        u, cp = m // 2, m & 1
        w = self.find(k="w2", u=u); assert w["n"] < self.full, (m, w, self.full)
        e, t2 = j // 2, j % 2
        self.lds("ds_read_b64_tr_b16", vr(WB0 + 8 * (m % 3) + 4 * e + 2 * t2, 2), vA + 2 * cp + e, w["addr"] + t2 * 2048)
    def p2_start(self):
        for cb in range(4): self.a(f"v_add_u32 v{vA+cb}, v{vNM}, v{vA+cb}")
        for m in range(2):
            for j in range(4): self.p2_read(m, j)
    def phase2(self, hooks):
        a, cfg = self.a, self.cfg
        pa, pb = self.find(k="w2", u=20)["addr"], self.find(k="w2", u=21)["addr"]
        assert self.p2b[-2] >= 22 and max(x["need"] for x in self.it) < 57 + 20
        tail = [f"s_mov_b32 s96, {pa}", f"s_mov_b32 s97, {pb}", f"s_cmp_lt_u32 {sW}, 2", "s_cselect_b32 s96, s96, s97", f"s_and_b32 s97, {sW}, 1", "s_lshl_b32 s97, s97, 12",
                "s_add_u32 s96, s96, s97", f"v_add_u32 v{T0}, s96, v{vL16}", f"v_xor_b32 v{T0+1}, 0x1000, v{T0}"]
        for m in range(72):
            u, cp = m // 2, m & 1
            buf = WB0 + 8 * (m % 3); x = SLOT[u % 20]
            extra = []
            if cp == 0:
                if u in hooks: hooks[u]()
                if u in self.p2b[:-1]:
                    a.need(vr(buf, 8))
                    self.barrier(56 + self.p2b[self.p2b.index(u) + 1] + 1, 56 + u, phase="2", gate=self.p2g.get(u))
                if u in (8, 16, 24, 28, 35): self.st(f"c{u}")
            if len(self.p2l[u]) > cp: extra = self.a2_loads(self.p2l[u][cp])
            if u >= 32 and tail: extra = tail[:3]; tail = tail[3:]
            a.need(vr(buf, 8), vr(x, 8))
            order = ((0, 0), (0, 1), (1, 1), (1, 0)) if m < 71 else ((0, 1), (1, 1), (1, 0), (0, 0))
            for j, (e, t) in enumerate(order):
                d = (ACC, Q0)[t] + 4 * (2 * cp + e)
                a(M16(d, buf + 4 * e, x + 4 * t, "0" if (u == 0 and t == 1) else d))
                self.p2_read(m + 2, j)
                if j >= 1 and extra: a(extra.pop(0))
                if m == 71 and j >= 2: a(f"ds_write_b128 v{T0}, {vr(Q0+4*(j-2),4)} offset:{(j-2)*1024}")
        for cb in (2, 3): a(f"ds_write_b128 v{T0}, {vr(Q0+4*cb,4)} offset:{cb*1024}")
        a("s_waitcnt lgkmcnt(0)"); a.raw("    s_barrier")
        for cb in range(4): a(f"ds_read_b128 {vr(P0+4*cb,4)}, v{T0+1} offset:{cb*1024}")
        for k in range(2):
            o = 24 + 4 * k
            for i in range(8): a(f"v_add_f32 v{ACC+8*k+i}, v{ACC+8*k+i}, v{P0+8*k+i}")
            for i in range(4): a(f"v_cvt_pk_bf16_f32 v{o+i}, v{ACC+8*k+2*i}, v{ACC+8*k+2*i+1}")
            a(f"v_permlane16_swap_b32 v{o}, v{o+2}", f"v_permlane16_swap_b32 v{o+1}, v{o+3}")
            a(f"buffer_store_dwordx4 {vr(o,4)}, v{vR}, {srd('out')}, s99 offen offset:{64*k}")
        if cfg.diag:
            a("s_waitcnt vmcnt(0)"); self.st("end")
        self.st.flush(130, 129)
        a("s_endpgm")

class Loader:
    vX, vQ, vG, vD, vHh, vAa = 2, 4, 6, 8, 10, 12
    vTag, vPo, vPo2, vP = 13, 14, 15, 16
    def __init__(self, a, cfg, comp):
        self.a, self.cfg, self.it, self.typ, self.bars = a, cfg, comp.it, comp.typ, comp.bars
        self.issued = 0
        self.st = Stamps(a, cfg, list(range(86, 102, 2)) + list(range(8, 36, 2)))
    def slow_poll(self, load, cmp):
        a = self.a
        C = a.newlabel("Lc"); L = a.newlabel("Lp")
        a(cmp, f"s_cbranch_vccz {C}")
        a.label(L)
        a.raw("    " + load); timeout(a); a.raw("    s_waitcnt vmcnt(0)"); a.raw("    " + cmp); a.raw(f"    s_cbranch_vccnz {L}")
        a.label(C)
    def prologue(self):
        a = self.a
        a("v_and_b32 v0, 63, v0", f"s_sub_u32 {sW}, {sW}, 4", f"s_lshl_b32 s77, {sW}, 11")
        a("v_lshrrev_b32 v21, 3, v0", "v_and_b32 v22, 7, v0", "v_lshrrev_b32 v23, 4, v0", "v_xor_b32 v24, v22, v23", "v_lshlrev_b32 v24, 4, v24")
        a(f"v_lshl_add_u32 v{self.vX}, v21, 10, v24", f"v_xor_b32 v{self.vX+1}, 64, v{self.vX}", f"v_add_u32 v{self.vX+1}, {8*1024-1024}, v{self.vX+1}")
        a(f"s_lshl_b32 s79, {sC}, 2", f"s_add_u32 s79, s79, {sW}", "s_lshl_b32 s79, s79, 15")
        a("s_movk_i32 s85, 0x3ff", f"s_lshl_b32 s84, {sROT}, 7" if self.cfg.rot else "s_mov_b32 s84, 0", "s_and_b32 s84, s84, s85", "s_add_u32 s78, s79, s84", "s_mov_b32 m0, s77")
        if self.cfg.lprio: a(f"s_setprio {self.cfg.lprio}")
        a("s_waitcnt lgkmcnt(0)")
        mk_srd(a, "x")
    def prologue2(self):
        a = self.a
        for n in ("qkv", "gate", "up", "down", "wo", "ws", "dbg"):
            mk_srd(a, n)
        a(f"s_lshl_b32 s76, {sW}, 4", "v_add_u32 v21, s76, v21")
        a("v_lshlrev_b32 v25, 1, v23", "v_xor_b32 v24, v22, v25", "v_lshlrev_b32 v24, 4, v24", f"v_lshl_add_u32 v{self.vD}, v21, 10, v24",
          f"v_add_u32 v{self.vD+1}, {8*1024-1024}, v{self.vD}")
        a("v_and_b32 v25, 2, v25", "v_xor_b32 v24, v22, v25", "v_lshlrev_b32 v24, 4, v24", "v_xor_b32 v26, 64, v24")
        for reg, st in ((self.vQ, 3072), (self.vG, 3584)):
            a(f"v_mul_u32_u24 v25, {st}, v21", f"v_add_u32 v{reg}, v25, v24", f"v_add_u32 v{reg+1}, v25, v26", f"v_add_u32 v{reg+1}, {8*st-1024}, v{reg+1}")
        a("v_lshrrev_b32 v25, 2, v0", f"s_lshl_b32 s76, {sW}, 5", "v_add_u32 v25, s76, v25", "v_mul_u32_u24 v25, 3584, v25", "v_and_b32 v26, 3, v0",
          "v_and_b32 v27, 2, v23", "v_xor_b32 v27, v26, v27", f"v_lshl_add_u32 v{self.vHh}, v27, 4, v25", f"v_add_u32 v{self.vHh+1}, {16*3584-1024}, v{self.vHh}")
        a("v_lshlrev_b32 v27, 4, v0", "v_add_u32 v17, s77, v27", "v_add_u32 v18, 0x10000, v17", "v_add_u32 v19, 0x20000, v17")
        a(f"s_and_b32 s76, {sW}, 2", "s_lshl_b32 s76, s76, 7", f"v_lshl_add_u32 v{self.vPo}, v22, 9, s76")
        a(f"s_lshl_b32 s76, {sW}, 7", f"v_lshl_add_u32 v{self.vPo2}, v26, 9, s76")
        a(f"s_lshl_b32 s80, {sI}, 7")
        a(f"s_lshl_b32 s81, {sCB}, 7")
        a(f"s_mul_i32 s83, {sTB}, {36*512}", f"s_add_u32 s83, s83, {WS_FLAG:#x}")
    def item(self, x, reg=None):
        a = self.a; k = x["k"]; aux = ""; rot = None
        if k == "x":
            n, t, sl = x["n"], x["t"], x["s"]
            assert x["addr"] == 8192 * (n + 1)
            a("s_addk_i32 m0, 0x2000")
            if n == 0: pass
            elif sl % 2 == 1: a("s_addk_i32 s78, 128")
            elif n == 2: a("s_addk_i32 s78, 0x3f80")
            else:
                if n == 10: a("s_addk_i32 s79, 0x4000", "s_addk_i32 s84, 256")
                a("s_addk_i32 s84, 256", "s_and_b32 s84, s84, s85", "s_add_u32 s78, s79, s84")
            a.e(f"buffer_load_dwordx4 v{self.vX}, {srd('x')}, s78 offen lds", tag=n)
            a.e(f"buffer_load_dwordx4 v{self.vX+1}, {srd('x')}, s78 offen offset:1024 lds", tag=n)
            self.issued = n + 1
            return
        elif k == "w1":
            u, i = x["u"], x["i"]
            if self.typ == "A":
                s, v, st, off = [("qkv", self.vQ, 3072, 1024), ("qkv", self.vQ, 3072, 2048), ("gate", self.vG, 3584, 16 * 128),
                                 ("up", self.vG, 3584, 16 * 128), ("qkv", self.vQ, 3072, 0)][u]
                base, rot = "s80", (i, 64 * st)
            elif u < 4:
                s, v, base, off, rot = ("gate", "up")[u % 2], self.vG, "s80", (u // 2) * 8 * 128, (i, 64 * 3584)
            else:
                if i == 0: a(f"s_lshl_b32 s79, {sI}, 6")
                s, v, base, off, rot = ("gate", "up")[i // 4], self.vHh, "s79", 24 * 128, (2 * (i % 4), 64 * 3584)
        elif k == "w2":
            u = x["u"]; S = max(y for y in STAGES if y <= u)
            s, v, base, off = ("down", self.vD, "s81", S * 65536) if u < 28 else ("wo", self.vD, "s81", 0)
            if self.cfg.rot2:
                a(f"s_add_u32 s84, {'s2' if self.cfg.rot2 == 1 else sCB}, {u-S}", f"s_and_b32 s84, s84, {3 if S == 24 else 7}", "s_lshl_b32 s84, s84, 16", "s_add_u32 s84, s84, s81")
                base = "s84"
            else: off += (u - S) * 65536
        if rot and self.cfg.rot:
            a(f"s_add_u32 s84, {sROT}, {rot[0]}", "s_and_b32 s84, s84, 7", f"s_mul_i32 s84, s84, {rot[1]}", f"s_add_u32 s84, s84, {base}")
            base = "s84"
        elif rot: off += rot[0] * rot[1]
        if reg is not None:
            a(f"s_add_u32 s78, {base}, {off}")
            a(f"buffer_load_dwordx4 {vr(reg,4)}, v{v}, {srd(s)}, s78 offen", f"buffer_load_dwordx4 {vr(reg+4,4)}, v{v+1}, {srd(s)}, s78 offen offset:1024")
            return
        a(f"s_add_u32 m0, s77, {x['addr']}", f"s_add_u32 s78, {base}, {off}")
        a.e(f"buffer_load_dwordx4 v{v}, {srd(s)}, s78 offen lds", tag=x["n"])
        a.e(f"buffer_load_dwordx4 v{v+1}, {srd(s)}, s78 offen offset:1024 lds", tag=x["n"])
        self.issued = x["n"] + 1
    G, Z, S, CK = 64, 128, 32, 36
    def g_loads(self, part):
        a, G, Z = self.a, self.G, self.Z
        if part == 0:
            for t in range(4):
                a(f"s_add_u32 s78, s85, {t*4*1152+1024}", f"buffer_load_dword v{Z+t}, v42, {srd('ws')}, s78 offen sc1")
        for c in range(8 * part, 8 * part + 8):
            a(f"s_add_u32 s78, s85, {c*1152}", f"buffer_load_dwordx4 {vr(G+4*c,4)}, v27, {srd('ws')}, s78 offen sc1")
    def g_sum(self, part):
        a, G, Z, S, CK = self.a, self.G, self.Z, self.S, self.CK
        if part == 0:
            a(f"v_xor_b32 v{CK}, v{self.vTag}, v{Z}")
            for t in range(1, 4): a(f"v_bitop3_b32 v{CK}, v{CK}, v{Z+t}, v{self.vTag} bitop3:0xf6", f"v_add_f32 v{Z}, v{Z}, v{Z+t}")
        for c in range(8 * part, 8 * part + 8):
            for r in range(4):
                if r == 0: a(f"v_bitop3_b32 v{CK}, v{CK}, v{G+4*c+r}, v{self.vTag} bitop3:0xf6")
                if c == 1: a(f"v_add_f32 v{S+r}, v{G+r}, v{G+4+r}")
                elif c > 1: a(f"v_add_f32 v{S+r}, v{S+r}, v{G+4*c+r}")
        if part == 1: a(f"v_and_b32 v{CK}, 0xff, v{CK}")
    def g_write(self):
        a, Z, S = self.a, self.Z, self.S
        a(f"v_mov_b32 v{Z+1}, v{Z}", f"v_cvt_pk_bf16_f32 v{S}, v{S}, v{S+1}", f"v_cvt_pk_bf16_f32 v{S+1}, v{S+2}, v{S+3}")
        a(f"v_permlane32_swap_b32 v{Z}, v{Z+1}", f"v_add_f32 v{Z}, v{Z}, v{Z+1}", f"v_mov_b32 v{Z+1}, v{Z}")
        a(f"v_permlane16_swap_b32 v{Z}, v{Z+1}", f"v_add_f32 v{Z}, v{Z}, v{Z+1}", f"v_cvt_pk_bf16_f32 v{Z}, v{Z}, v{Z}")
        a(f"ds_write_b64 v43, {vr(S,2)} offset:{OP_OFF}", f"ds_write_b16 v44, v{Z} offset:{OP_OFF+512}")
    def run(self):
        a, cfg, it = self.a, self.cfg, self.it
        self.st("start")
        nload = f"buffer_load_dword v{self.vTag}, off, {srd('dbg')}, 0 sc1"
        for bi, b in enumerate(self.bars):
            g = b.get("gate")
            if g == 0: b["t1"] = True
            if g is not None: self.bars[bi - {0: 2, 8: 0, 16: 1, 24: cfg.early24, 28: 0}[g]].setdefault("poll", []).append(g)
            b["dur"] *= (cfg.xscale if b.get("phase") == "x" else cfg.uscale) / 100
        t = 0.0; tmem = cfg.lat0 - 2 * cfg.c_x; land = {}; freed = 0; quiet = False; gst = 0 if self.typ == "A" else 9
        plan = []
        ndma = len(it) - cfg.nstage; sreg = [132 + 8 * i for i in range(15)] + [48, 56]
        if self.typ == "F": sreg += [64 + 8 * i for i in range(8)]
        staged = 0; tpf = 0
        for bi, b in enumerate(self.bars):
            c = cfg.c_x if b.get("phase") == "x" else (cfg.c_2 if b.get("phase") == "2" else cfg.c_1)
            n0 = self.issued; tiss = t
            vP = lambda u: 21 + STAGES.index(u)
            pl = lambda u: f"buffer_load_dword v{vP(u)}, v{self.vPo2 if u == 24 else self.vPo}, {srd('ws')}, s76 offen sc1"
            for u in b.get("poll", []): a(f"s_add_u32 s76, s83, {u*512}", pl(u))
            if gst < 9 and (b["step"] >= cfg.g_at or b.get("op")):
                while True:
                    if gst == 0:
                        self.st("g0")
                        a(f"s_lshl_b32 s85, {sI}, 2", f"s_add_u32 s85, s85, {sW}", f"s_mul_i32 s85, s85, {16*1152}", f"s_add_u32 s85, s85, {WS_KV:#x}")
                        a("v_lshrrev_b32 v40, 4, v0", "v_and_b32 v41, 15, v0", "v_mul_u32_u24 v42, 1152, v40", "v_lshl_add_u32 v42, v41, 2, v42")
                        a(f"s_mul_i32 s78, {sW}, 576", "v_lshl_add_u32 v43, v0, 3, s78", "v_lshl_add_u32 v44, v41, 1, s78")
                        self.g_loads(0); tmem = max(tmem, t) + 4.5 * c; tiss += 5 * cfg.c_iss
                    elif gst == 1:
                        self.g_loads(1); tmem = max(tmem, t) + 4 * c; tiss += 4 * cfg.c_iss + 300
                        a(f"s_setprio {cfg.gprio}"); self.g_sum(0); a(f"s_setprio {cfg.lprio}")
                    elif gst == 2:
                        a(f"s_setprio {cfg.gprio}"); self.g_sum(1); self.g_write(); a(f"s_setprio {cfg.lprio}"); self.st("g1"); tiss += 350
                    gst += 1
                    if not b.get("op") or gst >= 3: break
            def dur(x): return c * (2 if (x["k"] == "w1" and self.typ == "F" and x["u"] == 4) else 1)
            while self.issued < len(it):
                x = it[self.issued]; n = x["n"]
                req = n < b["full"]
                if x["need"] > freed:
                    assert not req, ("deadlock", bi, b, x); break
                if n >= ndma:
                    k = n - ndma
                    if k >= staged: self.item(x, sreg[k]); staged += 1
                    for h in range(2):
                        ad = x["addr"] + 1024 * h
                        a(f"ds_write_b128 v{17+(ad>>16)}, {vr(sreg[k]+4*h,4)} offset:{ad&65535}")
                    self.issued = n + 1
                    continue
                if not req:
                    tb = max(t + b["dur"], land.get(b["full"] - 1, 0))
                    if tpf > tb: break
                    tiss = max(tiss, tpf - cfg.c_iss)
                    if b.get("phase") == "x":
                        if n >= b["full"] + cfg.xlead and (bi == 0 or tiss + cfg.c_x > t + b["dur"]): break
                    elif (quiet and not (self.bars[bi - 1].get("t1") and n - n0 < cfg.q_t1)) or (b.get("phase") != "2" and (max(tmem, t) + dur(x) > tb + cfg.lead * c or tiss + cfg.c_iss > tb)): break
                tiss += cfg.c_iss * dur(x) / c
                if n == 16: self.split = len(a.out)
                if n == 36: a(nload)
                if n == 46: self.slow_poll(nload, f"v_cmp_eq_u32 vcc, 0, v{self.vTag}")
                if n in (16, 32, 56): self.st(f"i{n}")
                self.item(x)
                tmem = max(tmem, t) + dur(x); land[n] = max(tmem, t + cfg.lat)
                for at, lst in ((cfg.pf1, (("gate", 14), ("up", 14), ("qkv", 12))), (cfg.pf2, (("down", 14), ("wo", 4)))):
                    if n + 1 == at:
                        a("s_lshl_b32 s76, s2, 2", f"s_add_u32 s76, s76, {sW}", "v_lshlrev_b32 v28, 7, v0")
                        for k, (nm, nl) in enumerate(lst):
                            a(f"s_mul_i32 s78, s76, {nl*128}", f"s_mov_b64 exec, {(1 << nl) - 1:#x}", f"buffer_load_dword v{29+k+(3 if nm in ('down', 'wo') else 0)}, v28, {srd(nm)}, s78 offen")
                        a("s_mov_b64 exec, -1")
                        tmem = max(tmem, t) + cfg.pf_cost * sum(y[1] for y in lst) / 58; tpf = tmem
            after_t1 = bi > 0 and self.bars[bi - 1].get("t1")
            while staged < cfg.nstage and (b["step"] >= cfg.stage_from) and not after_t1:
                tb = max(t + b["dur"], land.get(b["full"] - 1, 0))
                if b.get("phase") != "2" and (max(tmem, t) + c > tb + cfg.lead * c or tiss + cfg.c_iss > tb): break
                self.item(it[ndma + staged], sreg[staged]); staged += 1
                tiss += cfg.c_iss; tmem = max(tmem, t) + c
            if b.get("phase") == "2": a.wait(lg=0)
            if bi == 0: self.st("i6"); self.prologue2(); self.st("pr2")
            if b.get("op"):
                C = a.newlabel("Lc"); L = a.newlabel("Lg")
                a(f"v_cmp_ne_u32 vcc, 0, v{self.CK}", f"s_cbranch_vccz {C}")
                save = (list(a.vm), list(a.lg))
                a.label(L)
                self.g_loads(0); self.g_loads(1); self.g_sum(0); self.g_sum(1)
                a(f"v_cmp_ne_u32 vcc, 0, v{self.CK}"); timeout(a); a(f"s_cbranch_vccnz {L}")
                self.g_write()
                a.label(C); a.vm, a.lg = save
                a("s_waitcnt lgkmcnt(0)")
            if b.get("gate") is not None:
                u = b["gate"]
                a(f"s_add_u32 s76, s83, {u*512}")
                self.slow_poll(pl(u), f"v_cmp_ne_u32 vcc, v{self.vTag}, v{vP(u)}")
                self.st(f"f{u}")
            for n in range(b["full"] - 1, -1, -1):
                if any(e[1] == n for e in a.vm): a.wait_tag(n); break
            if cfg.bdiag: a.raw("    s_memtime s[68:69]")
            a("s_barrier")
            if cfg.bdiag:
                for x_ in ("s_memtime s[70:71]", "s_waitcnt lgkmcnt(0)", f"v_writelane_b32 v46, s68, {bi}", f"v_writelane_b32 v47, s70, {bi}"): a.raw("    " + x_)
            t = max(t + b["dur"], land.get(b["full"] - 1, 0)); freed = b["freed"]; quiet = b.get("quiet", False)
            plan.append(f"{bi}:{b['step']}:t{t:.0f}:f{b['full']}:i{self.issued}:s{staged}")
        assert self.issued == len(it)
        print(f"plan {self.typ}:", " ".join(plan), file=sys.stderr)
        self.st("end")
        if cfg.bdiag:
            a("s_lshl_b32 s76, s2, 2", f"s_add_u32 s76, s76, {sW}", "s_lshl_b32 s76, s76, 9", f"s_add_u32 s76, s76, {WS_DIAG+0x100000:#x}", "v_lshlrev_b32 v45, 2, v0")
            a(f"buffer_store_dword v46, v45, {srd('ws')}, s76 offen", f"buffer_store_dword v47, v45, {srd('ws')}, s76 offen offset:256")
        self.plan = plan
        if cfg.diag: a(f"s_add_u32 {sW}, {sW}, 4")
        self.st.flush(130, 129)
        a("s_endpgm")

def generate(cfg):
    a = Asm()
    a("s_cmp_ge_u32 s2, 256", "s_cbranch_scc1 L_end")
    a("s_load_dwordx16 s[16:31], s[0:1], 0", "s_load_dwordx4 s[32:35], s[0:1], 64")
    a("v_lshrrev_b32 v1, 6, v0", f"v_readfirstlane_b32 {sW}, v1")
    a("s_and_b32 s8, s2, 1", "s_bfe_u32 s9, s2, 0x20001", "s_bfe_u32 s10, s2, 0x30003", "s_lshr_b32 s11, s2, 6")
    a(f"s_lshl_b32 {sC}, s8, 3", f"s_add_u32 {sC}, {sC}, s10")
    a("s_and_b32 s12, s11, 1", f"s_lshl_b32 {sI}, s9, 1", f"s_lshl_b32 {sROT}, s8, 2", f"s_add_u32 {sROT}, {sROT}, {sI}", f"s_add_u32 {sI}, {sI}, s12")
    a(f"s_lshl_b32 {sTB}, s8, 2", f"s_add_u32 {sTB}, {sTB}, s9", f"s_lshl_b32 {sTB}, {sTB}, 2", f"s_add_u32 {sTB}, {sTB}, s11", f"s_mov_b32 {sCB}, s10")
    a(f"s_mov_b32 {sT}, {cfg.timeout}")
    a(f"s_cmp_lt_u32 {sW}, 4", "s_cbranch_scc1 L_compute")
    info = {}
    progs = {}
    for typ in "AF":
        b = Asm(); b.uid = 1000 if typ == "A" else 2000
        c = Compute(b, cfg, typ)
        (c.typeA if typ == "A" else c.typeF)()
        progs[typ] = (b, c); info["c" + typ] = c.st.names
    lds_ = {}
    for typ in "AF":
        b = Asm(); b.uid = 3000 if typ == "A" else 4000
        l = Loader(b, cfg, progs[typ][1]); l.run()
        lds_[typ] = (b, l); info["l" + typ] = l.st.names; info["plan" + typ] = l.plan; info["bdiag"] = cfg.bdiag
        nb = lambda o: sum(x.strip() == "s_barrier" for x in o)
        assert nb(b.out) == nb(progs[typ][0].out) == len(progs[typ][1].bars)
        print(f"loader {typ}: {b.count} instrs, {b.nops} nop states; compute: {progs[typ][0].count} instrs, {progs[typ][0].nops} nop states", file=sys.stderr)
    def shared(d):
        (ba, oa), (bf, of) = d["A"], d["F"]
        assert oa.split == of.split and ba.out[:oa.split] == bf.out[:of.split]
        return ba.out[:oa.split]
    Loader(a, cfg, progs["A"][1]).prologue()
    a.out += shared(lds_)
    a("s_cmp_ge_u32 s2, 128", "s_cbranch_scc1 L_loadF", "s_branch L_loadA")
    a.label("L_end"); a.raw("    s_endpgm")
    a.label("L_compute"); a.reset()
    Compute(a, cfg, "A").prologue()
    a.out += shared(progs)
    a("s_cmp_ge_u32 s2, 128", "s_cbranch_scc1 L_compF")
    for typ in "AF":
        b, c = progs[typ]
        a.label("L_comp" + typ); a.out += b.out[c.split:] + b.stubs
        b, l = lds_[typ]
        a.label("L_load" + typ); a.out += b.out[l.split:]
    a.label("L_last"); a.raw("    s_endpgm")
    head = open("cdna_kernels/" + NAME + ".s.ref").read().split("; Override launch")[0]
    txt = head + f"; @launch grid=(256,1,1) block=(512,1,1) lds={LDS_BYTES}\n"
    txt += f""".amdgcn_target "amdgcn-amd-amdhsa--gfx950"
.text
.globl {NAME}_kernel
.p2align 8
.type {NAME}_kernel,@function
{NAME}_kernel:
""" + a.text() + f"""
.section .rodata,"a"
.p2align 6
.amdhsa_kernel {NAME}_kernel
  .amdhsa_next_free_vgpr 256
  .amdhsa_next_free_sgpr 102
  .amdhsa_accum_offset 256
  .amdhsa_group_segment_fixed_size 0
  .amdhsa_kernarg_size 80
  .amdhsa_user_sgpr_count 2
  .amdhsa_user_sgpr_kernarg_segment_ptr 1
  .amdhsa_system_sgpr_workgroup_id_x 1
.end_amdhsa_kernel
"""
    return txt, info

if __name__ == "__main__":
    cfg = Cfg()
    out = sys.argv[1]
    for kv in sys.argv[2:]:
        k, v = kv.split("="); getattr(Cfg, k); setattr(cfg, k, int(v))
    txt, info = generate(cfg)
    open(out, "w").write(txt)
    info["mode"] = cfg.diag
    import json; json.dump(info, open(out + ".json", "w"))
```

```python
import sys, os
from asmb import Asm

NAME = "parallel_sum__linear_attn_block__swiglu_ffn__prompt"

class Cfg:
    diag = 0
    bdiag = 0
    timeout = 400000
    round_ln = 1
    rot = 1
    rot2 = 2
    pf_code = 1
    pf_tlb = 0
    nofill = 0
    cprio = 0
    lprio = 0
    gprio = 0
    xq3 = 70
    xq4 = 50
    h1_flag = 60
    h2_gap = 84
    hA_gap = 112
    hA_epi = 0
    finA_rate = 12
    finA_start = 5
    late_at = 4
    gate0_at = 144
    gate8_at = 160
    n_preA = 2
    n_preF = 4
    xl_gap = 16
    xq_gap = 96
    preA_gap = 72
    preF_gap = 72
    pre_step = 8
    n_epi = 2
    n_epiF = 0
    D = 4
    p2_bar = 3
    p2_first = 3
    p2_cap = "4"
    polls = "0:1 8:1 12:2,0 20:2,0 28:2,1,0"
    nogather = 0
    out_aux = ""
    planX = "6 4 2 2 2,U0,U1 4 4 4 4"
    planA = "U2,U3,U4 7,N0 7,N1,P2 C,R 1 5 6 G0,4 G1,S0,3 S1,1 3 6"
    planF = "4,U3,U4 4,N0 7,N1,P2 4,C,R 4 4 4 4 3 3 3"

ZR_OFF, OP_OFF = 0, 1024
LDS_BYTES = 163840
WS_FLAG, WS_KV, WS_A2, WS_DIAG, WS_SIZE = 0x1000, 0x100000, 0x200000, 0x1000000, 0x2000000
sC, sI, sTB, sCB, sW, sROT = "s4", "s5", "s6", "s7", "s3", "s36"
sT = "s37"
SRD = dict(x=40, qkv=44, gate=48, up=52, down=56, wo=60, ws=64, out=68, dbg=72)
PTR = dict(x=16, qkv=18, wo=20, gate=24, up=26, down=28, out=30, dbg=32, ws=34)
SIZE = dict(x=2097152, qkv=1572864, wo=524288, gate=1835008, up=1835008, down=1835008, out=2097152, dbg=256, ws=WS_SIZE)
def srd(n): return f"s[{SRD[n]}:{SRD[n]+3}]"
def mk_srd(a, n):
    b = SRD[n]
    a(f"s_mov_b32 s{b}, s{PTR[n]}", f"s_mov_b32 s{b+1}, s{PTR[n]+1}", f"s_mov_b32 s{b+2}, {SIZE[n]:#x}", f"s_mov_b32 s{b+3}, 0x20000")
def vr(b, n=1): return f"v{b}" if n == 1 else f"v[{b}:{b+n-1}]"
M16 = lambda d, x, y, c: f"v_mfma_f32_16x16x32_bf16 {vr(d,4)}, {vr(x,4)}, {vr(y,4)}, {c if isinstance(c, str) else vr(c,4)}"

SCR_NEED, SCR_REL = 17 + 14, 17 + 20
STG = ((0, 0, 8), (8, 24, 4), (12, 16, 8), (20, 8, 8), (28, 28, 8))
STAGES = tuple(x[0] for x in STG)
def stage_of(j): return max(x for x in STG if x[0] <= j)
MIXU = 2
XORD = [(0, 0), (0, 1), (1, 0), (1, 1)] + [(0, s) for s in range(2, 8)] + [(1, s) for s in range(2, 8)]
def make_items(cfg, typ):
    it = []
    for i, (t, s) in enumerate(XORD): it.append(dict(k="x", s=s, t=t, rel=i + 1))
    for u in range(5):
        for i in range(8): it.append(dict(k="w1", u=u, i=i, rel=17 + 8 * u + i))
    for u in range(36): it.append(dict(k="w2", u=u, rel=57 + u))
    free = [(0, p) for p in range(1, 20)] + ([(0, 20)] if typ == "F" else [])
    scr = []
    for n, x in enumerate(it):
        free.sort()
        while typ == "A" and len(scr) < 2 and free[0][0] >= SCR_NEED - 1:
            need, p = free.pop(0); assert need <= SCR_NEED
            scr.append(8192 * p); free.append((SCR_REL, p)); free.sort()
        need, p = free.pop(0)
        assert need < x["rel"], (n, x, need)
        x["need"] = need; x["n"] = n; x["addr"] = 8192 * (p % 20)
        free.append((x["rel"], p))
    return it, scr

class Stamps:
    def __init__(self, a, cfg, regs):
        self.a, self.on, self.regs, self.n, self.names = a, cfg.diag, regs, 0, []
    def __call__(self, name):
        if not self.on: return
        sel = os.environ.get("STAMPS")
        if sel is None:
            if name.startswith("_"): return
        elif name not in sel.split(",") + ["start", "end"]: return
        r = self.regs[self.n]
        self.a.raw(f"    {'s_memrealtime' if self.on == 1 else 's_memtime'} s[{r}:{r+1}]")
        self.n += 1; self.names.append(name)
    def flush(self, vt, vz):
        if not self.on: return
        a = self.a
        a("s_waitcnt lgkmcnt(0)")
        a("s_lshl_b32 s76, s2, 3", f"s_add_u32 s76, s76, {sW}", "s_lshl_b32 s76, s76, 7", f"s_add_u32 s76, s76, {WS_DIAG:#x}")
        a(f"v_mov_b32 v{vz}, 0", "s_mov_b64 exec, 1")
        for i in range(self.n):
            a(f"v_mov_b32 v{vt+i}, s{self.regs[i]}")
            a(f"buffer_store_dword v{vt+i}, v{vz}, {srd('ws')}, s76 offen offset:{4*i}")

def timeout(a):
    a.raw(f"    s_sub_u32 {sT}, {sT}, 1")
    a.raw("    s_cbranch_scc1 L_end")

X0, P0, Q0, K0, WB0 = 128, 64, 96, 48, 24
vA, vH, vL16, vR, vNM, vTag, vFl, T0, ONES = 1, 5, 7, 8, 9, 10, 11, 12, 20
sNL2E, sHI, sL2E, sEPS6 = "s38", "s39", "s76", "s77"
sA2, sFL, sKV, sTmp = "s78", "s79", "s80", "s81"
sM1, sM2, sM3 = "s[82:83]", "s[84:85]", "s[86:87]"
def XF(t, s): return X0 + 64 * t + 4 * s
ACC, XRAW = XF(1, 0), XF(0, 0)
SLOT = [(XF(0, 2 + j), XF(1, 4 + j)) for j in range(6)] + [(XF(1, 10), XF(1, 11))] + [(XF(0, 8 + 2 * j), XF(0, 9 + 2 * j)) for j in range(4)] + [(XF(1, 12), XF(1, 13)), (XF(1, 14), XF(1, 15))]
SLOT_DEAD = [4 + j for j in range(6)] + [11]

class Compute:
    def __init__(self, a, cfg, typ):
        self.a, self.cfg, self.typ = a, cfg, typ
        self.it, self.scr = make_items(cfg, typ)
        self.bars = []; self.full = 0; self.freed = 0; self.mark = 0; self.cur = -1
        self.win = {}
        self.st = Stamps(a, cfg, list(range(44, 64, 2)) + list(range(20, 36, 2)))
    def find(self, **kw):
        for x in self.it:
            if all(x.get(k) == v for k, v in kw.items()): return x
        raise KeyError(kw)
    def barrier(self, full, freed, extra=0, **kw):
        slots = pipe = 0
        for l in self.a.out[self.mark:]:
            l = l.strip()
            if l.endswith(":"): continue
            if l.startswith("v_mfma"): slots += 2; pipe += 32 if "32x32" in l else 16
            elif l.startswith(("v_exp", "v_rcp", "v_sqrt", "v_rsq")): slots += 2
            else: slots += 1
        self.a("s_barrier"); self.mark = len(self.a.out)
        self.full = max(self.full, full); self.freed = max(self.freed, freed)
        self.bars.append(dict(full=self.full, freed=self.freed, dur=max(4.2 * slots, pipe) + 40 + extra, step=self.cur, **kw))
    def lds(self, op, dst, areg, addr):
        w = self.win.setdefault(areg, 0)
        if not (0 <= addr - w <= 65535):
            nw = addr & ~8191
            self.a(f"v_add_u32 v{areg}, {(nw - w) & 0xffffffff:#x}, v{areg}")
            self.win[areg] = w = nw
        self.a(f"{op} {dst}, v{areg} offset:{addr - w}")

    def step(self, n):
        u, ks = divmod(n, 32)
        buf = WB0 + 8 * (n % 3)
        it = self.it[16 + n // 4]
        acc = P0 if u % 2 == 0 else Q0
        rd = []; mf = []
        order = ((0, 0), (0, 1), (1, 1), (1, 0))
        if self.typ == "F" and u == MIXU:
            blk, s = ks // 16, ks % 16
            rd = [(buf + 4 * e + 2 * t2, vH + e, it["addr"] + (ks % 4) * 2048 + t2 * 1024) for e in range(2) for t2 in range(2)]
            for e, t in order:
                d = acc + 16 * blk + 8 * t + 4 * e
                mf.append(M16(d, buf + 4 * e, XF(t, s), "0" if s == 0 else d))
        else:
            s, cp = ks // 2, ks % 2
            nt = self.typ == "A" and u < 2
            rd = [(buf + 4 * e + 2 * t2, vA + 2 * cp + e, it["addr"] + (s % 2) * 4096 + t2 * 2048) for e in range(2) for t2 in range(2)]
            for e, t in order:
                cb = 2 * cp + e
                d = acc + (8 * cb + 4 * t if nt else 16 * t + 4 * cb)
                w, x = buf + 4 * e, XF(t, s)
                mf.append(M16(d, x if nt else w, w if nt else x, "0" if s == 0 else d))
        return dict(it=it, rd=rd, mf=mf, buf=buf)
    BARS = [8, 16, 32, 48, 64, 80, 96, 112, 128, 144, 152]
    def freed_at(self, n):
        return 16 + (n + 1) // 4
    def read(self, n, j):
        if n >= 160: return
        s = self.step(n)
        if j == 0 and n in self.BARS:
            nxt = min([b for b in self.BARS if b > n] + [160])
            self.barrier(16 + nxt // 4, self.freed_at(n - 2), gate=[g for g, at in ((0, self.cfg.gate0_at), (8, self.cfg.gate8_at)) if at == n])
        assert s["it"]["n"] < self.full, (n, self.full)
        d, r, ad = s["rd"][j]
        self.lds("ds_read_b64_tr_b16", vr(d, 2), r, ad)
    def cost(self, f):
        if isinstance(f, tuple) and f[0] == "gap": return 0
        if isinstance(f, str) and f.startswith(("v_exp", "v_rcp", "v_mfma")): return 2
        return 1
    def run_fill(self, fl, budget):
        used = 0
        while fl and used < budget:
            f = fl[0]
            if isinstance(f, tuple) and f[0] == "gap":
                if self.gap < f[1]: break
                fl.pop(0); continue
            fl.pop(0); used += self.cost(f)
            if callable(f): f()
            elif isinstance(f, tuple): self.a.e(f[0], tag=f[1])
            else: self.a(f)
        return used
    def unit(self, n0, nsteps, fl, rate=None, start=5, side=()):
        fl = list(fl); side = list(side)
        if self.cfg.nofill: fl = [f for f in fl if not (isinstance(f, str) and f.startswith(("v_mul_f32", "v_exp", "v_rcp", "v_add_f32", "v_max", "v_cvt", "v_lshlrev", "v_and_b32 v1")))]
        cost = sum(self.cost(f) for f in fl)
        if rate is None: rate = cost / (4 * nsteps - start - 1.5)
        credit = 0.0; self.gap = 0
        for n in range(n0, n0 + nsteps):
            s = self.step(n); self.cur = n
            self.a.need(vr(s["buf"], 8))
            for j in range(4):
                self.a(s["mf"][j])
                self.read(n + 2, j)
                if self.gap >= start:
                    credit = min(credit + rate, rate + 1.5)
                    credit -= self.run_fill(fl, credit - 0.5)
                self.run_fill(side, 1)
                self.gap += 1
        self.gap = 10 ** 9
        if side:
            print(f"  [{self.typ}] unit at {n0}: {len(side)} side fillers left over", file=sys.stderr)
            self.run_fill(side, 10 ** 9)
        if fl:
            print(f"  [{self.typ}] unit at {n0}: {len(fl)} fillers left over", file=sys.stderr)
            self.run_fill(fl, 10 ** 9)

    def f_silu(self, src, n, pack):
        fl = []
        for g in range(0, n, 4):
            t = T0 + (g // 4 % 2) * 4
            fl += [f"v_mul_f32 v{t+i}, {sNL2E}, v{src+g+i}" for i in range(4)]
            fl += [f"v_exp_f32 v{t+i}, v{t+i}" for i in range(4)]
            fl += [f"v_add_f32 v{t+i}, 1.0, v{t+i}" for i in range(4)]
            fl += [f"v_rcp_f32 v{t+i}, v{t+i}" for i in range(4)]
            fl += [f"v_mul_f32 v{src+g+i}, v{src+g+i}, v{t+i}" for i in range(4)]
            if pack is not None:
                fl += [f"v_cvt_pk_bf16_f32 v{pack+g//2+i}, v{src+g+2*i}, v{src+g+2*i+1}" for i in range(2)]
        return fl
    def f_phi(self, src, n, pack):
        fl = []
        for g in range(0, n, 4):
            t = T0 + (g // 4 % 2) * 4
            fl += [f"v_mul_f32 v{t+i}, {sL2E}, v{src+g+i}" for i in range(4)]
            fl += [f"v_exp_f32_e64 v{t+i}, v{t+i} clamp" for i in range(4)]
            fl += [f"v_max_f32 v{src+g+i}, {sEPS6}, v{src+g+i}" for i in range(4)]
            fl += [f"v_add_f32 v{src+g+i}, v{src+g+i}, v{t+i}" for i in range(4)]
            fl += [f"v_cvt_pk_bf16_f32 v{pack+g//2+i}, v{src+g+2*i}, v{src+g+2*i+1}" for i in range(2)]
        return fl
    def f_finish(self, U, tag):
        fl = [f"s_add_u32 {sTmp}, {sA2}, {U*8192}"]
        for g in range(0, 16, 2):
            t = T0 + (g // 2 % 2) * 4
            for i in range(2):
                fl += [f"v_lshlrev_b32 v{t+2*i}, 16, v{K0+g+i}", f"v_and_b32 v{t+2*i+1}, {sHI}, v{K0+g+i}"]
            fl += [f"v_mul_f32 v{t+i}, v{t+i}, v{Q0+2*g+i}" for i in range(4)]
            fl += [f"v_cvt_pk_bf16_f32 v{K0+g+i}, v{t+2*i}, v{t+2*i+1}" for i in range(2)]
            if g % 4 == 2:
                q = g // 4
                fl.append((f"buffer_store_dwordx4 {vr(K0+4*q,4)}, v{vL16}, {srd('ws')}, {sTmp} offen offset:{(2*(q%2)+q//2)*1024} sc1", tag))
                if q in (0, 3): fl.append(lambda q=q: self.st(f"_s{q}{tag}"))
        return fl
    def flag(self, U, tag):
        a = self.a
        a(f"s_add_u32 {sTmp}, {sFL}, {U*512}")
        self.st("_w" + tag); a.wait_tag(tag); self.st("_d" + tag)
        a(f"buffer_store_dword v{vTag}, v{vFl}, {srd('ws')}, {sTmp} offen sc1")
    def f_nonce(self):
        a = self.a
        def chk():
            L = a.newlabel("Ln"); C = a.newlabel("Lc")
            a(f"v_cmp_eq_u32 vcc, 0, v{vTag}")
            a(f"s_cbranch_vccnz {L}")
            a.label(C)
            a.stubs += [f"{L}:", f"    buffer_load_dword v{vTag}, off, {srd('dbg')}, 0 sc1", f"    s_sub_u32 {sT}, {sT}, 1", "    s_cbranch_scc1 L_end",
                        "    s_waitcnt vmcnt(0)", f"    v_cmp_eq_u32 vcc, 0, v{vTag}", f"    s_cbranch_vccnz {L}", f"    s_branch {C}"]
        return f"buffer_load_dword v{vTag}, off, {srd('dbg')}, 0 sc1", chk

    def prologue(self):
        a, cfg = self.a, self.cfg
        a("v_and_b32 v0, 63, v0")
        if cfg.pf_code:
            a("s_getpc_b64 s[98:99]"); a.label("L_pc")
            a(f"s_sub_u32 s98, s98, L_pc-{NAME}_kernel", "s_subb_u32 s99, s99, 0")
            a("s_lshr_b32 s96, s2, 3", "s_lshl_b32 s96, s96, 2", f"s_add_u32 s96, s96, {sW}", "s_mul_i32 s96, s96, 5")
            a("v_min_u32 v12, 4, v0", "v_add_u32 v12, s96, v12", "v_lshlrev_b32 v12, 7, v12", f"v_min_u32 v12, L_last-{NAME}_kernel, v12")
            a.raw(f"    global_load_dword v{vNM}, v12, s[98:99]")
        if cfg.pf_tlb:
            a(f"s_cmp_lg_u32 {sW}, 1", "s_cbranch_scc1 L_tlb")
            for x in ("v_min_u32 v12, 9, v0", "v_lshlrev_b32 v13, 3, v12", f"global_load_dwordx2 v[{Q0}:{Q0+1}], v13, s[0:1]",
                      "v_min_u32 v13, 14, v0", "v_sub_u32 v13, v13, v12", "v_lshlrev_b32 v13, 21, v13", "s_waitcnt vmcnt(0)",
                      f"v_add_co_u32 v{Q0}, vcc, v{Q0}, v13", "s_nop 1", f"v_addc_co_u32 v{Q0+1}, vcc, 0, v{Q0+1}, vcc",
                      f"global_load_dword v{vR}, v[{Q0}:{Q0+1}], off"):
                a.raw("    " + x)
            a.label("L_tlb")
        if cfg.cprio: a(f"s_setprio {cfg.cprio}")
        a(f"v_lshlrev_b32 v{vL16}, 4, v0")
        a("v_and_b32 v12, 15, v0", "v_lshrrev_b32 v13, 4, v0", "v_lshrrev_b32 v14, 1, v12", "v_xor_b32 v14, v13, v14", "v_lshlrev_b32 v14, 4, v14",
          "v_lshl_add_u32 v14, v12, 7, v14", f"s_lshl_b32 {sTmp}, {sW}, 11", f"v_add_u32 v{P0}, {sTmp}, v14", f"v_xor_b32 v{P0+1}, 64, v{P0}")
        for i in range(4): a(f"v_mov_b32 v{ONES+i}, 0x3f803f80")
        a("v_lshlrev_b32 v14, 2, v13", "v_sub_u32 v14, v12, v14")
        for i in range(4): a(f"v_cmp_eq_u32 s[{88+2*i}:{89+2*i}], {i}, v14")
        a(f"s_mov_b32 {sNL2E}, 0xbfb8aa3b", f"s_mov_b32 {sL2E}, 0x3fb8aa3b", f"s_mov_b32 {sHI}, 0xffff0000", f"s_mov_b32 {sEPS6}, 0x358637bd")
        a("v_lshrrev_b32 v15, 5, v0", "v_bfe_u32 v16, v0, 2, 2", "v_lshl_add_u32 v16, v15, 2, v16", "v_and_b32 v17, 1, v13", "v_lshl_add_u32 v16, v17, 3, v16")
        a("v_and_b32 v18, 3, v0", "v_lshlrev_b32 v18, 3, v18", "v_lshl_add_u32 v19, v16, 6, v18", f"v_lshl_add_u32 v{vH}, v17, 5, v19", f"v_xor_b32 v{vH+1}, 32, v{vH}")
        a("v_lshl_add_u32 v19, v16, 7, v18", "v_bfe_u32 v18, v0, 3, 2", f"v_lshl_add_u32 v{vA}, v18, 5, v19")
        for cb in range(1, 4): a(f"v_xor_b32 v{vA+cb}, {cb*32}, v{vA}")
        a("v_lshlrev_b32 v18, 2, v0", f"v_lshl_add_u32 v{vFl}, v15, 30, v18")
        a("v_and_b32 v14, 31, v0", "v_lshlrev_b32 v15, 3, v15", "v_sub_u32 v15, v14, v15")
        a("v_and_b32 v16, 1, v15", "v_lshlrev_b32 v16, 4, v16", "v_mov_b32 v17, 0x3f80", "v_lshlrev_b32 v16, v16, v17", "v_lshrrev_b32 v15, 1, v15")
        for t in range(8):
            a(f"v_cmp_eq_u32 vcc, {t if t < 4 else t + 4}, v15", f"v_cndmask_b32 v{K0+t}, 0, v16, vcc")
        a(f"s_lshr_b32 {sTmp}, {sW}, 1", f"s_lshl_b32 {sA2}, {sC}, 1", f"s_add_u32 {sA2}, {sA2}, {sTmp}", f"s_mul_i32 {sA2}, {sA2}, 36",
          f"s_add_u32 {sA2}, {sA2}, {sI}", f"s_lshl_b32 {sA2}, {sA2}, 1", f"s_and_b32 {sTmp}, {sW}, 1", f"s_add_u32 {sA2}, {sA2}, {sTmp}")
        a(f"s_lshl_b32 {sFL}, {sA2}, 8", f"s_add_u32 {sFL}, {sFL}, {WS_FLAG:#x}", f"s_lshl_b32 {sA2}, {sA2}, 12", f"s_add_u32 {sA2}, {sA2}, {WS_A2:#x}")
        a("s_waitcnt lgkmcnt(0)")
        for n in ("ws", "out", "dbg", "x"): mk_srd(a, n)
        a(f"s_mul_i32 s96, {sTB}, {36*8192}", f"s_lshl_b32 s97, {sW}, 11", "s_add_u32 s96, s96, s97", f"s_add_u32 s96, s96, {WS_A2:#x}")
        for j in range(12):
            if cfg.rot2: a(f"s_add_u32 s97, {'s2' if cfg.rot2 == 1 else sCB}, {j%8}", f"s_and_b32 s97, s97, {7 if j < 8 else 3}", "s_lshl_b32 s97, s97, 13", f"s_add_u32 s{8+j}, s96, s97")
            else: a(f"s_add_u32 s{8+j}, s96, {(j%8)*8192}")
        a(f"s_lshl_b32 s99, {sTB}, 2", f"s_add_u32 s99, s99, {sW}", "s_lshl_b32 s99, s99, 14", f"s_lshl_b32 s97, {sCB}, 7", "s_add_u32 s99, s99, s97")
        a("s_mov_b32 s82, 0xffff0000", "s_mov_b32 s83, 0", "s_mov_b32 s84, 0", "s_mov_b32 s85, 0xffff", "s_mov_b32 s86, 0", "s_mov_b32 s87, 0xffff0000")
        a(f"s_lshl_b32 {sKV}, {sI}, 2", f"s_add_u32 {sKV}, {sKV}, {sW}", f"s_lshl_b32 {sKV}, {sKV}, 4", f"s_add_u32 {sKV}, {sKV}, {sC}",
          f"s_mul_i32 {sKV}, {sKV}, 1152", f"s_add_u32 {sKV}, {sKV}, {WS_KV:#x}")
        pA, pB = self.scr
        a(f"s_mov_b32 s97, {pA}", f"s_mov_b32 s98, {pB}", f"s_cmp_lt_u32 {sW}, 2", "s_cselect_b32 s97, s97, s98", f"s_and_b32 s98, {sW}, 1", "s_lshl_b32 s98, s98, 12", "s_add_u32 s97, s97, s98")
        a(f"s_lshr_b32 s96, {sI}, 1", f"s_sub_u32 s96, s96, {sI}", "s_add_u32 s96, s96, 24", "s_lshl_b32 s96, s96, 2", f"s_and_b32 s98, {sI}, 1", "s_add_u32 s96, s96, s98",
          "s_lshl_b32 s100, s96, 11", f"s_add_u32 s100, s100, {sA2}", "s_lshl_b32 s101, s96, 7", f"s_add_u32 s101, s101, {sFL}")
        L = "L_tag0"
        a(f"s_or_b32 s96, s2, {sW}", "s_cmp_lg_u32 s96, 0", f"s_cbranch_scc1 {L}")
        a.raw(f"    buffer_load_dword v{vTag}, off, {srd('ws')}, 0 sc1")
        a.label(L)
    def tag_publish(self):
        a = self.a
        L = "L_tag1"
        a("s_cmp_lg_u32 s96, 0", f"s_cbranch_scc1 {L}")
        for x in ("s_waitcnt vmcnt(0)", f"v_add_u32 v{vTag}, 0x9e377902, v{vTag}", f"v_or_b32 v{vTag}, 0x80000000, v{vTag}", "s_mov_b64 exec, 1",
                  f"buffer_store_dword v{vTag}, off, {srd('dbg')}, 0 sc1", f"buffer_store_dword v{vTag}, off, {srd('ws')}, 0 sc1", "s_mov_b64 exec, -1"):
            a.raw("    " + x)
        a.label(L)
    def stats_fin(self, S1, S2):
        t = T0
        fl = [f"v_cndmask_b32 v{t+2}, 0, v{S2}, s[88:89]"] + [f"v_cndmask_b32 v{t+2}, v{t+2}, v{S2+i}, s[{88+2*i}:{89+2*i}]" for i in range(1, 4)]
        fl += [f"v_mov_b32 v{t+3}, v{t+2}", f"v_mul_f32 v{t}, 0x3b000000, v{S1}", f"v_permlane32_swap_b32 v{t+2}, v{t+3}", f"v_add_f32 v{t+2}, v{t+2}, v{t+3}",
               f"v_mov_b32 v{t+3}, v{t+2}", f"v_mul_f32 v{t+1}, v{t}, v{t}", f"v_permlane16_swap_b32 v{t+2}, v{t+3}", f"v_add_f32 v{t+2}, v{t+2}, v{t+3}"]
        fl += [f"v_mul_f32 v{t+2}, 0x3b000000, v{t+2}", f"v_sub_f32 v{t+2}, v{t+2}, v{t+1}", f"v_max_f32 v{t+2}, 0, v{t+2}"]
        if self.cfg.round_ln:
            fl += [f"v_cvt_pk_bf16_f32 v{t+1}, v{t}, v{t+2}", f"v_and_b32 v{t+2}, {sHI}, v{t+1}", f"v_lshlrev_b32 v{t}, 16, v{t+1}",
                   f"v_add_f32 v{t+2}, 0x3727c5ac, v{t+2}", f"v_cvt_pk_bf16_f32 v{t+2}, v{t+2}, v{t+2}", f"v_lshlrev_b32 v{t+2}, 16, v{t+2}",
                   f"v_sqrt_f32 v{t+2}, v{t+2}", f"v_cvt_pk_bf16_f32 v{t+2}, v{t+2}, v{t+2}", f"v_lshlrev_b32 v{t+2}, 16, v{t+2}", f"v_rcp_f32 v{vR}, v{t+2}"]
        else:
            fl += [f"v_add_f32 v{t+2}, 0x3727c5ac, v{t+2}", f"v_rsq_f32 v{vR}, v{t+2}"]
        fl += [f"v_mul_f32_e64 v{vNM}, -v{t}, v{vR}"]
        return fl
    def unpack(self, t, p):
        d = vr(Q0 + 16 * (p % 2), 16)
        return [f"v_mfma_f32_32x32x16_bf16 {d}, {vr(K0,4)}, {vr(XF(t,2*p),4)}, 0",
                f"v_mfma_f32_32x32x16_bf16 {d}, {vr(K0+4,4)}, {vr(XF(t,2*p+1),4)}, {d}"]
    def f_center(self, t, p):
        d = Q0 + 16 * (p % 2); fl = []
        for g in range(0, 16, 4):
            fl += [f"v_fma_f32 v{d+g+i}, v{d+g+i}, v{vR}, v{vNM}" for i in range(4)]
            fl += [f"v_cvt_pk_bf16_f32 v{XF(t,2*p)+g//2+i}, v{d+g+2*i}, v{d+g+2*i+1}" for i in range(2)]
        return fl
    def xphase(self):
        a, cfg = self.a, self.cfg
        S = P0 + 4
        groups = [[0, 1], [2, 3, 4, 5], [6, 7], [8, 9], [10, 11, 12], [13, 14, 15]]
        bg = self.unpack(0, 0) + self.unpack(0, 1) + self.stats_fin(S, S + 4)
        for p in range(8):
            bg += self.f_center(0, p)
            if p + 2 < 8: bg += self.unpack(0, p + 2)
        bg += self.unpack(1, 0) + self.unpack(1, 1)
        self.gap = 0
        for gi, g in enumerate(groups):
            self.barrier(g[-1] + 1, g[0], phase="x")
            if gi == 0: self.st("x0")
            if gi == len(groups) - 1: self.st("x7")
            fr = []
            for i in g:
                t, s = XORD[i]
                for e in range(2):
                    self.lds("ds_read_b128", vr(XF(t, 2 * s + e), 4), P0 + e, self.it[i]["addr"]); fr.append((t, 2 * s + e))
            if gi == 1:
                a("s_waitcnt vmcnt(0)"); self.tag_publish()
            if gi >= 4: self.run_fill(bg, 24)
            for t, s in fr:
                x = XF(t, s)
                a(M16(S + 8 * t, ONES, x, "0" if s == 0 else S + 8 * t), M16(S + 8 * t + 4, x, x, "0" if s == 0 else S + 8 * t + 4))
                if gi >= 4: self.run_fill(bg, 4)
            if gi == 3: self.run_fill(bg, cfg.xq3)
            if gi == 4: self.run_fill(bg, cfg.xq4)
        self.run_fill(bg, 10 ** 9)
        assert not bg
        self.barrier(18, 16, phase="x")
        for n in range(2):
            for j in range(4): self.read(n, j)
        for f in self.stats_fin(S + 8, S + 12) + self.f_center(1, 0): a(f)
        self.st("u0")
        self.split = len(a.out)
    def unit0(self):
        a = self.a
        self.gap = 0
        for p in range(8):
            fl = self.f_center(1, p + 1) if p + 1 < 8 else []
            up = self.unpack(1, p + 2) if p + 2 < 8 else []
            for e in range(4):
                n = 4 * p + e; s = self.step(n); self.cur = n
                if up and e % 2 == 0:
                    a(up[e // 2]); self.run_fill(fl, 4)
                a.need(vr(s["buf"], 8))
                for j in range(4):
                    a(s["mf"][j]); self.read(n + 2, j)
                    self.run_fill(fl, 1 if up else 2)
            assert not fl
    def f_xres(self):
        t = vNM
        pre = [f"v_bfe_u32 v{t}, v0, 4, 1", f"v_lshrrev_b32 v{vR}, 5, v0", f"v_lshl_add_u32 v{vR}, v{t}, 1, v{vR}", f"v_lshlrev_b32 v{vR}, 4, v{vR}",
               f"v_and_b32 v{t}, 15, v0", f"v_lshl_add_u32 v{vR}, v{t}, 10, v{vR}",
               f"v_lshrrev_b32 v{t}, 5, v0", f"v_bfe_u32 v{ONES}, v0, 4, 1", f"v_sub_u32 v{t}, v{t}, v{ONES}", f"v_lshlrev_b32 v{t}, 9, v{t}",
               f"s_and_b32 s96, {sW}, 1", "s_lshl_b32 s96, s96, 10", f"v_add_u32 v{ONES+1}, s96, v{vL16}", f"v_xor_b32 v{ONES+2}, 0x400, v{ONES+1}",
               "s_lshl_b32 s96, s96, 2", f"v_add_u32 v{t}, s96, v{t}"]
        ld = [f"buffer_load_dwordx4 {vr(XRAW+4*k,4)}, v{vR}, {srd('x')}, s99 offen offset:{64*k}" for k in range(2)]
        post = [lambda: self.st("_xq0"), lambda: self.a.need(vr(XRAW, 8)), lambda: self.st("_xq1")]
        for k in range(2): post += [f"v_permlane16_swap_b32 v{XRAW+4*k}, v{XRAW+4*k+2}", f"v_permlane16_swap_b32 v{XRAW+4*k+1}, v{XRAW+4*k+3}"]
        for i in range(8): post += [f"v_lshlrev_b32 v{ACC+2*i}, 16, v{XRAW+i}", f"v_and_b32 v{ACC+2*i+1}, {sHI}, v{XRAW+i}"]
        return pre, ld, post
    def a2_loads(self, u):
        S, U, n = stage_of(u)
        r = f"s{8+u-S}" if n == 8 else f"s{16+u-S}"
        b = SLOT[u % len(SLOT)]
        return [f"s_add_u32 {sTmp}, {r}, {U*8192}"] + [f"buffer_load_dwordx4 {vr(b[s],4)}, v{ONES+1+s}, {srd('ws')}, {sTmp} offen sc1" for s in range(2)]
    @staticmethod
    def merge(*lists):
        segs = []
        for l in lists:
            for f in l:
                if isinstance(f, tuple) and f[0] == "gap": segs.append([f])
                else: segs[-1].append(f)
        return [f for sg in sorted(segs, key=lambda x: x[0][1]) for f in sg]
    def f_pre(self, g0):
        fl = []
        assert g0 >= (self.cfg.gate0_at - 2 - 128) * 4 + 1 or self.n_pre == 0
        for u in range(self.n_pre):
            fl += [("gap", max(g0 + u * self.cfg.pre_step, 8 * SLOT_DEAD[u] + 8))] + [x.replace(sTmp, "s98") for x in self.a2_loads(u)]
        return fl
    def typeA(self):
        a, cfg = self.a, self.cfg
        ld, chk = self.f_nonce()
        pA, pB = self.scr
        self.xphase()
        self.unit0(); self.st("u1")
        self.unit(32, 32, [ld] + self.f_phi(P0, 32, K0) + [chk]); self.st("u2")
        t = T0
        fl = [f"v_cvt_pk_bf16_f32 v{Q0+i}, v{Q0+2*i}, v{Q0+2*i+1}" for i in range(16)]
        fl += [f"v_add_u32 v{t}, s97, v{vL16}", f"s_lshl_b32 {sTmp}, {sW}, 8", f"v_lshrrev_b32 v{t+1}, 2, v{vL16}"]
        fl += [M16(Q0 + 16 + 4 * h, K0 + 4 * h, Q0 + 4 * h, "0") for h in range(4)]
        fl += [M16(Q0 + 4 * h, ONES, K0 + 4 * h, "0") for h in range(4)]
        fl += [f"v_and_b32 v{t+2}, 60, v{t+1}", f"v_add_u32 v{t+1}, {sTmp}, v{t+1}", f"s_lshl_b32 {sTmp}, {sW}, 6", f"v_add_u32 v{t+2}, {sTmp}, v{t+2}",
               f"s_lshl_b32 {sTmp}, {sW}, 10", f"v_add_u32 v{t+3}, {sTmp}, v{vL16}", f"v_add_u32 v{t+4}, {pB}, v{t+3}", f"v_add_u32 v{t+3}, {pA}, v{t+3}"]
        def wchk(): assert self.freed >= SCR_NEED, self.freed
        fl += [f"v_cndmask_b32 v{Q0}, v{Q0}, v{Q0+4}, {sM1}", f"v_cndmask_b32 v{Q0}, v{Q0}, v{Q0+8}, {sM2}", f"v_cndmask_b32 v{Q0}, v{Q0}, v{Q0+12}, {sM3}", wchk]
        fl += [f"ds_write_b128 v{t}, {vr(Q0+16+4*h,4)} offset:{h*1024}" for h in range(4)] + [(f"ds_write_b32 v{t+1}, v{Q0} offset:{ZR_OFF}", "kvw")]
        def xbar():
            assert not any(e[1] == "kvw" for e in a.lg)
            self.barrier(0, self.freed_at(self.cur))
        fl += [("gap", 45), xbar]
        fl += [f"ds_read_b128 {vr(Q0+4*s,4)}, v{t+3+s//2} offset:{(s%2)*4096}" for s in range(4)]
        fl += [f"ds_read_b32 v{Q0+16+s}, v{t+2} offset:{ZR_OFF+s*256}" for s in range(4)] + [f"v_mov_b32 v{t+5}, 0xff", ("gap", 57)]
        for s in range(1, 4): fl += [f"v_add_f32 v{Q0+r}, v{Q0+r}, v{Q0+4*s+r}" for r in range(4)] + [f"v_add_f32 v{Q0+16}, v{Q0+16}, v{Q0+16+s}"]
        fl += [f"v_bfi_b32 v{Q0+r}, v{t+5}, v{vTag}, v{Q0+r}" for r in (0, 16)]
        fl += [f"buffer_store_dwordx4 {vr(Q0,4)}, v{vL16}, {srd('ws')}, {sKV} offen sc1", f"buffer_store_dword v{Q0+16}, v{vFl}, {srd('ws')}, {sKV} offen offset:1024 sc1"]
        def rchk(): assert self.freed < SCR_REL, self.freed; self.st("kv")
        fl += [rchk] + self.f_xres()[0]
        self.unit(64, 32, fl, rate=2); self.st("u3")
        self.unit(96, 32, self.f_silu(P0, 32, K0)); self.st("u4")
        xp, xl, xq = self.f_xres()
        self.n_pre = cfg.n_preA
        side = self.merge([("gap", cfg.xl_gap)] + xl + [("gap", cfg.xq_gap)] + xq, self.f_pre(cfg.preA_gap))
        late = [lambda: self.flag(16, "h")]
        self.unit(128, 32, self.f_finish(16, "h") + ([] if cfg.hA_epi else [("gap", cfg.hA_gap)] + late), rate=cfg.finA_rate / 10, start=cfg.finA_start, side=side); self.st("fin")
        OPK, OPZ, DEN, NUM = 240, 248, 160, (Q0, Q0 + 16)
        a(f"v_lshrrev_b32 v{t}, 1, v{vL16}", f"v_lshrrev_b32 v{t+1}, 4, v0", f"v_lshlrev_b32 v{t+1}, 3, v{t+1}", f"s_add_u32 s88, {sA2}, {28*8192}")
        self.cur = 160
        self.n_pre += cfg.n_epi; assert self.n_pre <= 7
        self.p2_plan()
        self.barrier(56 + self.p2b[0] + 1, 56, op=True, gate=[g for g, at in ((0, cfg.gate0_at), (8, cfg.gate8_at)) if at == 160])
        self.st("_e0")
        for h in range(4):
            a(f"ds_read_b64 {vr(OPK+2*h,2)}, v{t} offset:{OP_OFF+h*576}", f"ds_read_b64 {vr(OPZ+2*h,2)}, v{t+1} offset:{OP_OFF+h*576+512}")
        def mm(tt):
            o = []
            for h in range(4):
                b = vr(P0 + 16 * tt + 2 * h, 2)
                o += [f"v_mfma_f32_16x16x16_bf16 {vr(DEN+16*tt+4*h,4)}, {vr(OPZ+2*h,2)}, {b}, 0", f"v_mfma_f32_16x16x16_bf16 {vr(NUM[tt]+4*h,4)}, {vr(OPK+2*h,2)}, {b}, 0"]
            return o
        def post(tt):
            n, d = NUM[tt], DEN + 16 * tt
            for h in range(4): a(f"v_add_f32 v{d+4*h}, {sEPS6}, v{d+4*h}")
            for h in range(4): a(f"v_rcp_f32 v{d+4*h}, v{d+4*h}")
            for s2 in range(2):
                for i in range(8): a(f"v_mul_f32 v{n+8*s2+i}, v{n+8*s2+i}, v{d+8*s2+4*(i//4)}")
                o = K0 + 8 * tt + 4 * s2
                for i in range(4): a(f"v_cvt_pk_bf16_f32 v{o+i}, v{n+8*s2+2*i}, v{n+8*s2+2*i+1}")
                a.e(f"buffer_store_dwordx4 {vr(o,4)}, v{vL16}, {srd('ws')}, s88 offen offset:{(2*s2+tt)*1024} sc1", tag="o")
        body = []
        for tt in range(2): body += self.f_phi(P0 + 16 * tt, 16, P0 + 16 * tt) + (late if tt == 1 and cfg.hA_epi else []) + mm(tt)
        per = len(body) // (cfg.n_epi + 1)
        for i, f in enumerate(body):
            if i % per == 0 and i // per < cfg.n_epi:
                for x in self.a2_loads(cfg.n_preA + i // per): a(x)
            f() if callable(f) else a(f)
        self.st("_e1")
        post(0)
        self.st("_e2")
        self.p2_start()
        post(1)
        self.st("p2")
        self.phase2({cfg.late_at: lambda: self.flag(28, "o")})
    def typeF(self):
        a, cfg = self.a, self.cfg
        ld, chk = self.f_nonce()
        self.xphase()
        self.unit0(); self.st("u1")
        self.unit(32, 32, [ld] + self.f_silu(P0, 32, K0) + [chk]); self.st("u2")
        xp, xl, xq = self.f_xres()
        self.unit(64, 16, self.f_finish(0, "h1"))
        fl = self.f_silu(P0, 16, None)
        fl.insert(cfg.h1_flag, lambda: self.flag(0, "h1"))
        self.unit(80, 16, fl); self.st("u3")
        fl = []
        for k in range(2):
            fl += [f"v_mul_f32 v{P0+8*k+i}, v{P0+8*k+i}, v{P0+16+8*k+i}" for i in range(8)]
            fl += [f"v_cvt_pk_bf16_f32 v{K0+4*k+i}, v{P0+8*k+2*i}, v{P0+8*k+2*i+1}" for i in range(4)]
            fl += [(f"buffer_store_dwordx4 {vr(K0+4*k,4)}, v{vL16}, {srd('ws')}, s100 offen offset:{k*1024} sc1", "h2")]
        def f2():
            self.st("_wh2"); a.wait_tag("h2"); self.st("_dh2")
            a(f"buffer_store_dword v{vTag}, v{vFl}, {srd('ws')}, s101 offen sc1")
        self.unit(96, 32, fl + xp + [("gap", cfg.h2_gap), f2], rate=0.75); self.st("u4")
        self.n_pre = cfg.n_preF
        side = self.merge([("gap", cfg.xl_gap)] + xl + [("gap", cfg.xq_gap)] + xq, self.f_pre(cfg.preF_gap))
        self.unit(128, 32, self.f_silu(Q0, 32, None), side=side); self.st("fin")
        self.cur = 160
        self.n_pre += cfg.n_epiF
        self.p2_plan()
        self.barrier(56 + self.p2b[0] + 1, 56, gate=[g for g, at in ((0, cfg.gate0_at), (8, cfg.gate8_at)) if at == 160])
        for u in range(cfg.n_preF, self.n_pre):
            for x in self.a2_loads(u): a(x)
        self.p2_start()
        a(f"s_add_u32 s88, {sA2}, {8*8192}")
        for q in range(4):
            for i in range(8): a(f"v_mul_f32 v{P0+8*q+i}, v{P0+8*q+i}, v{Q0+8*q+i}")
            for i in range(4): a(f"v_cvt_pk_bf16_f32 v{K0+4*q+i}, v{P0+8*q+2*i}, v{P0+8*q+2*i+1}")
            a.e(f"buffer_store_dwordx4 {vr(K0+4*q,4)}, v{vL16}, {srd('ws')}, s88 offen offset:{(2*(q%2)+q//2)*1024} sc1", tag="h3")
        self.st("p2")
        self.phase2({cfg.late_at: lambda: self.flag(8, "h3")})
    def p2_plan(self):
        cfg = self.cfg
        nxt = self.n_pre; self.p2l = {}; self.p2g = {}; bars = []
        last_w = max(x["need"] for x in self.it) - 57
        for u in range(36):
            ld = []
            while nxt < 36 and nxt <= u + cfg.D and len(ld) < 2:
                if nxt in STAGES and not (nxt == 8 and cfg.gate8_at <= 160): self.p2g[u] = [nxt]
                ld.append(nxt); nxt += 1
            self.p2l[u] = ld
        prev = cfg.p2_first - cfg.p2_bar
        for u in range(36):
            nextg = min([g for g in self.p2g if g >= u] + [99])
            if u in self.p2g or (u - prev >= cfg.p2_bar and nextg - u >= 2 and prev <= last_w + 8):
                bars.append(u); prev = u
        self.p2b = bars + [35]
    def p2_read(self, m, j):
        if m >= 72: return
        u, cp = m // 2, m & 1
        w = self.find(k="w2", u=u); assert w["n"] < self.full, (m, w, self.full)
        e, t2 = j // 2, j % 2
        self.lds("ds_read_b64_tr_b16", vr(WB0 + 8 * (m % 3) + 4 * e + 2 * t2, 2), vA + 2 * cp + e, w["addr"] + t2 * 2048)
    def p2_start(self):
        for cb in range(4): self.a(f"v_add_u32 v{vA+cb}, v{vNM}, v{vA+cb}")
        for m in range(2):
            for j in range(4): self.p2_read(m, j)
    def phase2(self, hooks):
        a, cfg = self.a, self.cfg
        pa, pb = self.find(k="w2", u=20)["addr"], self.find(k="w2", u=21)["addr"]
        assert self.p2b[-2] >= 22 and max(x["need"] for x in self.it) < 57 + 20
        tail = [f"s_mov_b32 s96, {pa}", f"s_cmp_lt_u32 {sW}, 2", f"s_cselect_b32 s96, s96, {pb}", f"s_and_b32 s97, {sW}, 1", "s_lshl_b32 s97, s97, 12",
                "s_add_u32 s96, s96, s97", f"v_add_u32 v{T0}, s96, v{vL16}", f"v_xor_b32 v{T0+1}, 0x1000, v{T0}"]
        for m in range(72):
            u, cp = m // 2, m & 1
            buf = WB0 + 8 * (m % 3); x = SLOT[u % len(SLOT)]
            extra = []
            if cp == 0:
                if u in hooks: hooks[u]()
                if u in self.p2b[:-1]:
                    a.need(vr(buf, 8))
                    self.barrier(56 + self.p2b[self.p2b.index(u) + 1] + 1, 56 + u, phase="2", gate=self.p2g.get(u))
                self.st(f"c{u}" if u in (4, 12, 20, 28, 35) else f"_c{u}")
            if len(self.p2l[u]) > cp: extra = self.a2_loads(self.p2l[u][cp])
            if u >= 30 and tail and not extra: extra = tail[:3]; tail = tail[3:]
            a.need(vr(buf, 8), vr(x[0], 4), vr(x[1], 4))
            order = ((0, 0), (0, 1), (1, 1), (1, 0)) if m < 71 else ((0, 1), (1, 1), (1, 0), (0, 0))
            for j, (e, t) in enumerate(order):
                d = (ACC, Q0)[t] + 4 * (2 * cp + e)
                a(M16(d, buf + 4 * e, x[t], "0" if (u == 0 and t == 1) else d))
                self.p2_read(m + 2, j)
                if j >= 1 and extra: a(extra.pop(0))
                if m == 71 and j >= 2: a(f"ds_write_b128 v{T0}, {vr(Q0+4*(j-2),4)} offset:{(j-2)*1024}")
        assert not tail
        for cb in (2, 3): a(f"ds_write_b128 v{T0}, {vr(Q0+4*cb,4)} offset:{cb*1024}")
        self.st("_t0")
        a("s_waitcnt lgkmcnt(0)"); a.raw("    s_barrier ; compute waves only, the loaders have ended")
        self.st("_t1")
        for cb in range(4): a(f"ds_read_b128 {vr(P0+4*cb,4)}, v{T0+1} offset:{cb*1024}")
        for k in range(2):
            o = 24 + 4 * k
            for i in range(8): a(f"v_add_f32 v{ACC+8*k+i}, v{ACC+8*k+i}, v{P0+8*k+i}")
            for i in range(4): a(f"v_cvt_pk_bf16_f32 v{o+i}, v{ACC+8*k+2*i}, v{ACC+8*k+2*i+1}")
            a(f"v_permlane16_swap_b32 v{o}, v{o+2}", f"v_permlane16_swap_b32 v{o+1}, v{o+3}")
            a(f"buffer_store_dwordx4 {vr(o,4)}, v{vR}, {srd('out')}, s99 offen offset:{64*k} {cfg.out_aux.replace('_', ' ')}")
        self.st("_t2")
        if cfg.diag:
            a("s_waitcnt vmcnt(0)"); self.st("end")
        self.st.flush(130, 129)
        a("s_endpgm")

class Loader:
    vX, vQ, vG, vD, vHh, vAa = 2, 4, 6, 8, 10, 12
    vTag, vPo, vPo2, vP = 13, 14, 15, 16
    def __init__(self, a, cfg, comp):
        self.a, self.cfg, self.it, self.typ, self.bars = a, cfg, comp.it, comp.typ, comp.bars
        self.issued = 0
        self.st = Stamps(a, cfg, list(range(88, 102, 2)) + list(range(8, 36, 2)))
    def slow_poll(self, load, cmp):
        a = self.a
        C = a.newlabel("Lc"); L = a.newlabel("Lp")
        a(cmp, f"s_cbranch_vccz {C}")
        a.label(L)
        a.raw("    " + load); timeout(a); a.raw("    s_waitcnt vmcnt(0)"); a.raw("    " + cmp); a.raw(f"    s_cbranch_vccnz {L}")
        a.label(C)
    def prologue(self):
        a = self.a
        a("v_and_b32 v0, 63, v0", f"s_sub_u32 {sW}, {sW}, 4", f"s_lshl_b32 s77, {sW}, 11")
        a("v_lshrrev_b32 v21, 3, v0", "v_and_b32 v22, 7, v0", "v_lshrrev_b32 v23, 4, v0", "v_xor_b32 v24, v22, v23", "v_lshlrev_b32 v24, 4, v24")
        a(f"v_lshl_add_u32 v{self.vX}, v21, 10, v24", f"v_xor_b32 v{self.vX+1}, 64, v{self.vX}", f"v_add_u32 v{self.vX+1}, {8*1024-1024}, v{self.vX+1}")
        a(f"s_lshl_b32 s79, {sC}, 2", f"s_add_u32 s79, s79, {sW}", "s_lshl_b32 s79, s79, 15")
        a("s_movk_i32 s85, 0x3ff", f"s_lshl_b32 s84, {sROT}, 7" if self.cfg.rot else "s_mov_b32 s84, 0", "s_and_b32 s84, s84, s85", "s_add_u32 s78, s79, s84", "s_mov_b32 m0, s77")
        if self.cfg.lprio: a(f"s_setprio {self.cfg.lprio}")
        a("s_waitcnt lgkmcnt(0)")
        mk_srd(a, "x")
    def prologue2(self):
        a = self.a
        for n in ("qkv", "gate", "up", "down", "wo", "ws", "dbg"):
            mk_srd(a, n)
        a(f"s_lshl_b32 s76, {sW}, 4", "v_add_u32 v21, s76, v21")
        a("v_lshlrev_b32 v25, 1, v23", "v_xor_b32 v24, v22, v25", "v_lshlrev_b32 v24, 4, v24", f"v_lshl_add_u32 v{self.vD}, v21, 10, v24",
          f"v_add_u32 v{self.vD+1}, {8*1024-1024}, v{self.vD}")
        a("v_and_b32 v25, 2, v25", "v_xor_b32 v24, v22, v25", "v_lshlrev_b32 v24, 4, v24", "v_xor_b32 v26, 64, v24")
        for reg, st in ((self.vQ, 3072), (self.vG, 3584)):
            a(f"v_mul_u32_u24 v25, {st}, v21", f"v_add_u32 v{reg}, v25, v24", f"v_add_u32 v{reg+1}, v25, v26", f"v_add_u32 v{reg+1}, {8*st-1024}, v{reg+1}")
        a("v_lshrrev_b32 v25, 2, v0", f"s_lshl_b32 s76, {sW}, 5", "v_add_u32 v25, s76, v25", "v_mul_u32_u24 v25, 3584, v25", "v_and_b32 v26, 3, v0",
          "v_and_b32 v27, 2, v23", "v_xor_b32 v27, v26, v27", f"v_lshl_add_u32 v{self.vHh}, v27, 4, v25", f"v_add_u32 v{self.vHh+1}, {16*3584-1024}, v{self.vHh}")
        a("v_lshlrev_b32 v27, 4, v0")
        a(f"s_and_b32 s76, {sW}, 2", "s_lshl_b32 s76, s76, 7", f"s_and_b32 s82, {sW}, 1", "s_lshl_b32 s82, s82, 11", "s_add_u32 s76, s76, s82", f"v_lshl_add_u32 v{self.vPo}, v26, 9, s76")
        a(f"s_lshl_b32 s76, {sW}, 7", f"v_lshl_add_u32 v{self.vPo2}, v26, 9, s76")
        a(f"s_lshl_b32 s80, {sI}, 7")
        a(f"s_lshl_b32 s81, {sCB}, 7")
        a(f"s_mul_i32 s83, {sTB}, {36*512}", f"s_add_u32 s83, s83, {WS_FLAG:#x}")
        a("s_lshl_b32 s86, s2, 2", f"s_add_u32 s86, s86, {sW}", "s_lshr_b32 s87, s2, 3", "s_lshl_b32 s87, s87, 2", f"s_add_u32 s87, s87, {sW}", "v_lshlrev_b32 v28, 7, v0", "v_lshlrev_b32 v30, 10, v0")
        a(f"s_lshl_b32 s82, {sI}, 2", f"s_add_u32 s82, s82, {sW}", f"s_mul_i32 s82, s82, {16*1152}", f"s_add_u32 s82, s82, {WS_KV:#x}")
        a("v_and_b32 v41, 15, v0", "v_mul_u32_u24 v42, 1152, v23", "v_lshl_add_u32 v42, v41, 2, v42")
        a(f"s_mul_i32 s76, {sW}, 576", "v_lshl_add_u32 v43, v0, 3, s76", "v_lshl_add_u32 v44, v41, 1, s76")
    def item(self, x, reg=None):
        a = self.a; k = x["k"]; aux = ""; rot = None
        if k == "x":
            n, t, sl = x["n"], x["t"], x["s"]
            assert x["addr"] == 8192 * (n + 1)
            a("s_addk_i32 m0, 0x2000")
            if n == 0: pass
            elif sl % 2 == 1: a("s_addk_i32 s78, 128")
            elif n == 2: a("s_addk_i32 s78, 0x3f80")
            else:
                if n == 10: a("s_addk_i32 s79, 0x4000", "s_addk_i32 s84, 256")
                a("s_addk_i32 s84, 256", "s_and_b32 s84, s84, s85", "s_add_u32 s78, s79, s84")
            a.e(f"buffer_load_dwordx4 v{self.vX}, {srd('x')}, s78 offen lds", tag=n)
            a.e(f"buffer_load_dwordx4 v{self.vX+1}, {srd('x')}, s78 offen offset:1024 lds", tag=n)
            self.issued = n + 1
            return
        elif k == "w1":
            u, i = x["u"], x["i"]
            if self.typ == "A":
                s, v, st, off = [("qkv", self.vQ, 3072, 1024), ("qkv", self.vQ, 3072, 2048), ("gate", self.vG, 3584, 16 * 128),
                                 ("up", self.vG, 3584, 16 * 128), ("qkv", self.vQ, 3072, 0)][u]
                base, rot = "s80", (i, 64 * st)
            elif u != MIXU:
                uu = u - (u > MIXU)
                s, v, base, off, rot = ("gate", "up")[uu % 2], self.vG, "s80", (uu // 2) * 8 * 128, (i, 64 * 3584)
            else:
                if i == 0: a(f"s_lshl_b32 s79, {sI}, 6")
                s, v, base, off, rot = ("gate", "up")[i // 4], self.vHh, "s79", 24 * 128, (2 * (i % 4), 64 * 3584)
        elif k == "w2":
            u = x["u"]; S, U, n = stage_of(u)
            s, v, base, off = ("down", self.vD, "s81", U * 65536) if U < 28 else ("wo", self.vD, "s81", 0)
            if self.cfg.rot2:
                a(f"s_add_u32 s84, {'s2' if self.cfg.rot2 == 1 else sCB}, {u-S}", f"s_and_b32 s84, s84, {n-1}", "s_lshl_b32 s84, s84, 16", "s_add_u32 s84, s84, s81")
                base = "s84"
            else: off += (u - S) * 65536
        if rot and self.cfg.rot:
            a(f"s_add_u32 s84, {sROT}, {rot[0]}", "s_and_b32 s84, s84, 7", f"s_mul_i32 s84, s84, {rot[1]}", f"s_add_u32 s84, s84, {base}")
            base = "s84"
        elif rot: off += rot[0] * rot[1]
        if reg is not None:
            a(f"s_add_u32 s78, {base}, {off}")
            a(f"buffer_load_dwordx4 {vr(reg,4)}, v{v}, {srd(s)}, s78 offen", f"buffer_load_dwordx4 {vr(reg+4,4)}, v{v+1}, {srd(s)}, s78 offen offset:1024")
            return
        a(f"s_add_u32 m0, s77, {x['addr']}", f"s_add_u32 s78, {base}, {off}")
        a.e(f"buffer_load_dwordx4 v{v}, {srd(s)}, s78 offen lds", tag=x["n"])
        a.e(f"buffer_load_dwordx4 v{v+1}, {srd(s)}, s78 offen offset:1024 lds", tag=x["n"])
        self.issued = x["n"] + 1
    G, Z, S, CK = 64, 128, 32, 36
    def g_loads(self, part):
        a, G, Z = self.a, self.G, self.Z
        if part == 0:
            for t in range(4):
                a(f"s_add_u32 s78, s82, {t*4*1152+1024}", f"buffer_load_dword v{Z+t}, v42, {srd('ws')}, s78 offen sc1")
        for c in range(8 * part, 8 * part + 8):
            a(f"s_add_u32 s78, s82, {c*1152}", f"buffer_load_dwordx4 {vr(G+4*c,4)}, v27, {srd('ws')}, s78 offen sc1")
    def g_sum(self, part):
        a, G, Z, S, CK = self.a, self.G, self.Z, self.S, self.CK
        if part == 0:
            a(f"v_xor_b32 v{CK}, v{self.vTag}, v{Z}")
            for t in range(1, 4): a(f"v_bitop3_b32 v{CK}, v{CK}, v{Z+t}, v{self.vTag} bitop3:0xf6", f"v_add_f32 v{Z}, v{Z}, v{Z+t}")
        for c in range(8 * part, 8 * part + 8):
            for r in range(4):
                if r == 0: a(f"v_bitop3_b32 v{CK}, v{CK}, v{G+4*c+r}, v{self.vTag} bitop3:0xf6")
                if c == 1: a(f"v_add_f32 v{S+r}, v{G+r}, v{G+4+r}")
                elif c > 1: a(f"v_add_f32 v{S+r}, v{S+r}, v{G+4*c+r}")
        if part == 1: a(f"v_and_b32 v{CK}, 0xff, v{CK}")
    def g_write(self):
        a, Z, S = self.a, self.Z, self.S
        a(f"v_mov_b32 v{Z+1}, v{Z}", f"v_cvt_pk_bf16_f32 v{S}, v{S}, v{S+1}", f"v_cvt_pk_bf16_f32 v{S+1}, v{S+2}, v{S+3}")
        a(f"v_permlane32_swap_b32 v{Z}, v{Z+1}", f"v_add_f32 v{Z}, v{Z}, v{Z+1}", f"v_mov_b32 v{Z+1}, v{Z}")
        a(f"v_permlane16_swap_b32 v{Z}, v{Z+1}", f"v_add_f32 v{Z}, v{Z}, v{Z+1}", f"v_cvt_pk_bf16_f32 v{Z}, v{Z}, v{Z}")
        a(f"ds_write_b64 v43, {vr(S,2)} offset:{OP_OFF}", f"ds_write_b16 v44, v{Z} offset:{OP_OFF+512}")
    def sweep(self, lst, idx):
        a = self.a
        for nm, nl, base in lst:
            a(f"s_mul_i32 s76, {idx}, {nl*128}")
            if base: a(f"s_add_u32 s76, s76, {base}")
            a(f"s_mov_b64 exec, {(1 << nl) - 1:#x}", f"buffer_load_dword v{140+self.npf}, v28, {srd(nm)}, s76 offen"); self.npf += 1
        a("s_mov_b64 exec, -1")
    def action(self, x):
        a, cfg = self.a, self.cfg
        nload = f"buffer_load_dword v{self.vTag}, off, {srd('dbg')}, 0 sc1"
        if x == "P1": self.sweep((("gate", 14, 0), ("up", 14, 0), ("qkv", 12, 0)), "s86")
        elif x == "P2": self.sweep((("down", 14, 0), ("wo", 4, 0)), "s86")
        elif x == "P2a": self.sweep((("down", 8, 0),), "s86")
        elif x[0] == "L":
            k = int(x[1:]); self.sweep(((("down", 16, k << 18) if k < 7 else ("wo", 16, (k - 7) << 18)),), "s87")
        elif x in ("R", "R0"):
            for nm, nl in ((("down", 14), ("wo", 4)) if x == "R" else (("qkv", 12),)):
                a(f"s_mul_i32 s76, s87, {nl*1024}", f"s_mov_b64 exec, {(1 << nl) - 1:#x}", f"buffer_load_dword v{140+self.npf}, v30, {srd(nm)}, s76 offen offset:384"); self.npf += 1
            a("s_mov_b64 exec, -1")
        elif x[0] == "U":
            if not hasattr(self, "split"): self.split = len(a.out)
            u = int(x[1:])
            if self.typ == "A": s_, v, st, off = [("qkv", self.vQ, 3072, 1024), ("qkv", self.vQ, 3072, 2048), ("gate", self.vG, 3584, 2048), ("up", self.vG, 3584, 2048), ("qkv", self.vQ, 3072, 0)][u]
            else: uu = u - (u > MIXU); s_, v, st, off = ("gate", "up")[uu % 2], self.vG, 3584, (uu // 2) * 1024; assert u != MIXU
            a(f"s_mul_i32 s76, {sCB}, {64*st}", "s_add_u32 s76, s76, s80", "s_mov_b32 exec_lo, 0x01010101", "s_mov_b32 exec_hi, 0x01010101")
            for t in range(2):
                a(f"buffer_load_dword v{140+self.npf}, v{v+t}, {srd(s_)}, s76 offen offset:{off+1024*t}"); self.npf += 1
            a("s_mov_b64 exec, -1")
        elif x == "PR": self.prologue2()
        elif x == "C":
            L = a.newlabel("Lpc")
            a("s_getpc_b64 s[38:39]"); a.label(L)
            a(f"s_sub_u32 s38, s38, {L}-{NAME}_kernel", "s_subb_u32 s39, s39, 0", "s_mul_i32 s76, s87, 640", "v_add_u32 v29, s76, v28", f"v_min_u32 v29, L_last-{NAME}_kernel, v29")
            a("s_mov_b64 exec, 31", f"global_load_dword v{140+self.npf}, v29, s[38:39]", "s_mov_b64 exec, -1"); self.npf += 1
        elif x[0] == "W": self.st(x + "a"); a("s_waitcnt vmcnt(0)"); self.st(x + "b")
        elif x[0] == "T": self.st(x)
        elif x == "N0": a(nload)
        elif x == "N1": self.slow_poll(nload, f"v_cmp_eq_u32 vcc, 0, v{self.vTag}")
        elif cfg.nogather and x in ("G0", "G1", "S0", "S1"): pass
        elif x == "G0": self.st("g0"); self.g_loads(0)
        elif x == "G1": self.g_loads(1)
        elif x == "S0": a(f"s_setprio {cfg.gprio}"); self.g_sum(0); a(f"s_setprio {cfg.lprio}")
        elif x == "S1": a(f"s_setprio {cfg.gprio}"); self.g_sum(1); self.g_write(); a(f"s_setprio {cfg.lprio}"); self.st("g1")
        else: raise KeyError(x)
    def run(self):
        a, cfg, it = self.a, self.cfg, self.it
        self.st("start"); self.npf = 0
        spec = (cfg.planX + " " + (cfg.planA if self.typ == "A" else cfg.planF)).split()
        pol = {int(x.split(":")[0]): [int(y) for y in x.split(":")[1].split(",")] for x in cfg.polls.split()}
        for bi, b in enumerate(self.bars):
            for g in b.get("gate") or []:
                for k in pol[g]: self.bars[bi - k].setdefault("poll", []).append((g, k))
        freed = 0; plan = []
        for bi, b in enumerate(self.bars):
            vP = lambda u, k: 200 + 4 * STAGES.index(u) + k
            pl = lambda u, k: f"buffer_load_dword v{vP(u, k)}, v{self.vPo2 if stage_of(u)[2] == 4 else self.vPo}, {srd('ws')}, s76 offen sc1"
            for u, k in b.get("poll", []): a(f"s_add_u32 s76, s83, {stage_of(u)[1]*512}", "s_mov_b64 exec, 15", pl(u, k), "s_mov_b64 exec, -1")
            acts = spec[bi].split(",") if bi < len(spec) else [cfg.p2_cap]
            for x in acts + ["req"]:
                if x[0].isdigit() or x == "req":
                    depth = int(x.split("t")[1]) if "t" in x else None
                    lim = self.issued + int(x.split("t")[0]) if x != "req" else b["full"]
                    while self.issued < min(lim, len(it)):
                        y = it[self.issued]
                        if y["need"] > freed:
                            assert x != "req", ("deadlock", bi, b, y); break
                        if x == "req": print(f"  [{self.typ}] barrier {bi}: item {y['n']} issued only when required", file=sys.stderr)
                        if y["n"] == 16 and not hasattr(self, "split"): self.split = len(a.out)
                        if y["n"] in (16, 32, 56): self.st(f"i{y['n']}")
                        if depth: a.wait_tag(y["n"] - depth)
                        self.item(y)
                else: self.action(x)
            if bi == 0 and "PR" not in acts: self.prologue2()
            if b.get("op") and not cfg.nogather:
                C = a.newlabel("Lc"); L = a.newlabel("Lg")
                a(f"v_cmp_ne_u32 vcc, 0, v{self.CK}", f"s_cbranch_vccz {C}")
                save = (list(a.vm), list(a.lg))
                a.label(L)
                self.g_loads(0); self.g_loads(1); self.g_sum(0); self.g_sum(1)
                a(f"v_cmp_ne_u32 vcc, 0, v{self.CK}"); timeout(a); a(f"s_cbranch_vccnz {L}")
                self.g_write()
                a.label(C); a.vm, a.lg = save
                a("s_waitcnt lgkmcnt(0)")
            for u in b.get("gate") or []:
                a(f"s_add_u32 s76, s83, {stage_of(u)[1]*512}", "s_mov_b64 exec, 15")
                Cg = a.newlabel("Lc"); save = None
                for k in pol[u][:-1]:
                    a(f"v_cmp_ne_u32 vcc, v{self.vTag}, v{vP(u, k)}", f"s_cbranch_vccz {Cg}")
                    if save is None: save = list(a.vm)
                k = pol[u][-1]
                self.slow_poll(pl(u, k), f"v_cmp_ne_u32 vcc, v{self.vTag}, v{vP(u, k)}")
                a.label(Cg)
                if save is not None: a.vm = save
                a("s_mov_b64 exec, -1")
                self.st(f"f{u}")
            for n in range(b["full"] - 1, -1, -1):
                if any(e[1] == n for e in a.vm): a.wait_tag(n); break
            if cfg.bdiag: a.raw("    s_memtime s[68:69]")
            a("s_barrier")
            if cfg.bdiag:
                for x_ in ("s_memtime s[70:71]", "s_waitcnt lgkmcnt(0)", f"v_writelane_b32 v46, s68, {bi}", f"v_writelane_b32 v47, s70, {bi}"): a.raw("    " + x_)
            freed = b["freed"]
            plan.append(f"{bi}:{b['step']}:d{b['dur']:.0f}:f{b['full']}:i{self.issued}:{','.join(acts)}" + (f":gate{b['gate']}" if b.get("gate") else ""))
        assert self.issued == len(it)
        print(f"plan {self.typ}:", " ".join(plan), file=sys.stderr)
        self.st("end")
        if cfg.bdiag:
            a("s_lshl_b32 s76, s2, 2", f"s_add_u32 s76, s76, {sW}", "s_lshl_b32 s76, s76, 9", f"s_add_u32 s76, s76, {WS_DIAG+0x100000:#x}", "v_lshlrev_b32 v45, 2, v0")
            a(f"buffer_store_dword v46, v45, {srd('ws')}, s76 offen", f"buffer_store_dword v47, v45, {srd('ws')}, s76 offen offset:256")
        self.plan = plan
        if cfg.diag: a(f"s_add_u32 {sW}, {sW}, 4")
        self.st.flush(130, 129)
        a("s_endpgm")

def generate(cfg):
    a = Asm()
    a("s_cmp_ge_u32 s2, 256", "s_cbranch_scc1 L_end")
    a("s_load_dwordx16 s[16:31], s[0:1], 0", "s_load_dwordx4 s[32:35], s[0:1], 64")
    a("v_lshrrev_b32 v1, 6, v0", f"v_readfirstlane_b32 {sW}, v1")
    a("s_and_b32 s8, s2, 1", "s_bfe_u32 s9, s2, 0x20001", "s_bfe_u32 s10, s2, 0x30003", "s_lshr_b32 s11, s2, 6")
    a(f"s_lshl_b32 {sC}, s8, 3", f"s_add_u32 {sC}, {sC}, s10")
    a("s_and_b32 s12, s11, 1", f"s_lshl_b32 {sI}, s9, 1", f"s_lshl_b32 {sROT}, s8, 2", f"s_add_u32 {sROT}, {sROT}, {sI}", f"s_add_u32 {sI}, {sI}, s12")
    a(f"s_lshl_b32 {sTB}, s8, 2", f"s_add_u32 {sTB}, {sTB}, s9", f"s_lshl_b32 {sTB}, {sTB}, 2", f"s_add_u32 {sTB}, {sTB}, s11", f"s_mov_b32 {sCB}, s10")
    a(f"s_mov_b32 {sT}, {cfg.timeout}")
    a(f"s_cmp_lt_u32 {sW}, 4", "s_cbranch_scc1 L_compute")
    info = {}
    progs = {}
    for typ in "AF":
        b = Asm(); b.uid = 1000 if typ == "A" else 2000
        c = Compute(b, cfg, typ)
        (c.typeA if typ == "A" else c.typeF)()
        progs[typ] = (b, c); info["c" + typ] = c.st.names
    lds_ = {}
    for typ in "AF":
        b = Asm(); b.uid = 3000 if typ == "A" else 4000
        l = Loader(b, cfg, progs[typ][1]); l.run()
        lds_[typ] = (b, l); info["l" + typ] = l.st.names; info["plan" + typ] = l.plan; info["bdiag"] = cfg.bdiag
        nb = lambda o: sum(x.strip() == "s_barrier" for x in o)
        assert nb(b.out) == nb(progs[typ][0].out) == len(progs[typ][1].bars)
        print(f"loader {typ}: {b.count} instrs, {b.nops} nop states; compute: {progs[typ][0].count} instrs, {progs[typ][0].nops} nop states", file=sys.stderr)
    def shared(d):
        (ba, oa), (bf, of) = d["A"], d["F"]
        assert oa.split == of.split and ba.out[:oa.split] == bf.out[:of.split]
        return ba.out[:oa.split]
    Loader(a, cfg, progs["A"][1]).prologue()
    a.out += shared(lds_)
    a("s_cmp_ge_u32 s2, 128", "s_cbranch_scc1 L_loadF", "s_branch L_loadA")
    a.label("L_end"); a.raw("    s_endpgm")
    a.label("L_compute"); a.reset()
    Compute(a, cfg, "A").prologue()
    a.out += shared(progs)
    a("s_cmp_ge_u32 s2, 128", "s_cbranch_scc1 L_compF")
    for typ in "AF":
        b, c = progs[typ]
        a.label("L_comp" + typ); a.out += b.out[c.split:] + b.stubs
        b, l = lds_[typ]
        a.label("L_load" + typ); a.out += b.out[l.split:]
    a.label("L_last"); a.raw("    s_endpgm")
    head = open("cdna_kernels/" + NAME + ".s.ref").read().split("; Override launch")[0]
    txt = head + f"; @launch grid=(256,1,1) block=(512,1,1) lds={LDS_BYTES}\n"
    txt += f""".amdgcn_target "amdgcn-amd-amdhsa--gfx950"
.text
.globl {NAME}_kernel
.p2align 8
.type {NAME}_kernel,@function
{NAME}_kernel:
""" + a.text() + f"""
.section .rodata,"a"
.p2align 6
.amdhsa_kernel {NAME}_kernel
  .amdhsa_next_free_vgpr 256
  .amdhsa_next_free_sgpr 102
  .amdhsa_accum_offset 256
  .amdhsa_group_segment_fixed_size 0
  .amdhsa_kernarg_size 80
  .amdhsa_user_sgpr_count 2
  .amdhsa_user_sgpr_kernarg_segment_ptr 1
  .amdhsa_system_sgpr_workgroup_id_x 1
.end_amdhsa_kernel
"""
    return txt, info

if __name__ == "__main__":
    cfg = Cfg()
    out = sys.argv[1]
    for kv in sys.argv[2:]:
        k, v = kv.split("="); setattr(cfg, k, type(getattr(Cfg, k))(v))
    txt, info = generate(cfg)
    open(out, "w").write(txt)
    info["mode"] = cfg.diag
    import json; json.dump(info, open(out + ".json", "w"))
```

```python
import sys, os, struct
from asmb import Asm

NAME = "parallel_sum__linear_attn_block__swiglu_ffn__prompt"

class Cfg:
    diag = 0
    bdiag = 0
    timeout = 400000
    round_ln = 1
    rot = 1
    rot2 = 1
    pf_code = 1
    pf_tlb = 0
    nofill = 0
    cprio = 1
    lprio = 0
    gprio = 1
    xgroups = "2,6,8,10"
    grid = 24
    xo = 0
    pro2_at = 0
    xlate = "3:13,5:16"
    op_at = 144
    frate = 60
    ack = 44
    h1_dl = 300
    h2_dl = 430
    kvw_gap = 264
    hA_dl = 543
    hA_gap = 586
    finA = 0
    late_at = 5
    gate0_at = 144
    gate8_at = 160
    gate12_at = 999
    n_preA = 4
    n_preF = 5
    preA_gap = 588
    preF_gap = 580
    pre_step = 8
    n_epi = 2
    n_epiF = 0
    D = 4
    p2_bar = 2
    p2_first = 3
    p2_cap = "2"
    polls = "0:1 8:1 12:1 20:1,0 28:1,0"
    nogather = 0
    barsA = "8,16,32,48,64,80,96,112,128,144"
    barsF = "8,16,32,48,64,80,96,112,128,144"
    out_aux = "sc1"
    planX = "6,PR 4 3 2 2,U0,U1 2 4 4,PS 6"
    planA = "U2,U3,U4,P2 6,N0 6,N1 C,R 4 3 7,G0 4,S0,G1 Q0,S1,4 7,Q8 6"
    planF = "V2,U3,U4,P2 4,N0 5,N1 8,C,R 6 4 5 Q0,3 Q8,3 3 4"

ZR_OFF, OP_OFF = 0, 1024
LDS_BYTES = 163840
WS_FLAG, WS_KV, WS_A2, WS_DIAG, WS_SIZE = 0x1000, 0x100000, 0x200000, 0x1000000, 0x2000000
sC, sI, sTB, sCB, sW, sROT = "s4", "s5", "s6", "s7", "s3", "s36"
sT = "s37"
SRD = dict(x=40, qkv=44, gate=48, up=52, down=56, wo=60, ws=64, out=68, dbg=72)
PTR = dict(x=16, qkv=18, wo=20, gate=24, up=26, down=28, out=30, dbg=32, ws=34)
SIZE = dict(x=2097152, qkv=1572864, wo=524288, gate=1835008, up=1835008, down=1835008, out=2097152, dbg=256, ws=WS_SIZE)
def srd(n): return f"s[{SRD[n]}:{SRD[n]+3}]"
def mk_srd(a, n):
    b = SRD[n]
    a(f"s_mov_b32 s{b}, s{PTR[n]}", f"s_mov_b32 s{b+1}, s{PTR[n]+1}", f"s_mov_b32 s{b+2}, {SIZE[n]:#x}", f"s_mov_b32 s{b+3}, 0x20000")
LOG2E = 1.4426950408889634
def f2u(x): return struct.unpack('<I', struct.pack('<f', x))[0]
def srd_const(a, n): a(f"s_mov_b32 s{SRD[n]+2}, {SIZE[n]:#x}", f"s_mov_b32 s{SRD[n]+3}, 0x20000")
def srd_base(a, n): a(f"s_mov_b64 s[{SRD[n]}:{SRD[n]+1}], s[{PTR[n]}:{PTR[n]+1}]")
def vr(b, n=1): return f"v{b}" if n == 1 else f"v[{b}:{b+n-1}]"
M16 = lambda d, x, y, c: f"v_mfma_f32_16x16x32_bf16 {vr(d,4)}, {vr(x,4)}, {vr(y,4)}, {c if isinstance(c, str) else vr(c,4)}"

SCR_NEED, SCR_REL = 17 + 14, 17 + 20
STG = ((0, 0, 8), (8, 24, 4), (12, 16, 8), (20, 8, 8), (28, 28, 8))
STAGES = tuple(x[0] for x in STG)
def stage_of(j): return max(x for x in STG if x[0] <= j)
MIXU = 2
def xord(cfg):
    if cfg.xo == 0: return [(0, 0), (0, 1), (1, 0), (1, 1)] + [(0, s) for s in range(2, 8)] + [(1, s) for s in range(2, 8)]
    return [(t, s) for t in range(2) for s in range(8)]
def make_items(cfg, typ):
    it = []
    for i, (t, s) in enumerate(xord(cfg)): it.append(dict(k="x", s=s, t=t, rel=i + 1))
    for u in range(5):
        for i in range(8): it.append(dict(k="w1", u=u, i=i, rel=17 + 8 * u + i))
    for u in range(36): it.append(dict(k="w2", u=u, rel=57 + u))
    free = [(0, p) for p in range(1, 20)] + ([(0, 20)] if typ == "F" else [])
    scr = []
    for n, x in enumerate(it):
        free.sort()
        while typ == "A" and len(scr) < 2 and free[0][0] >= SCR_NEED - 1:
            need, p = free.pop(0); assert need <= SCR_NEED
            scr.append(8192 * p); free.append((SCR_REL, p)); free.sort()
        need, p = free.pop(0)
        assert need < x["rel"], (n, x, need)
        x["need"] = need; x["n"] = n; x["addr"] = 8192 * (p % 20)
        free.append((x["rel"], p))
    return it, scr

class Stamps:
    def __init__(self, a, cfg, regs):
        self.a, self.on, self.regs, self.n, self.names = a, cfg.diag, regs, 0, []
    def __call__(self, name):
        if not self.on: return
        sel = os.environ.get("STAMPS")
        if sel is None:
            if name.startswith("_"): return
        elif name not in sel.split(",") + ["start", "end"]: return
        r = self.regs[self.n]
        self.a.raw(f"    {'s_memrealtime' if self.on == 1 else 's_memtime'} s[{r}:{r+1}]")
        self.n += 1; self.names.append(name)
        if os.environ.get("BOTH"):
            r = self.regs[self.n]
            self.a.raw(f"    s_memtime s[{r}:{r+1}]")
            self.n += 1; self.names.append(name + "c")
    def flush(self, vt, vz):
        if not self.on: return
        a = self.a
        a("s_waitcnt lgkmcnt(0)")
        a("s_lshl_b32 s76, s2, 3", f"s_add_u32 s76, s76, {sW}", "s_lshl_b32 s76, s76, 7", f"s_add_u32 s76, s76, {WS_DIAG:#x}")
        a(f"v_mov_b32 v{vz}, 0", "s_mov_b64 exec, 1")
        for i in range(self.n):
            a(f"v_mov_b32 v{vt+i}, s{self.regs[i]}")
            a(f"buffer_store_dword v{vt+i}, v{vz}, {srd('ws')}, s76 offen offset:{4*i}")

def timeout(a):
    a.raw(f"    s_sub_u32 {sT}, {sT}, 1")
    a.raw("    s_cbranch_scc1 L_end")

X0, P0, Q0, K0, WB0 = 128, 64, 96, 48, 24
vA, vH, vL16, vR, vNM, vTag, vFl, T0, ONES = 1, 5, 7, 8, 9, 10, 11, 12, 20
sC2, sHI, sIC, sEPSC = "s38", "s39", "s76", "s77"
sCC = "s36"
sA2, sFL, sKV, sTmp = "s78", "s79", "s80", "s81"
sM1, sM2, sM3 = "s[82:83]", "s[84:85]", "s[86:87]"
def XF(t, s): return X0 + 64 * t + 4 * s
ACC, XRAW = K0, K0 + 8
SLOTQ = [((0, 0), (0, 1)), ((0, 2), (0, 3)), ((0, 4), (1, 4)), ((0, 5), (1, 5)), ((0, 6), (1, 6)), ((0, 7), (1, 7)), ((1, 0), (1, 1)), ((1, 2), (1, 3))] + [((0, s), (1, s)) for s in range(8, 16)]
SLOT = [(XF(*a), XF(*b)) for a, b in SLOTQ]

class Compute:
    def __init__(self, a, cfg, typ):
        self.a, self.cfg, self.typ = a, cfg, typ
        self.it, self.scr = make_items(cfg, typ)
        self.bars = []; self.full = 0; self.freed = 0; self.mark = 0; self.cur = -1
        self.win = {}
        self.st = Stamps(a, cfg, list(range(44, 64, 2)) + list(range(20, 36, 2)))
    def find(self, **kw):
        for x in self.it:
            if all(x.get(k) == v for k, v in kw.items()): return x
        raise KeyError(kw)
    def barrier(self, full, freed, extra=0, **kw):
        slots = pipe = 0
        for l in self.a.out[self.mark:]:
            l = l.strip()
            if l.endswith(":") or l.startswith("."): continue
            if l.startswith("v_mfma"): slots += 2; pipe += 32 if "32x32" in l else 16
            elif l.startswith(("v_exp", "v_rcp", "v_sqrt", "v_rsq")): slots += 2
            else: slots += 1
        self.a("s_barrier"); self.mark = len(self.a.out)
        self.full = max(self.full, full); self.freed = max(self.freed, freed)
        self.bars.append(dict(full=self.full, freed=self.freed, dur=max(4.2 * slots, pipe) + 40 + extra, step=self.cur, **kw))
    def lds(self, op, dst, areg, addr):
        w = self.win.setdefault(areg, 0)
        if not (0 <= addr - w <= 65535):
            nw = addr & ~8191
            self.a(f"v_add_u32 v{areg}, {(nw - w) & 0xffffffff:#x}, v{areg}")
            self.win[areg] = w = nw
        self.a(f"{op} {dst}, v{areg} offset:{addr - w}")

    def geom(self, n):
        u, ks = divmod(n, 32)
        if u == 0: return ks // 4, ks % 4, 2 * (ks // 4), False
        if self.typ == "F" and u == MIXU: return 4 * (ks // 16) + (ks % 8) // 2, ks // 8, 2 * (ks % 8), ks % 2 == 1
        i = 4 * (ks // 16) + ks % 4
        return i, (ks % 16) // 4, 2 * i, ks % 2 == 1
    def accreg(self, u, cb, t):
        return (P0 if u % 2 == 0 else Q0) + (8 * cb + 4 * t if (self.typ == "A" and u < 2) else 16 * t + 4 * cb)
    def comp(self, u, cb): return 4 * max(n for n in range(32 * u, 32 * u + 32) if self.geom(n)[1] == cb) + 8
    def first(self, u, cb): return 4 * min(n for n in range(32 * u, 32 * u + 32) if self.geom(n)[1] == cb) - 1
    def xdead(self, s): return 4 * max(n for n in range(128, 160) if self.geom(n)[2] == (s & ~1)) + 4
    def step(self, n):
        u = n // 32; i, cb, s0, flip = self.geom(n)
        buf = WB0 + 8 * (n % 3)
        it = self.it[self.item_of(n)]
        if self.typ == "F" and u == MIXU:
            rd = [(buf + 4 * e + 2 * t2, vH + cb % 2, it["addr"] + ((s0 + e) % 4) * 2048 + t2 * 1024) for e in range(2) for t2 in range(2)]
        else:
            rd = [(buf + 4 * e + 2 * t2, vA + cb, it["addr"] + e * 4096 + t2 * 2048) for e in range(2) for t2 in range(2)]
        nt = self.typ == "A" and u < 2
        mf = []
        for k, (e, t) in enumerate(((0, 1), (1, 1), (1, 0), (0, 0)) if flip else ((0, 0), (1, 0), (1, 1), (0, 1))):
            d = self.accreg(u, cb, t); w, x = buf + 4 * e, XF(t, s0 + e)
            mf.append(M16(d, x if nt else w, w if nt else x, "0" if (s0 == 0 and k % 2 == 0) else d))
        return dict(it=it, rd=rd, mf=mf, buf=buf)
    @property
    def BARS(self):
        return [int(x) for x in (self.cfg.barsA if self.typ == "A" else self.cfg.barsF).split(",")]
    def item_of(self, n): return 16 + 8 * (n // 32) + self.geom(n)[0]
    def freed_at(self, n):
        return min([self.item_of(m) for m in range(n + 1, 160)] + [56])
    def read(self, n, j):
        if n >= 160: return
        s = self.step(n)
        if j == 0 and n in self.BARS:
            nxt = min([b for b in self.BARS if b > n] + [160])
            self.barrier(max(self.item_of(m) for m in range(n, nxt)) + 1, self.freed_at(n - 2), op=(self.typ == "A" and n == self.cfg.op_at),
                         gate=[g for g, at in ((0, self.cfg.gate0_at), (8, self.cfg.gate8_at), (12, self.cfg.gate12_at)) if at == n])
        assert s["it"]["n"] < self.full, (n, self.full)
        d, r, ad = s["rd"][j]
        self.lds("ds_read_b64_tr_b16", vr(d, 2), r, ad)
    def cost(self, f):
        if isinstance(f, tuple) and f[0] in ("gap", "dl"): return 0
        if callable(f) and getattr(f, "free", False): return 0
        if isinstance(f, str) and f.startswith(("v_exp", "v_rcp", "v_mfma")): return 2
        return 1
    def run_fill(self, fl, budget):
        used = 0
        while fl and used < budget:
            f = fl[0]
            if isinstance(f, tuple) and f[0] == "gap":
                if self.gap < f[1]: break
                fl.pop(0); continue
            if isinstance(f, tuple) and f[0] == "dl": fl.pop(0); continue
            fl.pop(0); used += self.cost(f)
            if callable(f): f()
            elif isinstance(f, tuple): self.a.e(f[0], tag=f[1])
            else: self.a(f)
        return used
    def units(self, fl, side):
        fl = list(fl); side = list(side); credit = 0.0
        for n in range(32, 160):
            s = self.step(n); self.cur = n
            if n % 32 == 0: self.st(f"u{n//32}")
            self.a.need(vr(s["buf"], 8))
            for j in range(4):
                self.gap = 4 * n + j
                self.a(s["mf"][j])
                self.read(n + 2, j)
                rate = self.cfg.frate / 100; c = 0
                for f in fl:
                    if isinstance(f, tuple) and f[0] == "dl":
                        assert c == 0 or f[1] >= self.gap, ("deadline missed", f, self.gap)
                        if c: rate = max(rate, c / max(0.5, f[1] - self.gap - 0.5))
                    c += self.cost(f)
                credit = min(credit + rate, rate + 1.5)
                credit -= 0.7 * self.run_fill(side, 1)
                credit -= self.run_fill(fl, credit - 0.5)
        self.gap = 10 ** 9
        if side: print(f"  [{self.typ}] {len(side)} side fillers left over", file=sys.stderr)
        self.run_fill(side, 10 ** 9)
        return fl

    def f_silu(self, quads):
        fl = []
        for k, q in enumerate(quads):
            t = T0 + (k % 2) * 4
            fl += [f"v_exp_f32_e64 v{t+i}, -v{q+i}" for i in range(4)]
            fl += [f"v_fma_f32 v{t+i}, v{t+i}, {sC2}, {sC2}" for i in range(4)]
            fl += [f"v_rcp_f32 v{t+i}, v{t+i}" for i in range(4)]
            fl += [f"v_mul_f32 v{q+i}, v{q+i}, v{t+i}" for i in range(4)]
        return fl
    def f_phi(self, quads, packs):
        fl = []
        for k, (q, p) in enumerate(zip(quads, packs)):
            t = T0 + (k % 2) * 4
            fl += [f"v_exp_f32_e64 v{t+i}, v{q+i} clamp" for i in range(4)]
            fl += [f"v_max_f32 v{q+i}, {sEPSC}, v{q+i}" for i in range(4)]
            fl += [f"v_fmac_f32 v{t+i}, {sIC}, v{q+i}" for i in range(4)]
            fl += [f"v_cvt_pk_bf16_f32 v{p+i}, v{t+2*i}, v{t+2*i+1}" for i in range(2)]
        return fl
    def f_h(self, dst, src, soff, off, tag):
        mul = []; out = []
        for t in range(2):
            d = dst + 16 * t
            mul += [f"v_mul_f32 v{d+i}, v{d+i}, v{src+16*t+i}" for i in range(8)]
            out += [f"v_cvt_pk_bf16_f32 v{d+i}, v{d+2*i}, v{d+2*i+1}" for i in range(4)]
            out += [(f"buffer_store_dwordx4 {vr(d,4)}, v{vL16}, {srd('ws')}, {soff} offen offset:{off+t*1024} sc1", tag)]
        return mul, out
    def flag(self, U, tag):
        a = self.a
        a(f"s_add_u32 {sTmp}, {sFL}, {U*512}")
        self.st("_w" + tag); a.wait_tag(tag); self.st("_d" + tag)
        a(f"buffer_store_dword v{vTag}, v{vFl}, {srd('ws')}, {sTmp} offen sc1")
    def f_nonce(self):
        a = self.a
        def chk():
            L = a.newlabel("Ln"); C = a.newlabel("Lc")
            a(f"v_cmp_eq_u32 vcc, 0, v{vTag}")
            a(f"s_cbranch_vccnz {L}")
            a.label(C)
            a.stubs += [f"{L}:", f"    buffer_load_dword v{vTag}, off, {srd('dbg')}, 0 sc1", f"    s_sub_u32 {sT}, {sT}, 1", "    s_cbranch_scc1 L_end",
                        "    s_waitcnt vmcnt(0)", f"    v_cmp_eq_u32 vcc, 0, v{vTag}", f"    s_cbranch_vccnz {L}", f"    s_branch {C}"]
        return f"buffer_load_dword v{vTag}, off, {srd('dbg')}, 0 sc1", chk

    def prologue(self):
        a, cfg = self.a, self.cfg
        a("v_and_b32 v0, 63, v0")
        if cfg.cprio: a(f"s_setprio {cfg.cprio}")
        a(f"v_lshlrev_b32 v{vL16}, 4, v0")
        a("v_and_b32 v12, 15, v0", "v_lshrrev_b32 v13, 4, v0", "v_lshrrev_b32 v14, 1, v12", "v_xor_b32 v14, v13, v14", "v_lshlrev_b32 v14, 4, v14",
          "v_lshl_add_u32 v14, v12, 7, v14", f"s_lshl_b32 {sTmp}, {sW}, 11", f"v_add_u32 v{P0}, {sTmp}, v14", f"v_xor_b32 v{P0+1}, 64, v{P0}")
        for i in range(4): a(f"v_mov_b32 v{ONES+i}, 0x3f803f80")
        a("v_and_b32 v14, 31, v0", "v_lshrrev_b32 v15, 5, v0", "v_lshlrev_b32 v15, 3, v15", "v_sub_u32 v15, v14, v15")
        a("v_and_b32 v16, 1, v15", "v_lshlrev_b32 v16, 4, v16", "v_mov_b32 v17, 0x3f80", "v_lshlrev_b32 v16, v16, v17", "v_lshrrev_b32 v15, 1, v15")
        for t in range(8):
            a(f"v_cmp_eq_u32 vcc, {t if t < 4 else t + 4}, v15", f"v_cndmask_b32 v{K0+t}, 0, v16, vcc")
        a("s_waitcnt lgkmcnt(0)")
        for n in ("ws", "out", "dbg", "x"): srd_base(a, n); srd_const(a, n)
        L = "L_tag0"
        a(f"s_or_b32 s0, s2, {sW}", "s_cmp_lg_u32 s0, 0", f"s_cbranch_scc1 {L}")
        a.raw(f"    buffer_load_dword v{vTag}, off, {srd('ws')}, 0 sc1")
        a.label(L)
        a("v_lshlrev_b32 v14, 2, v13", "v_sub_u32 v14, v12, v14")
        for i in range(4): a(f"v_cmp_eq_u32 s[{88+2*i}:{89+2*i}], {i}, v14")
        a(f"s_mov_b32 {sC2}, {f2u(LOG2E**2):#x}", f"s_mov_b32 {sIC}, {f2u(1/LOG2E):#x}", f"s_mov_b32 {sHI}, 0xffff0000", f"s_mov_b32 {sEPSC}, {f2u(1e-6*LOG2E):#x}", f"s_mov_b32 {sCC}, {f2u(LOG2E):#x}")
        a("v_lshrrev_b32 v15, 5, v0", "v_bfe_u32 v16, v0, 2, 2", "v_lshl_add_u32 v16, v15, 2, v16", "v_and_b32 v17, 1, v13", "v_lshl_add_u32 v16, v17, 3, v16")
        a("v_and_b32 v18, 3, v0", "v_lshlrev_b32 v18, 3, v18", "v_lshl_add_u32 v19, v16, 6, v18", f"v_lshl_add_u32 v{vH}, v17, 5, v19", f"v_xor_b32 v{vH+1}, 32, v{vH}")
        a("v_lshl_add_u32 v19, v16, 7, v18", "v_bfe_u32 v18, v0, 3, 2", f"v_lshl_add_u32 v{vA}, v18, 5, v19")
        for cb in range(1, 4): a(f"v_xor_b32 v{vA+cb}, {cb*32}, v{vA}")
        a("v_lshlrev_b32 v18, 2, v0", f"v_lshl_add_u32 v{vFl}, v15, 30, v18")
    def prologue2(self):
        a, cfg = self.a, self.cfg
        a(f"s_lshr_b32 {sTmp}, {sW}, 1", f"s_lshl_b32 {sA2}, {sC}, 1", f"s_add_u32 {sA2}, {sA2}, {sTmp}", f"s_mul_i32 {sA2}, {sA2}, 36",
          f"s_add_u32 {sA2}, {sA2}, {sI}", f"s_lshl_b32 {sA2}, {sA2}, 1", f"s_and_b32 {sTmp}, {sW}, 1", f"s_add_u32 {sA2}, {sA2}, {sTmp}")
        a(f"s_lshl_b32 {sFL}, {sA2}, 8", f"s_add_u32 {sFL}, {sFL}, {WS_FLAG:#x}", f"s_lshl_b32 {sA2}, {sA2}, 12", f"s_add_u32 {sA2}, {sA2}, {WS_A2:#x}")
        a(f"s_mul_i32 s96, {sTB}, {36*8192}", f"s_lshl_b32 s97, {sW}, 11", "s_add_u32 s96, s96, s97", f"s_add_u32 s96, s96, {WS_A2:#x}")
        for j in range(12):
            if cfg.rot2: a(f"s_add_u32 s97, {'s2' if cfg.rot2 == 1 else sCB}, {j%8}", f"s_and_b32 s97, s97, {7 if j < 8 else 3}", "s_lshl_b32 s97, s97, 13", f"s_add_u32 s{8+j}, s96, s97")
            else: a(f"s_add_u32 s{8+j}, s96, {(j%8)*8192}")
        a(f"s_lshl_b32 s99, {sTB}, 2", f"s_add_u32 s99, s99, {sW}", "s_lshl_b32 s99, s99, 14", f"s_lshl_b32 s97, {sCB}, 7", "s_add_u32 s99, s99, s97")
        a("s_mov_b32 s82, 0xffff0000", "s_mov_b32 s83, 0", "s_mov_b32 s84, 0", "s_mov_b32 s85, 0xffff", "s_mov_b32 s86, 0", "s_mov_b32 s87, 0xffff0000")
        a(f"s_lshl_b32 {sKV}, {sI}, 2", f"s_add_u32 {sKV}, {sKV}, {sW}", f"s_lshl_b32 {sKV}, {sKV}, 4", f"s_add_u32 {sKV}, {sKV}, {sC}",
          f"s_mul_i32 {sKV}, {sKV}, 1152", f"s_add_u32 {sKV}, {sKV}, {WS_KV:#x}")
        pA, pB = make_items(cfg, "A")[1]
        a(f"s_mov_b32 s97, {pA}", f"s_mov_b32 s98, {pB}", f"s_cmp_lt_u32 {sW}, 2", "s_cselect_b32 s97, s97, s98", f"s_and_b32 s98, {sW}, 1", "s_lshl_b32 s98, s98, 12", "s_add_u32 s97, s97, s98")
        a(f"s_lshr_b32 s96, {sI}, 1", f"s_sub_u32 s96, s96, {sI}", "s_add_u32 s96, s96, 24", "s_lshl_b32 s96, s96, 2", f"s_and_b32 s98, {sI}, 1", "s_add_u32 s96, s96, s98",
          "s_lshl_b32 s100, s96, 11", f"s_add_u32 s100, s100, {sA2}", "s_lshl_b32 s101, s96, 7", f"s_add_u32 s101, s101, {sFL}")
    def tag_publish(self):
        a = self.a
        L = "L_tag1"
        a("s_cmp_lg_u32 s0, 0", f"s_cbranch_scc1 {L}")
        for x in ("s_waitcnt vmcnt(0)", f"v_add_u32 v{vTag}, 0x9e377902, v{vTag}", f"v_or_b32 v{vTag}, 0x80000000, v{vTag}", "s_mov_b64 exec, 1",
                  f"buffer_store_dword v{vTag}, off, {srd('dbg')}, 0 sc1", f"buffer_store_dword v{vTag}, off, {srd('ws')}, 0 sc1", "s_mov_b64 exec, -1"):
            a.raw("    " + x)
        a.label(L)
    def stats_fin(self, S1, S2, R):
        t = T0
        fl = [f"v_cndmask_b32 v{t+2}, 0, v{S2}, s[88:89]"] + [f"v_cndmask_b32 v{t+2}, v{t+2}, v{S2+i}, s[{88+2*i}:{89+2*i}]" for i in range(1, 4)]
        fl += [f"v_mov_b32 v{t+3}, v{t+2}", f"v_mul_f32 v{t}, 0x3b000000, v{S1}", f"v_mul_f32 v{t+1}, v{t}, v{t}", f"v_permlane32_swap_b32 v{t+2}, v{t+3}", f"v_add_f32 v{t+2}, v{t+2}, v{t+3}",
               f"v_mov_b32 v{t+3}, v{t+2}", f"v_permlane16_swap_b32 v{t+2}, v{t+3}", f"v_add_f32 v{t+2}, v{t+2}, v{t+3}"]
        fl += [f"v_mul_f32 v{t+2}, 0x3b000000, v{t+2}", f"v_sub_f32 v{t+2}, v{t+2}, v{t+1}", f"v_max_f32 v{t+2}, 0, v{t+2}"]
        if self.cfg.round_ln:
            fl += [f"v_cvt_pk_bf16_f32 v{t+1}, v{t}, v{t+2}", f"v_and_b32 v{t+2}, {sHI}, v{t+1}", f"v_lshlrev_b32 v{t}, 16, v{t+1}",
                   f"v_add_f32 v{t+2}, 0x3727c5ac, v{t+2}", f"v_cvt_pk_bf16_f32 v{t+2}, v{t+2}, v{t+2}", f"v_lshlrev_b32 v{t+2}, 16, v{t+2}",
                   f"v_sqrt_f32 v{t+2}, v{t+2}", f"v_cvt_pk_bf16_f32 v{t+2}, v{t+2}, v{t+2}", f"v_lshlrev_b32 v{t+2}, 16, v{t+2}", f"v_rcp_f32 v{R}, v{t+2}"]
        else:
            fl += [f"v_add_f32 v{t+2}, 0x3727c5ac, v{t+2}", f"v_rsq_f32 v{R}, v{t+2}"]
        fl += [f"v_mul_f32 v{R}, {sCC}, v{R}", f"v_mul_f32_e64 v{R+1}, -v{t}, v{R}"]
        return fl
    def unpack(self, t, p):
        d = vr(Q0 + 16 * (p % 2), 16)
        return [f"v_mfma_f32_32x32x16_bf16 {d}, {vr(K0,4)}, {vr(XF(t,2*p),4)}, 0",
                f"v_mfma_f32_32x32x16_bf16 {d}, {vr(K0+4,4)}, {vr(XF(t,2*p+1),4)}, {d}"]
    def f_center(self, t, p):
        d = Q0 + 16 * (p % 2); fl = []; R = vR if t else T0 + 4
        for g in range(0, 16, 4):
            fl += [f"v_fma_f32 v{d+g+i}, v{d+g+i}, v{R}, v{R+1}" for i in range(4)]
            fl += [f"v_cvt_pk_bf16_f32 v{XF(t,2*p)+g//2+i}, v{d+g+2*i}, v{d+g+2*i+1}" for i in range(2)]
        return fl
    def xphase(self):
        a, cfg = self.a, self.cfg
        S = P0 + 4
        done = [0]
        def group(g):
            self.barrier(g[-1] + 1, done[0], phase="x")
            mf = []
            for i in g:
                t, s = xord(cfg)[i]
                for e in range(2):
                    x, k = XF(t, 2 * s + e), 2 * s + e
                    self.lds("ds_read_b128", vr(x, 4), P0 + e, self.it[i]["addr"])
                    mf += [M16(S + 8 * t, ONES, x, "0" if k == 0 else S + 8 * t), M16(S + 8 * t + 4, x, x, "0" if k == 0 else S + 8 * t + 4)]
            return mf
        if cfg.pro2_at == 0: self.prologue2()
        ends = [0] + [int(x) for x in cfg.xgroups.split(",")]
        for gi in range(len(ends) - 1):
            g = list(range(ends[gi], ends[gi + 1]))
            mf = group(g)
            if gi == 0: self.st("x0")
            for m in mf: a(m)
            if gi == 0:
                for m in self.unpack(0, 0) + self.unpack(0, 1): a(m)
                a("s_waitcnt vmcnt(0)"); self.tag_publish()
                if cfg.pro2_at == 1: self.prologue2()
            done[0] = g[-1] + 1
        self.st("x4")
        for f in self.stats_fin(S, S + 4, T0 + 4): a(f)
        pend = []; fin = None
        late = [tuple(int(y) for y in x.split(":")) for x in cfg.xlate.split(",")]
        nxt = ends[-1]
        for q in range(9):
            while late and late[0][0] == q:
                for m in pend: a(m)
                done[0] = nxt
                pend = group(list(range(nxt, late[0][1]))); hold = 10; nxt = late.pop(0)[1]
                if not late: self.st("x7")
            if q == 8:
                for m in pend: a(m)
                pend = []
            if not late and not pend and fin is None: fin = self.stats_fin(S + 8, S + 12, vR)
            if q == 8:
                self.barrier(18, 16, phase="x")
                for n in range(2):
                    for j in range(4): self.read(n, j)
                for f in fin: a(f)
                fin = []
            assert q < 7 or xord(cfg).index((1, q - 7)) < nxt
            up = self.unpack(*divmod(q + 1, 8)) if q >= 1 else []
            a.raw("    .p2align 3")
            for k, f in enumerate(self.f_center(*divmod(q, 8))):
                if up and k in (0, 8): a(up.pop(0))
                if pend:
                    hold -= 1
                    if hold <= 0 and k % 3 == 2: a(pend.pop(0)); a.raw("    .p2align 3")
                a(f)
                if fin and k >= 2:
                    a(fin.pop(0))
        self.st("u0")
        self.split = len(a.out)
    def unit0(self):
        a = self.a
        self.gap = 0
        for p in range(8):
            fl = self.f_center(1, p + 1) if p + 1 < 8 else []
            up = self.unpack(1, p + 2) if p + 2 < 8 else []
            for e in range(4):
                n = 4 * p + e; s = self.step(n); self.cur = n
                if up and e % 2 == 0:
                    a(up[e // 2]); self.run_fill(fl, 4)
                a.need(vr(s["buf"], 8))
                for j in range(4):
                    a(s["mf"][j]); self.read(n + 2, j)
                    self.run_fill(fl, 1 if up else 2)
            assert not fl
    def f_xres(self):
        t = vNM
        pre = [f"v_bfe_u32 v{t}, v0, 4, 1", f"v_lshrrev_b32 v{vR}, 5, v0", f"v_lshl_add_u32 v{vR}, v{t}, 1, v{vR}", f"v_lshlrev_b32 v{vR}, 4, v{vR}",
               f"v_and_b32 v{t}, 15, v0", f"v_lshl_add_u32 v{vR}, v{t}, 10, v{vR}",
               f"v_lshrrev_b32 v{t}, 5, v0", f"v_bfe_u32 v{ONES}, v0, 4, 1", f"v_sub_u32 v{t}, v{t}, v{ONES}", f"v_lshlrev_b32 v{t}, 9, v{t}",
               f"s_and_b32 s96, {sW}, 1", "s_lshl_b32 s96, s96, 10", f"v_add_u32 v{ONES+1}, s96, v{vL16}", f"v_xor_b32 v{ONES+2}, 0x400, v{ONES+1}",
               "s_lshl_b32 s96, s96, 2", f"v_add_u32 v{t}, s96, v{t}"]
        ld = [f"buffer_load_dwordx4 {vr(XRAW+4*k,4)}, v{vR}, {srd('x')}, s99 offen offset:{64*k}" for k in range(2)]
        post = [lambda: self.st("_xq0"), lambda: self.a.need(vr(XRAW, 8)), lambda: self.st("_xq1")]
        for k in range(2): post += [f"v_permlane16_swap_b32 v{XRAW+4*k}, v{XRAW+4*k+2}", f"v_permlane16_swap_b32 v{XRAW+4*k+1}, v{XRAW+4*k+3}"]
        for i in range(8): post += [f"v_lshlrev_b32 v{ACC+2*i}, 16, v{XRAW+i}", f"v_and_b32 v{ACC+2*i+1}, {sHI}, v{XRAW+i}"]
        return pre, ld, post
    def a2_loads(self, u):
        S, U, n = stage_of(u)
        r = f"s{8+u-S}" if n == 8 else f"s{16+u-S}"
        b = SLOT[u % len(SLOT)]
        return [f"s_add_u32 {sTmp}, {r}, {U*8192}"] + [f"buffer_load_dwordx4 {vr(b[s],4)}, v{ONES+1+s}, {srd('ws')}, {sTmp} offen sc1" for s in range(2)]
    @staticmethod
    def merge(*lists):
        segs = []
        for l in lists:
            for f in l:
                if isinstance(f, tuple) and f[0] == "gap": segs.append([f])
                else: segs[-1].append(f)
        return [f for sg in sorted(segs, key=lambda x: x[0][1]) for f in sg]
    def f_pre(self, g0):
        fl = []
        assert g0 >= (self.cfg.gate0_at - 2) * 4 + 1 or self.n_pre == 0
        for u in range(self.n_pre):
            fl += [("gap", max([g0 + u * self.cfg.pre_step] + [self.xdead(q[1]) for q in SLOTQ[u]]))] + [x.replace(sTmp, "s98") for x in self.a2_loads(u)]
        return fl
    def hook(self, f):
        f.free = True; return f
    def typeA(self):
        a, cfg = self.a, self.cfg
        ld, chk = self.f_nonce()
        pA, pB = self.scr
        self.xphase()
        self.unit0()
        t = T0; R = self.accreg; xp, xl, xq = self.f_xres()
        fl = [("gap", 128 + 2), ld]
        for h in range(4):
            fl += [("gap", self.comp(0, h))] + self.f_phi([R(0, h, 0), R(0, h, 1)], [K0 + 4 * h, K0 + 4 * h + 2])
            if h: fl += [M16(P0 + 8 * (h - 1), ONES, K0 + 4 * (h - 1), "0")]
        fl += [f"v_add_u32 v{vH}, s97, v{vL16}", f"s_lshl_b32 {sTmp}, {sW}, 8", f"v_lshrrev_b32 v{t+1}, 2, v{vL16}", M16(P0 + 24, ONES, K0 + 12, "0"),
               f"v_and_b32 v{t+2}, 60, v{t+1}", f"v_add_u32 v{t+1}, {sTmp}, v{t+1}", f"s_lshl_b32 {sTmp}, {sW}, 6", f"v_add_u32 v{t+2}, {sTmp}, v{t+2}",
               f"s_lshl_b32 {sTmp}, {sW}, 10", f"v_add_u32 v{t+3}, {sTmp}, v{vL16}", f"v_add_u32 v{t+4}, {pB}, v{t+3}", f"v_add_u32 v{t+3}, {pA}, v{t+3}",
               f"v_cndmask_b32 v{t}, v{P0}, v{P0+8}, {sM1}", f"v_cndmask_b32 v{t}, v{t}, v{P0+16}, {sM2}", f"v_cndmask_b32 v{t}, v{t}, v{P0+24}, {sM3}", chk]
        def wchk(): assert self.freed >= SCR_NEED, self.freed
        fl += [("dl", self.first(2, 0))]
        wr = []
        for h in range(4):
            q = Q0 + 8 * h
            fl += [("gap", self.comp(1, h))] + [f"v_cvt_pk_bf16_f32 v{q+i}, v{q+2*i}, v{q+2*i+1}" for i in range(4)]
            if h: fl += [M16(q - 4, K0 + 4 * h - 4, q - 8, "0")]
            wr += [f"ds_write_b128 v{vH}, {vr(q+4,4)} offset:{h*1024}"]
        fl += [f"v_mov_b32 v{t+5}, 0xff", ("gap", cfg.kvw_gap), self.hook(wchk), M16(Q0 + 28, K0 + 12, Q0 + 24, "0"), f"ds_write_b32 v{t+1}, v{t} offset:{ZR_OFF}"] + wr[:3] + [(wr[3], "kvw"), ("dl", cfg.kvw_gap + 8)]
        def xbar():
            assert not any(e[1] == "kvw" for e in a.lg)
            self.barrier(0, self.freed_at(self.cur))
        fl += [("gap", cfg.kvw_gap + 17), xbar]
        fl += [f"ds_read_b128 {vr(Q0+4*s,4)}, v{t+3+s//2} offset:{(s%2)*4096}" for s in range(4)]
        fl += [f"ds_read_b32 v{Q0+16+s}, v{t+2} offset:{ZR_OFF+s*256}" for s in range(4)] + [("dl", cfg.kvw_gap + 24), ("gap", cfg.kvw_gap + 29)]
        for s in range(1, 4): fl += [f"v_add_f32 v{Q0+r}, v{Q0+r}, v{Q0+4*s+r}" for r in range(4)] + [f"v_add_f32 v{Q0+16}, v{Q0+16}, v{Q0+16+s}"]
        fl += [f"v_bfi_b32 v{Q0+r}, v{t+5}, v{vTag}, v{Q0+r}" for r in (0, 16)]
        fl += [f"buffer_store_dwordx4 {vr(Q0,4)}, v{vL16}, {srd('ws')}, {sKV} offen sc1", f"buffer_store_dword v{Q0+16}, v{vFl}, {srd('ws')}, {sKV} offen offset:1024 sc1"]
        def rchk(): assert self.freed < SCR_REL, self.freed; self.st("kv")
        fl += [self.hook(rchk), ("dl", cfg.kvw_gap + 48)] + xp + xl
        OPK, OPZ, DEN, NUM = XF(1, 0), XF(1, 2), Q0, Q0 + 16
        fl += [f"v_lshrrev_b32 v{vH}, 1, v{vL16}", f"v_lshrrev_b32 v{vH+1}, 4, v0", f"v_lshlrev_b32 v{vH+1}, 3, v{vH+1}", f"s_add_u32 s88, {sA2}, {16*8192}", f"s_add_u32 s89, {sA2}, {28*8192}"]
        h0, h1 = self.f_h(Q0, P0, "s88", 0, "h"), self.f_h(Q0 + 8, P0 + 8, "s88", 2048, "h")
        sil = lambda u, cb: [("gap", self.comp(u, cb))] + self.f_silu([R(u, cb, 0), R(u, cb, 1)])
        fl += sil(2, 0) + sil(2, 1) + sil(2, 2) + sil(2, 3)
        fl += [("gap", self.comp(3, 1))] + h0[0] + [("dl", self.first(4, 0))] + h0[1] + [("gap", self.comp(3, 3))] + h1[0] + h1[1] + [("dl", cfg.hA_dl)] + xq
        opr = []
        for h in range(4):
            opr += [f"ds_read_b64 {vr(OPK+2*h,2)}, v{vH} offset:{OP_OFF+h*576}", f"ds_read_b64 {vr(OPZ+2*h,2)}, v{vH+1} offset:{OP_OFF+h*576+512}"]
        phi = lambda h: [("gap", self.comp(4, h))] + self.f_phi([R(4, h, 0), R(4, h, 1)], [R(4, h, 0), R(4, h, 1)])
        def mm(h):
            o = []
            for tt in range(2):
                b, e = vr(R(4, h, tt), 2), h % 2
                o += [f"v_mfma_f32_16x16x16_bf16 {vr(DEN+8*tt+4*e,4)}, {vr(OPZ+2*h,2)}, {b}, 0", f"v_mfma_f32_16x16x16_bf16 {vr(NUM+8*tt+4*e,4)}, {vr(OPK+2*h,2)}, {b}, 0"]
            return o
        def post(s2, tt):
            n, d = NUM + 8 * tt, DEN + 8 * tt
            o = [f"v_add_f32 v{d+4*e}, {sEPSC}, v{d+4*e}" for e in range(2)] + [f"v_rcp_f32 v{d+4*e}, v{d+4*e}" for e in range(2)]
            o += [f"v_mul_f32 v{n+i}, v{n+i}, v{d+4*(i//4)}" for i in range(8)]
            o += [f"v_cvt_pk_bf16_f32 v{d+i}, v{n+2*i}, v{n+2*i+1}" for i in range(4)]
            return o + [(f"buffer_store_dwordx4 {vr(d,4)}, v{vL16}, {srd('ws')}, s89 offen offset:{(2*s2+tt)*1024} sc1", "o")]
        def weave(main, extra, every):
            o = []; extra = list(extra)
            for k, f in enumerate(main):
                if extra and k % every == every - 1: o.append(extra.pop(0))
                o.append(f)
            return o + extra
        assert cfg.op_at < 160 and cfg.op_at in self.BARS and cfg.hA_dl <= self.first(4, 2) and cfg.hA_gap > cfg.hA_dl and (cfg.gate0_at in self.BARS or cfg.gate0_at == 160)
        fl += [("gap", max((cfg.op_at - 2) * 4 + 1, self.xdead(3)))] + opr + phi(0) + weave(phi(1), mm(0), 4)
        last = [weave(phi(2), mm(1), 4), post(0, 0) + post(0, 1)]
        for k in range(2):
            if k == cfg.finA: fl += [("dl", 639)]
            fl += last[k]
        if cfg.finA == 2: fl += [("dl", 639)]
        self.n_pre = cfg.n_preA; assert self.n_pre + cfg.n_epi <= 6
        rest = self.units(fl, self.merge(self.f_pre(cfg.preA_gap), [("gap", cfg.hA_gap), lambda: self.flag(16, "h")])); self.st("fin")
        self.cur = 160
        self.n_pre += cfg.n_epi
        self.p2_plan()
        self.barrier(56 + self.p2b[0] + 1, 56, gate=[g for g, at in ((0, cfg.gate0_at), (8, cfg.gate8_at), (12, cfg.gate12_at)) if at == 160])
        self.st("_e0")
        lds_ = [x for u in range(cfg.n_preA, self.n_pre) for x in self.a2_loads(u)]
        self.run_fill(lds_ + rest + weave(phi(3), mm(2), 4) + mm(3), 10 ** 9)
        self.p2_start()
        self.run_fill(post(1, 0) + post(1, 1), 10 ** 9)
        self.st("p2")
        self.phase2({cfg.late_at: lambda: self.flag(28, "o")})
    def typeF(self):
        a, cfg = self.a, self.cfg
        ld, chk = self.f_nonce()
        self.xphase()
        self.unit0()
        R = self.accreg; xp, xl, xq = self.f_xres()
        sil = lambda u, cb: [("gap", self.comp(u, cb))] + self.f_silu([R(u, cb, 0), R(u, cb, 1)])
        h10, h11 = self.f_h(Q0, P0, sA2, 0, "h1"), self.f_h(Q0 + 8, P0 + 8, sA2, 2048, "h1")
        h2 = self.f_h(P0, P0 + 8, "s100", 0, "h2")
        h30, h31 = self.f_h(P0, Q0, "s88", 0, "h3"), self.f_h(P0 + 8, Q0 + 8, "s88", 2048, "h3")
        fl = [("gap", 128 + 2), ld] + sil(0, 0) + sil(0, 1) + sil(0, 2) + [chk, ("gap", self.comp(1, 1))] + h10[0] + [("dl", self.first(2, 0))] + h10[1]
        fl += sil(0, 3) + [("gap", self.comp(1, 3))] + h11[0] + h11[1] + [("dl", cfg.h1_dl)]
        fl += sil(2, 0) + sil(2, 1) + [("gap", self.comp(2, 3))] + h2[0] + h2[1] + [("dl", cfg.h2_dl)] + xp + xl + [f"s_add_u32 s88, {sA2}, {8*8192}"]
        fl += sil(3, 0) + sil(3, 1) + xq + sil(3, 2) + sil(3, 3) + [("gap", self.comp(4, 1))] + h30[0] + h30[1] + [("dl", 639)]
        def f2():
            self.st("_wh2"); a.wait_tag("h2"); self.st("_dh2")
            a(f"buffer_store_dword v{vTag}, v{vFl}, {srd('ws')}, s101 offen sc1")
        assert cfg.h1_dl <= self.first(2, 2) and cfg.n_preF + cfg.n_epiF <= 8 and cfg.h2_dl <= self.first(4, 0) and (cfg.gate0_at in self.BARS or cfg.gate0_at == 160)
        self.n_pre = cfg.n_preF
        rest = self.units(fl, self.merge(self.f_pre(cfg.preF_gap), [("gap", cfg.h1_dl + cfg.ack), lambda: self.flag(0, "h1")], [("gap", cfg.h2_dl + cfg.ack), f2])); self.st("fin")
        self.cur = 160
        self.n_pre += cfg.n_epiF
        self.p2_plan()
        self.barrier(56 + self.p2b[0] + 1, 56, gate=[g for g, at in ((0, cfg.gate0_at), (8, cfg.gate8_at), (12, cfg.gate12_at)) if at == 160])
        for u in range(cfg.n_preF, self.n_pre):
            for x in self.a2_loads(u): a(x)
        self.p2_start()
        self.run_fill(rest + h31[0] + h31[1], 10 ** 9)
        self.st("p2")
        self.phase2({cfg.late_at: lambda: self.flag(8, "h3")})
    def p2_plan(self):
        cfg = self.cfg
        nxt = self.n_pre; self.p2l = {}; self.p2g = {}; bars = []
        last_w = max(x["need"] for x in self.it) - 57
        for u in range(36):
            ld = []
            while nxt < 36 and nxt <= u + cfg.D and len(ld) < 2:
                if nxt in STAGES and not (nxt == 8 and cfg.gate8_at <= 160) and not (nxt == 12 and cfg.gate12_at <= 160): self.p2g[u] = [nxt]
                ld.append(nxt); nxt += 1
            self.p2l[u] = ld
        prev = cfg.p2_first - cfg.p2_bar
        for u in range(36):
            nextg = min([g for g in self.p2g if g >= u] + [99])
            if u in self.p2g or (u - prev >= cfg.p2_bar and nextg - u >= min(2, cfg.p2_bar) and prev <= last_w + 8):
                bars.append(u); prev = u
        self.p2b = bars + [35]
    def p2_read(self, m, j):
        if m >= 72: return
        u, cp = m // 2, m & 1
        w = self.find(k="w2", u=u); assert w["n"] < self.full, (m, w, self.full)
        e, t2 = j // 2, j % 2
        self.lds("ds_read_b64_tr_b16", vr(WB0 + 8 * (m % 3) + 4 * e + 2 * t2, 2), vA + 2 * cp + e, w["addr"] + t2 * 2048)
    def p2_start(self):
        for cb in range(4): self.a(f"v_add_u32 v{vA+cb}, v{vNM}, v{vA+cb}")
        for m in range(2):
            for j in range(4): self.p2_read(m, j)
    def phase2(self, hooks):
        a, cfg = self.a, self.cfg
        pa, pb = self.find(k="w2", u=20)["addr"], self.find(k="w2", u=21)["addr"]
        assert self.p2b[-2] >= 22 and max(x["need"] for x in self.it) < 57 + 20
        tail = [f"s_mov_b32 s96, {pa}", f"s_cmp_lt_u32 {sW}, 2", f"s_cselect_b32 s96, s96, {pb}", f"s_and_b32 s97, {sW}, 1", "s_lshl_b32 s97, s97, 12",
                "s_add_u32 s96, s96, s97", f"v_add_u32 v{T0}, s96, v{vL16}", f"v_xor_b32 v{T0+1}, 0x1000, v{T0}"]
        for m in range(72):
            u, cp = m // 2, m & 1
            buf = WB0 + 8 * (m % 3); x = SLOT[u % len(SLOT)]
            extra = []
            if cp == 0:
                if u in hooks: hooks[u]()
                if u in self.p2b[:-1]:
                    a.need(vr(buf, 8))
                    self.barrier(56 + self.p2b[self.p2b.index(u) + 1] + 1, 56 + u, phase="2", gate=self.p2g.get(u))
                self.st(f"c{u}" if u in (4, 12, 20, 28, 35) else f"_c{u}")
            if len(self.p2l[u]) > cp: extra = self.a2_loads(self.p2l[u][cp])
            if u >= 30 and tail and not extra: extra = tail[:3]; tail = tail[3:]
            a.need(vr(buf, 8), vr(x[0], 4), vr(x[1], 4))
            order = ((0, 0), (0, 1), (1, 1), (1, 0)) if m < 71 else ((0, 1), (1, 1), (1, 0), (0, 0))
            for j, (e, t) in enumerate(order):
                d = (ACC, Q0)[t] + 4 * (2 * cp + e)
                a(M16(d, buf + 4 * e, x[t], "0" if (u == 0 and t == 1) else d))
                self.p2_read(m + 2, j)
                if j >= 1 and extra: a(extra.pop(0))
                if m == 71 and j >= 2: a(f"ds_write_b128 v{T0}, {vr(Q0+4*(j-2),4)} offset:{(j-2)*1024}")
        assert not tail
        for cb in (2, 3): a(f"ds_write_b128 v{T0}, {vr(Q0+4*cb,4)} offset:{cb*1024}")
        self.st("_t0")
        a("s_waitcnt lgkmcnt(0)"); a.raw("    s_barrier ; compute waves only, the loaders have ended")
        self.st("_t1")
        for cb in range(4): a(f"ds_read_b128 {vr(P0+4*cb,4)}, v{T0+1} offset:{cb*1024}")
        for k in range(2):
            o = 24 + 4 * k
            for i in range(8): a(f"v_add_f32 v{ACC+8*k+i}, v{ACC+8*k+i}, v{P0+8*k+i}")
            for i in range(4): a(f"v_cvt_pk_bf16_f32 v{o+i}, v{ACC+8*k+2*i}, v{ACC+8*k+2*i+1}")
            a(f"v_permlane16_swap_b32 v{o}, v{o+2}", f"v_permlane16_swap_b32 v{o+1}, v{o+3}")
            a(f"buffer_store_dwordx4 {vr(o,4)}, v{vR}, {srd('out')}, s99 offen offset:{64*k} {cfg.out_aux.replace('_', ' ')}")
        self.st("_t2")
        if cfg.diag:
            a("s_waitcnt vmcnt(0)"); self.st("end")
        self.st.flush(130, 129)
        a("s_endpgm")

class Loader:
    vX, vQ, vG, vD, vHh = 2, 4, 6, 16, 10
    vTag, vPo, vPo2, vP = 13, 14, 15, 16
    def __init__(self, a, cfg, comp):
        self.a, self.cfg, self.it, self.typ, self.bars = a, cfg, comp.it, comp.typ, comp.bars
        self.issued = 0
        self.st = Stamps(a, cfg, list(range(88, 102, 2)) + list(range(8, 36, 2)))
    def slow_poll(self, load, cmp):
        a = self.a
        C = a.newlabel("Lc"); L = a.newlabel("Lp")
        a(cmp, f"s_cbranch_vccz {C}")
        a.label(L)
        a.raw("    " + load); timeout(a); a.raw("    s_waitcnt vmcnt(0)"); a.raw("    " + cmp); a.raw(f"    s_cbranch_vccnz {L}")
        a.label(C)
    def prologue(self):
        a = self.a
        a("v_and_b32 v0, 63, v0", f"s_sub_u32 {sW}, {sW}, 4", f"s_lshl_b32 s77, {sW}, 11")
        a("v_lshrrev_b32 v21, 3, v0", "v_and_b32 v22, 7, v0", "v_lshrrev_b32 v23, 4, v0", "v_xor_b32 v24, v22, v23", "v_lshlrev_b32 v24, 4, v24")
        a(f"v_lshl_add_u32 v{self.vX}, v21, 10, v24", f"v_xor_b32 v{self.vX+1}, 64, v{self.vX}", f"v_add_u32 v{self.vX+1}, {8*1024-1024}, v{self.vX+1}")
        a(f"s_lshl_b32 s79, {sC}, 2", f"s_add_u32 s79, s79, {sW}", "s_lshl_b32 s79, s79, 15")
        a("s_movk_i32 s85, 0x3ff", f"s_lshl_b32 s84, {sROT}, 7" if self.cfg.rot else "s_mov_b32 s84, 0", "s_and_b32 s84, s84, s85", "s_add_u32 s78, s79, s84", "s_mov_b32 m0, s77")
        if self.cfg.lprio: a(f"s_setprio {self.cfg.lprio}")
        srd_const(a, "x")
        if "B1" in self.cfg.planX:
            a(f"s_lshl_b32 s76, {sW}, 3", "s_lshr_b32 s82, 0x30282008, s76", "s_and_b32 s82, s82, 0xff", "s_load_dwordx2 s[38:39], s[0:1], s82")
            a("s_lshr_b32 s82, 0x48403810, s76", "s_and_b32 s82, s82, 0xff", "s_load_dwordx2 s[86:87], s[0:1], s82", "v_mov_b32 v29, 0", "v_lshlrev_b32 v30, 21, v0")
        a("s_waitcnt lgkmcnt(0)")
        srd_base(a, "x")
    def prologue2(self):
        a = self.a
        for n in ("qkv", "gate", "up"): srd_base(a, n); srd_const(a, n)
        a(f"s_lshl_b32 s76, {sW}, 4", "v_add_u32 v21, s76, v21", f"s_lshl_b32 s80, {sI}, 7")
        a("v_lshlrev_b32 v25, 1, v23", "v_and_b32 v25, 2, v25", "v_xor_b32 v24, v22, v25", "v_lshlrev_b32 v24, 4, v24", "v_xor_b32 v26, 64, v24")
        for reg, st in ((self.vQ, 3072), (self.vG, 3584)):
            a(f"v_mul_u32_u24 v25, {st}, v21", f"v_add_u32 v{reg}, v25, v24", f"v_add_u32 v{reg+1}, v25, v26", f"v_add_u32 v{reg+1}, {8*st-1024}, v{reg+1}")
    def prologue3(self):
        a = self.a
        for n in ("down", "wo", "ws", "dbg"): srd_base(a, n); srd_const(a, n)
        a("v_lshlrev_b32 v25, 1, v23", "v_xor_b32 v24, v22, v25", "v_lshlrev_b32 v24, 4, v24", f"v_lshl_add_u32 v{self.vD}, v21, 10, v24",
          f"v_add_u32 v{self.vD+1}, {8*1024-1024}, v{self.vD}")
        a("v_lshrrev_b32 v25, 2, v0", f"s_lshl_b32 s76, {sW}, 5", "v_add_u32 v25, s76, v25", "v_mul_u32_u24 v25, 3584, v25", "v_and_b32 v26, 3, v0",
          "v_and_b32 v27, 2, v23", "v_xor_b32 v27, v26, v27", f"v_lshl_add_u32 v{self.vHh}, v27, 4, v25", f"v_add_u32 v{self.vHh+1}, {16*3584-1024}, v{self.vHh}")
        a("v_lshlrev_b32 v27, 4, v0")
        a(f"s_and_b32 s76, {sW}, 2", "s_lshl_b32 s76, s76, 7", f"s_and_b32 s82, {sW}, 1", "s_lshl_b32 s82, s82, 11", "s_add_u32 s76, s76, s82", f"v_lshl_add_u32 v{self.vPo}, v26, 9, s76")
        a(f"s_lshl_b32 s76, {sW}, 7", f"v_lshl_add_u32 v{self.vPo2}, v26, 9, s76")
        a(f"s_lshl_b32 s81, {sCB}, 7")
        a(f"s_mul_i32 s83, {sTB}, {36*512}", f"s_add_u32 s83, s83, {WS_FLAG:#x}")
        a("s_lshl_b32 s86, s2, 2", f"s_add_u32 s86, s86, {sW}", "s_lshr_b32 s87, s2, 3", "s_lshl_b32 s87, s87, 2", f"s_add_u32 s87, s87, {sW}", "v_lshlrev_b32 v28, 7, v0", "v_lshlrev_b32 v30, 10, v0")
        a(f"s_lshl_b32 s82, {sI}, 2", f"s_add_u32 s82, s82, {sW}", f"s_mul_i32 s82, s82, {16*1152}", f"s_add_u32 s82, s82, {WS_KV:#x}")
        a("v_and_b32 v41, 15, v0", "v_mul_u32_u24 v42, 1152, v23", "v_lshl_add_u32 v42, v41, 2, v42")
        a(f"s_mul_i32 s76, {sW}, 576", "v_lshl_add_u32 v43, v0, 3, s76", "v_lshl_add_u32 v44, v41, 1, s76")
    def item(self, x, reg=None):
        a = self.a; k = x["k"]; aux = ""; rot = None
        if k == "x":
            n, t, sl = x["n"], x["t"], x["s"]
            assert x["addr"] == 8192 * (n + 1)
            a("s_addk_i32 m0, 0x2000")
            if n == 0: pass
            elif sl % 2 == 1: a("s_addk_i32 s78, 128")
            elif n == 2 and t == 1: a("s_addk_i32 s78, 0x3f80")
            else:
                if n == 10 and self.cfg.xo == 0: a("s_addk_i32 s79, 0x4000", "s_addk_i32 s84, 256")
                if n == 8 and t == 1: a("s_addk_i32 s79, 0x4000")
                a("s_addk_i32 s84, 256", "s_and_b32 s84, s84, s85", "s_add_u32 s78, s79, s84")
            a.e(f"buffer_load_dwordx4 v{self.vX}, {srd('x')}, s78 offen lds", tag=n)
            a.e(f"buffer_load_dwordx4 v{self.vX+1}, {srd('x')}, s78 offen offset:1024 lds", tag=n)
            self.issued = n + 1
            return
        elif k == "w1":
            u, i = x["u"], x["i"]
            if self.typ == "A":
                s, v, st, off = [("qkv", self.vQ, 3072, 1024), ("qkv", self.vQ, 3072, 2048), ("gate", self.vG, 3584, 16 * 128),
                                 ("up", self.vG, 3584, 16 * 128), ("qkv", self.vQ, 3072, 0)][u]
                base, rot = "s80", (i, 64 * st)
            elif u != MIXU:
                uu = u - (u > MIXU)
                s, v, base, off, rot = ("gate", "up")[uu % 2], self.vG, "s80", (uu // 2) * 8 * 128, (i, 64 * 3584)
            else:
                if i == 0: a(f"s_lshl_b32 s79, {sI}, 6")
                s, v, base, off, rot = ("gate", "up")[i // 4], self.vHh, "s79", 24 * 128, (2 * (i % 4), 64 * 3584)
        elif k == "w2":
            u = x["u"]; S, U, n = stage_of(u)
            s, v, base, off = ("down", self.vD, "s81", U * 65536) if U < 28 else ("wo", self.vD, "s81", 0)
            if self.cfg.rot2:
                a(f"s_add_u32 s84, {'s2' if self.cfg.rot2 == 1 else sCB}, {u-S}", f"s_and_b32 s84, s84, {n-1}", "s_lshl_b32 s84, s84, 16", "s_add_u32 s84, s84, s81")
                base = "s84"
            else: off += (u - S) * 65536
        if rot and self.cfg.rot:
            a(f"s_add_u32 s84, {sROT}, {rot[0]}", "s_and_b32 s84, s84, 7", f"s_mul_i32 s84, s84, {rot[1]}", f"s_add_u32 s84, s84, {base}")
            base = "s84"
        elif rot: off += rot[0] * rot[1]
        if reg is not None:
            a(f"s_add_u32 s78, {base}, {off}")
            a(f"buffer_load_dwordx4 {vr(reg,4)}, v{v}, {srd(s)}, s78 offen", f"buffer_load_dwordx4 {vr(reg+4,4)}, v{v+1}, {srd(s)}, s78 offen offset:1024")
            return
        a(f"s_add_u32 m0, s77, {x['addr']}", f"s_add_u32 s78, {base}, {off}")
        a.e(f"buffer_load_dwordx4 v{v}, {srd(s)}, s78 offen lds", tag=x["n"])
        a.e(f"buffer_load_dwordx4 v{v+1}, {srd(s)}, s78 offen offset:1024 lds", tag=x["n"])
        self.issued = x["n"] + 1
    G, Z, S, CK = 64, 128, 32, 36
    def g_loads(self, part):
        a, G, Z = self.a, self.G, self.Z
        a(f"s_lshr_b32 s84, {sC}, 3", f"s_xor_b32 s84, s84, {part}", f"s_mul_i32 s84, s84, {8*1152}", "s_add_u32 s84, s84, s82")
        for t in range(2):
            a(f"s_add_u32 s78, s84, {t*4*1152+1024}", f"buffer_load_dword v{Z+2*part+t}, v42, {srd('ws')}, s78 offen sc1")
        for c in range(8):
            a(f"s_add_u32 s78, s84, {c*1152}", f"buffer_load_dwordx4 {vr(G+32*part+4*c,4)}, v27, {srd('ws')}, s78 offen sc1")
    def g_sum(self, part):
        a, G, Z, S, CK = self.a, self.G, self.Z, self.S, self.CK
        for t in range(2 * part, 2 * part + 2):
            if t == 0: a(f"v_xor_b32 v{CK}, v{self.vTag}, v{Z}")
            else: a(f"v_bitop3_b32 v{CK}, v{CK}, v{Z+t}, v{self.vTag} bitop3:0xf6", f"v_add_f32 v{Z}, v{Z}, v{Z+t}")
        for c in range(8 * part, 8 * part + 8):
            for r in range(4):
                if r == 0: a(f"v_bitop3_b32 v{CK}, v{CK}, v{G+4*c+r}, v{self.vTag} bitop3:0xf6")
                if c == 1: a(f"v_add_f32 v{S+r}, v{G+r}, v{G+4+r}")
                elif c > 1: a(f"v_add_f32 v{S+r}, v{S+r}, v{G+4*c+r}")
        if part == 1: a(f"v_and_b32 v{CK}, 0xff, v{CK}")
    def g_write(self):
        a, Z, S = self.a, self.Z, self.S
        a(f"v_mov_b32 v{Z+1}, v{Z}", f"v_cvt_pk_bf16_f32 v{S}, v{S}, v{S+1}", f"v_cvt_pk_bf16_f32 v{S+1}, v{S+2}, v{S+3}")
        a(f"v_permlane32_swap_b32 v{Z}, v{Z+1}", f"v_add_f32 v{Z}, v{Z}, v{Z+1}", f"v_mov_b32 v{Z+1}, v{Z}")
        a(f"v_permlane16_swap_b32 v{Z}, v{Z+1}", f"v_add_f32 v{Z}, v{Z}, v{Z+1}", f"v_mul_f32 v{Z}, {f2u(LOG2E):#x}, v{Z}", f"v_cvt_pk_bf16_f32 v{Z}, v{Z}, v{Z}")
        a(f"ds_write_b64 v43, {vr(S,2)} offset:{OP_OFF}", f"ds_write_b16 v44, v{Z} offset:{OP_OFF+512}")
    def sweep(self, lst, idx):
        a = self.a
        for nm, nl, base in lst:
            a(f"s_mul_i32 s76, {idx}, {nl*128}")
            if base: a(f"s_add_u32 s76, s76, {base}")
            a(f"s_mov_b64 exec, {(1 << nl) - 1:#x}", f"buffer_load_dword v{140+self.npf}, v28, {srd(nm)}, s76 offen"); self.npf += 1
        a("s_mov_b64 exec, -1")
    def action(self, x):
        a, cfg = self.a, self.cfg
        nload = f"buffer_load_dword v{self.vTag}, off, {srd('dbg')}, 0 sc1"
        need = {"U": ["PR"], "V": ["PR"], "PS": ["PR"], "P1": ["PS"], "P2": ["PS"], "P2a": ["PS"], "L": ["PS"], "R": ["PS"], "R0": ["PS"], "C": ["PS"], "N0": ["PS"], "N1": ["N0"],
                "G0": ["PS"], "G1": ["PS"], "S0": ["G0", "N1"], "S1": ["G1", "S0"], "Q": ["PS"]}
        for y in need.get(x, need.get(x[0], []) if x[0] in "UVLQ" else []): assert y in self.done, (x, "before", y)
        assert x not in self.done or x == "C", x
        assert not (x == "V2" and self.issued < 16)
        self.done.add(x)
        if x[0] == "Q":
            u = int(x[1:]); a(f"s_add_u32 s76, s83, {stage_of(u)[1]*512}", "s_mov_b64 exec, 15", self.pl(u, 3), "s_mov_b64 exec, -1")
        elif x == "P1": self.sweep((("gate", 14, 0), ("up", 14, 0), ("qkv", 12, 0)), "s86")
        elif x == "P2": self.sweep((("down", 14, 0), ("wo", 4, 0)), "s86")
        elif x == "P2a": self.sweep((("down", 8, 0),), "s86")
        elif x[0] == "L":
            k = int(x[1:]); self.sweep(((("down", 16, k << 18) if k < 7 else ("wo", 16, (k - 7) << 18)),), "s87")
        elif x in ("R", "R0"):
            for nm, nl in ((("down", 14), ("wo", 4)) if x == "R" else (("qkv", 12),)):
                a(f"s_mul_i32 s76, s87, {nl*1024}", f"s_mov_b64 exec, {(1 << nl) - 1:#x}", f"buffer_load_dword v{140+self.npf}, v30, {srd(nm)}, s76 offen offset:384"); self.npf += 1
            a("s_mov_b64 exec, -1")
        elif x[0] in "UV":
            if not hasattr(self, "split"): self.split = len(a.out)
            u = int(x[1:])
            if self.typ == "A": s_, v, st, off = [("qkv", self.vQ, 3072, 1024), ("qkv", self.vQ, 3072, 2048), ("gate", self.vG, 3584, 2048), ("up", self.vG, 3584, 2048), ("qkv", self.vQ, 3072, 0)][u]
            else: uu = u - (u > MIXU); s_, v, st, off = ("gate", "up")[uu % 2], self.vG, 3584, (uu // 2) * 1024
            if x[0] == "V":
                a(f"s_lshl_b32 s76, {sC}, 2", f"s_sub_u32 s76, s76, {sW}", f"s_mul_i32 s76, s76, {8*st}", "s_mov_b32 exec_lo, 0x01010101", "s_mov_b32 exec_hi, 0x01010101")
                if self.typ == "F" and u == MIXU:
                    a(f"s_lshr_b32 s84, {sI}, 1", "s_lshl_b32 s84, s84, 7", "s_add_u32 s76, s76, s84", f"v_add_u32 v29, s76, v{v}")
                    for s_ in ("gate", "up"):
                        a(f"buffer_load_dword v{140+self.npf}, v29, {srd(s_)}, 0 offen offset:3072"); self.npf += 1
                else:
                    a("s_add_u32 s76, s76, s80", f"v_add_u32 v29, s76, v{v}", f"buffer_load_dword v{140+self.npf}, v29, {srd(s_)}, 0 offen offset:{off}"); self.npf += 1
                a("s_mov_b64 exec, -1")
                return
            assert cfg.grid == 24 and not (self.typ == "F" and u == MIXU)
            a(f"s_mul_i32 s76, {sCB}, {64*st}", "s_add_u32 s76, s76, s80", "s_mov_b32 exec_lo, 0x01010101", "s_mov_b32 exec_hi, 0x01010101")
            for t in range(2):
                a(f"buffer_load_dword v{140+self.npf}, v{v+t}, {srd(s_)}, s76 offen offset:{off+1024*t}"); self.npf += 1
            a("s_mov_b64 exec, -1")
        elif x == "B1": a("s_mov_b64 exec, 1", "global_load_dword v138, v29, s[38:39]", "s_mov_b64 exec, -1")
        elif x == "B2": a("s_mov_b64 exec, 1", "global_load_dword v139, v29, s[86:87]", "s_mov_b64 exec, -1")
        elif x == "B3": a("s_mov_b64 exec, 62", "global_load_dword v137, v30, s[34:35]", "s_mov_b64 exec, -1")
        elif x == "PR": self.prologue2()
        elif x == "PS": self.prologue3()
        elif x == "C":
            L = a.newlabel("Lpc")
            a("s_getpc_b64 s[38:39]"); a.label(L)
            a(f"s_sub_u32 s38, s38, {L}-{NAME}_kernel", "s_subb_u32 s39, s39, 0", "s_mul_i32 s76, s87, 640", "v_add_u32 v29, s76, v28", f"v_min_u32 v29, L_last-{NAME}_kernel, v29")
            a("s_mov_b64 exec, 31", f"global_load_dword v{140+self.npf}, v29, s[38:39]", "s_mov_b64 exec, -1"); self.npf += 1
        elif x[0] == "W": self.st(x + "a"); a("s_waitcnt vmcnt(0)"); self.st(x + "b")
        elif x[0] == "T": self.st(x)
        elif x == "N0": a(nload)
        elif x == "N1": self.slow_poll(nload, f"v_cmp_eq_u32 vcc, 0, v{self.vTag}")
        elif cfg.nogather and x in ("G0", "G1", "S0", "S1"): pass
        elif x == "G0": self.st("g0"); self.g_loads(0)
        elif x == "G1": self.g_loads(1)
        elif x == "S0": a(f"s_setprio {cfg.gprio}"); self.g_sum(0); a(f"s_setprio {cfg.lprio}")
        elif x == "S1": a(f"s_setprio {cfg.gprio}"); self.g_sum(1); self.g_write(); a(f"s_setprio {cfg.lprio}"); self.st("g1")
        else: raise KeyError(x)
    def run(self):
        a, cfg, it = self.a, self.cfg, self.it
        self.st("start"); self.npf = 0; self.done = set()
        if os.environ.get("ENTRY"):
            a.raw(f"    s_mov_b32 s{self.st.regs[self.st.n]}, s14"); self.st.n += 1; self.st.names.append("entry")
        spec = (cfg.planX + " " + (cfg.planA if self.typ == "A" else cfg.planF)).split()
        pol = {int(x.split(":")[0]): [int(y) for y in x.split(":")[1].split(",")] for x in cfg.polls.split()}
        for g in pol:
            if any(f"Q{g}" in y.split(",") for y in spec): pol[g] = [3]
        for bi, b in enumerate(self.bars):
            for g in b.get("gate") or []:
                for k in pol[g] if pol[g] != [3] else []: self.bars[bi - k].setdefault("poll", []).append((g, k))
        freed = 0; plan = []
        for bi, b in enumerate(self.bars):
            vP = lambda u, k: 200 + 4 * STAGES.index(u) + k
            pl = lambda u, k: f"buffer_load_dword v{vP(u, k)}, v{self.vPo2 if stage_of(u)[2] == 4 else self.vPo}, {srd('ws')}, s76 offen sc1"
            self.pl = pl
            for u, k in b.get("poll", []): a(f"s_add_u32 s76, s83, {stage_of(u)[1]*512}", "s_mov_b64 exec, 15", pl(u, k), "s_mov_b64 exec, -1")
            acts = spec[bi].split(",") if bi < len(spec) else [cfg.p2_cap]
            for x in acts + ["req"]:
                if x[0].isdigit() or x == "req":
                    depth = int(x.split("t")[1]) if "t" in x else None
                    lim = self.issued + int(x.split("t")[0]) if x != "req" else b["full"]
                    while self.issued < min(lim, len(it)):
                        y = it[self.issued]
                        if y["need"] > freed:
                            assert x != "req", ("deadlock", bi, b, y); break
                        if x == "req": print(f"  [{self.typ}] barrier {bi}: item {y['n']} issued only when required", file=sys.stderr)
                        if y["n"] == 16 and not hasattr(self, "split"): self.split = len(a.out)
                        if y["n"] in (16, 32, 56): self.st(f"i{y['n']}")
                        assert y["n"] < 16 or "PR" in self.done
                        assert y["n"] < 32 or "PS" in self.done
                        if depth: a.wait_tag(y["n"] - depth)
                        self.item(y)
                else: self.action(x)
            if b.get("op") and not cfg.nogather:
                assert "S1" in self.done
                C = a.newlabel("Lc"); L = a.newlabel("Lg")
                a(f"v_cmp_ne_u32 vcc, 0, v{self.CK}", f"s_cbranch_vccz {C}")
                save = (list(a.vm), list(a.lg))
                a.label(L)
                self.g_loads(0); self.g_loads(1); self.g_sum(0); self.g_sum(1)
                a(f"v_cmp_ne_u32 vcc, 0, v{self.CK}"); timeout(a); a(f"s_cbranch_vccnz {L}")
                self.g_write()
                a.label(C); a.vm, a.lg = save
                a("s_waitcnt lgkmcnt(0)")
            for u in b.get("gate") or []:
                a(f"s_add_u32 s76, s83, {stage_of(u)[1]*512}", "s_mov_b64 exec, 15")
                assert "N1" in self.done and (pol[u] != [3] or f"Q{u}" in self.done)
                Cg = a.newlabel("Lc"); save = None
                for k in pol[u][:-1]:
                    a(f"v_cmp_ne_u32 vcc, v{self.vTag}, v{vP(u, k)}", f"s_cbranch_vccz {Cg}")
                    if save is None: save = list(a.vm)
                k = pol[u][-1]
                self.slow_poll(pl(u, k), f"v_cmp_ne_u32 vcc, v{self.vTag}, v{vP(u, k)}")
                a.label(Cg)
                if save is not None: a.vm = save
                a("s_mov_b64 exec, -1")
                self.st(f"f{u}")
            for n in range(b["full"] - 1, -1, -1):
                if any(e[1] == n for e in a.vm): a.wait_tag(n); break
            if cfg.bdiag: a.raw("    s_memtime s[68:69]")
            a("s_barrier")
            if cfg.bdiag:
                for x_ in ("s_memtime s[70:71]", "s_waitcnt lgkmcnt(0)", f"v_writelane_b32 v46, s68, {bi}", f"v_writelane_b32 v47, s70, {bi}"): a.raw("    " + x_)
            freed = b["freed"]
            plan.append(f"{bi}:{b['step']}:d{b['dur']:.0f}:f{b['full']}:i{self.issued}:{','.join(acts)}" + (f":gate{b['gate']}" if b.get("gate") else ""))
        assert self.issued == len(it)
        print(f"plan {self.typ}:", " ".join(plan), file=sys.stderr)
        self.st("end")
        if cfg.bdiag:
            a("s_lshl_b32 s76, s2, 2", f"s_add_u32 s76, s76, {sW}", "s_lshl_b32 s76, s76, 9", f"s_add_u32 s76, s76, {WS_DIAG+0x100000:#x}", "v_lshlrev_b32 v45, 2, v0")
            a(f"buffer_store_dword v46, v45, {srd('ws')}, s76 offen", f"buffer_store_dword v47, v45, {srd('ws')}, s76 offen offset:256")
        self.plan = plan
        if cfg.diag: a(f"s_add_u32 {sW}, {sW}, 4")
        self.st.flush(130, 129)
        a("s_endpgm")

def generate(cfg):
    a = Asm()
    if os.environ.get("ENTRY"): a.raw("    s_memrealtime s[14:15]")
    a("s_cmp_ge_u32 s2, 256", "s_cbranch_scc1 L_end")
    a("s_load_dwordx16 s[16:31], s[0:1], 0", "s_load_dwordx4 s[32:35], s[0:1], 64")
    a("v_lshrrev_b32 v1, 6, v0")
    if cfg.pf_code:
        a("s_getpc_b64 s[98:99]"); a.label("L_pc")
        a("s_lshr_b32 s96, s2, 3", "s_lshl_b32 s96, s96, 11", "v_and_b32 v2, 0x1e0, v0", "v_lshl_add_u32 v2, v2, 2, s96", "v_min_u32 v2, L_last-L_pc, v2")
        a.raw(f"    global_load_dword v{vNM}, v2, s[98:99]")
    a(f"v_readfirstlane_b32 {sW}, v1")
    if cfg.grid == 24:
        a("s_and_b32 s8, s2, 1", "s_bfe_u32 s9, s2, 0x20001", "s_bfe_u32 s10, s2, 0x30003", "s_lshr_b32 s11, s2, 6")
        a(f"s_lshl_b32 {sC}, s8, 3", f"s_add_u32 {sC}, {sC}, s10")
        a("s_and_b32 s12, s11, 1", f"s_lshl_b32 {sI}, s9, 1", f"s_lshl_b32 {sROT}, s8, 2", f"s_add_u32 {sROT}, {sROT}, {sI}", f"s_add_u32 {sI}, {sI}, s12")
        a(f"s_lshl_b32 {sTB}, s8, 2", f"s_add_u32 {sTB}, {sTB}, s9", f"s_lshl_b32 {sTB}, {sTB}, 2", f"s_add_u32 {sTB}, {sTB}, s11", f"s_mov_b32 {sCB}, s10")
    else:
        a("s_and_b32 s8, s2, 3", "s_and_b32 s9, s2, 4", "s_bfe_u32 s10, s2, 0x20003", "s_bfe_u32 s11, s2, 0x20005")
        a(f"s_lshl_b32 {sC}, s8, 2", f"s_add_u32 {sC}, {sC}, s10", f"s_add_u32 {sI}, s9, s11")
        a("s_and_b32 s12, s11, 1", "s_lshl_b32 s12, s12, 1", f"s_add_u32 {sROT}, s9, s12")
        a(f"s_lshl_b32 {sTB}, s8, 3", f"s_add_u32 {sTB}, {sTB}, s9", "s_lshr_b32 s12, s2, 6", f"s_add_u32 {sTB}, {sTB}, s12", f"s_bfe_u32 {sCB}, s2, 0x30003")
    a(f"s_mov_b32 {sT}, {cfg.timeout}")
    a(f"s_cmp_lt_u32 {sW}, 4", "s_cbranch_scc1 L_compute")
    info = {}
    progs = {}
    for typ in "AF":
        b = Asm(); b.uid = 1000 if typ == "A" else 2000
        c = Compute(b, cfg, typ)
        (c.typeA if typ == "A" else c.typeF)()
        progs[typ] = (b, c); info["c" + typ] = c.st.names
    lds_ = {}
    for typ in "AF":
        b = Asm(); b.uid = 3000 if typ == "A" else 4000
        l = Loader(b, cfg, progs[typ][1]); l.run()
        lds_[typ] = (b, l); info["l" + typ] = l.st.names; info["plan" + typ] = l.plan; info["bdiag"] = cfg.bdiag
        nb = lambda o: sum(x.strip() == "s_barrier" for x in o)
        assert nb(b.out) == nb(progs[typ][0].out) == len(progs[typ][1].bars)
        print(f"loader {typ}: {b.count} instrs, {b.nops} nop states; compute: {progs[typ][0].count} instrs, {progs[typ][0].nops} nop states", file=sys.stderr)
    def shared(d):
        (ba, oa), (bf, of) = d["A"], d["F"]
        assert oa.split == of.split and ba.out[:oa.split] == bf.out[:of.split]
        return ba.out[:oa.split]
    Loader(a, cfg, progs["A"][1]).prologue()
    a.out += shared(lds_)
    a("s_cmp_ge_u32 s2, 128", "s_cbranch_scc1 L_loadF", "s_branch L_loadA")
    a.label("L_end"); a.raw("    s_endpgm")
    a.label("L_compute"); a.reset()
    Compute(a, cfg, "A").prologue()
    a.out += shared(progs)
    a("s_cmp_ge_u32 s2, 128", "s_cbranch_scc1 L_compF")
    for typ in "AF":
        b, c = progs[typ]
        a.label("L_comp" + typ); a.out += b.out[c.split:] + b.stubs
        b, l = lds_[typ]
        a.label("L_load" + typ); a.out += b.out[l.split:]
    a.label("L_last"); a.raw("    s_endpgm")
    head = open("cdna_kernels/" + NAME + ".s.ref").read().split("; Override launch")[0]
    txt = head + f"; @launch grid=(256,1,1) block=(512,1,1) lds={LDS_BYTES}\n"
    txt += f""".amdgcn_target "amdgcn-amd-amdhsa--gfx950"
.text
.globl {NAME}_kernel
.p2align 8
.type {NAME}_kernel,@function
{NAME}_kernel:
""" + a.text() + f"""
.section .rodata,"a"
.p2align 6
.amdhsa_kernel {NAME}_kernel
  .amdhsa_next_free_vgpr 256
  .amdhsa_next_free_sgpr 102
  .amdhsa_accum_offset 256
  .amdhsa_group_segment_fixed_size 0
  .amdhsa_kernarg_size 80
  .amdhsa_user_sgpr_count 2
  .amdhsa_user_sgpr_kernarg_segment_ptr 1
  .amdhsa_system_sgpr_workgroup_id_x 1
.end_amdhsa_kernel
"""
    return txt, info

if __name__ == "__main__":
    cfg = Cfg()
    out = sys.argv[1]
    for kv in sys.argv[2:]:
        k, v = kv.split("="); setattr(cfg, k, type(getattr(Cfg, k))(v))
    txt, info = generate(cfg)
    open(out, "w").write(txt)
    info["mode"] = cfg.diag
    import json; json.dump(info, open(out + ".json", "w"))
```

```python
import sys, os, struct, re
from asmb import Asm

NAME = "parallel_sum__linear_attn_block__swiglu_ffn__prompt"

class Cfg:
    diag = 0
    bdiag = 0
    timeout = 400000
    round_ln = 1
    rot = 1
    rot2 = 0
    pf_code = 1
    pf_tlb = 0
    nofill = 0
    cprio = 1
    lprio = 0
    gprio = 1
    xgroups = "2,6,8,10"
    grid = 24
    xo = 0
    pro2_at = 0
    xlate = "3:13,5:16"
    op_at = 144
    frate = 60
    ack = 50
    h1_dl = 308
    h2_dl = 418
    kvw_gap = 266
    hA_dl = 537
    hA_gap = 586
    finA = 0
    late_at = 4
    gate0_at = 144
    gate8_at = 160
    gate12_at = 999
    n_preA = 5
    n_preF = 3
    preA_gap = 580
    preF_gap = 580
    pre_step = 10
    n_epi = 1
    n_epiF = 1
    D = 4
    p2_bar = 1
    p2_first = 3
    p2_cap = "1"
    polls = "0:1 8:2,0 12:2 20:2 28:2,0"
    nogather = 0
    pads = 1
    x1 = 1
    x4 = 4
    rotadd = 2
    cbmap = 1
    own = 2
    fullline = 0
    barsA = "8,16,32,48,64,80,96,112,128,144"
    barsF = "8,16,32,48,64,80,96,112,128,144"
    out_aux = "sc1"
    planX = "7,PR 3 3 2 2,U0 U1,2 4 4,PS 6"
    planA = "U2,U3,U4,P2 5,N0 7,N1 R 5 3 7,G0 4,S0,G1 Q0,S1,4 8,Q8 6"
    planF = "V2,2,V3,U4,P2 2,N0 N1,6 9 5,R 3 5 Q0,4 3,Q8 3 4"

ZR_OFF, OP_OFF = 0, 1024
LDS_BYTES = 163840
WS_FLAG, WS_KV, WS_A2, WS_DIAG, WS_SIZE = 0x1000, 0x100000, 0x200000, 0x1000000, 0x2000000
sC, sI, sTB, sCB, sW, sROT = "s4", "s5", "s6", "s7", "s3", "s36"
sT = "s37"
SRD = dict(x=40, qkv=44, gate=48, up=52, down=56, wo=60, ws=64, out=68, dbg=72)
PTR = dict(x=16, qkv=18, wo=20, gate=24, up=26, down=28, out=30, dbg=32, ws=34)
SIZE = dict(x=2097152, qkv=1572864, wo=524288, gate=1835008, up=1835008, down=1835008, out=2097152, dbg=256, ws=WS_SIZE)
def srd(n): return f"s[{SRD[n]}:{SRD[n]+3}]"
def mk_srd(a, n):
    b = SRD[n]
    a(f"s_mov_b32 s{b}, s{PTR[n]}", f"s_mov_b32 s{b+1}, s{PTR[n]+1}", f"s_mov_b32 s{b+2}, {SIZE[n]:#x}", f"s_mov_b32 s{b+3}, 0x20000")
LOG2E = 1.4426950408889634
def f2u(x): return struct.unpack('<I', struct.pack('<f', x))[0]
def srd_const(a, n): a(f"s_mov_b32 s{SRD[n]+2}, {SIZE[n]:#x}", f"s_mov_b32 s{SRD[n]+3}, 0x20000")
def srd_base(a, n): a(f"s_mov_b64 s[{SRD[n]}:{SRD[n]+1}], s[{PTR[n]}:{PTR[n]+1}]")
def vr(b, n=1): return f"v{b}" if n == 1 else f"v[{b}:{b+n-1}]"
M16 = lambda d, x, y, c: f"v_mfma_f32_16x16x32_bf16 {vr(d,4)}, {vr(x,4)}, {vr(y,4)}, {c if isinstance(c, str) else vr(c,4)}"

SCR_NEED, SCR_REL = 17 + 14, 17 + 20
STG = ((0, 0, 8), (8, 24, 4), (12, 16, 8), (20, 8, 8), (28, 28, 8))
STAGES = tuple(x[0] for x in STG)
def stage_of(j): return max(x for x in STG if x[0] <= j)
MIXU = 2
def xord(cfg):
    if cfg.xo == 0: return [(0, 0), (0, 1), (1, 0), (1, 1)] + [(0, s) for s in range(2, 8)] + [(1, s) for s in range(2, 8)]
    return [(t, s) for t in range(2) for s in range(8)]
def make_items(cfg, typ):
    it = []
    for i, (t, s) in enumerate(xord(cfg)): it.append(dict(k="x", s=s, t=t, rel=i + 1))
    for u in range(5):
        for i in range(8): it.append(dict(k="w1", u=u, i=i, rel=17 + 8 * u + i))
    for u in range(36): it.append(dict(k="w2", u=u, rel=57 + u))
    free = [(0, p) for p in range(1, 20)] + ([(0, 20)] if typ == "F" else [])
    scr = []
    for n, x in enumerate(it):
        free.sort()
        while typ == "A" and len(scr) < 2 and free[0][0] >= SCR_NEED - 1:
            need, p = free.pop(0); assert need <= SCR_NEED
            scr.append(8192 * p); free.append((SCR_REL, p)); free.sort()
        need, p = free.pop(0)
        assert need < x["rel"], (n, x, need)
        x["need"] = need; x["n"] = n; x["addr"] = 8192 * (p % 20)
        free.append((x["rel"], p))
    return it, scr

class Stamps:
    def __init__(self, a, cfg, regs):
        self.a, self.on, self.regs, self.n, self.names = a, cfg.diag, regs, 0, []
    def __call__(self, name):
        if not self.on: return
        sel = os.environ.get("STAMPS")
        if sel is None:
            if name.startswith("_"): return
        elif name not in sel.split(",") + ["start", "end"]: return
        r = self.regs[self.n]
        self.a.raw(f"    {'s_memrealtime' if self.on == 1 else 's_memtime'} s[{r}:{r+1}]")
        self.n += 1; self.names.append(name)
        if os.environ.get("BOTH"):
            r = self.regs[self.n]
            self.a.raw(f"    s_memtime s[{r}:{r+1}]")
            self.n += 1; self.names.append(name + "c")
    def flush(self, vt, vz):
        if not self.on: return
        a = self.a
        a("s_waitcnt lgkmcnt(0)")
        a("s_lshl_b32 s76, s2, 3", f"s_add_u32 s76, s76, {sW}", "s_lshl_b32 s76, s76, 7", f"s_add_u32 s76, s76, {WS_DIAG:#x}")
        a(f"v_mov_b32 v{vz}, 0", "s_mov_b64 exec, 1")
        for i in range(self.n):
            a(f"v_mov_b32 v{vt+i}, s{self.regs[i]}")
            a(f"buffer_store_dword v{vt+i}, v{vz}, {srd('ws')}, s76 offen offset:{4*i}")

def timeout(a):
    a.raw(f"    s_sub_u32 {sT}, {sT}, 1")
    a.raw("    s_cbranch_scc1 L_end")

X0, P0, Q0, K0, WB0 = 128, 64, 96, 48, 24
vA, vH, vL16, vR, vNM, vTag, vFl, T0, ONES = 1, 5, 7, 8, 9, 10, 11, 12, 20
sC2, sHI, sIC, sEPSC = "s38", "s39", "s76", "s77"
sCC = "s36"
sA2, sFL, sKV, sTmp = "s78", "s79", "s80", "s81"
sM1, sM2, sM3 = "s[82:83]", "s[84:85]", "s[86:87]"
def XF(t, s): return X0 + 64 * t + 4 * s
ACC, XRAW = K0, K0 + 8
SLOTQ = [((0, 0), (0, 1)), ((0, 2), (0, 3)), ((0, 4), (1, 4)), ((0, 5), (1, 5)), ((0, 6), (1, 6)), ((0, 7), (1, 7)), ((1, 0), (1, 1)), ((1, 2), (1, 3))] + [((0, s), (1, s)) for s in range(8, 16)]
SLOT = [(XF(*a), XF(*b)) for a, b in SLOTQ]

class Compute:
    def __init__(self, a, cfg, typ):
        self.a, self.cfg, self.typ = a, cfg, typ
        self.it, self.scr = make_items(cfg, typ)
        self.bars = []; self.full = 0; self.freed = 0; self.mark = 0; self.cur = -1
        self.win = {}
        self.st = Stamps(a, cfg, list(range(48, 64, 2)) + list(range(20, 36, 2)))
    def find(self, **kw):
        for x in self.it:
            if all(x.get(k) == v for k, v in kw.items()): return x
        raise KeyError(kw)
    def barrier(self, full, freed, extra=0, **kw):
        slots = pipe = 0
        for l in self.a.out[self.mark:]:
            l = l.strip()
            if l.endswith(":") or l.startswith("."): continue
            if l.startswith("v_mfma"): slots += 2; pipe += 32 if "32x32" in l else 16
            elif l.startswith(("v_exp", "v_rcp", "v_sqrt", "v_rsq")): slots += 2
            else: slots += 1
        self.a("s_barrier"); self.mark = len(self.a.out)
        self.full = max(self.full, full); self.freed = max(self.freed, freed)
        self.bars.append(dict(full=self.full, freed=self.freed, dur=max(4.2 * slots, pipe) + 40 + extra, step=self.cur, **kw))
    def lds(self, op, dst, areg, addr):
        w = self.win.setdefault(areg, 0)
        if not (0 <= addr - w <= 65535):
            nw = addr & ~8191
            self.a(f"v_add_u32 v{areg}, {(nw - w) & 0xffffffff:#x}, v{areg}")
            self.win[areg] = w = nw
        self.a(f"{op} {dst}, v{areg} offset:{addr - w}")

    def geom(self, n):
        u, ks = divmod(n, 32)
        if u == 0: return ks // 4, ks % 4, 2 * (ks // 4), False
        if self.typ == "F" and u == MIXU: return 4 * (ks // 16) + (ks % 8) // 2, ks // 8, 2 * (ks % 8), ks % 2 == 1
        i = 4 * (ks // 16) + ks % 4
        return i, (ks % 16) // 4, 2 * i, ks % 2 == 1
    def accreg(self, u, cb, t):
        return (P0 if u % 2 == 0 else Q0) + (8 * cb + 4 * t if (self.typ == "A" and u < 2) else 16 * t + 4 * cb)
    def comp(self, u, cb): return 4 * max(n for n in range(32 * u, 32 * u + 32) if self.geom(n)[1] == cb) + 8
    def first(self, u, cb): return 4 * min(n for n in range(32 * u, 32 * u + 32) if self.geom(n)[1] == cb) - 1
    def xdead(self, s): return 4 * max(n for n in range(128, 160) if self.geom(n)[2] == (s & ~1)) + 4
    def step(self, n):
        u = n // 32; i, cb, s0, flip = self.geom(n)
        buf = WB0 + 8 * (n % 3)
        it = self.it[self.item_of(n)]
        if self.typ == "F" and u == MIXU:
            rd = [(buf + 4 * e + 2 * t2, vH + cb % 2, it["addr"] + ((s0 + e) % 4) * 2048 + t2 * 1024) for e in range(2) for t2 in range(2)]
        else:
            rd = [(buf + 4 * e + 2 * t2, vA + cb, it["addr"] + e * 4096 + t2 * 2048) for e in range(2) for t2 in range(2)]
        nt = self.typ == "A" and u < 2
        mf = []
        for k, (e, t) in enumerate(((0, 1), (1, 1), (1, 0), (0, 0)) if flip else ((0, 0), (1, 0), (1, 1), (0, 1))):
            d = self.accreg(u, cb, t); w, x = buf + 4 * e, XF(t, s0 + e)
            mf.append(M16(d, x if nt else w, w if nt else x, "0" if (s0 == 0 and k % 2 == 0) else d))
        return dict(it=it, rd=rd, mf=mf, buf=buf)
    @property
    def BARS(self):
        return [int(x) for x in (self.cfg.barsA if self.typ == "A" else self.cfg.barsF).split(",")]
    def item_of(self, n): return 16 + 8 * (n // 32) + self.geom(n)[0]
    def freed_at(self, n):
        return min([self.item_of(m) for m in range(n + 1, 160)] + [56])
    def read(self, n, j):
        if n >= 160: return
        s = self.step(n)
        if j == 0 and n in self.BARS:
            nxt = min([b for b in self.BARS if b > n] + [160])
            self.barrier(max(self.item_of(m) for m in range(n, nxt)) + 1, self.freed_at(n - 2), op=(self.typ == "A" and n == self.cfg.op_at),
                         gate=[g for g, at in ((0, self.cfg.gate0_at), (8, self.cfg.gate8_at), (12, self.cfg.gate12_at)) if at == n])
        assert s["it"]["n"] < self.full, (n, self.full)
        d, r, ad = s["rd"][j]
        self.lds("ds_read_b64_tr_b16", vr(d, 2), r, ad)
    def cost(self, f):
        if isinstance(f, tuple) and f[0] in ("gap", "dl"): return 0
        if callable(f) and getattr(f, "free", False): return 0
        if isinstance(f, str) and f.startswith(("v_exp", "v_rcp", "v_mfma")): return 2
        return 1
    def run_fill(self, fl, budget):
        used = 0
        while fl and used < budget:
            f = fl[0]
            if isinstance(f, tuple) and f[0] == "gap":
                if self.gap < f[1]: break
                fl.pop(0); continue
            if isinstance(f, tuple) and f[0] == "dl": fl.pop(0); continue
            fl.pop(0); used += self.cost(f)
            if callable(f): f()
            elif isinstance(f, tuple): self.a.e(f[0], tag=f[1])
            else: self.a(f)
        return used
    def units(self, fl, side):
        fl = list(fl); side = list(side); credit = 0.0
        for n in range(32, 160):
            s = self.step(n); self.cur = n
            if n % 32 == 0: self.st(f"u{n//32}")
            self.a.need(vr(s["buf"], 8))
            for j in range(4):
                self.gap = 4 * n + j
                self.a(s["mf"][j])
                self.read(n + 2, j)
                rate = self.cfg.frate / 100; c = 0
                for f in fl:
                    if isinstance(f, tuple) and f[0] == "dl":
                        assert c == 0 or f[1] >= self.gap, ("deadline missed", f, self.gap)
                        if c: rate = max(rate, c / max(0.5, f[1] - self.gap - 0.5))
                    c += self.cost(f)
                credit = min(credit + rate, rate + 1.5)
                credit -= 0.7 * self.run_fill(side, 1)
                credit -= self.run_fill(fl, credit - 0.5)
        self.gap = 10 ** 9
        if side: print(f"  [{self.typ}] {len(side)} side fillers left over", file=sys.stderr)
        self.run_fill(side, 10 ** 9)
        return fl

    def f_silu(self, quads):
        fl = []
        for k, q in enumerate(quads):
            t = T0 + (k % 2) * 4
            fl += [f"v_exp_f32_e64 v{t+i}, -v{q+i}" for i in range(4)]
            fl += [f"v_fma_f32 v{t+i}, v{t+i}, {sC2}, {sC2}" for i in range(4)]
            fl += [f"v_rcp_f32 v{t+i}, v{t+i}" for i in range(4)]
            fl += [f"v_mul_f32 v{q+i}, v{q+i}, v{t+i}" for i in range(4)]
        return fl
    def f_phi(self, quads, packs):
        fl = []
        for k, (q, p) in enumerate(zip(quads, packs)):
            t = T0 + (k % 2) * 4
            fl += [f"v_exp_f32_e64 v{t+i}, v{q+i} clamp" for i in range(4)]
            fl += [f"v_max_f32 v{q+i}, {sEPSC}, v{q+i}" for i in range(4)]
            fl += [f"v_fmac_f32 v{t+i}, {sIC}, v{q+i}" for i in range(4)]
            fl += [f"v_cvt_pk_bf16_f32 v{p+i}, v{t+2*i}, v{t+2*i+1}" for i in range(2)]
        return fl
    def f_h(self, dst, src, soff, off, tag):
        mul = []; out = []
        for t in range(2):
            d = dst + 16 * t
            mul += [f"v_mul_f32 v{d+i}, v{d+i}, v{src+16*t+i}" for i in range(8)]
            out += [f"v_cvt_pk_bf16_f32 v{d+i}, v{d+2*i}, v{d+2*i+1}" for i in range(4)]
            out += [(f"buffer_store_dwordx4 {vr(d,4)}, v{vL16}, {srd('ws')}, {soff} offen offset:{off+t*1024} sc1", tag)]
        return mul, out
    def flag(self, U, tag):
        a = self.a
        a(f"s_add_u32 {sTmp}, {dict(h1=sFL, h='s45', h3='s45', o='s47')[tag]}, {U*512}")
        self.st("_w" + tag); a.wait_tag(tag); self.st("_d" + tag)
        a(f"buffer_store_dword v{vTag}, v{vFl}, {srd('ws')}, {sTmp} offen sc1")
    def f_nonce(self):
        a = self.a
        def chk():
            L = a.newlabel("Ln"); C = a.newlabel("Lc")
            a(f"v_cmp_eq_u32 vcc, 0, v{vTag}")
            a(f"s_cbranch_vccnz {L}")
            a.label(C)
            a.stubs += [f"{L}:", f"    buffer_load_dword v{vTag}, off, {srd('dbg')}, 0 sc1", f"    s_sub_u32 {sT}, {sT}, 1", "    s_cbranch_scc1 L_end",
                        "    s_waitcnt vmcnt(0)", f"    v_cmp_eq_u32 vcc, 0, v{vTag}", f"    s_cbranch_vccnz {L}", f"    s_branch {C}"]
        return f"buffer_load_dword v{vTag}, off, {srd('dbg')}, 0 sc1", chk

    def prologue(self):
        a, cfg = self.a, self.cfg
        a("v_and_b32 v0, 63, v0")
        if cfg.cprio: a(f"s_setprio {cfg.cprio}")
        a(f"v_lshlrev_b32 v{vL16}, 4, v0")
        a("v_and_b32 v12, 15, v0", "v_lshrrev_b32 v13, 4, v0", "v_lshrrev_b32 v14, 1, v12", "v_xor_b32 v14, v13, v14", "v_lshlrev_b32 v14, 4, v14",
          "v_lshl_add_u32 v14, v12, 7, v14", f"s_lshl_b32 {sTmp}, {sW}, 11", f"v_add_u32 v{P0}, {sTmp}, v14", f"v_xor_b32 v{P0+1}, 64, v{P0}")
        for i in range(4): a(f"v_mov_b32 v{ONES+i}, 0x3f803f80")
        a("v_and_b32 v14, 31, v0", "v_lshrrev_b32 v15, 5, v0", "v_lshlrev_b32 v15, 3, v15", "v_sub_u32 v15, v14, v15")
        a("v_and_b32 v16, 1, v15", "v_lshlrev_b32 v16, 4, v16", "v_mov_b32 v17, 0x3f80", "v_lshlrev_b32 v16, v16, v17", "v_lshrrev_b32 v15, 1, v15")
        for t in range(8):
            a(f"v_cmp_eq_u32 vcc, {t if t < 4 else t + 4}, v15", f"v_cndmask_b32 v{K0+t}, 0, v16, vcc")
        a("s_waitcnt lgkmcnt(0)")
        for n in ("ws", "out", "dbg", "x"): srd_base(a, n); srd_const(a, n)
        L = "L_tag0"
        a(f"s_or_b32 s0, s2, {sW}", "s_cmp_lg_u32 s0, 0", f"s_cbranch_scc1 {L}")
        a.raw(f"    buffer_load_dword v{vTag}, off, {srd('ws')}, 0 sc1")
        a.label(L)
        a("v_lshlrev_b32 v14, 2, v13", "v_sub_u32 v14, v12, v14")
        for i in range(4): a(f"v_cmp_eq_u32 s[{88+2*i}:{89+2*i}], {i}, v14")
        a(f"s_mov_b32 {sC2}, {f2u(LOG2E**2):#x}", f"s_mov_b32 {sIC}, {f2u(1/LOG2E):#x}", f"s_mov_b32 {sHI}, 0xffff0000", f"s_mov_b32 {sEPSC}, {f2u(1e-6*LOG2E):#x}", f"s_mov_b32 {sCC}, {f2u(LOG2E):#x}")
        a("v_lshrrev_b32 v15, 5, v0", "v_bfe_u32 v16, v0, 2, 2", "v_lshl_add_u32 v16, v15, 2, v16", "v_and_b32 v17, 1, v13", "v_lshl_add_u32 v16, v17, 3, v16")
        a("v_and_b32 v18, 3, v0", "v_lshlrev_b32 v18, 3, v18", "v_lshl_add_u32 v19, v16, 6, v18", f"v_lshl_add_u32 v{vH}, v17, 5, v19", f"v_xor_b32 v{vH+1}, 32, v{vH}")
        a("v_lshl_add_u32 v19, v16, 7, v18", "v_bfe_u32 v18, v0, 3, 2", f"v_lshl_add_u32 v{vA}, v18, 5, v19")
        for cb in range(1, 4): a(f"v_xor_b32 v{vA+cb}, {cb*32}, v{vA}")
        a("v_lshlrev_b32 v18, 2, v0", f"v_lshl_add_u32 v{vFl}, v15, 30, v18")
    def prologue2(self):
        a, cfg = self.a, self.cfg
        a(f"s_lshr_b32 {sTmp}, {sW}, 1", f"s_lshl_b32 {sA2}, {sC}, 1", f"s_add_u32 {sA2}, {sA2}, {sTmp}", f"s_mul_i32 {sA2}, {sA2}, 36",
          f"s_add_u32 {sA2}, {sA2}, {sI}", f"s_lshl_b32 {sA2}, {sA2}, 1", f"s_and_b32 {sTmp}, {sW}, 1", f"s_add_u32 {sA2}, {sA2}, {sTmp}")
        a(f"s_lshl_b32 {sFL}, {sA2}, 8", f"s_add_u32 {sFL}, {sFL}, {WS_FLAG:#x}", f"s_lshl_b32 {sA2}, {sA2}, 12", f"s_add_u32 {sA2}, {sA2}, {WS_A2:#x}")
        for r, x in ((44, cfg.x1), (46, cfg.x4)):
            a(f"s_xor_b32 s96, {sI}, {x}", f"s_sub_u32 s96, s96, {sI}", "s_lshl_b32 s97, s96, 13", f"s_add_u32 s{r}, {sA2}, s97", "s_lshl_b32 s97, s96, 9", f"s_add_u32 s{r+1}, {sFL}, s97")
        a(f"s_mul_i32 s96, {sTB}, {36*8192}", f"s_add_u32 s96, s96, {WS_A2:#x}")
        for j in range(12):
            if cfg.rot2: a(f"s_add_u32 s97, {'s2' if cfg.rot2 == 1 else sCB}, {j%8}", f"s_and_b32 s97, s97, {7 if j < 8 else 3}", "s_lshl_b32 s97, s97, 13", f"s_add_u32 s{8+j}, s96, s97")
            else: a(f"s_add_u32 s{8+j}, s96, {(j%8)*8192}")
        a(f"s_lshl_b32 s99, {sTB}, 2", f"s_add_u32 s99, s99, {sW}", "s_lshl_b32 s99, s99, 14", f"s_lshl_b32 s97, {sCB}, 7", "s_add_u32 s99, s99, s97")
        a("s_mov_b32 s82, 0xffff0000", "s_mov_b32 s83, 0", "s_mov_b32 s84, 0", "s_mov_b32 s85, 0xffff", "s_mov_b32 s86, 0", "s_mov_b32 s87, 0xffff0000")
        a(f"s_lshl_b32 {sKV}, {sI}, 2", f"s_add_u32 {sKV}, {sKV}, {sW}", f"s_lshl_b32 {sKV}, {sKV}, 4", f"s_add_u32 {sKV}, {sKV}, {sC}",
          f"s_mul_i32 {sKV}, {sKV}, 1152", f"s_add_u32 {sKV}, {sKV}, {WS_KV:#x}")
        pA, pB = make_items(cfg, "A")[1]
        a(f"s_mov_b32 s97, {pA}", f"s_mov_b32 s98, {pB}", f"s_cmp_lt_u32 {sW}, 2", "s_cselect_b32 s97, s97, s98", f"s_and_b32 s98, {sW}, 1", "s_lshl_b32 s98, s98, 12", "s_add_u32 s97, s97, s98")
        a(f"s_lshr_b32 s96, {sI}, 1", f"s_sub_u32 s96, s96, {sI}", "s_add_u32 s96, s96, 24", "s_lshl_b32 s96, s96, 2", f"s_and_b32 s98, {sI}, 1", "s_add_u32 s96, s96, s98",
          "s_lshl_b32 s100, s96, 11", f"s_add_u32 s100, s100, {sA2}", "s_lshl_b32 s101, s96, 7", f"s_add_u32 s101, s101, {sFL}")
    def tag_publish(self):
        a = self.a
        L = "L_tag1"
        a("s_cmp_lg_u32 s0, 0", f"s_cbranch_scc1 {L}")
        for x in ("s_waitcnt vmcnt(0)", f"v_add_u32 v{vTag}, 0x9e377902, v{vTag}", f"v_or_b32 v{vTag}, 0x80000000, v{vTag}", "s_mov_b64 exec, 1",
                  f"buffer_store_dword v{vTag}, off, {srd('dbg')}, 0 sc1", f"buffer_store_dword v{vTag}, off, {srd('ws')}, 0 sc1", "s_mov_b64 exec, -1"):
            a.raw("    " + x)
        a.label(L)
    def stats_fin(self, S1, S2, R):
        t = T0
        fl = [f"v_cndmask_b32 v{t+2}, 0, v{S2}, s[88:89]"] + [f"v_cndmask_b32 v{t+2}, v{t+2}, v{S2+i}, s[{88+2*i}:{89+2*i}]" for i in range(1, 4)]
        fl += [f"v_mov_b32 v{t+3}, v{t+2}", f"v_mul_f32 v{t}, 0x3b000000, v{S1}", f"v_mul_f32 v{t+1}, v{t}, v{t}", f"v_permlane32_swap_b32 v{t+2}, v{t+3}", f"v_add_f32 v{t+2}, v{t+2}, v{t+3}",
               f"v_mov_b32 v{t+3}, v{t+2}", f"v_permlane16_swap_b32 v{t+2}, v{t+3}", f"v_add_f32 v{t+2}, v{t+2}, v{t+3}"]
        fl += [f"v_mul_f32 v{t+2}, 0x3b000000, v{t+2}", f"v_sub_f32 v{t+2}, v{t+2}, v{t+1}", f"v_max_f32 v{t+2}, 0, v{t+2}"]
        if self.cfg.round_ln:
            fl += [f"v_cvt_pk_bf16_f32 v{t+1}, v{t}, v{t+2}", f"v_and_b32 v{t+2}, {sHI}, v{t+1}", f"v_lshlrev_b32 v{t}, 16, v{t+1}",
                   f"v_add_f32 v{t+2}, 0x3727c5ac, v{t+2}", f"v_cvt_pk_bf16_f32 v{t+2}, v{t+2}, v{t+2}", f"v_lshlrev_b32 v{t+2}, 16, v{t+2}",
                   f"v_sqrt_f32 v{t+2}, v{t+2}", f"v_cvt_pk_bf16_f32 v{t+2}, v{t+2}, v{t+2}", f"v_lshlrev_b32 v{t+2}, 16, v{t+2}", f"v_rcp_f32 v{R}, v{t+2}"]
        else:
            fl += [f"v_add_f32 v{t+2}, 0x3727c5ac, v{t+2}", f"v_rsq_f32 v{R}, v{t+2}"]
        fl += [f"v_mul_f32 v{R}, {sCC}, v{R}", f"v_mul_f32_e64 v{R+1}, -v{t}, v{R}"]
        return fl
    def unpack(self, t, p):
        d = vr(Q0 + 16 * (p % 2), 16)
        return [f"v_mfma_f32_32x32x16_bf16 {d}, {vr(K0,4)}, {vr(XF(t,2*p),4)}, 0",
                f"v_mfma_f32_32x32x16_bf16 {d}, {vr(K0+4,4)}, {vr(XF(t,2*p+1),4)}, {d}"]
    def f_center(self, t, p):
        d = Q0 + 16 * (p % 2); fl = []; R = vR if t else T0 + 4
        for g in range(0, 16, 4):
            fl += [f"v_fma_f32 v{d+g+i}, v{d+g+i}, v{R}, v{R+1}" for i in range(4)]
            fl += [f"v_cvt_pk_bf16_f32 v{XF(t,2*p)+g//2+i}, v{d+g+2*i}, v{d+g+2*i+1}" for i in range(2)]
        return fl
    def xphase(self):
        a, cfg = self.a, self.cfg
        S = P0 + 4
        done = [0]
        def group(g):
            self.barrier(g[-1] + 1, done[0], phase="x")
            mf = []
            for i in g:
                t, s = xord(cfg)[i]
                for e in range(2):
                    x, k = XF(t, 2 * s + e), 2 * s + e
                    self.lds("ds_read_b128", vr(x, 4), P0 + e, self.it[i]["addr"])
                    mf += [M16(S + 8 * t, ONES, x, "0" if k == 0 else S + 8 * t), M16(S + 8 * t + 4, x, x, "0" if k == 0 else S + 8 * t + 4)]
            return mf
        if cfg.pro2_at == 0: self.prologue2()
        a.out += touch_code(cfg)
        ends = [0] + [int(x) for x in cfg.xgroups.split(",")]
        for gi in range(len(ends) - 1):
            g = list(range(ends[gi], ends[gi + 1]))
            mf = group(g)
            if gi == 0: self.st("x0")
            for m in mf: a(m)
            if gi == 0:
                for m in self.unpack(0, 0) + self.unpack(0, 1): a(m)
                a("s_waitcnt vmcnt(0)"); self.tag_publish()
                if cfg.pro2_at == 1: self.prologue2()
            done[0] = g[-1] + 1
        self.st("x4")
        for f in self.stats_fin(S, S + 4, T0 + 4): a(f)
        pend = []; fin = None
        late = [tuple(int(y) for y in x.split(":")) for x in cfg.xlate.split(",")]
        nxt = ends[-1]
        for q in range(9):
            while late and late[0][0] == q:
                for m in pend: a(m)
                done[0] = nxt
                pend = group(list(range(nxt, late[0][1]))); hold = 10; nxt = late.pop(0)[1]
                if not late: self.st("x7")
            if q == 8:
                for m in pend: a(m)
                pend = []
            if not late and not pend and fin is None: fin = self.stats_fin(S + 8, S + 12, vR)
            if q == 8:
                self.barrier(18, 16, phase="x")
                for n in range(2):
                    for j in range(4): self.read(n, j)
                for f in fin: a(f)
                fin = []
            assert q < 7 or xord(cfg).index((1, q - 7)) < nxt
            up = self.unpack(*divmod(q + 1, 8)) if q >= 1 else []
            a.raw("    .p2align 3")
            for k, f in enumerate(self.f_center(*divmod(q, 8))):
                if up and k in (0, 8): a(up.pop(0))
                if pend:
                    hold -= 1
                    if hold <= 0 and k % 3 == 2: a(pend.pop(0)); a.raw("    .p2align 3")
                a(f)
                if fin and k >= 2:
                    a(fin.pop(0))
        self.st("u0")
        self.split = len(a.out)
    def unit0(self):
        a = self.a
        self.gap = 0
        for p in range(8):
            fl = self.f_center(1, p + 1) if p + 1 < 8 else []
            up = self.unpack(1, p + 2) if p + 2 < 8 else []
            for e in range(4):
                n = 4 * p + e; s = self.step(n); self.cur = n
                if up and e % 2 == 0:
                    a(up[e // 2]); self.run_fill(fl, 4)
                a.need(vr(s["buf"], 8))
                for j in range(4):
                    a(s["mf"][j]); self.read(n + 2, j)
                    self.run_fill(fl, 1 if up else 2)
            assert not fl
    def f_xres(self):
        t = vNM
        pre = [f"v_bfe_u32 v{t}, v0, 4, 1", f"v_lshrrev_b32 v{vR}, 5, v0", f"v_lshl_add_u32 v{vR}, v{t}, 1, v{vR}", f"v_lshlrev_b32 v{vR}, 4, v{vR}",
               f"v_and_b32 v{t}, 15, v0", f"v_lshl_add_u32 v{vR}, v{t}, 10, v{vR}",
               f"v_lshrrev_b32 v{t}, 5, v0", f"v_bfe_u32 v{ONES}, v0, 4, 1", f"v_sub_u32 v{t}, v{t}, v{ONES}", f"v_lshlrev_b32 v{t}, 9, v{t}",
               f"s_and_b32 s96, {sW}, 1", "s_lshl_b32 s96, s96, 10", f"v_add_u32 v{ONES+1}, s96, v{vL16}", f"v_lshl_add_u32 v{ONES+1}, {sW}, 11, v{ONES+1}", f"v_xor_b32 v{ONES+2}, 0x400, v{ONES+1}",
               f"v_xor_b32 v{ONES+3}, 0x800, v{ONES+1}",
               "s_lshl_b32 s96, s96, 2", f"v_add_u32 v{t}, s96, v{t}"]
        ld = [f"buffer_load_dwordx4 {vr(XRAW+4*k,4)}, v{vR}, {srd('x')}, s99 offen offset:{64*k}" for k in range(2)]
        post = [lambda: self.st("_xq0"), lambda: self.a.need(vr(XRAW, 8)), lambda: self.st("_xq1")]
        for k in range(2): post += [f"v_permlane16_swap_b32 v{XRAW+4*k}, v{XRAW+4*k+2}", f"v_permlane16_swap_b32 v{XRAW+4*k+1}, v{XRAW+4*k+3}"]
        for i in range(8): post += [f"v_lshlrev_b32 v{ACC+2*i}, 16, v{XRAW+i}", f"v_and_b32 v{ACC+2*i+1}, {sHI}, v{XRAW+i}"]
        return pre, ld, post
    def a2_loads(self, u):
        S, U, n = stage_of(u)
        r = f"s{8+u-S}" if n == 8 else f"s{16+u-S}"
        b = SLOT[u % len(SLOT)]
        return [f"s_add_u32 {sTmp}, {r}, {U*8192}"] + [f"buffer_load_dwordx4 {vr(b[s],4)}, v{ONES+1+s*(2 if u >= 36 - self.cfg.own else 1)}, {srd('ws')}, {sTmp} offen sc1" for s in range(2)]
    @staticmethod
    def merge(*lists):
        segs = []
        for l in lists:
            for f in l:
                if isinstance(f, tuple) and f[0] == "gap": segs.append([f])
                else: segs[-1].append(f)
        return [f for sg in sorted(segs, key=lambda x: x[0][1]) for f in sg]
    def f_pre(self, g0):
        fl = []
        assert g0 >= (self.cfg.gate0_at - 2) * 4 + 1 or self.n_pre == 0
        for u in range(self.n_pre):
            fl += [("gap", max([g0 + u * self.cfg.pre_step] + [self.xdead(q[1]) for q in SLOTQ[u]]))] + [x.replace(sTmp, "s98") for x in self.a2_loads(u)]
        return fl
    def hook(self, f):
        f.free = True; return f
    def typeA(self):
        a, cfg = self.a, self.cfg
        ld, chk = self.f_nonce()
        pA, pB = self.scr
        self.xphase()
        self.unit0()
        t = T0; R = self.accreg; xp, xl, xq = self.f_xres()
        fl = [("gap", 128 + 2), ld]
        for h in range(4):
            fl += [("gap", self.comp(0, h))] + self.f_phi([R(0, h, 0), R(0, h, 1)], [K0 + 4 * h, K0 + 4 * h + 2])
            if h: fl += [M16(P0 + 8 * (h - 1), ONES, K0 + 4 * (h - 1), "0")]
        fl += [f"v_add_u32 v{vH}, s97, v{vL16}", f"s_lshl_b32 {sTmp}, {sW}, 8", f"v_lshrrev_b32 v{t+1}, 2, v{vL16}", M16(P0 + 24, ONES, K0 + 12, "0"),
               f"v_and_b32 v{t+2}, 60, v{t+1}", f"v_add_u32 v{t+1}, {sTmp}, v{t+1}", f"s_lshl_b32 {sTmp}, {sW}, 6", f"v_add_u32 v{t+2}, {sTmp}, v{t+2}",
               f"s_lshl_b32 {sTmp}, {sW}, 10", f"v_add_u32 v{t+3}, {sTmp}, v{vL16}", f"v_add_u32 v{t+4}, {pB}, v{t+3}", f"v_add_u32 v{t+3}, {pA}, v{t+3}",
               f"v_cndmask_b32 v{t}, v{P0}, v{P0+8}, {sM1}", f"v_cndmask_b32 v{t}, v{t}, v{P0+16}, {sM2}", f"v_cndmask_b32 v{t}, v{t}, v{P0+24}, {sM3}", chk]
        def wchk(): assert self.freed >= SCR_NEED, self.freed
        fl += [("dl", self.first(2, 0))]
        wr = []
        for h in range(4):
            q = Q0 + 8 * h
            fl += [("gap", self.comp(1, h))] + [f"v_cvt_pk_bf16_f32 v{q+i}, v{q+2*i}, v{q+2*i+1}" for i in range(4)]
            if h: fl += [M16(q - 4, K0 + 4 * h - 4, q - 8, "0")]
            wr += [f"ds_write_b128 v{vH}, {vr(q+4,4)} offset:{h*1024}"]
        fl += [f"v_mov_b32 v{t+5}, 0xff", ("gap", cfg.kvw_gap), self.hook(wchk), M16(Q0 + 28, K0 + 12, Q0 + 24, "0"), f"ds_write_b32 v{t+1}, v{t} offset:{ZR_OFF}"] + wr[:3] + [(wr[3], "kvw"), ("dl", cfg.kvw_gap + 8)]
        def xbar():
            assert not any(e[1] == "kvw" for e in a.lg)
            self.barrier(0, self.freed_at(self.cur))
        fl += [("gap", cfg.kvw_gap + 17), xbar]
        fl += [f"ds_read_b128 {vr(Q0+4*s,4)}, v{t+3+s//2} offset:{(s%2)*4096}" for s in range(4)]
        fl += [f"ds_read_b32 v{Q0+16+s}, v{t+2} offset:{ZR_OFF+s*256}" for s in range(4)] + [("dl", cfg.kvw_gap + 24), ("gap", cfg.kvw_gap + 29)]
        for s in range(1, 4): fl += [f"v_add_f32 v{Q0+r}, v{Q0+r}, v{Q0+4*s+r}" for r in range(4)] + [f"v_add_f32 v{Q0+16}, v{Q0+16}, v{Q0+16+s}"]
        fl += [f"v_bfi_b32 v{Q0+r}, v{t+5}, v{vTag}, v{Q0+r}" for r in (0, 16)]
        fl += [f"buffer_store_dwordx4 {vr(Q0,4)}, v{vL16}, {srd('ws')}, {sKV} offen sc1", f"buffer_store_dword v{Q0+16}, v{vFl}, {srd('ws')}, {sKV} offen offset:1024 sc1"]
        def rchk(): assert self.freed < SCR_REL, self.freed; self.st("kv")
        fl += [self.hook(rchk), ("dl", cfg.kvw_gap + 48)] + xp + xl
        OPK, OPZ, DEN, NUM = XF(1, 0), XF(1, 2), Q0, Q0 + 16
        fl += [f"v_lshrrev_b32 v{vH}, 1, v{vL16}", f"v_lshrrev_b32 v{vH+1}, 4, v0", f"v_lshlrev_b32 v{vH+1}, 3, v{vH+1}", f"s_add_u32 s88, s44, {16*8192}", f"s_add_u32 s89, s46, {28*8192}"]
        h0, h1 = self.f_h(Q0, P0, "s88", 0, "h"), self.f_h(Q0 + 8, P0 + 8, "s88", 2048, "h")
        sil = lambda u, cb: [("gap", self.comp(u, cb))] + self.f_silu([R(u, cb, 0), R(u, cb, 1)])
        fl += sil(2, 0) + sil(2, 1) + sil(2, 2) + sil(2, 3)
        fl += [("gap", self.comp(3, 1))] + h0[0] + [("dl", self.first(4, 0))] + h0[1] + [("gap", self.comp(3, 3))] + h1[0] + h1[1] + [("dl", cfg.hA_dl)] + xq
        opr = []
        for h in range(4):
            opr += [f"ds_read_b64 {vr(OPK+2*h,2)}, v{vH} offset:{OP_OFF+h*576}", f"ds_read_b64 {vr(OPZ+2*h,2)}, v{vH+1} offset:{OP_OFF+h*576+512}"]
        phi = lambda h: [("gap", self.comp(4, h))] + self.f_phi([R(4, h, 0), R(4, h, 1)], [R(4, h, 0), R(4, h, 1)])
        def mm(h):
            o = []
            for tt in range(2):
                b, e = vr(R(4, h, tt), 2), h % 2
                o += [f"v_mfma_f32_16x16x16_bf16 {vr(DEN+8*tt+4*e,4)}, {vr(OPZ+2*h,2)}, {b}, 0", f"v_mfma_f32_16x16x16_bf16 {vr(NUM+8*tt+4*e,4)}, {vr(OPK+2*h,2)}, {b}, 0"]
            return o
        def post(s2, tt):
            n, d = NUM + 8 * tt, DEN + 8 * tt
            o = [f"v_add_f32 v{d+4*e}, {sEPSC}, v{d+4*e}" for e in range(2)] + [f"v_rcp_f32 v{d+4*e}, v{d+4*e}" for e in range(2)]
            o += [f"v_mul_f32 v{n+i}, v{n+i}, v{d+4*(i//4)}" for i in range(8)]
            o += [f"v_cvt_pk_bf16_f32 v{d+i}, v{n+2*i}, v{n+2*i+1}" for i in range(4)]
            return o + [(f"buffer_store_dwordx4 {vr(d,4)}, v{vL16}, {srd('ws')}, s89 offen offset:{(2*s2+tt)*1024} sc1", "o")]
        def weave(main, extra, every):
            o = []; extra = list(extra)
            for k, f in enumerate(main):
                if extra and k % every == every - 1: o.append(extra.pop(0))
                o.append(f)
            return o + extra
        assert cfg.op_at < 160 and cfg.op_at in self.BARS and cfg.hA_dl <= self.first(4, 2) and cfg.hA_gap > cfg.hA_dl and (cfg.gate0_at in self.BARS or cfg.gate0_at == 160)
        fl += [("gap", max((cfg.op_at - 2) * 4 + 1, self.xdead(3)))] + opr + phi(0) + weave(phi(1), mm(0), 4)
        last = [weave(phi(2), mm(1), 4), post(0, 0) + post(0, 1)]
        for k in range(2):
            if k == cfg.finA: fl += [("dl", 639)]
            fl += last[k]
        if cfg.finA == 2: fl += [("dl", 639)]
        self.n_pre = cfg.n_preA; assert self.n_pre + cfg.n_epi <= 6
        rest = self.units(fl, self.merge(self.f_pre(cfg.preA_gap), [("gap", cfg.hA_gap), lambda: self.flag(16, "h")])); self.st("fin")
        self.cur = 160
        self.n_pre += cfg.n_epi
        self.p2_plan()
        self.barrier(56 + self.p2b[0] + 1, 56, gate=[g for g, at in ((0, cfg.gate0_at), (8, cfg.gate8_at), (12, cfg.gate12_at)) if at == 160])
        self.st("_e0")
        lds_ = [x for u in range(cfg.n_preA, self.n_pre) for x in self.a2_loads(u)]
        self.run_fill(lds_ + rest + weave(phi(3), mm(2), 4) + mm(3), 10 ** 9)
        self.p2_start()
        self.run_fill(post(1, 0) + post(1, 1), 10 ** 9)
        self.st("p2")
        self.phase2({cfg.late_at: lambda: self.flag(28, "o")})
    def typeF(self):
        a, cfg = self.a, self.cfg
        ld, chk = self.f_nonce()
        self.xphase()
        self.unit0()
        R = self.accreg; xp, xl, xq = self.f_xres()
        sil = lambda u, cb: [("gap", self.comp(u, cb))] + self.f_silu([R(u, cb, 0), R(u, cb, 1)])
        h10, h11 = self.f_h(Q0, P0, sA2, 0, "h1"), self.f_h(Q0 + 8, P0 + 8, sA2, 2048, "h1")
        h2 = self.f_h(P0, P0 + 8, "s100", 0, "h2")
        h30, h31 = self.f_h(P0, Q0, "s88", 0, "h3"), self.f_h(P0 + 8, Q0 + 8, "s88", 2048, "h3")
        fl = [("gap", 128 + 2), ld] + sil(0, 0) + sil(0, 1) + sil(0, 2) + [chk, ("gap", self.comp(1, 1))] + h10[0] + [("dl", self.first(2, 0))] + h10[1]
        fl += sil(0, 3) + [("gap", self.comp(1, 3))] + h11[0] + h11[1] + [("dl", cfg.h1_dl)]
        fl += sil(2, 0) + sil(2, 1) + [("gap", self.comp(2, 3))] + h2[0] + h2[1] + [("dl", cfg.h2_dl)] + xp + xl + [f"s_add_u32 s88, s44, {8*8192}"]
        fl += sil(3, 0) + sil(3, 1) + xq + sil(3, 2) + sil(3, 3) + [("gap", self.comp(4, 1))] + h30[0] + h30[1] + [("dl", 639)]
        def f2():
            self.st("_wh2"); a.wait_tag("h2"); self.st("_dh2")
            a(f"buffer_store_dword v{vTag}, v{vFl}, {srd('ws')}, s101 offen sc1")
        assert cfg.h1_dl <= self.first(2, 2) and cfg.n_preF + cfg.n_epiF <= 8 and cfg.h2_dl <= self.first(4, 0) and (cfg.gate0_at in self.BARS or cfg.gate0_at == 160)
        self.n_pre = cfg.n_preF
        rest = self.units(fl, self.merge(self.f_pre(cfg.preF_gap), [("gap", cfg.h1_dl + cfg.ack), lambda: self.flag(0, "h1")], [("gap", cfg.h2_dl + cfg.ack), f2])); self.st("fin")
        self.cur = 160
        self.n_pre += cfg.n_epiF
        self.p2_plan()
        self.barrier(56 + self.p2b[0] + 1, 56, gate=[g for g, at in ((0, cfg.gate0_at), (8, cfg.gate8_at), (12, cfg.gate12_at)) if at == 160])
        for u in range(cfg.n_preF, self.n_pre):
            for x in self.a2_loads(u): a(x)
        self.p2_start()
        self.run_fill(rest + h31[0] + h31[1], 10 ** 9)
        self.st("p2")
        self.phase2({cfg.late_at: lambda: self.flag(8, "h3")})
    def p2_plan(self):
        cfg = self.cfg
        nxt = self.n_pre; self.p2l = {}; self.p2g = {}; bars = []
        last_w = max(x["need"] for x in self.it) - 57
        for u in range(36):
            ld = []
            while nxt < 36 and nxt <= u + cfg.D and len(ld) < 2:
                if nxt in STAGES and not (nxt == 8 and cfg.gate8_at <= 160) and not (nxt == 12 and cfg.gate12_at <= 160): self.p2g[u] = [nxt]
                ld.append(nxt); nxt += 1
            self.p2l[u] = ld
        prev = cfg.p2_first - cfg.p2_bar
        for u in range(36):
            nextg = min([g for g in self.p2g if g >= u] + [99])
            if u in self.p2g or (u - prev >= cfg.p2_bar and nextg - u >= min(2, cfg.p2_bar) and prev <= last_w + 8):
                bars.append(u); prev = u
        self.p2b = bars + [35]
    def p2_read(self, m, j):
        if m >= 72 - 2 * self.cfg.own: return
        u, cp = m // 2, m & 1
        w = self.find(k="w2", u=u); assert w["n"] < self.full, (m, w, self.full)
        e, t2 = j // 2, j % 2
        self.lds("ds_read_b64_tr_b16", vr(WB0 + 8 * (m % 3) + 4 * e + 2 * t2, 2), vA + 2 * cp + e, w["addr"] + t2 * 2048)
    def p2_start(self):
        for cb in range(4): self.a(f"v_add_u32 v{vA+cb}, v{vNM}, v{vA+cb}")
        for m in range(2):
            for j in range(4): self.p2_read(m, j)
    def phase2(self, hooks):
        a, cfg = self.a, self.cfg
        pa, pb = self.find(k="w2", u=20)["addr"], self.find(k="w2", u=21)["addr"]
        assert self.p2b[-2] >= 22 and max(x["need"] for x in self.it) < 57 + 20
        tail = [f"s_mov_b32 s96, {pa}", f"s_cmp_lt_u32 {sW}, 2", f"s_cselect_b32 s96, s96, {pb}", f"s_and_b32 s97, {sW}, 1", "s_lshl_b32 s97, s97, 12",
                "s_add_u32 s96, s96, s97", f"v_add_u32 v{T0}, s96, v{vL16}", f"v_xor_b32 v{T0+1}, 0x1000, v{T0}"]
        own = cfg.own; assert own in (0, 2) and cfg.D >= own
        FQ = [q for sl in SLOT[4:12] for q in sl]
        pre = []
        if own:
            tail += [f"v_xor_b32 v{T0+4+cb}, 0x1000, v{vA+cb}" for cb in range(4)]
            for u in (34, 35):
                w = self.find(k="w2", u=u)
                pre += [(FQ[8 * (u - 34) + 2 * cb + e] + 2 * t2, (vA, T0 + 4)[e] + cb, w) + (t2,) for cb in range(4) for e in range(2) for t2 in range(2)]
        if cfg.fullline: tail += [f"v_and_b32 v{T0+2}, 0x2000, v{vR}", f"v_lshrrev_b32 v{T0+3}, 7, v{T0+2}", f"v_sub_u32 v{vR}, v{vR}, v{T0+2}", f"v_add_u32 v{vR}, v{vR}, v{T0+3}", "s_add_u32 s98, s99, 0x2000"]
        M = 72 - 2 * own
        for m in range(M):
            u, cp = m // 2, m & 1
            buf = WB0 + 8 * (m % 3); x = SLOT[u % len(SLOT)]
            extra = []
            if cp == 0:
                if u in hooks: hooks[u]()
                if u in self.p2b[:-1]:
                    a.need(vr(buf, 8))
                    self.barrier(56 + self.p2b[self.p2b.index(u) + 1] + 1, 56 + u, phase="2", gate=self.p2g.get(u))
                self.st(f"c{u}" if u in (4, 12, 20, 28, 35) else f"_c{u}")
            if len(self.p2l[u]) > cp: extra = self.a2_loads(self.p2l[u][cp])
            if u >= 22 and tail and not extra: extra = tail[:3]; tail = tail[3:]
            a.need(vr(buf, 8), vr(x[0], 4), vr(x[1], 4))
            order = ((0, 0), (0, 1), (1, 1), (1, 0)) if m < M - 1 else ((0, 1), (1, 1), (1, 0), (0, 0))
            for j, (e, t) in enumerate(order):
                d = (ACC, Q0)[t] + 4 * (2 * cp + e)
                a(M16(d, buf + 4 * e, x[t], "0" if (u == 0 and t == 1) else d))
                self.p2_read(m + 2, j)
                if pre and (m >= M - 2 or (m >= M - 10 and j != 3)):
                    dq, ar, w, t2 = pre.pop(0); assert not tail and w["n"] < self.full and u >= 28
                    self.lds("ds_read_b64_tr_b16", vr(dq, 2), ar, w["addr"] + t2 * 2048)
                if j >= 1 and extra:
                    f = extra.pop(0); a(f)
                    mm = re.match(rf"v_xor_b32 v(\d+), 0x1000, v(\d+)$", f)
                    if mm and int(mm.group(2)) in self.win: self.win[int(mm.group(1))] = self.win[int(mm.group(2))]
                if not own and m == M - 1 and j >= 2: a(f"ds_write_b128 v{T0}, {vr(Q0+4*(j-2),4)} offset:{(j-2)*1024}")
        assert not tail and not pre
        wr = [f"ds_write_b128 v{T0}, {vr(Q0+4*cb,4)} offset:{cb*1024}" for cb in range(4)]
        rd = [f"ds_read_b128 {vr(P0+4*cb,4)}, v{T0+1} offset:{cb*1024}" for cb in range(4)]
        def bar():
            self.st("_t0")
            a("s_waitcnt lgkmcnt(0)"); a.raw("    s_barrier ; compute waves only, the loaders have ended")
            self.st("_t1")
        add = lambda cb: [f"v_add_f32 v{ACC+4*cb+i}, v{ACC+4*cb+i}, v{P0+4*cb+i}" for i in range(4)] + [f"v_cvt_pk_bf16_f32 v{24+2*cb+i}, v{ACC+4*cb+2*i}, v{ACC+4*cb+2*i+1}" for i in range(2)]
        swp = lambda k: [f"v_permlane16_swap_b32 v{24+4*k}, v{26+4*k}", f"v_permlane16_swap_b32 v{25+4*k}, v{27+4*k}"]
        aux = cfg.out_aux.replace("_", " ")
        sto = lambda k: [] if cfg.fullline else [f"buffer_store_dwordx4 {vr(24+4*k,4)}, v{vR}, {srd('out')}, s99 offen offset:{64*k} {aux}"]
        if own:
            sched = {0: wr[:1], 1: wr[1:2], 2: wr[2:3], 3: wr[3:], 7: [bar] + rd, 13: add(0)[:3], 14: add(0)[3:], 15: add(1) + swp(0) + sto(0)}
            for k in range(16):
                u, cb, e = 34 + k // 8, (k % 8) // 2, k % 2
                if k == 8: self.st("c35")
                a(M16(ACC + 4 * cb, FQ[k], SLOT[u % len(SLOT)][e], ACC + 4 * cb))
                self.run_fill(list(sched.get(k, [])), 10 ** 9)
            self.run_fill(add(2) + add(3) + swp(1) + sto(1), 10 ** 9)
        else:
            self.run_fill(wr[2:] + [bar] + rd + add(0) + add(1) + swp(0) + sto(0) + add(2) + add(3) + swp(1) + sto(1), 10 ** 9)
        if cfg.fullline:
            for i in range(4): a(f"v_mov_b32 v{32+i}, v{24+i}")
            for i in range(4): a(f"v_mov_b32_dpp v{24+i}, v{28+i} row_ror:8 row_mask:0xf bank_mask:0xc")
            a(f"buffer_store_dwordx4 v[24:27], v{vR}, {srd('out')}, s99 offen {aux}")
            for i in range(4): a(f"v_mov_b32_dpp v{28+i}, v{32+i} row_ror:8 row_mask:0xf bank_mask:0x3")
            a(f"buffer_store_dwordx4 v[28:31], v{vR}, {srd('out')}, s98 offen {aux}")
        self.st("_t2")
        if cfg.diag:
            a("s_waitcnt vmcnt(0)"); self.st("end")
        self.st.flush(130, 129)
        a("s_endpgm")

class Loader:
    vX, vQ, vG, vD, vHh = 2, 4, 6, 16, 10
    vTag, vPo, vPo2, vP = 13, 14, 15, 16
    def __init__(self, a, cfg, comp):
        self.a, self.cfg, self.it, self.typ, self.bars = a, cfg, comp.it, comp.typ, comp.bars
        self.issued = 0
        self.st = Stamps(a, cfg, list(range(88, 102, 2)) + list(range(8, 36, 2)))
    def slow_poll(self, load, cmp):
        a = self.a
        C = a.newlabel("Lc"); L = a.newlabel("Lp")
        a(cmp, f"s_cbranch_vccz {C}")
        a.label(L)
        a.raw("    " + load); timeout(a); a.raw("    s_waitcnt vmcnt(0)"); a.raw("    " + cmp); a.raw(f"    s_cbranch_vccnz {L}")
        a.label(C)
    def prologue(self):
        a = self.a
        a("v_and_b32 v0, 63, v0", f"s_sub_u32 {sW}, {sW}, 4", f"s_lshl_b32 s77, {sW}, 11")
        a("v_lshrrev_b32 v21, 3, v0", "v_and_b32 v22, 7, v0", "v_lshrrev_b32 v23, 4, v0", "v_xor_b32 v24, v22, v23", "v_lshlrev_b32 v24, 4, v24")
        a(f"v_lshl_add_u32 v{self.vX}, v21, 10, v24", f"v_xor_b32 v{self.vX+1}, 64, v{self.vX}", f"v_add_u32 v{self.vX+1}, {8*1024-1024}, v{self.vX+1}")
        a(f"s_lshl_b32 s79, {sC}, 2", f"s_add_u32 s79, s79, {sW}", "s_lshl_b32 s79, s79, 15")
        a("s_movk_i32 s85, 0x3ff", f"s_lshl_b32 s84, {sROT}, 7" if self.cfg.rot else "s_mov_b32 s84, 0", "s_and_b32 s84, s84, s85", "s_add_u32 s78, s79, s84", "s_mov_b32 m0, s77")
        if self.cfg.lprio: a(f"s_setprio {self.cfg.lprio}")
        srd_const(a, "x")
        if "B1" in self.cfg.planX:
            a(f"s_lshl_b32 s76, {sW}, 3", "s_lshr_b32 s82, 0x30282008, s76", "s_and_b32 s82, s82, 0xff", "s_load_dwordx2 s[38:39], s[0:1], s82")
            a("s_lshr_b32 s82, 0x48403810, s76", "s_and_b32 s82, s82, 0xff", "s_load_dwordx2 s[86:87], s[0:1], s82", "v_mov_b32 v29, 0", "v_lshlrev_b32 v30, 21, v0")
        a("s_waitcnt lgkmcnt(0)")
        srd_base(a, "x")
    def prologue2(self):
        a = self.a
        for n in ("qkv", "gate", "up"): srd_base(a, n); srd_const(a, n)
        a(f"s_lshl_b32 s76, {sW}, 4", "v_add_u32 v21, s76, v21", f"s_lshl_b32 s80, {sI}, 7", f"s_xor_b32 s0, s80, {self.cfg.x1 << 7}", f"s_xor_b32 s1, s80, {self.cfg.x4 << 7}")
        a("v_lshlrev_b32 v25, 1, v23", "v_and_b32 v25, 2, v25", "v_xor_b32 v24, v22, v25", "v_lshlrev_b32 v24, 4, v24", "v_xor_b32 v26, 64, v24")
        for reg, st in ((self.vQ, 3072), (self.vG, 3584)):
            a(f"v_mul_u32_u24 v25, {st}, v21", f"v_add_u32 v{reg}, v25, v24", f"v_add_u32 v{reg+1}, v25, v26", f"v_add_u32 v{reg+1}, {8*st-1024}, v{reg+1}")
    def prologue3(self):
        a = self.a
        for n in ("down", "wo", "ws", "dbg"): srd_base(a, n); srd_const(a, n)
        a("v_lshlrev_b32 v25, 1, v23", "v_xor_b32 v24, v22, v25", "v_lshlrev_b32 v24, 4, v24", f"v_lshl_add_u32 v{self.vD}, v21, 10, v24",
          f"v_add_u32 v{self.vD+1}, {8*1024-1024}, v{self.vD}")
        a("v_lshrrev_b32 v25, 2, v0", f"s_lshl_b32 s76, {sW}, 5", "v_add_u32 v25, s76, v25", "v_mul_u32_u24 v25, 3584, v25", "v_and_b32 v26, 3, v0",
          "v_and_b32 v27, 2, v23", "v_xor_b32 v27, v26, v27", f"v_lshl_add_u32 v{self.vHh}, v27, 4, v25", f"v_add_u32 v{self.vHh+1}, {16*3584-1024}, v{self.vHh}")
        a("v_lshlrev_b32 v27, 4, v0")
        a(f"s_and_b32 s76, {sW}, 2", "s_lshl_b32 s76, s76, 7", f"s_and_b32 s82, {sW}, 1", "s_lshl_b32 s82, s82, 11", "s_add_u32 s76, s76, s82", f"v_lshl_add_u32 v{self.vPo}, v26, 9, s76")
        a(f"s_lshl_b32 s76, {sW}, 7", f"v_lshl_add_u32 v{self.vPo2}, v26, 9, s76")
        a(f"s_lshl_b32 s81, {sCB}, 7")
        a(f"s_mul_i32 s83, {sTB}, {36*512}", f"s_add_u32 s83, s83, {WS_FLAG:#x}")
        a("s_lshl_b32 s86, s2, 2", f"s_add_u32 s86, s86, {sW}", "s_lshr_b32 s87, s2, 3", "s_lshl_b32 s87, s87, 2", f"s_add_u32 s87, s87, {sW}", "v_lshlrev_b32 v28, 7, v0", "v_lshlrev_b32 v30, 10, v0")
        a(f"s_xor_b32 s82, {sI}, {self.cfg.x4}", "s_lshl_b32 s82, s82, 2", f"s_add_u32 s82, s82, {sW}", f"s_mul_i32 s82, s82, {16*1152}", f"s_add_u32 s82, s82, {WS_KV:#x}")
        a("v_and_b32 v41, 15, v0", "v_mul_u32_u24 v42, 1152, v23", "v_lshl_add_u32 v42, v41, 2, v42")
        a(f"s_mul_i32 s76, {sW}, 576", "v_lshl_add_u32 v43, v0, 3, s76", "v_lshl_add_u32 v44, v41, 1, s76")
    def colbase(self, u): return (("s80", "s80", "s0", "s0", "s1") if self.typ == "A" else ("s80", "s80", None, "s0", "s0"))[u]
    def item(self, x, reg=None):
        a = self.a; k = x["k"]; aux = ""; rot = None
        if k == "x":
            n, t, sl = x["n"], x["t"], x["s"]
            assert x["addr"] == 8192 * (n + 1)
            a("s_addk_i32 m0, 0x2000")
            if n == 0: pass
            elif sl % 2 == 1: a("s_addk_i32 s78, 128")
            elif n == 2 and t == 1: a("s_addk_i32 s78, 0x3f80")
            else:
                if n == 10 and self.cfg.xo == 0: a("s_addk_i32 s79, 0x4000", "s_addk_i32 s84, 256")
                if n == 8 and t == 1: a("s_addk_i32 s79, 0x4000")
                a("s_addk_i32 s84, 256", "s_and_b32 s84, s84, s85", "s_add_u32 s78, s79, s84")
            a.e(f"buffer_load_dwordx4 v{self.vX}, {srd('x')}, s78 offen lds", tag=n)
            a.e(f"buffer_load_dwordx4 v{self.vX+1}, {srd('x')}, s78 offen offset:1024 lds", tag=n)
            self.issued = n + 1
            return
        elif k == "w1":
            u, i = x["u"], x["i"]
            if self.typ == "A":
                s, v, st, off = [("qkv", self.vQ, 3072, 1024), ("qkv", self.vQ, 3072, 2048), ("gate", self.vG, 3584, 16 * 128),
                                 ("up", self.vG, 3584, 16 * 128), ("qkv", self.vQ, 3072, 0)][u]
                base, rot = self.colbase(u), (i, 64 * st)
            elif u != MIXU:
                uu = u - (u > MIXU)
                s, v, base, off, rot = ("gate", "up")[uu % 2], self.vG, self.colbase(u), (uu // 2) * 8 * 128, (i, 64 * 3584)
            else:
                if i == 0: a(f"s_lshl_b32 s79, {sI}, 6")
                s, v, base, off, rot = ("gate", "up")[i // 4], self.vHh, "s79", 24 * 128, (2 * (i % 4), 64 * 3584)
        elif k == "w2":
            u = x["u"]; S, U, n = stage_of(u)
            s, v, base, off = ("down", self.vD, "s81", U * 65536) if U < 28 else ("wo", self.vD, "s81", 0)
            if self.cfg.rot2:
                a(f"s_add_u32 s84, {'s2' if self.cfg.rot2 == 1 else sCB}, {u-S}", f"s_and_b32 s84, s84, {n-1}", "s_lshl_b32 s84, s84, 16", "s_add_u32 s84, s84, s81")
                base = "s84"
            else: off += (u - S) * 65536
        if rot and self.cfg.rot:
            a(f"s_add_u32 s84, {sROT}, {rot[0]}", "s_and_b32 s84, s84, 7", f"s_mul_i32 s84, s84, {rot[1]}", f"s_add_u32 s84, s84, {base}")
            base = "s84"
        elif rot: off += rot[0] * rot[1]
        if reg is not None:
            a(f"s_add_u32 s78, {base}, {off}")
            a(f"buffer_load_dwordx4 {vr(reg,4)}, v{v}, {srd(s)}, s78 offen", f"buffer_load_dwordx4 {vr(reg+4,4)}, v{v+1}, {srd(s)}, s78 offen offset:1024")
            return
        a(f"s_add_u32 m0, s77, {x['addr']}", f"s_add_u32 s78, {base}, {off}")
        a.e(f"buffer_load_dwordx4 v{v}, {srd(s)}, s78 offen lds", tag=x["n"])
        a.e(f"buffer_load_dwordx4 v{v+1}, {srd(s)}, s78 offen offset:1024 lds", tag=x["n"])
        self.issued = x["n"] + 1
    G, Z, S, CK = 64, 128, 32, 36
    def g_loads(self, part):
        a, G, Z = self.a, self.G, self.Z
        a(f"s_lshr_b32 s84, {sC}, 3", f"s_xor_b32 s84, s84, {part}", f"s_mul_i32 s84, s84, {8*1152}", "s_add_u32 s84, s84, s82")
        for t in range(2):
            a(f"s_add_u32 s78, s84, {t*4*1152+1024}", f"buffer_load_dword v{Z+2*part+t}, v42, {srd('ws')}, s78 offen sc1")
        for c in range(8):
            a(f"s_add_u32 s78, s84, {c*1152}", f"buffer_load_dwordx4 {vr(G+32*part+4*c,4)}, v27, {srd('ws')}, s78 offen sc1")
    def g_sum(self, part):
        a, G, Z, S, CK = self.a, self.G, self.Z, self.S, self.CK
        for t in range(2 * part, 2 * part + 2):
            if t == 0: a(f"v_xor_b32 v{CK}, v{self.vTag}, v{Z}")
            else: a(f"v_bitop3_b32 v{CK}, v{CK}, v{Z+t}, v{self.vTag} bitop3:0xf6", f"v_add_f32 v{Z}, v{Z}, v{Z+t}")
        for c in range(8 * part, 8 * part + 8):
            for r in range(4):
                if r == 0: a(f"v_bitop3_b32 v{CK}, v{CK}, v{G+4*c+r}, v{self.vTag} bitop3:0xf6")
                if c == 1: a(f"v_add_f32 v{S+r}, v{G+r}, v{G+4+r}")
                elif c > 1: a(f"v_add_f32 v{S+r}, v{S+r}, v{G+4*c+r}")
        if part == 1: a(f"v_and_b32 v{CK}, 0xff, v{CK}")
    def g_write(self):
        a, Z, S = self.a, self.Z, self.S
        a(f"v_mov_b32 v{Z+1}, v{Z}", f"v_cvt_pk_bf16_f32 v{S}, v{S}, v{S+1}", f"v_cvt_pk_bf16_f32 v{S+1}, v{S+2}, v{S+3}")
        a(f"v_permlane32_swap_b32 v{Z}, v{Z+1}", f"v_add_f32 v{Z}, v{Z}, v{Z+1}", f"v_mov_b32 v{Z+1}, v{Z}")
        a(f"v_permlane16_swap_b32 v{Z}, v{Z+1}", f"v_add_f32 v{Z}, v{Z}, v{Z+1}", f"v_mul_f32 v{Z}, {f2u(LOG2E):#x}, v{Z}", f"v_cvt_pk_bf16_f32 v{Z}, v{Z}, v{Z}")
        a(f"ds_write_b64 v43, {vr(S,2)} offset:{OP_OFF}", f"ds_write_b16 v44, v{Z} offset:{OP_OFF+512}")
    def sweep(self, lst, idx):
        a = self.a
        for nm, nl, base in lst:
            a(f"s_mul_i32 s76, {idx}, {nl*128}")
            if base: a(f"s_add_u32 s76, s76, {base}")
            a(f"s_mov_b64 exec, {(1 << nl) - 1:#x}", f"buffer_load_dword v{140+self.npf}, v28, {srd(nm)}, s76 offen"); self.npf += 1
        a("s_mov_b64 exec, -1")
    def action(self, x):
        a, cfg = self.a, self.cfg
        nload = f"buffer_load_dword v{self.vTag}, off, {srd('dbg')}, 0 sc1"
        need = {"U": ["PR"], "V": ["PR"], "PS": ["PR"], "P1": ["PS"], "P2": ["PS"], "P2a": ["PS"], "L": ["PS"], "R": ["PS"], "R0": ["PS"], "C": ["PS"], "N0": ["PS"], "N1": ["N0"],
                "G0": ["PS"], "G1": ["PS"], "S0": ["G0", "N1"], "S1": ["G1", "S0"], "Q": ["PS"]}
        for y in need.get(x, need.get(x[0], []) if x[0] in "UVLQ" else []): assert y in self.done, (x, "before", y)
        assert x not in self.done or x == "C", x
        assert not (x == "V2" and self.issued < 16)
        self.done.add(x)
        if x[0] == "Q":
            u = int(x[1:]); a(f"s_add_u32 s76, s83, {stage_of(u)[1]*512}", "s_mov_b64 exec, 15", self.pl(u, 3), "s_mov_b64 exec, -1")
        elif x == "P1": self.sweep((("gate", 14, 0), ("up", 14, 0), ("qkv", 12, 0)), "s86")
        elif x == "P2": self.sweep((("down", 14, 0), ("wo", 4, 0)), "s86")
        elif x == "P2a": self.sweep((("down", 8, 0),), "s86")
        elif x[0] == "L":
            k = int(x[1:]); self.sweep(((("down", 16, k << 18) if k < 7 else ("wo", 16, (k - 7) << 18)),), "s87")
        elif x in ("R", "R0"):
            for nm, nl in ((("down", 14), ("wo", 4)) if x == "R" else (("qkv", 12),)):
                a(f"s_mul_i32 s76, s87, {nl*1024}", f"s_mov_b64 exec, {(1 << nl) - 1:#x}", f"buffer_load_dword v{140+self.npf}, v30, {srd(nm)}, s76 offen offset:384"); self.npf += 1
            a("s_mov_b64 exec, -1")
        elif x[0] in "UV":
            if not hasattr(self, "split"): self.split = len(a.out)
            u = int(x[1:])
            if self.typ == "A": s_, v, st, off = [("qkv", self.vQ, 3072, 1024), ("qkv", self.vQ, 3072, 2048), ("gate", self.vG, 3584, 2048), ("up", self.vG, 3584, 2048), ("qkv", self.vQ, 3072, 0)][u]
            else: uu = u - (u > MIXU); s_, v, st, off = ("gate", "up")[uu % 2], self.vG, 3584, (uu // 2) * 1024
            if x[0] == "V":
                a(f"s_lshl_b32 s76, {sC}, 2", f"s_sub_u32 s76, s76, {sW}", f"s_mul_i32 s76, s76, {8*st}", "s_mov_b32 exec_lo, 0x01010101", "s_mov_b32 exec_hi, 0x01010101")
                if self.typ == "F" and u == MIXU:
                    a(f"s_lshr_b32 s84, {sI}, 1", "s_lshl_b32 s84, s84, 7", "s_add_u32 s76, s76, s84", f"v_add_u32 v29, s76, v{v}")
                    for s_ in ("gate", "up"):
                        a(f"buffer_load_dword v{140+self.npf}, v29, {srd(s_)}, 0 offen offset:3072"); self.npf += 1
                else:
                    a(f"s_add_u32 s76, s76, {self.colbase(u)}", f"v_add_u32 v29, s76, v{v}", f"buffer_load_dword v{140+self.npf}, v29, {srd(s_)}, 0 offen offset:{off}"); self.npf += 1
                a("s_mov_b64 exec, -1")
                return
            assert cfg.grid == 24 and not (self.typ == "F" and u == MIXU)
            a(f"s_and_b32 s76, {sC}, 7", f"s_mul_i32 s76, s76, {64*st}", f"s_add_u32 s76, s76, {self.colbase(u)}", "s_mov_b32 exec_lo, 0x01010101", "s_mov_b32 exec_hi, 0x01010101")
            for t in range(2):
                a(f"buffer_load_dword v{140+self.npf}, v{v+t}, {srd(s_)}, s76 offen offset:{off+1024*t}"); self.npf += 1
            a("s_mov_b64 exec, -1")
        elif x == "B1": a("s_mov_b64 exec, 1", "global_load_dword v138, v29, s[38:39]", "s_mov_b64 exec, -1")
        elif x == "B2": a("s_mov_b64 exec, 1", "global_load_dword v139, v29, s[86:87]", "s_mov_b64 exec, -1")
        elif x == "B3": a("s_mov_b64 exec, 62", "global_load_dword v137, v30, s[34:35]", "s_mov_b64 exec, -1")
        elif x == "PR": self.prologue2()
        elif x == "PS": self.prologue3()
        elif x == "C":
            L = a.newlabel("Lpc")
            a("s_getpc_b64 s[38:39]"); a.label(L)
            a(f"s_sub_u32 s38, s38, {L}-{NAME}_kernel", "s_subb_u32 s39, s39, 0", "s_mul_i32 s76, s87, 640", "v_add_u32 v29, s76, v28", f"v_min_u32 v29, L_last-{NAME}_kernel, v29")
            a("s_mov_b64 exec, 31", f"global_load_dword v{140+self.npf}, v29, s[38:39]", "s_mov_b64 exec, -1"); self.npf += 1
        elif x[0] == "W": self.st(x + "a"); a("s_waitcnt vmcnt(0)"); self.st(x + "b")
        elif x[0] == "T": self.st(x)
        elif x == "N0": a(nload)
        elif x == "N1": self.slow_poll(nload, f"v_cmp_eq_u32 vcc, 0, v{self.vTag}")
        elif cfg.nogather and x in ("G0", "G1", "S0", "S1"): pass
        elif x == "G0": self.st("g0"); self.g_loads(0)
        elif x == "G1": self.g_loads(1)
        elif x == "S0": a(f"s_setprio {cfg.gprio}"); self.g_sum(0); a(f"s_setprio {cfg.lprio}")
        elif x == "S1": a(f"s_setprio {cfg.gprio}"); self.g_sum(1); self.g_write(); a(f"s_setprio {cfg.lprio}"); self.st("g1")
        else: raise KeyError(x)
    def run(self):
        a, cfg, it = self.a, self.cfg, self.it
        self.st("start"); self.npf = 0; self.done = set()
        if os.environ.get("ENTRY"):
            a.raw(f"    s_mov_b32 s{self.st.regs[self.st.n]}, s14"); self.st.n += 1; self.st.names.append("entry")
        spec = (cfg.planX + " " + (cfg.planA if self.typ == "A" else cfg.planF)).split()
        pol = {int(x.split(":")[0]): [int(y) for y in x.split(":")[1].split(",")] for x in cfg.polls.split()}
        for g in pol:
            if any(f"Q{g}" in y.split(",") for y in spec): pol[g] = [3]
        for bi, b in enumerate(self.bars):
            for g in b.get("gate") or []:
                for k in pol[g] if pol[g] != [3] else []: self.bars[bi - k].setdefault("poll", []).append((g, k))
        freed = 0; plan = []
        for bi, b in enumerate(self.bars):
            vP = lambda u, k: 200 + 4 * STAGES.index(u) + k
            pl = lambda u, k: f"buffer_load_dword v{vP(u, k)}, v{self.vPo2 if stage_of(u)[2] == 4 else self.vPo}, {srd('ws')}, s76 offen sc1"
            self.pl = pl
            for u, k in b.get("poll", []): a(f"s_add_u32 s76, s83, {stage_of(u)[1]*512}", "s_mov_b64 exec, 15", pl(u, k), "s_mov_b64 exec, -1")
            acts = spec[bi].split(",") if bi < len(spec) else [cfg.p2_cap]
            for x in acts + ["req"]:
                if x[0].isdigit() or x == "req":
                    depth = int(x.split("t")[1]) if "t" in x else None
                    lim = self.issued + int(x.split("t")[0]) if x != "req" else b["full"]
                    while self.issued < min(lim, len(it)):
                        y = it[self.issued]
                        if y["need"] > freed:
                            assert x != "req", ("deadlock", bi, b, y); break
                        if x == "req": print(f"  [{self.typ}] barrier {bi}: item {y['n']} issued only when required", file=sys.stderr)
                        if y["n"] == 16 and not hasattr(self, "split"): self.split = len(a.out)
                        if y["n"] in (16, 32, 56): self.st(f"i{y['n']}")
                        assert y["n"] < 16 or "PR" in self.done
                        assert y["n"] < 32 or "PS" in self.done
                        if depth: a.wait_tag(y["n"] - depth)
                        self.item(y)
                else: self.action(x)
            if b.get("op") and not cfg.nogather:
                assert "S1" in self.done
                C = a.newlabel("Lc"); L = a.newlabel("Lg")
                a(f"v_cmp_ne_u32 vcc, 0, v{self.CK}", f"s_cbranch_vccz {C}")
                save = (list(a.vm), list(a.lg))
                a.label(L)
                self.g_loads(0); self.g_loads(1); self.g_sum(0); self.g_sum(1)
                a(f"v_cmp_ne_u32 vcc, 0, v{self.CK}"); timeout(a); a(f"s_cbranch_vccnz {L}")
                self.g_write()
                a.label(C); a.vm, a.lg = save
                a("s_waitcnt lgkmcnt(0)")
            for u in b.get("gate") or []:
                a(f"s_add_u32 s76, s83, {stage_of(u)[1]*512}", "s_mov_b64 exec, 15")
                assert "N1" in self.done and (pol[u] != [3] or f"Q{u}" in self.done)
                Cg = a.newlabel("Lc"); save = None
                for k in pol[u][:-1]:
                    a(f"v_cmp_ne_u32 vcc, v{self.vTag}, v{vP(u, k)}", f"s_cbranch_vccz {Cg}")
                    if save is None: save = list(a.vm)
                k = pol[u][-1]
                self.slow_poll(pl(u, k), f"v_cmp_ne_u32 vcc, v{self.vTag}, v{vP(u, k)}")
                a.label(Cg)
                if save is not None: a.vm = save
                a("s_mov_b64 exec, -1")
                self.st(f"f{u}")
            for n in range(b["full"] - 1, -1, -1):
                if any(e[1] == n for e in a.vm): a.wait_tag(n); break
            if cfg.bdiag: a.raw("    s_memtime s[68:69]")
            a("s_barrier")
            if cfg.bdiag:
                for x_ in ("s_memtime s[70:71]", "s_waitcnt lgkmcnt(0)", f"v_writelane_b32 v46, s68, {bi}", f"v_writelane_b32 v47, s70, {bi}"): a.raw("    " + x_)
            freed = b["freed"]
            plan.append(f"{bi}:{b['step']}:d{b['dur']:.0f}:f{b['full']}:i{self.issued}:{','.join(acts)}" + (f":gate{b['gate']}" if b.get("gate") else ""))
        assert self.issued == len(it)
        print(f"plan {self.typ}:", " ".join(plan), file=sys.stderr)
        self.st("end")
        if cfg.bdiag:
            a("s_lshl_b32 s76, s2, 2", f"s_add_u32 s76, s76, {sW}", "s_lshl_b32 s76, s76, 9", f"s_add_u32 s76, s76, {WS_DIAG+0x100000:#x}", "v_lshlrev_b32 v45, 2, v0")
            a(f"buffer_store_dword v46, v45, {srd('ws')}, s76 offen", f"buffer_store_dword v47, v45, {srd('ws')}, s76 offen offset:256")
        self.plan = plan
        if cfg.diag: a(f"s_add_u32 {sW}, {sW}, 4")
        self.st.flush(130, 129)
        a("s_endpgm")

NPAD = 8
def touch_code(cfg):
    if not cfg.pads: return []
    o = ["s_cmp_ge_u32 s2, 128", "s_cbranch_scc1 L_tF"]
    for typ in "AF":
        o += [f"L_t{typ}:"]
        for w in range(4):
            if w < 3: o += [f"s_cmp_lg_u32 {sW}, {w}", f"s_cbranch_scc1 L_t{typ}{w+1}"]
            o += [f"s_call_b64 s[30:31], L_pad{typ}{k}" for k in range(w, NPAD, 4)] + ["s_branch L_tdone"]
            if w < 3: o += [f"L_t{typ}{w+1}:"]
    return [x if x.endswith(":") else "    " + x for x in o[:-1] + ["L_tdone:"]]
def place(lines, cfg):
    import subprocess, tempfile
    ins = [l for l in lines if not l.strip().startswith(".")]
    labels = set(re.findall(r"\bL_\w+", "\n".join(ins))) - {l[:-1] for l in ins if l.endswith(":")}
    with tempfile.TemporaryDirectory() as d:
        open(d + "/x.s", "w").write(".text\n" + "\n".join(ins) + "\n" + "".join(x + ":\n" for x in labels) + "s_endpgm\n")
        subprocess.run(["clang", "-x", "assembler", "-target", "amdgcn-amd-amdhsa", "-mcpu=gfx950", "-c", d + "/x.s", "-o", d + "/x.o"], check=True)
        dis = subprocess.run(["llvm-objdump", "-d", "--mcpu=gfx950", d + "/x.o"], capture_output=True, text=True, check=True).stdout
    ad = [int(m, 16) for m in re.findall(r"// ([0-9A-F]{12}):", dis)]
    size = iter([y - x for x, y in zip(ad, ad[1:])])
    out = []; pos = 0; page = 1; typ = "S"; pads = dict(S=[], A=[], F=[]); prev = ""; live = True
    for l in lines:
        t = l.strip()
        if t == ".p2align 3":
            if pos % 8: out.append("    s_nop 0"); pos += 4
            continue
        if t == "L_compA:": typ = "A"
        if t == "L_compF:":
            while pos % 64: out.append("    s_nop 0"); pos += 4
            typ = "F"; live = True; n = f"L_pg{len(out)}"; pads["F"].append(n)
            out += [n + ":", "    s_setpc_b64 s[30:31]", "    s_nop 0"]; pos += 8; page = pos // 4096 + 1
        if t.endswith(":"): out.append(l); continue
        if pos >= 4096 * page - 4 and (prev.startswith("v_mfma") or pos >= 4096 * page + 40):
            if live and cfg.pads:
                n = f"L_pg{len(out)}"; pads[typ].append(n)
                out += [f"    s_branch {n}x", n + ":", "    s_setpc_b64 s[30:31]", n + "x:"]; pos += 8
            page += 1
        out.append(l); pos += next(size); prev = t
        if t == "s_endpgm": live = False
    for ty in "AF":
        p = pads["S"] + pads[ty]; assert len(p) <= NPAD, p
        if not cfg.pads: continue
        for k in range(NPAD): out = [re.sub(rf"\bL_pad{ty}{k}\b", p[min(k, len(p) - 1)], x) for x in out]
    return out

def generate(cfg):
    a = Asm()
    if os.environ.get("ENTRY"): a.raw("    s_memrealtime s[14:15]")
    a("s_cmp_ge_u32 s2, 256", "s_cbranch_scc1 L_end")
    a("s_load_dwordx16 s[16:31], s[0:1], 0", "s_load_dwordx4 s[32:35], s[0:1], 64")
    a("v_lshrrev_b32 v1, 6, v0")
    if cfg.pf_code:
        a("s_getpc_b64 s[98:99]"); a.label("L_pc")
        a("s_lshr_b32 s96, s2, 3", "s_mul_i32 s96, s96, 0x900", "v_mul_u32_u24 v2, 9, v0", "v_lshrrev_b32 v2, 1, v2", "v_and_b32 v2, 0xf80, v2", "v_add_u32 v2, s96, v2", "v_min_u32 v2, L_last-L_pc, v2")
        a.raw(f"    global_load_dword v{vNM}, v2, s[98:99]")
    a(f"v_readfirstlane_b32 {sW}, v1")
    if cfg.grid == 24:
        a("s_and_b32 s8, s2, 1", "s_bfe_u32 s9, s2, 0x20001", "s_bfe_u32 s10, s2, 0x30003", "s_lshr_b32 s11, s2, 6")
        a(f"s_lshl_b32 {sC}, s8, 3", f"s_add_u32 {sC}, {sC}, s10")
        a("s_and_b32 s12, s11, 1", f"s_lshl_b32 {sI}, s9, 1", f"s_lshl_b32 {sROT}, s8, 2", f"s_add_u32 {sROT}, {sROT}, {sI}", f"s_add_u32 {sI}, {sI}, s12")
        a(f"s_lshl_b32 {sTB}, s8, 2", f"s_add_u32 {sTB}, {sTB}, s9", f"s_lshl_b32 {sTB}, {sTB}, 2", f"s_add_u32 {sROT}, {sROT}, {cfg.rotadd}")
        if cfg.cbmap: a("s_and_b32 s12, s10, 3", f"s_add_u32 {sTB}, {sTB}, s12", f"s_bfe_u32 {sCB}, s2, 0x20005", f"s_lshl_b32 {sCB}, {sCB}, 1", "s_lshr_b32 s12, s2, 7", f"s_add_u32 {sCB}, {sCB}, s12")
        else: a(f"s_add_u32 {sTB}, {sTB}, s11", f"s_mov_b32 {sCB}, s10")
    else:
        a("s_and_b32 s8, s2, 3", "s_and_b32 s9, s2, 4", "s_bfe_u32 s10, s2, 0x20003", "s_bfe_u32 s11, s2, 0x20005")
        a(f"s_lshl_b32 {sC}, s8, 2", f"s_add_u32 {sC}, {sC}, s10", f"s_add_u32 {sI}, s9, s11")
        a("s_and_b32 s12, s11, 1", "s_lshl_b32 s12, s12, 1", f"s_add_u32 {sROT}, s9, s12")
        a(f"s_lshl_b32 {sTB}, s8, 3", f"s_add_u32 {sTB}, {sTB}, s9", "s_lshr_b32 s12, s2, 6", f"s_add_u32 {sTB}, {sTB}, s12", f"s_bfe_u32 {sCB}, s2, 0x30003")
    a(f"s_mov_b32 {sT}, {cfg.timeout}")
    a(f"s_cmp_lt_u32 {sW}, 4", "s_cbranch_scc1 L_compute")
    info = {}
    progs = {}
    for typ in "AF":
        b = Asm(); b.uid = 1000 if typ == "A" else 2000
        c = Compute(b, cfg, typ)
        (c.typeA if typ == "A" else c.typeF)()
        progs[typ] = (b, c); info["c" + typ] = c.st.names
    lds_ = {}
    for typ in "AF":
        b = Asm(); b.uid = 3000 if typ == "A" else 4000
        l = Loader(b, cfg, progs[typ][1]); l.run()
        lds_[typ] = (b, l); info["l" + typ] = l.st.names; info["plan" + typ] = l.plan; info["bdiag"] = cfg.bdiag
        nb = lambda o: sum(x.strip() == "s_barrier" for x in o)
        assert nb(b.out) == nb(progs[typ][0].out) == len(progs[typ][1].bars)
        print(f"loader {typ}: {b.count} instrs, {b.nops} nop states; compute: {progs[typ][0].count} instrs, {progs[typ][0].nops} nop states", file=sys.stderr)
    def shared(d):
        (ba, oa), (bf, of) = d["A"], d["F"]
        assert oa.split == of.split and ba.out[:oa.split] == bf.out[:of.split]
        return ba.out[:oa.split]
    Loader(a, cfg, progs["A"][1]).prologue()
    a.out += shared(lds_)
    a("s_cmp_ge_u32 s2, 128", "s_cbranch_scc1 L_loadF")
    for typ in "AF":
        b, l = lds_[typ]
        a.label("L_load" + typ); a.out += b.out[l.split:]
    a.label("L_end"); a.raw("    s_endpgm")
    c = Asm(); c.uid = 5000
    c.label("L_compute")
    Compute(c, cfg, "A").prologue()
    c.out += shared(progs)
    c("s_cmp_ge_u32 s2, 128", "s_cbranch_scc1 L_compF")
    for typ in "AF":
        b, p = progs[typ]
        c.label("L_comp" + typ); c.out += b.out[p.split:] + b.stubs
    a.raw("    .p2align 12"); a.out += place(c.out, cfg)
    a.label("L_last"); a.raw("    s_endpgm")
    head = open("cdna_kernels/" + NAME + ".s.ref").read().split("; Override launch")[0]
    txt = head + f"; @launch grid=(256,1,1) block=(512,1,1) lds={LDS_BYTES}\n"
    txt += f""".amdgcn_target "amdgcn-amd-amdhsa--gfx950"
.text
.globl {NAME}_kernel
.p2align 8
.type {NAME}_kernel,@function
{NAME}_kernel:
""" + a.text() + f"""
.section .rodata,"a"
.p2align 6
.amdhsa_kernel {NAME}_kernel
  .amdhsa_next_free_vgpr 256
  .amdhsa_next_free_sgpr 102
  .amdhsa_accum_offset 256
  .amdhsa_group_segment_fixed_size 0
  .amdhsa_kernarg_size 80
  .amdhsa_user_sgpr_count 2
  .amdhsa_user_sgpr_kernarg_segment_ptr 1
  .amdhsa_system_sgpr_workgroup_id_x 1
.end_amdhsa_kernel
"""
    return txt, info

if __name__ == "__main__":
    cfg = Cfg()
    out = sys.argv[1]
    for kv in sys.argv[2:]:
        k, v = kv.split("="); setattr(cfg, k, type(getattr(Cfg, k))(v))
    txt, info = generate(cfg)
    open(out, "w").write(txt)
    info["mode"] = cfg.diag
    import json; json.dump(info, open(out + ".json", "w"))
```

```python
import sys, os, struct, re
from asmb import Asm

NAME = "parallel_sum__linear_attn_block__swiglu_ffn__prompt"

class Cfg:
    diag = 0
    bdiag = 0
    timeout = 400000
    round_ln = 1
    rot = 1
    rot2 = 0
    pf_code = 1
    pf_tlb = 0
    nofill = 0
    cprio = 1
    lprio = 0
    gprio = 2
    xgroups = "2,6,8,10"
    grid = 24
    xo = 0
    pro2_at = 0
    xlate = "3:13,5:16"
    op_at = 146
    frate = 60
    ack = 50
    h1_dl = 308
    h2_dl = 418
    kvb = 17
    scr_need = 32
    scr_rel = 36
    kvw_gap = 266
    hA_dl = 537
    hA_gap = 586
    finA = 0
    late_at = 4
    gate0_at = 146
    gate8_at = 999
    gate12_at = 999
    n_preA = 5
    n_preF = 4
    preA_gap = 580
    preF_gap = 580
    pre_step = 12
    n_epi = 1
    n_epiF = 0
    D = 5
    p2_lastA = 19
    p2_lastF = 18
    D2 = 4
    d_sw = 21
    g28_u = 25
    p2_fin = 27
    p2_bar = 1
    p2_first = 3
    p2_cap = "1"
    polls = "0:1 8:2,0 12:3 20:3 28:0"
    nogather = 0
    pads = 1
    PD = 3
    xadd_at = 6
    x1 = 1
    x4 = 4
    rotadd = 2
    cbmap = 1
    own = 2
    fullline = 0
    barsA = "8,16,32,50,66,82,98,114,130,146"
    barsF = "8,16,34,50,66,82,98,114,130,146"
    out_aux = "sc1"
    planX = "7,PR 3 3 2 2,U0 V1,2 4 4,PS 6"
    planA = "N0,U2,U3,U4,P2 5 8,N1 R 4 5 G0,S0,4 5,G1 Q0,S1,3 9,Q8 6"
    planF = "V2,2,V3,U4,P2 2,N0 6 8,N1 6,R 3 Q0,5 4 4,Q8 1 4"

ZR_OFF, OP_OFF = 0, 1024
LDS_BYTES = 163840
WS_KV2 = 0x1d0000
WS_FLAG, WS_KV, WS_A2, WS_DIAG, WS_SIZE = 0x1000, 0x100000, 0x200000, 0x1000000, 0x2000000
sC, sI, sTB, sCB, sW, sROT = "s4", "s5", "s6", "s7", "s3", "s36"
sT = "s37"
SRD = dict(x=40, qkv=44, gate=48, up=52, down=56, wo=60, ws=64, out=68, dbg=72)
PTR = dict(x=16, qkv=18, wo=20, gate=24, up=26, down=28, out=30, dbg=32, ws=34)
SIZE = dict(x=2097152, qkv=1572864, wo=524288, gate=1835008, up=1835008, down=1835008, out=2097152, dbg=256, ws=WS_SIZE)
def srd(n): return f"s[{SRD[n]}:{SRD[n]+3}]"
def mk_srd(a, n):
    b = SRD[n]
    a(f"s_mov_b32 s{b}, s{PTR[n]}", f"s_mov_b32 s{b+1}, s{PTR[n]+1}", f"s_mov_b32 s{b+2}, {SIZE[n]:#x}", f"s_mov_b32 s{b+3}, 0x20000")
LOG2E = 1.4426950408889634
def f2u(x): return struct.unpack('<I', struct.pack('<f', x))[0]
def srd_const(a, n): a(f"s_mov_b32 s{SRD[n]+2}, {SIZE[n]:#x}", f"s_mov_b32 s{SRD[n]+3}, 0x20000")
def srd_base(a, n): a(f"s_mov_b64 s[{SRD[n]}:{SRD[n]+1}], s[{PTR[n]}:{PTR[n]+1}]")
def vr(b, n=1): return f"v{b}" if n == 1 else f"v[{b}:{b+n-1}]"
M16 = lambda d, x, y, c: f"v_mfma_f32_16x16x32_bf16 {vr(d,4)}, {vr(x,4)}, {vr(y,4)}, {c if isinstance(c, str) else vr(c,4)}"

STG = ((0, 0, 8), (8, 24, 4), (12, 16, 8), (20, 8, 8), (28, 28, 8))
STAGES = tuple(x[0] for x in STG)
def stage_of(j): return max(x for x in STG if x[0] <= j)
MIXU = 2
def xord(cfg):
    if cfg.xo == 0: return [(0, 0), (0, 1), (1, 0), (1, 1)] + [(0, s) for s in range(2, 8)] + [(1, s) for s in range(2, 8)]
    return [(t, s) for t in range(2) for s in range(8)]
def make_items(cfg, typ):
    it = []
    for i, (t, s) in enumerate(xord(cfg)): it.append(dict(k="x", s=s, t=t, rel=i + 1))
    for u in range(5):
        for i in range(8): it.append(dict(k="w1", u=u, i=i, rel=17 + 8 * u + i))
    for u in range(36): it.append(dict(k="w2", u=u, rel=57 + u))
    free = [(0, p) for p in range(1, 20)] + ([(0, 20)] if typ == "F" else [])
    scr = []
    for n, x in enumerate(it):
        free.sort()
        while typ == "A" and len(scr) < 2 and free[0][0] >= cfg.scr_need - 1:
            need, p = free.pop(0); assert need <= cfg.scr_need
            scr.append(8192 * p); free.append((cfg.scr_rel, p)); free.sort()
        need, p = free.pop(0)
        assert need < x["rel"], (n, x, need)
        x["need"] = need; x["n"] = n; x["addr"] = 8192 * (p % 20)
        free.append((x["rel"], p))
    return it, scr

class Stamps:
    def __init__(self, a, cfg, regs):
        self.a, self.on, self.regs, self.n, self.names = a, cfg.diag, regs, 0, []
    def __call__(self, name):
        if not self.on: return
        sel = os.environ.get("STAMPS")
        if sel is None:
            if name.startswith("_"): return
        elif name not in sel.split(",") + ["start", "end"]: return
        r = self.regs[self.n]
        self.a.raw(f"    {'s_memrealtime' if self.on == 1 else 's_memtime'} s[{r}:{r+1}]")
        self.n += 1; self.names.append(name)
        if os.environ.get("BOTH"):
            r = self.regs[self.n]
            self.a.raw(f"    s_memtime s[{r}:{r+1}]")
            self.n += 1; self.names.append(name + "c")
    def flush(self, vt, vz):
        if not self.on: return
        a = self.a
        a("s_waitcnt lgkmcnt(0)")
        a("s_lshl_b32 s76, s2, 3", f"s_add_u32 s76, s76, {sW}", "s_lshl_b32 s76, s76, 7", f"s_add_u32 s76, s76, {WS_DIAG:#x}")
        a(f"v_mov_b32 v{vz}, 0", "s_mov_b64 exec, 1")
        for i in range(self.n):
            a(f"v_mov_b32 v{vt+i}, s{self.regs[i]}")
            a(f"buffer_store_dword v{vt+i}, v{vz}, {srd('ws')}, s76 offen offset:{4*i}")

def timeout(a):
    a.raw(f"    s_sub_u32 {sT}, {sT}, 1")
    a.raw("    s_cbranch_scc1 L_end")

X0, P0, Q0, K0, WB0 = 128, 64, 96, 56, 24
vA, vH, vL16, vR, vNM, vTag, vFl, T0, ONES = 1, 5, 7, 8, 9, 10, 11, 12, 20
sC2, sHI, sIC, sEPSC = "s38", "s39", "s76", "s77"
sCC = "s36"
sA2, sFL, sKV, sTmp = "s78", "s79", "s80", "s81"
sM1, sM2, sM3 = "s[82:83]", "s[84:85]", "s[86:87]"
def XF(t, s): return X0 + 64 * t + 4 * s
ACC, XRAW = Q0 + 16, K0
SLOTQ = [((0, 0), (0, 1)), ((0, 2), (0, 3)), ((0, 4), (1, 4)), ((0, 5), (1, 5)), ((0, 6), (1, 6)), ((0, 7), (1, 7)), ((1, 0), (1, 1)), ((1, 2), (1, 3))] + [((0, s), (1, s)) for s in range(8, 16)]
SLOT = [(XF(*a), XF(*b)) for a, b in SLOTQ]

class Compute:
    def __init__(self, a, cfg, typ):
        self.a, self.cfg, self.typ = a, cfg, typ
        self.it, self.scr = make_items(cfg, typ)
        self.bars = []; self.full = 0; self.freed = 0; self.mark = 0; self.cur = -1
        self.win = {}
        self.st = Stamps(a, cfg, list(range(48, 64, 2)) + list(range(20, 36, 2)))
    def find(self, **kw):
        for x in self.it:
            if all(x.get(k) == v for k, v in kw.items()): return x
        raise KeyError(kw)
    def barrier(self, full, freed, extra=0, **kw):
        slots = pipe = 0
        for l in self.a.out[self.mark:]:
            l = l.strip()
            if l.endswith(":") or l.startswith("."): continue
            if l.startswith("v_mfma"): slots += 2; pipe += 32 if "32x32" in l else 16
            elif l.startswith(("v_exp", "v_rcp", "v_sqrt", "v_rsq")): slots += 2
            else: slots += 1
        self.a("s_barrier"); self.mark = len(self.a.out)
        self.full = max(self.full, full); self.freed = max(self.freed, freed)
        self.bars.append(dict(full=self.full, freed=self.freed, dur=max(4.2 * slots, pipe) + 40 + extra, step=self.cur, **kw))
    def lds(self, op, dst, areg, addr):
        w = self.win.setdefault(areg, 0)
        if not (0 <= addr - w <= 65535):
            nw = addr & ~8191
            self.a(f"v_add_u32 v{areg}, {(nw - w) & 0xffffffff:#x}, v{areg}")
            self.win[areg] = w = nw
        self.a(f"{op} {dst}, v{areg} offset:{addr - w}")

    def geom(self, n):
        u, ks = divmod(n, 32)
        if u == 0: return ks // 4, ks % 4, 2 * (ks // 4), False
        if self.typ == "F" and u == MIXU: return 4 * (ks // 16) + (ks % 8) // 2, ks // 8, 2 * (ks % 8), ks % 2 == 1
        i = 4 * (ks // 16) + ks % 4
        return i, (ks % 16) // 4, 2 * i, ks % 2 == 1
    def accreg(self, u, cb, t):
        return (P0 if u % 2 == 0 else Q0) + (8 * cb + 4 * t if (self.typ == "A" and u < 2) else 16 * t + 4 * cb)
    def comp(self, u, cb): return 4 * max(n for n in range(32 * u, 32 * u + 32) if self.geom(n)[1] == cb) + 8
    def first(self, u, cb): return 4 * min(n for n in range(32 * u, 32 * u + 32) if self.geom(n)[1] == cb) - 1
    def xdead(self, s): return 4 * max(n for n in range(128, 160) if self.geom(n)[2] == (s & ~1)) + 4
    def step(self, n):
        u = n // 32; i, cb, s0, flip = self.geom(n)
        buf = WB0 + 8 * (n % 4)
        it = self.it[self.item_of(n)]
        if self.typ == "F" and u == MIXU:
            rd = [(buf + 4 * e + 2 * t2, vH + cb % 2, it["addr"] + ((s0 + e) % 4) * 2048 + t2 * 1024) for e in range(2) for t2 in range(2)]
        else:
            rd = [(buf + 4 * e + 2 * t2, vA + cb, it["addr"] + e * 4096 + t2 * 2048) for e in range(2) for t2 in range(2)]
        nt = self.typ == "A" and u < 2
        mf = []
        for k, (e, t) in enumerate(((0, 1), (1, 1), (1, 0), (0, 0)) if flip else ((0, 0), (1, 0), (1, 1), (0, 1))):
            d = self.accreg(u, cb, t); w, x = buf + 4 * e, XF(t, s0 + e)
            mf.append(M16(d, x if nt else w, w if nt else x, "0" if (s0 == 0 and k % 2 == 0) else d))
        return dict(it=it, rd=rd, mf=mf, buf=buf)
    @property
    def BARS(self):
        return [int(x) for x in (self.cfg.barsA if self.typ == "A" else self.cfg.barsF).split(",")]
    def item_of(self, n): return 16 + 8 * (n // 32) + self.geom(n)[0]
    def freed_at(self, n):
        return min([self.item_of(m) for m in range(n + 1, 160)] + [56])
    def read(self, n, j):
        if n >= 160: return
        s = self.step(n)
        if j == 0 and n in self.BARS:
            nxt = min([b for b in self.BARS if b > n] + [160])
            self.barrier(max(self.item_of(m) for m in range(n, nxt)) + 1, self.freed_at(self.arrived), op=(self.typ == "A" and n == self.cfg.op_at),
                         gate=[g for g, at in ((0, self.cfg.gate0_at), (8, self.cfg.gate8_at), (12, self.cfg.gate12_at)) if at == n])
        assert s["it"]["n"] < self.full, (n, self.full)
        d, r, ad = s["rd"][j]
        self.lds("ds_read_b64_tr_b16", vr(d, 2), r, ad)
    def need_step(self, n):
        if self.cfg.PD == 3 and n % 2 == 0: n += 1
        self.a.need(vr(WB0 + 8 * (n % 4), 8)); self.arrived = n
    def cost(self, f):
        if isinstance(f, tuple) and f[0] in ("gap", "dl"): return 0
        if callable(f) and getattr(f, "free", False): return 0
        if isinstance(f, str) and f.startswith(("v_exp", "v_rcp", "v_mfma")): return 2
        return 1
    def run_fill(self, fl, budget):
        used = 0
        while fl and used < budget:
            f = fl[0]
            if isinstance(f, tuple) and f[0] == "gap":
                if self.gap < f[1]: break
                fl.pop(0); continue
            if isinstance(f, tuple) and f[0] == "dl": fl.pop(0); continue
            fl.pop(0); used += self.cost(f)
            if callable(f): f()
            elif isinstance(f, tuple): self.a.e(f[0], tag=f[1])
            else: self.a(f)
        return used
    def units(self, fl, side):
        fl = list(fl); side = list(side); credit = 0.0
        for n in range(32, 160):
            s = self.step(n); self.cur = n
            if n % 32 == 0: self.st(f"u{n//32}")
            self.need_step(n)
            for j in range(4):
                self.gap = 4 * n + j
                self.a(s["mf"][j])
                self.read(n + self.cfg.PD, j)
                rate = self.cfg.frate / 100; c = 0
                for f in fl:
                    if isinstance(f, tuple) and f[0] == "dl":
                        assert c == 0 or f[1] >= self.gap, ("deadline missed", f, self.gap)
                        if c: rate = max(rate, c / max(0.5, f[1] - self.gap - 0.5))
                    c += self.cost(f)
                credit = min(credit + rate, rate + 1.5)
                credit -= 0.7 * self.run_fill(side, 1)
                credit -= self.run_fill(fl, credit - 0.5)
        self.gap = 10 ** 9
        if side: print(f"  [{self.typ}] {len(side)} side fillers left over", file=sys.stderr)
        self.run_fill(side, 10 ** 9)
        return fl

    def f_silu(self, quads):
        fl = []
        for k, q in enumerate(quads):
            t = T0 + (k % 2) * 4
            fl += [f"v_exp_f32_e64 v{t+i}, -v{q+i}" for i in range(4)]
            fl += [f"v_fma_f32 v{t+i}, v{t+i}, {sC2}, {sC2}" for i in range(4)]
            fl += [f"v_rcp_f32 v{t+i}, v{t+i}" for i in range(4)]
            fl += [f"v_mul_f32 v{q+i}, v{q+i}, v{t+i}" for i in range(4)]
        return fl
    def f_phi(self, quads, packs):
        fl = []
        for k, (q, p) in enumerate(zip(quads, packs)):
            t = T0 + (k % 2) * 4
            fl += [f"v_exp_f32_e64 v{t+i}, v{q+i} clamp" for i in range(4)]
            fl += [f"v_max_f32 v{q+i}, {sEPSC}, v{q+i}" for i in range(4)]
            fl += [f"v_fmac_f32 v{t+i}, {sIC}, v{q+i}" for i in range(4)]
            fl += [f"v_cvt_pk_bf16_f32 v{p+i}, v{t+2*i}, v{t+2*i+1}" for i in range(2)]
        return fl
    def f_h(self, dst, src, soff, off, tag):
        mul = []; out = []
        for t in range(2):
            d = dst + 16 * t
            mul += [f"v_mul_f32 v{d+i}, v{d+i}, v{src+16*t+i}" for i in range(8)]
            out += [f"v_cvt_pk_bf16_f32 v{d+i}, v{d+2*i}, v{d+2*i+1}" for i in range(4)]
            out += [(f"buffer_store_dwordx4 {vr(d,4)}, v{vL16}, {srd('ws')}, {soff} offen offset:{off+t*1024} sc1", tag)]
        return mul, out
    def flag(self, U, tag):
        a = self.a
        a(f"s_add_u32 {sTmp}, {dict(h1=sFL, h='s45', h3='s45', o='s47')[tag]}, {U*512}")
        self.st("_w" + tag); a.wait_tag(tag); self.st("_d" + tag)
        a(f"buffer_store_dword v{vTag}, v{vFl}, {srd('ws')}, {sTmp} offen sc1")
    def f_nonce(self):
        a = self.a
        def chk():
            L = a.newlabel("Ln"); C = a.newlabel("Lc")
            a(f"v_cmp_eq_u32 vcc, 0, v{vTag}")
            a(f"s_cbranch_vccnz {L}")
            a.label(C)
            a.stubs += [f"{L}:", f"    buffer_load_dword v{vTag}, off, {srd('dbg')}, 0 sc1", f"    s_sub_u32 {sT}, {sT}, 1", "    s_cbranch_scc1 L_end",
                        "    s_waitcnt vmcnt(0)", f"    v_cmp_eq_u32 vcc, 0, v{vTag}", f"    s_cbranch_vccnz {L}", f"    s_branch {C}"]
        return f"buffer_load_dword v{vTag}, off, {srd('dbg')}, 0 sc1", chk

    def prologue(self):
        a, cfg = self.a, self.cfg
        a("v_and_b32 v0, 63, v0")
        if cfg.cprio: a(f"s_setprio {cfg.cprio}")
        a(f"v_lshlrev_b32 v{vL16}, 4, v0")
        a("v_and_b32 v12, 15, v0", "v_lshrrev_b32 v13, 4, v0", "v_lshrrev_b32 v14, 1, v12", "v_xor_b32 v14, v13, v14", "v_lshlrev_b32 v14, 4, v14",
          "v_lshl_add_u32 v14, v12, 7, v14", f"s_lshl_b32 {sTmp}, {sW}, 11", f"v_add_u32 v{P0}, {sTmp}, v14", f"v_xor_b32 v{P0+1}, 64, v{P0}")
        for i in range(4): a(f"v_mov_b32 v{ONES+i}, 0x3f803f80")
        a("v_and_b32 v14, 31, v0", "v_lshrrev_b32 v15, 5, v0", "v_lshlrev_b32 v15, 3, v15", "v_sub_u32 v15, v14, v15")
        a("v_and_b32 v16, 1, v15", "v_lshlrev_b32 v16, 4, v16", "v_mov_b32 v17, 0x3f80", "v_lshlrev_b32 v16, v16, v17", "v_lshrrev_b32 v15, 1, v15")
        for t in range(8):
            a(f"v_cmp_eq_u32 vcc, {t if t < 4 else t + 4}, v15", f"v_cndmask_b32 v{K0+t}, 0, v16, vcc")
        a("s_waitcnt lgkmcnt(0)")
        for n in ("ws", "out", "dbg", "x"): srd_base(a, n); srd_const(a, n)
        L = "L_tag0"
        a(f"s_or_b32 s0, s2, {sW}", "s_cmp_lg_u32 s0, 0", f"s_cbranch_scc1 {L}")
        a.raw(f"    buffer_load_dword v{vTag}, off, {srd('ws')}, 0 sc1")
        a.label(L)
        a("v_lshlrev_b32 v14, 2, v13", "v_sub_u32 v14, v12, v14")
        for i in range(4): a(f"v_cmp_eq_u32 s[{88+2*i}:{89+2*i}], {i}, v14")
        a(f"s_mov_b32 {sC2}, {f2u(LOG2E**2):#x}", f"s_mov_b32 {sIC}, {f2u(1/LOG2E):#x}", f"s_mov_b32 {sHI}, 0xffff0000", f"s_mov_b32 {sEPSC}, {f2u(1e-6*LOG2E):#x}", f"s_mov_b32 {sCC}, {f2u(LOG2E):#x}")
        a("v_lshrrev_b32 v15, 5, v0", "v_bfe_u32 v16, v0, 2, 2", "v_lshl_add_u32 v16, v15, 2, v16", "v_and_b32 v17, 1, v13", "v_lshl_add_u32 v16, v17, 3, v16")
        a("v_and_b32 v18, 3, v0", "v_lshlrev_b32 v18, 3, v18", "v_lshl_add_u32 v19, v16, 6, v18", f"v_lshl_add_u32 v{vH}, v17, 5, v19", f"v_xor_b32 v{vH+1}, 32, v{vH}")
        a("v_lshl_add_u32 v19, v16, 7, v18", "v_bfe_u32 v18, v0, 3, 2", f"v_lshl_add_u32 v{vA}, v18, 5, v19")
        for cb in range(1, 4): a(f"v_xor_b32 v{vA+cb}, {cb*32}, v{vA}")
        a("v_lshlrev_b32 v18, 2, v0", f"v_lshl_add_u32 v{vFl}, v15, 30, v18")
    def prologue2(self):
        a, cfg = self.a, self.cfg
        a(f"s_lshr_b32 {sTmp}, {sW}, 1", f"s_lshl_b32 {sA2}, {sC}, 1", f"s_add_u32 {sA2}, {sA2}, {sTmp}", f"s_mul_i32 {sA2}, {sA2}, 36",
          f"s_add_u32 {sA2}, {sA2}, {sI}", f"s_lshl_b32 {sA2}, {sA2}, 1", f"s_and_b32 {sTmp}, {sW}, 1", f"s_add_u32 {sA2}, {sA2}, {sTmp}")
        a(f"s_lshl_b32 {sFL}, {sA2}, 8", f"s_add_u32 {sFL}, {sFL}, {WS_FLAG:#x}", f"s_lshl_b32 {sA2}, {sA2}, 12", f"s_add_u32 {sA2}, {sA2}, {WS_A2:#x}")
        for r, x in ((44, cfg.x1), (46, cfg.x4)):
            a(f"s_xor_b32 s96, {sI}, {x}", f"s_sub_u32 s96, s96, {sI}", "s_lshl_b32 s97, s96, 13", f"s_add_u32 s{r}, {sA2}, s97", "s_lshl_b32 s97, s96, 9", f"s_add_u32 s{r+1}, {sFL}, s97")
        a(f"s_mul_i32 s96, {sTB}, {36*8192}", f"s_add_u32 s96, s96, {WS_A2:#x}")
        for j in range(12):
            if cfg.rot2: a(f"s_add_u32 s97, {'s2' if cfg.rot2 == 1 else sCB}, {j%8}", f"s_and_b32 s97, s97, {7 if j < 8 else 3}", "s_lshl_b32 s97, s97, 13", f"s_add_u32 s{8+j}, s96, s97")
            else: a(f"s_add_u32 s{8+j}, s96, {(j%8)*8192}")
        a(f"s_lshl_b32 s99, {sTB}, 2", f"s_add_u32 s99, s99, {sW}", "s_lshl_b32 s99, s99, 14", f"s_lshl_b32 s97, {sCB}, 7", "s_add_u32 s99, s99, s97")
        a("s_mov_b32 s82, 0xffff0000", "s_mov_b32 s83, 0", "s_mov_b32 s84, 0", "s_mov_b32 s85, 0xffff", "s_mov_b32 s86, 0", "s_mov_b32 s87, 0xffff0000")
        a(f"s_lshl_b32 {sKV}, {sI}, 2", f"s_add_u32 {sKV}, {sKV}, {sW}", f"s_lshl_b32 {sKV}, {sKV}, 6", f"s_add_u32 {sKV}, {sKV}, {sC}",
          f"s_mul_i32 {sKV}, {sKV}, 384", f"s_add_u32 {sKV}, {sKV}, {WS_KV:#x}")
        pA, pB = make_items(cfg, "A")[1]
        a(f"s_mov_b32 s97, {pA}", f"s_mov_b32 s98, {pB}", f"s_cmp_lt_u32 {sW}, 2", "s_cselect_b32 s97, s97, s98", f"s_and_b32 s98, {sW}, 1", "s_lshl_b32 s98, s98, 12", "s_add_u32 s97, s97, s98")
        a(f"s_lshr_b32 s96, {sI}, 1", f"s_sub_u32 s96, s96, {sI}", "s_add_u32 s96, s96, 24", "s_lshl_b32 s96, s96, 2", f"s_and_b32 s98, {sI}, 1", "s_add_u32 s96, s96, s98",
          "s_lshl_b32 s100, s96, 11", f"s_add_u32 s100, s100, {sA2}", "s_lshl_b32 s101, s96, 7", f"s_add_u32 s101, s101, {sFL}")
    def tag_publish(self):
        a = self.a
        L = "L_tag1"
        a("s_cmp_lg_u32 s0, 0", f"s_cbranch_scc1 {L}")
        for x in ("s_waitcnt vmcnt(0)", f"v_add_u32 v{vTag}, 0x9e377902, v{vTag}", f"v_or_b32 v{vTag}, 0x80000000, v{vTag}", "s_mov_b64 exec, 1",
                  f"buffer_store_dword v{vTag}, off, {srd('dbg')}, 0 sc1", f"buffer_store_dword v{vTag}, off, {srd('ws')}, 0 sc1", "s_mov_b64 exec, -1"):
            a.raw("    " + x)
        a.label(L)
    def stats_fin(self, S1, S2, R):
        t = T0
        fl = [f"v_cndmask_b32 v{t+2}, 0, v{S2}, s[88:89]"] + [f"v_cndmask_b32 v{t+2}, v{t+2}, v{S2+i}, s[{88+2*i}:{89+2*i}]" for i in range(1, 4)]
        fl += [f"v_mov_b32 v{t+3}, v{t+2}", f"v_mul_f32 v{t}, 0x3b000000, v{S1}", f"v_mul_f32 v{t+1}, v{t}, v{t}", f"v_permlane32_swap_b32 v{t+2}, v{t+3}", f"v_add_f32 v{t+2}, v{t+2}, v{t+3}",
               f"v_mov_b32 v{t+3}, v{t+2}", f"v_permlane16_swap_b32 v{t+2}, v{t+3}", f"v_add_f32 v{t+2}, v{t+2}, v{t+3}"]
        fl += [f"v_mul_f32 v{t+2}, 0x3b000000, v{t+2}", f"v_sub_f32 v{t+2}, v{t+2}, v{t+1}", f"v_max_f32 v{t+2}, 0, v{t+2}"]
        if self.cfg.round_ln:
            fl += [f"v_cvt_pk_bf16_f32 v{t+1}, v{t}, v{t+2}", f"v_and_b32 v{t+2}, {sHI}, v{t+1}", f"v_lshlrev_b32 v{t}, 16, v{t+1}",
                   f"v_add_f32 v{t+2}, 0x3727c5ac, v{t+2}", f"v_cvt_pk_bf16_f32 v{t+2}, v{t+2}, v{t+2}", f"v_lshlrev_b32 v{t+2}, 16, v{t+2}",
                   f"v_sqrt_f32 v{t+2}, v{t+2}", f"v_cvt_pk_bf16_f32 v{t+2}, v{t+2}, v{t+2}", f"v_lshlrev_b32 v{t+2}, 16, v{t+2}", f"v_rcp_f32 v{R}, v{t+2}"]
        else:
            fl += [f"v_add_f32 v{t+2}, 0x3727c5ac, v{t+2}", f"v_rsq_f32 v{R}, v{t+2}"]
        fl += [f"v_mul_f32 v{R}, {sCC}, v{R}", f"v_mul_f32_e64 v{R+1}, -v{t}, v{R}"]
        return fl
    def unpack(self, t, p):
        d = vr(Q0 + 16 * (p % 2), 16)
        return [f"v_mfma_f32_32x32x16_bf16 {d}, {vr(K0,4)}, {vr(XF(t,2*p),4)}, 0",
                f"v_mfma_f32_32x32x16_bf16 {d}, {vr(K0+4,4)}, {vr(XF(t,2*p+1),4)}, {d}"]
    def f_center(self, t, p):
        d = Q0 + 16 * (p % 2); fl = []; R = vR if t else T0 + 4
        for g in range(0, 16, 4):
            fl += [f"v_fma_f32 v{d+g+i}, v{d+g+i}, v{R}, v{R+1}" for i in range(4)]
            fl += [f"v_cvt_pk_bf16_f32 v{XF(t,2*p)+g//2+i}, v{d+g+2*i}, v{d+g+2*i+1}" for i in range(2)]
        return fl
    def xphase(self):
        a, cfg = self.a, self.cfg
        S = P0 + 4
        done = [0]
        def group(g):
            self.barrier(g[-1] + 1, done[0], phase="x")
            mf = []
            for i in g:
                t, s = xord(cfg)[i]
                for e in range(2):
                    x, k = XF(t, 2 * s + e), 2 * s + e
                    self.lds("ds_read_b128", vr(x, 4), P0 + e, self.it[i]["addr"])
                    mf += [M16(S + 8 * t, ONES, x, "0" if k == 0 else S + 8 * t), M16(S + 8 * t + 4, x, x, "0" if k == 0 else S + 8 * t + 4)]
            return mf
        if cfg.pro2_at == 0: self.prologue2()
        a.out += touch_code(cfg)
        ends = [0] + [int(x) for x in cfg.xgroups.split(",")]
        for gi in range(len(ends) - 1):
            g = list(range(ends[gi], ends[gi + 1]))
            mf = group(g)
            if gi == 0: self.st("x0")
            for m in mf: a(m)
            if gi == 0:
                for m in self.unpack(0, 0) + self.unpack(0, 1): a(m)
                a("s_waitcnt vmcnt(0)"); self.tag_publish()
                if cfg.pro2_at == 1: self.prologue2()
            done[0] = g[-1] + 1
        self.st("_x4")
        for f in self.stats_fin(S, S + 4, T0 + 4): a(f)
        pend = []; fin = None
        late = [tuple(int(y) for y in x.split(":")) for x in cfg.xlate.split(",")]
        nxt = ends[-1]
        for q in range(9):
            while late and late[0][0] == q:
                for m in pend: a(m)
                done[0] = nxt
                pend = group(list(range(nxt, late[0][1]))); hold = 10; nxt = late.pop(0)[1]
                if not late: self.st("_x7")
            if q == 8:
                for m in pend: a(m)
                pend = []
            if not late and not pend and fin is None: fin = self.stats_fin(S + 8, S + 12, vR)
            if q == 8:
                self.barrier(18, 16, phase="x")
                for n in range(cfg.PD):
                    for j in range(4): self.read(n, j)
                for f in fin: a(f)
                fin = []
            assert q < 7 or xord(cfg).index((1, q - 7)) < nxt
            up = self.unpack(*divmod(q + 1, 8)) if q >= 1 else []
            a.raw("    .p2align 3")
            for k, f in enumerate(self.f_center(*divmod(q, 8))):
                if up and k in (0, 8): a(up.pop(0))
                if pend:
                    hold -= 1
                    if hold <= 0 and k % 3 == 2: a(pend.pop(0)); a.raw("    .p2align 3")
                a(f)
                if fin and k >= 2:
                    a(fin.pop(0))
        self.st("u0")
        self.split = len(a.out)
    def unit0(self):
        a = self.a
        self.gap = 0
        for p in range(8):
            fl = self.f_center(1, p + 1) if p + 1 < 8 else []
            up = self.unpack(1, p + 2) if p + 2 < 8 else []
            for e in range(4):
                n = 4 * p + e; s = self.step(n); self.cur = n
                if up and e % 2 == 0:
                    a(up[e // 2]); self.run_fill(fl, 4)
                self.need_step(n)
                for j in range(4):
                    a(s["mf"][j]); self.read(n + self.cfg.PD, j)
                    self.run_fill(fl, 1 if up else 2)
            assert not fl
    def f_xres(self):
        t = vNM
        pre = [f"v_bfe_u32 v{t}, v0, 4, 1", f"v_lshrrev_b32 v{vR}, 5, v0", f"v_lshl_add_u32 v{vR}, v{t}, 1, v{vR}", f"v_lshlrev_b32 v{vR}, 4, v{vR}",
               f"v_and_b32 v{t}, 15, v0", f"v_lshl_add_u32 v{vR}, v{t}, 10, v{vR}",
               f"v_lshrrev_b32 v{t}, 5, v0", f"v_bfe_u32 v{ONES}, v0, 4, 1", f"v_sub_u32 v{t}, v{t}, v{ONES}", f"v_lshlrev_b32 v{t}, 9, v{t}",
               f"s_and_b32 s96, {sW}, 1", "s_lshl_b32 s96, s96, 10", f"v_add_u32 v{ONES+1}, s96, v{vL16}", f"v_lshl_add_u32 v{ONES+1}, {sW}, 11, v{ONES+1}", f"v_xor_b32 v{ONES+2}, 0x400, v{ONES+1}",
               f"v_xor_b32 v{ONES+3}, 0x800, v{ONES+1}",
               "s_lshl_b32 s96, s96, 2", f"v_add_u32 v{t}, s96, v{t}"]
        ld = [f"buffer_load_dwordx4 {vr(XRAW+4*k,4)}, v{vR}, {srd('x')}, s99 offen offset:{64*k}" for k in range(2)]
        post = []
        for k in range(2): post += [f"v_permlane16_swap_b32 v{XRAW+4*k}, v{XRAW+4*k+2}", f"v_permlane16_swap_b32 v{XRAW+4*k+1}, v{XRAW+4*k+3}"]
        for i in range(8): post += [f"v_lshlrev_b32 v{P0+2*i}, 16, v{XRAW+i}", f"v_and_b32 v{P0+2*i+1}, {sHI}, v{XRAW+i}"]
        return pre, ld, post
    def a2_loads(self, u):
        S, U, n = stage_of(u)
        r = f"s{8+u-S}" if n == 8 else f"s{16+u-S}"
        b = SLOT[u % len(SLOT)]
        return [f"s_add_u32 {sTmp}, {r}, {U*8192}"] + [f"buffer_load_dwordx4 {vr(b[s],4)}, v{ONES+1+s*(2 if u >= 36 - self.cfg.own else 1)}, {srd('ws')}, {sTmp} offen sc1" for s in range(2)]
    @staticmethod
    def merge(*lists):
        segs = []
        for l in lists:
            for f in l:
                if isinstance(f, tuple) and f[0] == "gap": segs.append([f])
                else: segs[-1].append(f)
        return [f for sg in sorted(segs, key=lambda x: x[0][1]) for f in sg]
    def f_pre(self, g0):
        fl = []
        assert g0 >= (self.cfg.gate0_at - self.cfg.PD) * 4 + 1 or self.n_pre == 0
        for u in range(self.n_pre):
            fl += [("gap", max([g0 + u * self.cfg.pre_step] + [self.xdead(q[1]) for q in SLOTQ[u]]))] + [x.replace(sTmp, "s98") for x in self.a2_loads(u)]
        return fl
    def hook(self, f):
        f.free = True; return f
    def typeA(self):
        a, cfg = self.a, self.cfg
        ld, chk = self.f_nonce()
        pA, pB = self.scr
        self.xphase()
        self.unit0()
        t = T0; R = self.accreg; xp, xl, xq = self.f_xres()
        PK = lambda h: P0 + 8 * h + 4
        fl = [("gap", 128 + 2), ld]
        for h in range(4):
            fl += [("gap", self.comp(0, h))] + self.f_phi([R(0, h, 1), R(0, h, 0)], [PK(h) + 2, PK(h)])
            if h: fl += [M16(P0 + 8 * (h - 1), ONES, PK(h - 1), "0")]
        fl += [f"v_add_u32 v{vH}, s97, v{vL16}", f"s_lshl_b32 {sTmp}, {sW}, 8", f"v_lshrrev_b32 v{t+1}, 2, v{vL16}", M16(P0 + 24, ONES, PK(3), "0"),
               f"v_and_b32 v{t+2}, 12, v{t+1}", f"v_and_b32 v{t+6}, 48, v0", f"v_add_u32 v{t+2}, v{t+2}, v{t+6}", f"v_mul_u32_u24 v{t+7}, {(6144-128)//16}, v{t+6}",
               f"v_lshl_add_u32 v{t+7}, v0, 3, v{t+7}", f"v_mul_u32_u24 v{t+6}, {(6144-256)//16}, v{t+6}", f"v_add_u32 v{t+6}, v{t+6}, v{vL16}", f"v_add_u32 v{t+1}, {sTmp}, v{t+1}", f"s_lshl_b32 {sTmp}, {sW}, 6", f"v_add_u32 v{t+2}, {sTmp}, v{t+2}",
               f"s_lshl_b32 {sTmp}, {sW}, 10", f"v_add_u32 v{t+3}, {sTmp}, v{vL16}", f"v_add_u32 v{t+4}, {pB}, v{t+3}", f"v_add_u32 v{t+3}, {pA}, v{t+3}",
               f"v_cndmask_b32 v{t}, v{P0}, v{P0+8}, {sM1}", f"v_cndmask_b32 v{t}, v{t}, v{P0+16}, {sM2}", f"v_cndmask_b32 v{t}, v{t}, v{P0+24}, {sM3}", chk]
        def wchk(): assert self.freed >= cfg.scr_need, self.freed
        fl += [("dl", self.first(2, 0))]
        wr = []
        for h in range(4):
            q = Q0 + 8 * h
            fl += [("gap", self.comp(1, h))] + [f"v_cvt_pk_bf16_f32 v{q+i}, v{q+2*i}, v{q+2*i+1}" for i in range(4)]
            if h: fl += [M16(q - 4, PK(h - 1), q - 8, "0")]
            wr += [f"ds_write_b128 v{vH}, {vr(q+4,4)} offset:{h*1024}"]
        fl += [("dl", self.first(2, 1)), f"v_mov_b32 v{t+5}, 0xff", ("gap", cfg.kvw_gap), self.hook(wchk), M16(Q0 + 28, PK(3), Q0 + 24, "0"), f"ds_write_b32 v{t+1}, v{t} offset:{ZR_OFF}"] + wr[:3] + [(wr[3], "kvw"), ("dl", cfg.kvw_gap + 8)]
        def xbar():
            k = [n for n, e in enumerate(a.lg) if e[1] == "kvw"]
            if k: a.wait(lg=len(a.lg) - 1 - k[0])
            self.barrier(0, self.freed_at(self.arrived))
        fl += [("gap", cfg.kvw_gap + cfg.kvb), xbar]
        fl += [f"ds_read_b128 {vr(Q0+4*s,4)}, v{t+3+s//2} offset:{(s%2)*4096}" for s in range(4)]
        fl += [f"ds_read_b32 v{Q0+16+s}, v{t+2} offset:{ZR_OFF+s*256}" for s in range(4)] + [("dl", cfg.kvw_gap + cfg.kvb + 7), ("gap", cfg.kvw_gap + cfg.kvb + 12)]
        for s in range(1, 4): fl += [f"v_add_f32 v{Q0+r}, v{Q0+r}, v{Q0+4*s+r}" for r in range(4)] + [f"v_add_f32 v{Q0+16}, v{Q0+16}, v{Q0+16+s}"]
        fl += [f"v_bfi_b32 v{Q0+r}, v{t+5}, v{vTag}, v{Q0+r}" for r in (0, 16)]
        fl += [f"v_mov_b32 v{Q0+17}, v{Q0+16}", f"buffer_store_dwordx4 {vr(Q0,4)}, v{t+6}, {srd('ws')}, {sKV} offen sc1", f"buffer_store_dwordx2 {vr(Q0+16,2)}, v{t+7}, {srd('ws')}, {sKV} offen offset:256 sc1"]
        def rchk(): assert self.freed < cfg.scr_rel, self.freed; self.st("kv")
        fl += [self.hook(rchk), ("dl", cfg.kvw_gap + cfg.kvb + 31)] + xp + xl
        OPK, OPZ, DEN, NUM = XF(1, 0), XF(1, 2), Q0, Q0 + 16
        fl += [f"v_lshrrev_b32 v{vH}, 1, v{vL16}", f"v_lshrrev_b32 v{vH+1}, 4, v0", f"v_lshlrev_b32 v{vH+1}, 3, v{vH+1}", f"s_add_u32 s88, s44, {16*8192}", f"s_add_u32 s89, s46, {28*8192}"]
        h0, h1 = self.f_h(Q0, P0, "s88", 0, "h"), self.f_h(Q0 + 8, P0 + 8, "s88", 2048, "h")
        sil = lambda u, cb: [("gap", self.comp(u, cb))] + self.f_silu([R(u, cb, 0), R(u, cb, 1)])
        fl += sil(2, 0) + sil(2, 1) + sil(2, 2) + sil(2, 3)
        fl += [("gap", self.comp(3, 1))] + h0[0] + [("dl", self.first(4, 0))] + h0[1] + [("gap", self.comp(3, 3))] + h1[0] + h1[1] + [("dl", cfg.hA_dl)]
        opr = []
        for h in range(4):
            opr += [f"ds_read_b64 {vr(OPK+2*h,2)}, v{vH} offset:{OP_OFF+h*576}", f"ds_read_b64 {vr(OPZ+2*h,2)}, v{vH+1} offset:{OP_OFF+h*576+512}"]
        phi = lambda h: [("gap", self.comp(4, h))] + self.f_phi([R(4, h, 0), R(4, h, 1)], [R(4, h, 0), R(4, h, 1)])
        def mm(h):
            o = []
            for tt in range(2):
                b, e = vr(R(4, h, tt), 2), h % 2
                o += [f"v_mfma_f32_16x16x16_bf16 {vr(DEN+8*tt+4*e,4)}, {vr(OPZ+2*h,2)}, {b}, 0", f"v_mfma_f32_16x16x16_bf16 {vr(NUM+8*tt+4*e,4)}, {vr(OPK+2*h,2)}, {b}, 0"]
            return o
        def post(s2, tt):
            n, d = NUM + 8 * tt, DEN + 8 * tt
            o = [f"v_add_f32 v{d+4*e}, {sEPSC}, v{d+4*e}" for e in range(2)] + [f"v_rcp_f32 v{d+4*e}, v{d+4*e}" for e in range(2)]
            o += [f"v_mul_f32 v{n+i}, v{n+i}, v{d+4*(i//4)}" for i in range(8)]
            o += [f"v_cvt_pk_bf16_f32 v{d+i}, v{n+2*i}, v{n+2*i+1}" for i in range(4)]
            return o + [(f"buffer_store_dwordx4 {vr(d,4)}, v{vL16}, {srd('ws')}, s89 offen offset:{(2*s2+tt)*1024} sc1", "o")]
        def weave(main, extra, every):
            o = []; extra = list(extra)
            for k, f in enumerate(main):
                if extra and k % every == every - 1: o.append(extra.pop(0))
                o.append(f)
            return o + extra
        assert cfg.op_at < 160 and cfg.op_at in self.BARS and cfg.hA_dl <= self.first(4, 2) and cfg.hA_gap > cfg.hA_dl and (cfg.gate0_at in self.BARS or cfg.gate0_at == 160)
        fl += [("gap", max((cfg.op_at - cfg.PD) * 4 + 1, self.xdead(3)))] + opr + phi(0) + weave(phi(1), mm(0), 4)
        last = [weave(phi(2), mm(1), 4), post(0, 0) + post(0, 1)]
        for k in range(2):
            if k == cfg.finA: fl += [("dl", 639)]
            fl += last[k]
        if cfg.finA == 2: fl += [("dl", 639)]
        self.n_pre = cfg.n_preA; assert self.n_pre + cfg.n_epi <= 6
        rest = self.units(fl, self.merge(self.f_pre(cfg.preA_gap), [("gap", cfg.hA_gap), lambda: self.flag(16, "h")])); self.st("fin")
        self.cur = 160
        self.n_pre += cfg.n_epi
        self.p2_plan()
        self.barrier(56 + self.p2b[0] + 1, 56, gate=[g for g, at in ((0, cfg.gate0_at), (8, cfg.gate8_at), (12, cfg.gate12_at)) if at == 160])
        self.st("_e0")
        lds_ = [x for u in range(cfg.n_preA, self.n_pre) for x in self.a2_loads(u)]
        self.run_fill(lds_ + rest + weave(phi(3), mm(2), 4) + mm(3), 10 ** 9)
        self.p2_start()
        self.run_fill(post(1, 0) + post(1, 1), 10 ** 9)
        self.st("p2")
        self.phase2({cfg.late_at: lambda: self.flag(28, "o")})
    def typeF(self):
        a, cfg = self.a, self.cfg
        ld, chk = self.f_nonce()
        self.xphase()
        self.unit0()
        R = self.accreg; xp, xl, xq = self.f_xres()
        sil = lambda u, cb: [("gap", self.comp(u, cb))] + self.f_silu([R(u, cb, 0), R(u, cb, 1)])
        h10, h11 = self.f_h(Q0, P0, sA2, 0, "h1"), self.f_h(Q0 + 8, P0 + 8, sA2, 2048, "h1")
        h2 = self.f_h(P0, P0 + 8, "s100", 0, "h2")
        h30, h31 = self.f_h(P0, Q0, "s88", 0, "h3"), self.f_h(P0 + 8, Q0 + 8, "s88", 2048, "h3")
        fl = [("gap", 128 + 2), ld] + sil(0, 0) + sil(0, 1) + sil(0, 2) + [chk, ("gap", self.comp(1, 1))] + h10[0] + [("dl", self.first(2, 0))] + h10[1]
        fl += sil(0, 3) + [("gap", self.comp(1, 3))] + h11[0] + h11[1] + [("dl", cfg.h1_dl)]
        fl += sil(2, 0) + sil(2, 1) + [("gap", self.comp(2, 3))] + h2[0] + h2[1] + [("dl", cfg.h2_dl)] + xp + xl + [f"s_add_u32 s88, s44, {8*8192}"]
        fl += sil(3, 0) + sil(3, 1) + sil(3, 2) + sil(3, 3) + [("gap", self.comp(4, 1))] + h30[0] + h30[1] + [("dl", 639)]
        def f2():
            self.st("_wh2"); a.wait_tag("h2"); self.st("_dh2")
            a(f"buffer_store_dword v{vTag}, v{vFl}, {srd('ws')}, s101 offen sc1")
        assert cfg.h1_dl <= self.first(2, 2) and cfg.n_preF + cfg.n_epiF <= 8 and cfg.h2_dl <= self.first(4, 0) and (cfg.gate0_at in self.BARS or cfg.gate0_at == 160)
        self.n_pre = cfg.n_preF
        rest = self.units(fl, self.merge(self.f_pre(cfg.preF_gap), [("gap", cfg.h1_dl + cfg.ack), lambda: self.flag(0, "h1")], [("gap", cfg.h2_dl + cfg.ack), f2])); self.st("fin")
        self.cur = 160
        self.n_pre += cfg.n_epiF
        self.p2_plan()
        self.barrier(56 + self.p2b[0] + 1, 56, gate=[g for g, at in ((0, cfg.gate0_at), (8, cfg.gate8_at), (12, cfg.gate12_at)) if at == 160])
        for u in range(cfg.n_preF, self.n_pre):
            for x in self.a2_loads(u): a(x)
        self.p2_start()
        self.run_fill(rest + h31[0] + h31[1], 10 ** 9)
        self.st("p2")
        self.phase2({cfg.late_at: lambda: self.flag(8, "h3")})
    def p2_plan(self):
        cfg = self.cfg
        nxt = self.n_pre; self.p2l = {}; self.p2g = {}; bars = []
        last_w = max(x["need"] for x in self.it) - 57
        for u in range(36):
            ld = []
            while nxt < 36 and nxt <= u + (cfg.D if u < cfg.d_sw else cfg.D2) and len(ld) < 2:
                if nxt in STAGES and not (nxt == 8 and cfg.gate8_at <= 160) and not (nxt == 12 and cfg.gate12_at <= 160): self.p2g[u] = [nxt]
                ld.append(nxt); nxt += 1
            self.p2l[u] = ld
        g28 = [u for u in self.p2g if self.p2g[u] == [28]][0]
        if cfg.g28_u < g28:
            del self.p2g[g28]; self.p2g.setdefault(cfg.g28_u, []).append(28)
        prev = cfg.p2_first - cfg.p2_bar
        for u in range(36):
            nextg = min([g for g in self.p2g if g >= u] + [99])
            if u in self.p2g or u == cfg.p2_fin or (u - prev >= cfg.p2_bar and nextg - u >= min(2, cfg.p2_bar) and u <= (cfg.p2_lastA if self.typ == 'A' else cfg.p2_lastF)):
                bars.append(u); prev = u
        self.p2b = bars + [35]
    def p2_read(self, m, j):
        if m >= 72 - 2 * self.cfg.own: return
        u, cp = m // 2, m & 1
        w = self.find(k="w2", u=u); assert w["n"] < self.full, (m, w, self.full)
        e, t2 = j // 2, j % 2
        self.lds("ds_read_b64_tr_b16", vr(WB0 + 8 * (m % 4) + 4 * e + 2 * t2, 2), vA + 2 * cp + e, w["addr"] + t2 * 2048)
    def p2_start(self):
        for cb in range(4): self.a(f"v_add_u32 v{vA+cb}, v{vNM}, v{vA+cb}")
        for m in range(2):
            for j in range(4): self.p2_read(m, j)
    def phase2(self, hooks):
        a, cfg = self.a, self.cfg
        pa, pb = self.find(k="w2", u=20)["addr"], self.find(k="w2", u=21)["addr"]
        assert self.p2b[-2] >= 22 and max(x["need"] for x in self.it) < 57 + 20
        tail = [f"s_mov_b32 s96, {pa}", f"s_cmp_lt_u32 {sW}, 2", f"s_cselect_b32 s96, s96, {pb}", f"s_and_b32 s97, {sW}, 1", "s_lshl_b32 s97, s97, 12",
                "s_add_u32 s96, s96, s97", f"v_add_u32 v{T0}, s96, v{vL16}", f"v_xor_b32 v{T0+1}, 0x1000, v{T0}"]
        own = cfg.own; assert own in (0, 2) and cfg.D >= own
        FQ = [q for sl in SLOT[4:12] for q in sl]
        pre = []
        if own:
            tail += [f"v_xor_b32 v{T0+4+cb}, 0x1000, v{vA+cb}" for cb in range(4)]
            for u in (34, 35):
                w = self.find(k="w2", u=u)
                pre += [(FQ[8 * (u - 34) + 2 * cb + e] + 2 * t2, (vA, T0 + 4)[e] + cb, w) + (t2,) for cb in range(4) for e in range(2) for t2 in range(2)]
        if cfg.fullline: tail += [f"v_and_b32 v{T0+2}, 0x2000, v{vR}", f"v_lshrrev_b32 v{T0+3}, 7, v{T0+2}", f"v_sub_u32 v{vR}, v{vR}, v{T0+2}", f"v_add_u32 v{vR}, v{vR}, v{T0+3}", "s_add_u32 s98, s99, 0x2000"]
        M = 72 - 2 * own
        xq = self.f_xres()[2]; xa = {}
        for cb in range(4): xa[2 * (cfg.xadd_at + 4 + cb) + 1 + cb // 2] = [f"v_add_f32 v{ACC+4*cb+i}, v{ACC+4*cb+i}, v{P0+4*cb+i}" for i in range(4)]
        for m in range(M):
            u, cp = m // 2, m & 1
            buf = WB0 + 8 * (m % 4); x = SLOT[u % len(SLOT)]
            extra = []
            if cp == 0:
                if u in hooks: hooks[u]()
                if u in self.p2b[:-1]:
                    a.need(vr(buf, 8))
                    self.barrier(56 + self.p2b[self.p2b.index(u) + 1] + 1, 56 + u, phase="2", gate=self.p2g.get(u))
                self.st(f"c{u}" if u in (4, 12, 20, 28, 35) else f"_c{u}")
            if len(self.p2l[u]) > cp: extra = self.a2_loads(self.p2l[u][cp])
            if u >= 18 and tail and not extra: extra = tail[:3]; tail = tail[3:]
            a.need(vr(buf, 8), vr(x[0], 4), vr(x[1], 4))
            order = ((0, 0), (0, 1), (1, 1), (1, 0)) if m < M - 1 else ((0, 1), (1, 1), (1, 0), (0, 0))
            for j, (e, t) in enumerate(order):
                d = (ACC, Q0)[t] + 4 * (2 * cp + e)
                a(M16(d, buf + 4 * e, x[t], "0" if u == 0 else d))
                self.p2_read(m + 2, j)
                if pre and (m >= M - 2 or (m >= M - 10 and j != 3)):
                    dq, ar, w, t2 = pre.pop(0); assert not tail and w["n"] < self.full and u >= 28
                    self.lds("ds_read_b64_tr_b16", vr(dq, 2), ar, w["addr"] + t2 * 2048)
                if u >= cfg.xadd_at and xq and (j == 0 or not extra): a(xq.pop(0))
                if m in xa and j == 2:
                    assert not xq
                    for f in xa.pop(m): a(f)
                if j >= 1 and extra:
                    f = extra.pop(0); a(f)
                    mm = re.match(rf"v_xor_b32 v(\d+), 0x1000, v(\d+)$", f)
                    if mm and int(mm.group(2)) in self.win: self.win[int(mm.group(1))] = self.win[int(mm.group(2))]
                if not own and m == M - 1 and j >= 2: a(f"ds_write_b128 v{T0}, {vr(Q0+4*(j-2),4)} offset:{(j-2)*1024}")
        assert not tail and not pre and not xa
        wr = [f"ds_write_b128 v{T0}, {vr(Q0+4*cb,4)} offset:{cb*1024}" for cb in range(4)]
        rd = [f"ds_read_b128 {vr(P0+4*cb,4)}, v{T0+1} offset:{cb*1024}" for cb in range(4)]
        def bar():
            self.st("_t0")
            a("s_waitcnt lgkmcnt(0)"); a.raw("    s_barrier ; compute waves only, the loaders have ended")
            self.st("_t1")
        add = lambda cb: [f"v_add_f32 v{ACC+4*cb+i}, v{ACC+4*cb+i}, v{P0+4*cb+i}" for i in range(4)] + [f"v_cvt_pk_bf16_f32 v{24+2*cb+i}, v{ACC+4*cb+2*i}, v{ACC+4*cb+2*i+1}" for i in range(2)]
        swp = lambda k: [f"v_permlane16_swap_b32 v{24+4*k}, v{26+4*k}", f"v_permlane16_swap_b32 v{25+4*k}, v{27+4*k}"]
        aux = cfg.out_aux.replace("_", " ")
        sto = lambda k: [] if cfg.fullline else [f"buffer_store_dwordx4 {vr(24+4*k,4)}, v{vR}, {srd('out')}, s99 offen offset:{64*k} {aux}"]
        if own:
            sched = {0: wr[:1], 1: wr[1:2], 2: wr[2:3], 3: wr[3:], 7: [bar] + rd, 13: add(0)[:3], 14: add(0)[3:], 15: add(1) + swp(0) + sto(0)}
            for k in range(16):
                u, cb, e = 34 + k // 8, (k % 8) // 2, k % 2
                if k == 8: self.st("c35")
                a(M16(ACC + 4 * cb, FQ[k], SLOT[u % len(SLOT)][e], ACC + 4 * cb))
                self.run_fill(list(sched.get(k, [])), 10 ** 9)
            self.run_fill(add(2) + add(3) + swp(1) + sto(1), 10 ** 9)
        else:
            self.run_fill(wr[2:] + [bar] + rd + add(0) + add(1) + swp(0) + sto(0) + add(2) + add(3) + swp(1) + sto(1), 10 ** 9)
        if cfg.fullline:
            for i in range(4): a(f"v_mov_b32 v{32+i}, v{24+i}")
            for i in range(4): a(f"v_mov_b32_dpp v{24+i}, v{28+i} row_ror:8 row_mask:0xf bank_mask:0xc")
            a(f"buffer_store_dwordx4 v[24:27], v{vR}, {srd('out')}, s99 offen {aux}")
            for i in range(4): a(f"v_mov_b32_dpp v{28+i}, v{32+i} row_ror:8 row_mask:0xf bank_mask:0x3")
            a(f"buffer_store_dwordx4 v[28:31], v{vR}, {srd('out')}, s98 offen {aux}")
        self.st("_t2")
        if cfg.diag:
            a("s_waitcnt vmcnt(0)"); self.st("end")
        self.st.flush(130, 129)
        a("s_endpgm")

class Loader:
    vX, vQ, vG, vD, vHh = 2, 4, 6, 16, 10
    vTag, vPo, vPo2, vP = 13, 14, 15, 16
    def __init__(self, a, cfg, comp):
        self.a, self.cfg, self.it, self.typ, self.bars = a, cfg, comp.it, comp.typ, comp.bars
        self.issued = 0
        self.st = Stamps(a, cfg, list(range(88, 102, 2)) + list(range(8, 36, 2)))
    def slow_poll(self, load, cmp):
        a = self.a
        C = a.newlabel("Lc"); L = a.newlabel("Lp")
        a(cmp, f"s_cbranch_vccz {C}")
        a.label(L)
        a.raw("    " + load); timeout(a); a.raw("    s_waitcnt vmcnt(0)"); a.raw("    " + cmp); a.raw(f"    s_cbranch_vccnz {L}")
        a.label(C)
    def prologue(self):
        a = self.a
        a("v_and_b32 v0, 63, v0", f"s_sub_u32 {sW}, {sW}, 4", f"s_lshl_b32 s77, {sW}, 11")
        a("v_lshrrev_b32 v21, 3, v0", "v_and_b32 v22, 7, v0", "v_lshrrev_b32 v23, 4, v0", "v_xor_b32 v24, v22, v23", "v_lshlrev_b32 v24, 4, v24")
        a(f"v_lshl_add_u32 v{self.vX}, v21, 10, v24", f"v_xor_b32 v{self.vX+1}, 64, v{self.vX}", f"v_add_u32 v{self.vX+1}, {8*1024-1024}, v{self.vX+1}")
        a(f"s_lshl_b32 s79, {sC}, 2", f"s_add_u32 s79, s79, {sW}", "s_lshl_b32 s79, s79, 15")
        a("s_movk_i32 s85, 0x3ff", f"s_lshl_b32 s84, {sROT}, 7" if self.cfg.rot else "s_mov_b32 s84, 0", "s_and_b32 s84, s84, s85", "s_add_u32 s78, s79, s84", "s_mov_b32 m0, s77")
        if self.cfg.lprio: a(f"s_setprio {self.cfg.lprio}")
        srd_const(a, "x")
        if "B1" in self.cfg.planX:
            a(f"s_lshl_b32 s76, {sW}, 3", "s_lshr_b32 s82, 0x30282008, s76", "s_and_b32 s82, s82, 0xff", "s_load_dwordx2 s[38:39], s[0:1], s82")
            a("s_lshr_b32 s82, 0x48403810, s76", "s_and_b32 s82, s82, 0xff", "s_load_dwordx2 s[86:87], s[0:1], s82", "v_mov_b32 v29, 0", "v_lshlrev_b32 v30, 21, v0")
        a("s_waitcnt lgkmcnt(0)")
        srd_base(a, "x")
    def prologue2(self):
        a = self.a
        for n in ("qkv", "gate", "up"): srd_base(a, n); srd_const(a, n)
        a(f"s_lshl_b32 s76, {sW}, 4", "v_add_u32 v21, s76, v21", f"s_lshl_b32 s80, {sI}, 7", f"s_xor_b32 s0, s80, {self.cfg.x1 << 7}", f"s_xor_b32 s1, s80, {self.cfg.x4 << 7}")
        a("v_lshlrev_b32 v25, 1, v23", "v_and_b32 v25, 2, v25", "v_xor_b32 v24, v22, v25", "v_lshlrev_b32 v24, 4, v24", "v_xor_b32 v26, 64, v24")
        for reg, st in ((self.vQ, 3072), (self.vG, 3584)):
            a(f"v_mul_u32_u24 v25, {st}, v21", f"v_add_u32 v{reg}, v25, v24", f"v_add_u32 v{reg+1}, v25, v26", f"v_add_u32 v{reg+1}, {8*st-1024}, v{reg+1}")
    def prologue3(self):
        a = self.a
        for n in ("down", "wo", "ws", "dbg"): srd_base(a, n); srd_const(a, n)
        a("v_lshlrev_b32 v25, 1, v23", "v_xor_b32 v24, v22, v25", "v_lshlrev_b32 v24, 4, v24", f"v_lshl_add_u32 v{self.vD}, v21, 10, v24",
          f"v_add_u32 v{self.vD+1}, {8*1024-1024}, v{self.vD}")
        a("v_lshrrev_b32 v25, 2, v0", f"s_lshl_b32 s76, {sW}, 5", "v_add_u32 v25, s76, v25", "v_mul_u32_u24 v25, 3584, v25", "v_and_b32 v26, 3, v0",
          "v_and_b32 v27, 2, v23", "v_xor_b32 v27, v26, v27", f"v_lshl_add_u32 v{self.vHh}, v27, 4, v25", f"v_add_u32 v{self.vHh+1}, {16*3584-1024}, v{self.vHh}")
        a("v_lshlrev_b32 v27, 4, v0")
        a(f"s_and_b32 s76, {sW}, 2", "s_lshl_b32 s76, s76, 7", f"s_and_b32 s82, {sW}, 1", "s_lshl_b32 s82, s82, 11", "s_add_u32 s76, s76, s82", f"v_lshl_add_u32 v{self.vPo}, v26, 9, s76")
        a(f"s_lshl_b32 s76, {sW}, 7", f"v_lshl_add_u32 v{self.vPo2}, v26, 9, s76")
        a(f"s_lshl_b32 s81, {sCB}, 7")
        a(f"s_mul_i32 s83, {sTB}, {36*512}", f"s_add_u32 s83, s83, {WS_FLAG:#x}")
        a("s_lshl_b32 s86, s2, 2", f"s_add_u32 s86, s86, {sW}", "s_lshr_b32 s87, s2, 3", "s_lshl_b32 s87, s87, 2", f"s_add_u32 s87, s87, {sW}", "v_lshlrev_b32 v28, 7, v0", "v_lshlrev_b32 v30, 10, v0")
        a(f"s_lshl_b32 s85, {sI}, 4", f"s_add_u32 s85, s85, {sC}", "s_mul_i32 s82, s85, 6144", f"s_add_u32 s82, s82, {WS_KV:#x}", "s_mul_i32 s85, s85, 384", f"s_add_u32 s85, s85, {WS_KV2:#x}")
        a(f"s_xor_b32 s39, {sI}, {self.cfg.x4}", "s_lshl_b32 s39, s39, 2", f"s_add_u32 s39, s39, {sW}", "s_mul_i32 s39, s39, 1536", f"s_add_u32 s39, s39, {WS_KV2:#x}")
        a("v_and_b32 v41, 15, v0", "v_lshl_add_u32 v42, v23, 7, v27", "v_mul_u32_u24 v40, 384, v23")
        a("v_lshrrev_b32 v39, 2, v0", "v_mul_u32_u24 v39, 384, v39", "v_lshl_add_u32 v39, v26, 3, v39")
        a("v_lshlrev_b32 v38, 2, v23", "v_lshl_add_u32 v38, v41, 4, v38", "v_lshlrev_b32 v37, 2, v0", "v_mov_b32 v36, 0xff")
        a(f"s_mul_i32 s76, {sW}, 576", "v_lshl_add_u32 v43, v0, 3, s76", "v_lshl_add_u32 v44, v23, 3, s76")
    def colbase(self, u): return (("s80", "s80", "s0", "s0", "s1") if self.typ == "A" else ("s80", "s80", None, "s0", "s0"))[u]
    def item(self, x, reg=None):
        a = self.a; k = x["k"]; aux = ""; rot = None
        if k == "x":
            n, t, sl = x["n"], x["t"], x["s"]
            assert x["addr"] == 8192 * (n + 1)
            a("s_addk_i32 m0, 0x2000")
            if n == 0: pass
            elif sl % 2 == 1: a("s_addk_i32 s78, 128")
            elif n == 2 and t == 1: a("s_addk_i32 s78, 0x3f80")
            else:
                if n == 10 and self.cfg.xo == 0: a("s_addk_i32 s79, 0x4000", "s_addk_i32 s84, 256")
                if n == 8 and t == 1: a("s_addk_i32 s79, 0x4000")
                a("s_addk_i32 s84, 256", "s_and_b32 s84, s84, s85", "s_add_u32 s78, s79, s84")
            a.e(f"buffer_load_dwordx4 v{self.vX}, {srd('x')}, s78 offen lds", tag=n)
            a.e(f"buffer_load_dwordx4 v{self.vX+1}, {srd('x')}, s78 offen offset:1024 lds", tag=n)
            self.issued = n + 1
            return
        elif k == "w1":
            u, i = x["u"], x["i"]
            if self.typ == "A":
                s, v, st, off = [("qkv", self.vQ, 3072, 1024), ("qkv", self.vQ, 3072, 2048), ("gate", self.vG, 3584, 16 * 128),
                                 ("up", self.vG, 3584, 16 * 128), ("qkv", self.vQ, 3072, 0)][u]
                base, rot = self.colbase(u), (i, 64 * st)
            elif u != MIXU:
                uu = u - (u > MIXU)
                s, v, base, off, rot = ("gate", "up")[uu % 2], self.vG, self.colbase(u), (uu // 2) * 8 * 128, (i, 64 * 3584)
            else:
                if i == 0: a(f"s_lshl_b32 s79, {sI}, 6")
                s, v, base, off, rot = ("gate", "up")[i // 4], self.vHh, "s79", 24 * 128, (2 * (i % 4), 64 * 3584)
        elif k == "w2":
            u = x["u"]; S, U, n = stage_of(u)
            s, v, base, off = ("down", self.vD, "s81", U * 65536) if U < 28 else ("wo", self.vD, "s81", 0)
            if self.cfg.rot2:
                a(f"s_add_u32 s84, {'s2' if self.cfg.rot2 == 1 else sCB}, {u-S}", f"s_and_b32 s84, s84, {n-1}", "s_lshl_b32 s84, s84, 16", "s_add_u32 s84, s84, s81")
                base = "s84"
            else: off += (u - S) * 65536
        if rot and self.cfg.rot:
            a(f"s_add_u32 s84, {sROT}, {rot[0]}", "s_and_b32 s84, s84, 7", f"s_mul_i32 s84, s84, {rot[1]}", f"s_add_u32 s84, s84, {base}")
            base = "s84"
        elif rot: off += rot[0] * rot[1]
        if reg is not None:
            a(f"s_add_u32 s78, {base}, {off}")
            a(f"buffer_load_dwordx4 {vr(reg,4)}, v{v}, {srd(s)}, s78 offen", f"buffer_load_dwordx4 {vr(reg+4,4)}, v{v+1}, {srd(s)}, s78 offen offset:1024")
            return
        a(f"s_add_u32 m0, s77, {x['addr']}", f"s_add_u32 s78, {base}, {off}")
        a.e(f"buffer_load_dwordx4 v{v}, {srd(s)}, s78 offen lds", tag=x["n"])
        a.e(f"buffer_load_dwordx4 v{v+1}, {srd(s)}, s78 offen offset:1024 lds", tag=x["n"])
        self.issued = x["n"] + 1
    def sub(self, loads, check, work, since):
        a = self.a
        b = Asm(); b.uid = a.uid + 1; a.uid += 10
        L, C = b.newlabel("Lr"), b.newlabel("Lc")
        b(f"s_waitcnt vmcnt({since})", *check); b(f"s_cbranch_vccz {C}")
        b.label(L); b(*loads); timeout(b); b("s_waitcnt vmcnt(0)", *check); b(f"s_cbranch_vccnz {L}")
        b.label(C); b.reset(); b("s_nop 0"); b(*work)
        return b.out
    def by_wave(self, parts):
        a = self.a; E = a.newlabel("Le")
        for w, p in enumerate(parts):
            N = a.newlabel("Ln")
            a.out += [f"    s_cmp_lg_u32 {sW}, {w}", f"    s_cbranch_scc1 {N if w + 1 < len(parts) else E}"] + p
            if w + 1 < len(parts): a.out += [f"    s_branch {E}", N + ":"]
        a.label(E); a.hist = []
    def kv(self, x):
        a, tg, ws = self.a, self.vTag, srd("ws")
        def chk(regs):
            o = [f"v_xor_b32 v32, v{tg}, v{regs[0]}"] + [f"v_bitop3_b32 v32, v32, v{r}, v{tg} bitop3:0xf6" for r in regs[1:]]
            return o + ["v_and_b32 v32, 0xff, v32", "v_cmp_ne_u32 vcc, 0, v32"]
        l1 = [y for t in range(4) for y in (f"s_add_u32 s78, s82, {t*1536}", f"buffer_load_dwordx4 {vr(64+4*t,4)}, v42, {ws}, s78 offen sc1")]
        l1z = [f"buffer_load_dword v64, v39, {ws}, s82 offen offset:256 sc1"]
        l2 = [f"buffer_load_dwordx4 v[80:83], v42, {ws}, s39 offen sc1", f"buffer_load_dwordx4 v[84:87], v40, {ws}, s39 offen offset:256 sc1"]
        if x in ("G0", "G1"):
            if x == "G0": self.by_wave([["    " + y for y in l1], ["    " + y for y in l1z]])
            else: a.out += ["    " + y for y in l2]
            self.mark = a.nvm
        elif x == "S0":
            w0 = [f"v_add_f32 v{64+r}, v{64+r}, v{68+r}" for r in range(4)] + [f"v_add_f32 v{72+r}, v{72+r}, v{76+r}" for r in range(4)] + [f"v_add_f32 v{64+r}, v{64+r}, v{72+r}" for r in range(4)]
            w0 += ["v_permlane32_swap_b32 v64, v66", "v_permlane32_swap_b32 v65, v67", "v_add_f32 v64, v64, v66", "v_add_f32 v65, v65, v67", "v_permlane16_swap_b32 v64, v65", "v_add_f32 v64, v64, v65",
                   f"v_bfi_b32 v64, v36, v{tg}, v64", f"buffer_store_dword v64, v38, {ws}, s85 offen sc1"]
            w1 = ["v_add_f32_dpp v64, v64, v64 row_ror:4 row_mask:0xf bank_mask:0xf", "v_add_f32_dpp v64, v64, v64 row_ror:8 row_mask:0xf bank_mask:0xf",
                  "v_mov_b32 v65, v64", "v_permlane32_swap_b32 v64, v65", "v_add_f32 v64, v64, v65", "v_mov_b32 v65, v64", "v_permlane16_swap_b32 v64, v65", "v_add_f32 v64, v64, v65",
                  f"v_mul_f32 v64, {f2u(LOG2E):#x}, v64", f"v_bfi_b32 v64, v36, v{tg}, v64", "s_mov_b32 exec_hi, 0", f"buffer_store_dword v64, v37, {ws}, s85 offen offset:256 sc1", "s_mov_b32 exec_hi, -1"]
            k = min(63, a.nvm - self.mark)
            self.by_wave([self.sub(l1, chk([64, 68, 72, 76]), w0, k), self.sub(l1z, chk([64]), w1, k)])
        else:
            w = [f"v_cvt_pk_bf16_f32 v{88+i}, v{80+2*i}, v{81+2*i}" for i in range(4)]
            w += [f"ds_write_b64 v43, v[88:89] offset:{OP_OFF}", f"ds_write_b64 v44, v[90:91] offset:{OP_OFF+512}"]
            a.out += self.sub(l2, chk(list(range(80, 88))), w, min(63, a.nvm - self.mark)); a.hist = []
    def sweep(self, lst, idx):
        a = self.a
        for nm, nl, base in lst:
            a(f"s_mul_i32 s76, {idx}, {nl*128}")
            if base: a(f"s_add_u32 s76, s76, {base}")
            a(f"s_mov_b64 exec, {(1 << nl) - 1:#x}", f"buffer_load_dword v{140+self.npf}, v28, {srd(nm)}, s76 offen"); self.npf += 1
        a("s_mov_b64 exec, -1")
    def action(self, x):
        a, cfg = self.a, self.cfg
        nload = f"buffer_load_dword v{self.vTag}, off, {srd('dbg')}, 0 sc1"
        need = {"U": ["PR"], "V": ["PR"], "PS": ["PR"], "P1": ["PS"], "P2": ["PS"], "P2a": ["PS"], "L": ["PS"], "R": ["PS"], "R0": ["PS"], "C": ["PS"], "N0": ["PS"], "N1": ["N0"],
                "G0": ["PS"], "G1": ["S0"], "S0": ["G0", "N1"], "S1": ["G1", "S0"], "Q": ["PS"]}
        for y in need.get(x, need.get(x[0], []) if x[0] in "UVLQ" else []): assert y in self.done, (x, "before", y)
        assert x not in self.done or x == "C", x
        assert not (x == "V2" and self.issued < 16)
        self.done.add(x)
        if x[0] == "Q":
            u = int(x[1:]); a(f"s_add_u32 s76, s83, {stage_of(u)[1]*512}", "s_mov_b64 exec, 15", self.pl(u, 99), "s_mov_b64 exec, -1")
        elif x == "P1": self.sweep((("gate", 14, 0), ("up", 14, 0), ("qkv", 12, 0)), "s86")
        elif x == "P2": self.sweep((("down", 14, 0), ("wo", 4, 0)), "s86")
        elif x == "P2a": self.sweep((("down", 8, 0),), "s86")
        elif x[0] == "L":
            k = int(x[1:]); self.sweep(((("down", 16, k << 18) if k < 7 else ("wo", 16, (k - 7) << 18)),), "s87")
        elif x in ("R", "R0"):
            for nm, nl in ((("down", 14), ("wo", 4)) if x == "R" else (("qkv", 12),)):
                a(f"s_mul_i32 s76, s87, {nl*1024}", f"s_mov_b64 exec, {(1 << nl) - 1:#x}", f"buffer_load_dword v{140+self.npf}, v30, {srd(nm)}, s76 offen offset:384"); self.npf += 1
            a("s_mov_b64 exec, -1")
        elif x[0] in "UV":
            if not hasattr(self, "split"): self.split = len(a.out)
            u = int(x[1:])
            if self.typ == "A": s_, v, st, off = [("qkv", self.vQ, 3072, 1024), ("qkv", self.vQ, 3072, 2048), ("gate", self.vG, 3584, 2048), ("up", self.vG, 3584, 2048), ("qkv", self.vQ, 3072, 0)][u]
            else: uu = u - (u > MIXU); s_, v, st, off = ("gate", "up")[uu % 2], self.vG, 3584, (uu // 2) * 1024
            if x[0] == "V":
                a(f"s_lshl_b32 s76, {sC}, 2", f"s_sub_u32 s76, s76, {sW}", f"s_mul_i32 s76, s76, {8*st}", "s_mov_b32 exec_lo, 0x01010101", "s_mov_b32 exec_hi, 0x01010101")
                if self.typ == "F" and u == MIXU:
                    a(f"s_lshr_b32 s84, {sI}, 1", "s_lshl_b32 s84, s84, 7", "s_add_u32 s76, s76, s84", f"v_add_u32 v29, s76, v{v}")
                    for s_ in ("gate", "up"):
                        a(f"buffer_load_dword v{140+self.npf}, v29, {srd(s_)}, 0 offen offset:3072"); self.npf += 1
                else:
                    a(f"s_add_u32 s76, s76, {self.colbase(u)}", f"v_add_u32 v29, s76, v{v}", f"buffer_load_dword v{140+self.npf}, v29, {srd(s_)}, 0 offen offset:{off}"); self.npf += 1
                a("s_mov_b64 exec, -1")
                return
            assert cfg.grid == 24 and not (self.typ == "F" and u == MIXU)
            a(f"s_and_b32 s76, {sC}, 7", f"s_mul_i32 s76, s76, {64*st}", f"s_add_u32 s76, s76, {self.colbase(u)}", "s_mov_b32 exec_lo, 0x01010101", "s_mov_b32 exec_hi, 0x01010101")
            for t in range(2):
                a(f"buffer_load_dword v{140+self.npf}, v{v+t}, {srd(s_)}, s76 offen offset:{off+1024*t}"); self.npf += 1
            a("s_mov_b64 exec, -1")
        elif x == "B1": a("s_mov_b64 exec, 1", "global_load_dword v138, v29, s[38:39]", "s_mov_b64 exec, -1")
        elif x == "B2": a("s_mov_b64 exec, 1", "global_load_dword v139, v29, s[86:87]", "s_mov_b64 exec, -1")
        elif x == "B3": a("s_mov_b64 exec, 62", "global_load_dword v137, v30, s[34:35]", "s_mov_b64 exec, -1")
        elif x == "PR": self.prologue2()
        elif x == "PS": assert self.issued >= 16; self.prologue3()
        elif x == "C":
            L = a.newlabel("Lpc")
            a("s_getpc_b64 s[70:71]"); a.label(L)
            a(f"s_sub_u32 s70, s70, {L}-{NAME}_kernel", "s_subb_u32 s71, s71, 0", "s_mul_i32 s76, s87, 640", "v_add_u32 v29, s76, v28", f"v_min_u32 v29, L_last-{NAME}_kernel, v29")
            a("s_mov_b64 exec, 31", f"global_load_dword v{140+self.npf}, v29, s[70:71]", "s_mov_b64 exec, -1"); self.npf += 1
        elif x[0] == "W": self.st(x + "a"); a("s_waitcnt vmcnt(0)"); self.st(x + "b")
        elif x[0] == "T": self.st(x)
        elif x == "N0": a(nload)
        elif x == "N1": self.slow_poll(nload, f"v_cmp_eq_u32 vcc, 0, v{self.vTag}")
        elif cfg.nogather and x in ("G0", "G1", "S0", "S1"): pass
        elif x in ("G0", "G1"): self.kv(x)
        elif x in ("S0", "S1"): a(f"s_setprio {cfg.gprio}"); self.kv(x); a(f"s_setprio {cfg.lprio}"); self.st("g" + x[1])
        else: raise KeyError(x)
    def run(self):
        a, cfg, it = self.a, self.cfg, self.it
        self.st("start"); self.npf = 0; self.done = set()
        if os.environ.get("ENTRY"):
            a.raw(f"    s_mov_b32 s{self.st.regs[self.st.n]}, s14"); self.st.n += 1; self.st.names.append("entry")
        spec = (cfg.planX + " " + (cfg.planA if self.typ == "A" else cfg.planF)).split()
        pol = {int(x.split(":")[0]): [int(y) for y in x.split(":")[1].split(",")] for x in cfg.polls.split()}
        for g in pol:
            if any(f"Q{g}" in y.split(",") for y in spec): pol[g] = [99]
        for bi, b in enumerate(self.bars):
            for g in b.get("gate") or []:
                for k in pol[g] if pol[g] != [99] else []: self.bars[bi - k].setdefault("poll", []).append((g, k))
        freed = 0; plan = []
        for bi, b in enumerate(self.bars):
            vP = lambda u, k: 200 + 4 * STAGES.index(u) + pol[u].index(k)
            pl = lambda u, k: f"buffer_load_dword v{vP(u, k)}, v{self.vPo2 if stage_of(u)[2] == 4 else self.vPo}, {srd('ws')}, s76 offen sc1"
            self.pl = pl
            for u, k in b.get("poll", []): a(f"s_add_u32 s76, s83, {stage_of(u)[1]*512}", "s_mov_b64 exec, 15", pl(u, k), "s_mov_b64 exec, -1")
            acts = spec[bi].split(",") if bi < len(spec) else [cfg.p2_cap]
            for x in acts + ["req"]:
                if x[0].isdigit() or x == "req":
                    depth = int(x.split("t")[1]) if "t" in x else None
                    lim = self.issued + int(x.split("t")[0]) if x != "req" else b["full"]
                    while self.issued < min(lim, len(it)):
                        y = it[self.issued]
                        if y["need"] > freed:
                            assert x != "req", ("deadlock", bi, b, y); break
                        if x == "req": print(f"  [{self.typ}] barrier {bi}: item {y['n']} issued only when required", file=sys.stderr)
                        if y["n"] == 16 and not hasattr(self, "split"): self.split = len(a.out)
                        if y["n"] in (16, 32, 56): self.st(f"i{y['n']}")
                        assert y["n"] < 16 or "PR" in self.done
                        assert y["n"] < 32 or "PS" in self.done
                        if depth: a.wait_tag(y["n"] - depth)
                        self.item(y)
                else: self.action(x)
            if b.get("op") and not cfg.nogather:
                assert "S1" in self.done
                a("s_waitcnt lgkmcnt(0)")
            for u in b.get("gate") or []:
                a(f"s_add_u32 s76, s83, {stage_of(u)[1]*512}", "s_mov_b64 exec, 15")
                assert "N1" in self.done and (pol[u] != [99] or f"Q{u}" in self.done)
                Cg = a.newlabel("Lc"); save = None
                for k in pol[u][:-1]:
                    a(f"v_cmp_ne_u32 vcc, v{self.vTag}, v{vP(u, k)}", f"s_cbranch_vccz {Cg}")
                    if save is None: save = list(a.vm)
                k = pol[u][-1]
                self.slow_poll(pl(u, k), f"v_cmp_ne_u32 vcc, v{self.vTag}, v{vP(u, k)}")
                a.label(Cg)
                if save is not None: a.vm = save
                a("s_mov_b64 exec, -1")
                self.st(f"f{u}")
            for n in range(b["full"] - 1, -1, -1):
                if any(e[1] == n for e in a.vm): a.wait_tag(n); break
            if cfg.bdiag: a.raw("    s_memtime s[68:69]")
            a("s_barrier")
            if cfg.bdiag:
                for x_ in ("s_memtime s[70:71]", "s_waitcnt lgkmcnt(0)", f"v_writelane_b32 v46, s68, {bi}", f"v_writelane_b32 v47, s70, {bi}"): a.raw("    " + x_)
            freed = b["freed"]
            plan.append(f"{bi}:{b['step']}:d{b['dur']:.0f}:f{b['full']}:i{self.issued}:{','.join(acts)}" + (f":gate{b['gate']}" if b.get("gate") else ""))
        assert self.issued == len(it)
        print(f"plan {self.typ}:", " ".join(plan), file=sys.stderr)
        self.st("end")
        if cfg.bdiag:
            a("s_lshl_b32 s76, s2, 2", f"s_add_u32 s76, s76, {sW}", "s_lshl_b32 s76, s76, 9", f"s_add_u32 s76, s76, {WS_DIAG+0x100000:#x}", "v_lshlrev_b32 v45, 2, v0")
            a(f"buffer_store_dword v46, v45, {srd('ws')}, s76 offen", f"buffer_store_dword v47, v45, {srd('ws')}, s76 offen offset:256")
        self.plan = plan
        if cfg.diag: a(f"s_add_u32 {sW}, {sW}, 4")
        self.st.flush(130, 129)
        a("s_endpgm")

NPAD = 8
def touch_code(cfg):
    if not cfg.pads: return []
    o = ["s_cmp_ge_u32 s2, 128", "s_cbranch_scc1 L_tF"]
    for typ in "AF":
        o += [f"L_t{typ}:"]
        for w in range(4):
            if w < 3: o += [f"s_cmp_lg_u32 {sW}, {w}", f"s_cbranch_scc1 L_t{typ}{w+1}"]
            o += [f"s_call_b64 s[30:31], L_pad{typ}{k}" for k in range(w, NPAD, 4)] + ["s_branch L_tdone"]
            if w < 3: o += [f"L_t{typ}{w+1}:"]
    return [x if x.endswith(":") else "    " + x for x in o[:-1] + ["L_tdone:"]]
def place(lines, cfg):
    import subprocess, tempfile
    ins = [l for l in lines if not l.strip().startswith(".")]
    labels = set(re.findall(r"\bL_\w+", "\n".join(ins))) - {l[:-1] for l in ins if l.endswith(":")}
    with tempfile.TemporaryDirectory() as d:
        open(d + "/x.s", "w").write(".text\n" + "\n".join(ins) + "\n" + "".join(x + ":\n" for x in labels) + "s_endpgm\n")
        subprocess.run(["clang", "-x", "assembler", "-target", "amdgcn-amd-amdhsa", "-mcpu=gfx950", "-c", d + "/x.s", "-o", d + "/x.o"], check=True)
        dis = subprocess.run(["llvm-objdump", "-d", "--mcpu=gfx950", d + "/x.o"], capture_output=True, text=True, check=True).stdout
    ad = [int(m, 16) for m in re.findall(r"// ([0-9A-F]{12}):", dis)]
    size = iter([y - x for x, y in zip(ad, ad[1:])])
    out = []; pos = 0; page = 1; typ = "S"; pads = dict(S=[], A=[], F=[]); prev = ""; live = True
    for l in lines:
        t = l.strip()
        if t == ".p2align 3":
            if pos % 8: out.append("    s_nop 0"); pos += 4
            continue
        if t == "L_compA:": typ = "A"
        if t == "L_compF:":
            while pos % 64: out.append("    s_nop 0"); pos += 4
            typ = "F"; live = True; n = f"L_pg{len(out)}"; pads["F"].append(n)
            out += [n + ":", "    s_setpc_b64 s[30:31]", "    s_nop 0"]; pos += 8; page = pos // 4096 + 1
        if t.endswith(":"): out.append(l); continue
        if pos >= 4096 * page - 4 and (prev.startswith("v_mfma") or pos >= 4096 * page + 40):
            if live and cfg.pads:
                n = f"L_pg{len(out)}"; pads[typ].append(n)
                out += [f"    s_branch {n}x", n + ":", "    s_setpc_b64 s[30:31]", n + "x:"]; pos += 8
            page += 1
        out.append(l); pos += next(size); prev = t
        if t == "s_endpgm": live = False
    for ty in "AF":
        p = pads["S"] + pads[ty]; assert len(p) <= NPAD, p
        if not cfg.pads: continue
        for k in range(NPAD): out = [re.sub(rf"\bL_pad{ty}{k}\b", p[min(k, len(p) - 1)], x) for x in out]
    return out

def generate(cfg):
    a = Asm()
    if os.environ.get("ENTRY"): a.raw("    s_memrealtime s[14:15]")
    a("s_cmp_ge_u32 s2, 256", "s_cbranch_scc1 L_end")
    a("s_load_dwordx16 s[16:31], s[0:1], 0", "s_load_dwordx4 s[32:35], s[0:1], 64")
    a("v_lshrrev_b32 v1, 6, v0")
    if cfg.pf_code:
        a("s_getpc_b64 s[98:99]"); a.label("L_pc")
        a("s_lshr_b32 s96, s2, 3", "s_mul_i32 s96, s96, 0x900", "v_mul_u32_u24 v2, 9, v0", "v_lshrrev_b32 v2, 1, v2", "v_and_b32 v2, 0xf80, v2", "v_add_u32 v2, s96, v2", "v_min_u32 v2, L_last-L_pc, v2")
        a.raw(f"    global_load_dword v{vNM}, v2, s[98:99]")
    a(f"v_readfirstlane_b32 {sW}, v1")
    if cfg.grid == 24:
        a("s_and_b32 s8, s2, 1", "s_bfe_u32 s9, s2, 0x20001", "s_bfe_u32 s10, s2, 0x30003", "s_lshr_b32 s11, s2, 6")
        a(f"s_lshl_b32 {sC}, s8, 3", f"s_add_u32 {sC}, {sC}, s10")
        a("s_and_b32 s12, s11, 1", f"s_lshl_b32 {sI}, s9, 1", f"s_lshl_b32 {sROT}, s8, 2", f"s_add_u32 {sROT}, {sROT}, {sI}", f"s_add_u32 {sI}, {sI}, s12")
        a(f"s_lshl_b32 {sTB}, s8, 2", f"s_add_u32 {sTB}, {sTB}, s9", f"s_lshl_b32 {sTB}, {sTB}, 2", f"s_add_u32 {sROT}, {sROT}, {cfg.rotadd}")
        if cfg.cbmap: a("s_and_b32 s12, s10, 3", f"s_add_u32 {sTB}, {sTB}, s12", f"s_bfe_u32 {sCB}, s2, 0x20005", f"s_lshl_b32 {sCB}, {sCB}, 1", "s_lshr_b32 s12, s2, 7", f"s_add_u32 {sCB}, {sCB}, s12")
        else: a(f"s_add_u32 {sTB}, {sTB}, s11", f"s_mov_b32 {sCB}, s10")
    else:
        a("s_and_b32 s8, s2, 3", "s_and_b32 s9, s2, 4", "s_bfe_u32 s10, s2, 0x20003", "s_bfe_u32 s11, s2, 0x20005")
        a(f"s_lshl_b32 {sC}, s8, 2", f"s_add_u32 {sC}, {sC}, s10", f"s_add_u32 {sI}, s9, s11")
        a("s_and_b32 s12, s11, 1", "s_lshl_b32 s12, s12, 1", f"s_add_u32 {sROT}, s9, s12")
        a(f"s_lshl_b32 {sTB}, s8, 3", f"s_add_u32 {sTB}, {sTB}, s9", "s_lshr_b32 s12, s2, 6", f"s_add_u32 {sTB}, {sTB}, s12", f"s_bfe_u32 {sCB}, s2, 0x30003")
    a(f"s_mov_b32 {sT}, {cfg.timeout}")
    a(f"s_cmp_lt_u32 {sW}, 4", "s_cbranch_scc1 L_compute")
    info = {}
    progs = {}
    for typ in "AF":
        b = Asm(); b.uid = 1000 if typ == "A" else 2000
        c = Compute(b, cfg, typ)
        (c.typeA if typ == "A" else c.typeF)()
        progs[typ] = (b, c); info["c" + typ] = c.st.names
    lds_ = {}
    for typ in "AF":
        b = Asm(); b.uid = 3000 if typ == "A" else 4000
        l = Loader(b, cfg, progs[typ][1]); l.run()
        lds_[typ] = (b, l); info["l" + typ] = l.st.names; info["plan" + typ] = l.plan; info["bdiag"] = cfg.bdiag
        nb = lambda o: sum(x.strip() == "s_barrier" for x in o)
        assert nb(b.out) == nb(progs[typ][0].out) == len(progs[typ][1].bars)
        print(f"loader {typ}: {b.count} instrs, {b.nops} nop states; compute: {progs[typ][0].count} instrs, {progs[typ][0].nops} nop states", file=sys.stderr)
    def shared(d):
        (ba, oa), (bf, of) = d["A"], d["F"]
        assert oa.split == of.split and ba.out[:oa.split] == bf.out[:of.split]
        return ba.out[:oa.split]
    Loader(a, cfg, progs["A"][1]).prologue()
    a.out += shared(lds_)
    a("s_cmp_ge_u32 s2, 128", "s_cbranch_scc1 L_loadF")
    for typ in "AF":
        b, l = lds_[typ]
        a.label("L_load" + typ); a.out += b.out[l.split:]
    a.label("L_end"); a.raw("    s_endpgm")
    c = Asm(); c.uid = 5000
    c.label("L_compute")
    Compute(c, cfg, "A").prologue()
    c.out += shared(progs)
    c("s_cmp_ge_u32 s2, 128", "s_cbranch_scc1 L_compF")
    for typ in "AF":
        b, p = progs[typ]
        c.label("L_comp" + typ); c.out += b.out[p.split:] + b.stubs
    a.raw("    .p2align 12"); a.out += place(c.out, cfg)
    a.label("L_last"); a.raw("    s_endpgm")
    head = open("cdna_kernels/" + NAME + ".s.ref").read().split("; Override launch")[0]
    txt = head + f"; @launch grid=(256,1,1) block=(512,1,1) lds={LDS_BYTES}\n"
    txt += f""".amdgcn_target "amdgcn-amd-amdhsa--gfx950"
.text
.globl {NAME}_kernel
.p2align 8
.type {NAME}_kernel,@function
{NAME}_kernel:
""" + a.text() + f"""
.section .rodata,"a"
.p2align 6
.amdhsa_kernel {NAME}_kernel
  .amdhsa_next_free_vgpr 256
  .amdhsa_next_free_sgpr 102
  .amdhsa_accum_offset 256
  .amdhsa_group_segment_fixed_size 0
  .amdhsa_kernarg_size 80
  .amdhsa_user_sgpr_count 2
  .amdhsa_user_sgpr_kernarg_segment_ptr 1
  .amdhsa_system_sgpr_workgroup_id_x 1
.end_amdhsa_kernel
"""
    return txt, info

if __name__ == "__main__":
    cfg = Cfg()
    out = sys.argv[1]
    for kv in sys.argv[2:]:
        k, v = kv.split("="); setattr(cfg, k, type(getattr(Cfg, k))(v))
    txt, info = generate(cfg)
    open(out, "w").write(txt)
    info["mode"] = cfg.diag
    import json; json.dump(info, open(out + ".json", "w"))
```

```python
import re
from probe import kd, NAME
base = open("cdna_kernels/" + NAME + ".s").read()
def mk(out, n, grid, block, lds, vg):
    main = f"; @launch kernel={NAME}_kernel grid=(256,1,1) block=(512,1,1) lds=163840"
    pr = f"; @launch kernel=probe_kernel grid=({grid},1,1) block=({block},1,1) lds={lds}"
    s = re.sub(r"; @launch grid.*", "\n".join([main] + [pr] * n), base)
    code = f".p2align 8\n.type probe_kernel,@function\nprobe_kernel:\n    s_endpgm\n"
    s = s.replace('.section .rodata,"a"', code + '.section .rodata,"a"') + kd("probe_kernel", vg)
    open(out, "w").write(s)
mk("e1.s", 20, 1, 64, 0, 32)
mk("e2.s", 20, 256, 512, 0, 32)
mk("e3.s", 20, 256, 512, 163840, 32)
mk("e4.s", 20, 256, 512, 163840, 256)
mk("e5.s", 20, 256, 256, 163840, 256)
mk("e6.s", 20, 256, 64, 163840, 256)
```

```python
import sys, os, struct, re
from asmb import Asm

NAME = "parallel_sum__linear_attn_block__swiglu_ffn__prompt"

class Cfg:
    diag = 0
    bdiag = 0
    timeout = 400000
    round_ln = 1
    rot = 1
    rot2 = 0
    pf_code = 1
    pf_tlb = 0
    nofill = 0
    cprio = 1
    lprio = 0
    gprio = 2
    xgroups = "2,6,8,10"
    grid = 24
    xo = 0
    mixu = 2
    xv = 1
    xA = 13
    xpu = 5
    prearly = 0
    xpre = 4
    pro2_at = 0
    xlate = "3:13,5:16"
    op_at = 146
    frate = 60
    ack = 50
    h1_dl = 308
    h2_dl = 418
    kvb = 17
    scr_need = 32
    scr_rel = 36
    kvw_gap = 266
    hA_dl = 537
    hA_gap = 586
    u4kA = 0
    u4kF = 0
    finF = 1
    finA = 0
    late_at = 4
    gate0_at = 146
    gate8_at = 999
    gate12_at = 999
    n_preA = 5
    n_preF = 5
    preA_gap = 588
    preF_gap = 588
    pre_step = 10
    n_epi = 1
    n_epiF = 0
    D = 5
    p2_lastA = 19
    p2_lastF = 18
    D2 = 4
    d_sw = 21
    g28_u = 25
    p2_fin = 27
    p2_bar = 1
    p2_first = 3
    p2_cap = "1"
    polls = "0:1 8:2,0 12:3 20:3 28:0"
    nogather = 0
    pads = 1
    PD = 3
    xadd_at = 6
    x1 = 1
    x4 = 4
    rotadd = 2
    cbmap = 1
    own = 2
    fullline = 0
    barsA = "8,20,34,50,66,82,98,114,130,146"
    barsF = "8,18,34,50,66,82,98,114,130,146"
    out_aux = "sc1"
    planX = "7,PR,PS 3 3 2 2,U0 V1,2 4 4 6"
    planA = "N0,U2,U3,U4,P2 5 8,N1 R 4 5 G0,S0,4 5,G1 Q0,S1,3 9,Q8 6"
    planF = "V2,2,V3,U4,P2 2,N0 6 8,N1 6,R 3 Q0,5 4 4,Q8 1 4"

ZR_OFF, OP_OFF = 0, 1024
LDS_BYTES = 163840
WS_KV2 = 0x1d0000
WS_FLAG, WS_KV, WS_A2, WS_DIAG, WS_SIZE = 0x1000, 0x100000, 0x200000, 0x1000000, 0x2000000
sC, sI, sTB, sCB, sW, sROT = "s4", "s5", "s6", "s7", "s3", "s36"
sT = "s37"
SRD = dict(x=40, qkv=44, gate=48, up=52, down=56, wo=60, ws=64, out=68, dbg=72)
PTR = dict(x=16, qkv=18, wo=20, gate=24, up=26, down=28, out=30, dbg=32, ws=34)
SIZE = dict(x=2097152, qkv=1572864, wo=524288, gate=1835008, up=1835008, down=1835008, out=2097152, dbg=256, ws=WS_SIZE)
def srd(n): return f"s[{SRD[n]}:{SRD[n]+3}]"
def mk_srd(a, n):
    b = SRD[n]
    a(f"s_mov_b32 s{b}, s{PTR[n]}", f"s_mov_b32 s{b+1}, s{PTR[n]+1}", f"s_mov_b32 s{b+2}, {SIZE[n]:#x}", f"s_mov_b32 s{b+3}, 0x20000")
LOG2E = 1.4426950408889634
def f2u(x): return struct.unpack('<I', struct.pack('<f', x))[0]
def srd_const(a, n): a(f"s_mov_b32 s{SRD[n]+2}, {SIZE[n]:#x}", f"s_mov_b32 s{SRD[n]+3}, 0x20000")
def srd_base(a, n): a(f"s_mov_b64 s[{SRD[n]}:{SRD[n]+1}], s[{PTR[n]}:{PTR[n]+1}]")
def vr(b, n=1): return f"v{b}" if n == 1 else f"v[{b}:{b+n-1}]"
M16 = lambda d, x, y, c: f"v_mfma_f32_16x16x32_bf16 {vr(d,4)}, {vr(x,4)}, {vr(y,4)}, {c if isinstance(c, str) else vr(c,4)}"

STG = ((0, 0, 8), (8, 24, 4), (12, 16, 8), (20, 8, 8), (28, 28, 8))
STAGES = tuple(x[0] for x in STG)
def stage_of(j): return max(x for x in STG if x[0] <= j)
MIXU = 2
def xord(cfg):
    if cfg.xo == 0: return [(0, 0), (0, 1), (1, 0), (1, 1)] + [(0, s) for s in range(2, 8)] + [(1, s) for s in range(2, 8)]
    return [(t, s) for t in range(2) for s in range(8)]
def make_items(cfg, typ):
    it = []
    for i, (t, s) in enumerate(xord(cfg)): it.append(dict(k="x", s=s, t=t, rel=i + 1))
    for u in range(5):
        for i in range(8): it.append(dict(k="w1", u=u, i=i, rel=17 + 8 * u + i))
    for u in range(36): it.append(dict(k="w2", u=u, rel=57 + u))
    free = [(0, p) for p in range(1, 20)] + ([(0, 20)] if typ == "F" else [])
    scr = []
    for n, x in enumerate(it):
        free.sort()
        while typ == "A" and len(scr) < 2 and free[0][0] >= cfg.scr_need - 1:
            need, p = free.pop(0); assert need <= cfg.scr_need
            scr.append(8192 * p); free.append((cfg.scr_rel, p)); free.sort()
        need, p = free.pop(0)
        assert need < x["rel"], (n, x, need)
        x["need"] = need; x["n"] = n; x["addr"] = 8192 * (p % 20)
        free.append((x["rel"], p))
    return it, scr

class Stamps:
    def __init__(self, a, cfg, regs):
        self.a, self.on, self.regs, self.n, self.names = a, cfg.diag, regs, 0, []
    def __call__(self, name):
        if not self.on: return
        sel = os.environ.get("STAMPS")
        if sel is None:
            if name.startswith("_"): return
        elif name not in sel.split(",") + ["start", "end"]: return
        r = self.regs[self.n]
        self.a.raw(f"    {'s_memrealtime' if self.on == 1 else 's_memtime'} s[{r}:{r+1}]")
        self.n += 1; self.names.append(name)
        if os.environ.get("BOTH"):
            r = self.regs[self.n]
            self.a.raw(f"    s_memtime s[{r}:{r+1}]")
            self.n += 1; self.names.append(name + "c")
    def flush(self, vt, vz):
        if not self.on: return
        a = self.a
        a("s_waitcnt lgkmcnt(0)")
        a("s_lshl_b32 s76, s2, 3", f"s_add_u32 s76, s76, {sW}", "s_lshl_b32 s76, s76, 7", f"s_add_u32 s76, s76, {WS_DIAG:#x}")
        a(f"v_mov_b32 v{vz}, 0", "s_mov_b64 exec, 1")
        for i in range(self.n):
            a(f"v_mov_b32 v{vt+i}, s{self.regs[i]}")
            a(f"buffer_store_dword v{vt+i}, v{vz}, {srd('ws')}, s76 offen offset:{4*i}")

def timeout(a):
    a.raw(f"    s_sub_u32 {sT}, {sT}, 1")
    a.raw("    s_cbranch_scc1 L_end")

X0, P0, Q0, K0, WB0 = 128, 64, 96, 56, 24
vA, vH, vL16, vR, vNM, vTag, vFl, T0, ONES = 1, 5, 7, 8, 9, 10, 11, 12, 20
sC2, sHI, sIC, sEPSC = "s38", "s39", "s76", "s77"
sCC = "s36"
sA2, sFL, sKV, sTmp = "s78", "s79", "s80", "s81"
sM1, sM2, sM3 = "s[82:83]", "s[84:85]", "s[86:87]"
def XF(t, s): return X0 + 64 * t + 4 * s
ACC, XRAW = Q0 + 16, K0
SLOTQ = [((0, 0), (0, 1)), ((0, 2), (0, 3)), ((0, 4), (1, 4)), ((0, 5), (1, 5)), ((0, 6), (1, 6)), ((0, 7), (1, 7)), ((1, 0), (1, 1)), ((1, 2), (1, 3))] + [((0, s), (1, s)) for s in range(8, 16)]
SLOT = [(XF(*a), XF(*b)) for a, b in SLOTQ]

class Compute:
    def __init__(self, a, cfg, typ):
        self.a, self.cfg, self.typ = a, cfg, typ
        self.it, self.scr = make_items(cfg, typ)
        self.bars = []; self.full = 0; self.freed = 0; self.mark = 0; self.cur = -1
        self.win = {}
        self.u4k = cfg.u4kA if typ == "A" else cfg.u4kF
        self.SQ = [((0, s), (1, s)) for s in range(16)] if (self.u4k or (typ == 'F' and MIXU == 4)) else SLOTQ
        self.SL = [(XF(*x), XF(*y)) for x, y in self.SQ]
        self.st = Stamps(a, cfg, list(range(48, 64, 2)) + list(range(20, 36, 2)))
    def find(self, **kw):
        for x in self.it:
            if all(x.get(k) == v for k, v in kw.items()): return x
        raise KeyError(kw)
    def barrier(self, full, freed, extra=0, **kw):
        slots = pipe = 0
        for l in self.a.out[self.mark:]:
            l = l.strip()
            if l.endswith(":") or l.startswith("."): continue
            if l.startswith("v_mfma"): slots += 2; pipe += 32 if "32x32" in l else 16
            elif l.startswith(("v_exp", "v_rcp", "v_sqrt", "v_rsq")): slots += 2
            else: slots += 1
        self.a("s_barrier"); self.mark = len(self.a.out)
        self.full = max(self.full, full); self.freed = max(self.freed, freed)
        self.bars.append(dict(full=self.full, freed=self.freed, dur=max(4.2 * slots, pipe) + 40 + extra, step=self.cur, **kw))
    def lds(self, op, dst, areg, addr):
        w = self.win.setdefault(areg, 0)
        if not (0 <= addr - w <= 65535):
            nw = addr & ~8191
            self.a(f"v_add_u32 v{areg}, {(nw - w) & 0xffffffff:#x}, v{areg}")
            self.win[areg] = w = nw
        self.a(f"{op} {dst}, v{areg} offset:{addr - w}")

    def geom(self, n):
        u, ks = divmod(n, 32)
        if self.typ == "F" and u == MIXU == 4 and ks >= 16: return 4 + (ks % 16) // 4, 2 + ks % 2, 2 * ((ks % 16) // 2), False
        if u == 0 or (u == 4 and self.u4k): return ks // 4, ks % 4, 2 * (ks // 4), False
        if self.typ == "F" and u == MIXU: return 4 * (ks // 16) + (ks % 8) // 2, ks // 8, 2 * (ks % 8), ks % 2 == 1
        i = 4 * (ks // 16) + ks % 4
        return i, (ks % 16) // 4, 2 * i, ks % 2 == 1
    def accreg(self, u, cb, t):
        return (P0 if u % 2 == 0 else Q0) + (8 * cb + 4 * t if (self.typ == "A" and u < 2) else 16 * t + 4 * cb)
    def comp(self, u, cb): return 4 * max(n for n in range(32 * u, 32 * u + 32) if self.geom(n)[1] == cb) + 8
    def first(self, u, cb): return 4 * min(n for n in range(32 * u, 32 * u + 32) if self.geom(n)[1] == cb) - 1
    def xdead(self, s): return 4 * max(n for n in range(128, 160) if self.geom(n)[2] == (s & ~1)) + 4
    def step(self, n):
        u = n // 32; i, cb, s0, flip = self.geom(n)
        buf = WB0 + 8 * (n % 4)
        it = self.it[self.item_of(n)]
        if self.typ == "F" and u == MIXU:
            rd = [(buf + 4 * e + 2 * t2, vH + cb % 2, it["addr"] + ((s0 + e) % 4) * 2048 + t2 * 1024) for e in range(2) for t2 in range(2)]
        else:
            rd = [(buf + 4 * e + 2 * t2, vA + cb, it["addr"] + e * 4096 + t2 * 2048) for e in range(2) for t2 in range(2)]
        nt = self.typ == "A" and u < 2
        mf = []
        for k, (e, t) in enumerate(((0, 1), (1, 1), (1, 0), (0, 0)) if flip else ((0, 0), (1, 0), (1, 1), (0, 1))):
            d = self.accreg(u, cb, t); w, x = buf + 4 * e, XF(t, s0 + e)
            mf.append(M16(d, x if nt else w, w if nt else x, "0" if (s0 == 0 and k % 2 == 0) else d))
        return dict(it=it, rd=rd, mf=mf, buf=buf)
    @property
    def BARS(self):
        return [int(x) for x in (self.cfg.barsA if self.typ == "A" else self.cfg.barsF).split(",")]
    def item_of(self, n): return 16 + 8 * (n // 32) + self.geom(n)[0]
    def freed_at(self, n):
        return min([self.item_of(m) for m in range(n + 1, 160)] + [56])
    def read(self, n, j):
        if n >= 160: return
        s = self.step(n)
        if j == 0 and n in self.BARS:
            nxt = min([b for b in self.BARS if b > n] + [160])
            self.barrier(max(self.item_of(m) for m in range(n, nxt)) + 1, self.freed_at(self.arrived), op=(self.typ == "A" and n == self.cfg.op_at),
                         gate=[g for g, at in ((0, self.cfg.gate0_at), (8, self.cfg.gate8_at), (12, self.cfg.gate12_at)) if at == n])
        assert s["it"]["n"] < self.full, (n, self.full)
        d, r, ad = s["rd"][j]
        self.lds("ds_read_b64_tr_b16", vr(d, 2), r, ad)
    def need_step(self, n):
        if self.cfg.PD == 3 and n % 2 == 0: n += 1
        self.a.need(vr(WB0 + 8 * (n % 4), 8)); self.arrived = n
    def cost(self, f):
        if isinstance(f, tuple) and f[0] in ("gap", "dl"): return 0
        if callable(f) and getattr(f, "free", False): return 0
        if isinstance(f, str) and f.startswith(("v_exp", "v_rcp", "v_mfma")): return 2
        return 1
    def run_fill(self, fl, budget):
        used = 0
        while fl and used < budget:
            f = fl[0]
            if isinstance(f, tuple) and f[0] == "gap":
                if self.gap < f[1]: break
                fl.pop(0); continue
            if isinstance(f, tuple) and f[0] == "dl": fl.pop(0); continue
            fl.pop(0); used += self.cost(f)
            if callable(f): f()
            elif isinstance(f, tuple): self.a.e(f[0], tag=f[1])
            else: self.a(f)
        return used
    def units(self, fl, side):
        fl = list(fl); side = list(side); credit = 0.0
        for n in range(32, 160):
            s = self.step(n); self.cur = n
            if n % 32 == 0: self.st(f"u{n//32}")
            self.need_step(n)
            for j in range(4):
                self.gap = 4 * n + j
                self.a(s["mf"][j])
                self.read(n + self.cfg.PD, j)
                rate = self.cfg.frate / 100; c = 0
                for f in fl:
                    if isinstance(f, tuple) and f[0] == "dl":
                        assert c == 0 or f[1] >= self.gap, ("deadline missed", f, self.gap)
                        if c: rate = max(rate, c / max(0.5, f[1] - self.gap - 0.5))
                    c += self.cost(f)
                credit = min(credit + rate, rate + 1.5)
                credit -= 0.7 * self.run_fill(side, 1)
                credit -= self.run_fill(fl, credit - 0.5)
        self.gap = 10 ** 9
        if side: print(f"  [{self.typ}] {len(side)} side fillers left over", file=sys.stderr)
        self.run_fill(side, 10 ** 9)
        return fl

    def f_silu(self, quads):
        fl = []
        for k, q in enumerate(quads):
            t = T0 + (k % 2) * 4
            fl += [f"v_exp_f32_e64 v{t+i}, -v{q+i}" for i in range(4)]
            fl += [f"v_fma_f32 v{t+i}, v{t+i}, {sC2}, {sC2}" for i in range(4)]
            fl += [f"v_rcp_f32 v{t+i}, v{t+i}" for i in range(4)]
            fl += [f"v_mul_f32 v{q+i}, v{q+i}, v{t+i}" for i in range(4)]
        return fl
    def f_phi(self, quads, packs):
        fl = []
        for k, (q, p) in enumerate(zip(quads, packs)):
            t = T0 + (k % 2) * 4
            fl += [f"v_exp_f32_e64 v{t+i}, v{q+i} clamp" for i in range(4)]
            fl += [f"v_max_f32 v{q+i}, {sEPSC}, v{q+i}" for i in range(4)]
            fl += [f"v_fmac_f32 v{t+i}, {sIC}, v{q+i}" for i in range(4)]
            fl += [f"v_cvt_pk_bf16_f32 v{p+i}, v{t+2*i}, v{t+2*i+1}" for i in range(2)]
        return fl
    def f_h(self, dst, src, soff, off, tag):
        mul = []; out = []
        for t in range(2):
            d = dst + 16 * t
            mul += [f"v_mul_f32 v{d+i}, v{d+i}, v{src+16*t+i}" for i in range(8)]
            out += [f"v_cvt_pk_bf16_f32 v{d+i}, v{d+2*i}, v{d+2*i+1}" for i in range(4)]
            out += [(f"buffer_store_dwordx4 {vr(d,4)}, v{vL16}, {srd('ws')}, {soff} offen offset:{off+t*1024} sc1", tag)]
        return mul, out
    def flag(self, U, tag):
        a = self.a
        a(f"s_add_u32 {sTmp}, {dict(h1=sFL, h='s45', h3='s45', o='s47')[tag]}, {U*512}")
        self.st("_w" + tag); a.wait_tag(tag); self.st("_d" + tag)
        a(f"buffer_store_dword v{vTag}, v{vFl}, {srd('ws')}, {sTmp} offen sc1")
    def f_nonce(self):
        a = self.a
        def chk():
            L = a.newlabel("Ln"); C = a.newlabel("Lc")
            a(f"v_cmp_eq_u32 vcc, 0, v{vTag}")
            a(f"s_cbranch_vccnz {L}")
            a.label(C)
            a.stubs += [f"{L}:", f"    buffer_load_dword v{vTag}, off, {srd('dbg')}, 0 sc1", f"    s_sub_u32 {sT}, {sT}, 1", "    s_cbranch_scc1 L_end",
                        "    s_waitcnt vmcnt(0)", f"    v_cmp_eq_u32 vcc, 0, v{vTag}", f"    s_cbranch_vccnz {L}", f"    s_branch {C}"]
        return f"buffer_load_dword v{vTag}, off, {srd('dbg')}, 0 sc1", chk

    def prologue(self):
        a, cfg = self.a, self.cfg
        a("v_and_b32 v0, 63, v0")
        if cfg.cprio: a(f"s_setprio {cfg.cprio}")
        a(f"v_lshlrev_b32 v{vL16}, 4, v0")
        a("v_and_b32 v12, 15, v0", "v_lshrrev_b32 v13, 4, v0", "v_lshrrev_b32 v14, 1, v12", "v_xor_b32 v14, v13, v14", "v_lshlrev_b32 v14, 4, v14",
          "v_lshl_add_u32 v14, v12, 7, v14", f"s_lshl_b32 {sTmp}, {sW}, 11", f"v_add_u32 v{P0}, {sTmp}, v14", f"v_xor_b32 v{P0+1}, 64, v{P0}")
        for i in range(4): a(f"v_mov_b32 v{ONES+i}, 0x3f803f80")
        a("v_and_b32 v14, 31, v0", "v_lshrrev_b32 v15, 5, v0", "v_lshlrev_b32 v15, 3, v15", "v_sub_u32 v15, v14, v15")
        a("v_and_b32 v16, 1, v15", "v_lshlrev_b32 v16, 4, v16", "v_mov_b32 v17, 0x3f80", "v_lshlrev_b32 v16, v16, v17", "v_lshrrev_b32 v15, 1, v15")
        for t in range(8):
            a(f"v_cmp_eq_u32 vcc, {t if t < 4 else t + 4}, v15", f"v_cndmask_b32 v{K0+t}, 0, v16, vcc")
        a("s_waitcnt lgkmcnt(0)")
        for n in ("ws", "out", "dbg", "x"): srd_base(a, n); srd_const(a, n)
        L = "L_tag0"
        a(f"s_or_b32 s0, s2, {sW}", "s_cmp_lg_u32 s0, 0", f"s_cbranch_scc1 {L}")
        a.raw(f"    buffer_load_dword v{vTag}, off, {srd('ws')}, 0 sc1")
        a.label(L)
        a("v_lshlrev_b32 v14, 2, v13", "v_sub_u32 v14, v12, v14")
        for i in range(4): a(f"v_cmp_eq_u32 s[{88+2*i}:{89+2*i}], {i}, v14")
        a(f"s_mov_b32 {sC2}, {f2u(LOG2E**2):#x}", f"s_mov_b32 {sIC}, {f2u(1/LOG2E):#x}", f"s_mov_b32 {sHI}, 0xffff0000", f"s_mov_b32 {sEPSC}, {f2u(1e-6*LOG2E):#x}", f"s_mov_b32 {sCC}, {f2u(LOG2E):#x}")
        a("v_lshrrev_b32 v15, 5, v0", "v_bfe_u32 v16, v0, 2, 2", "v_lshl_add_u32 v16, v15, 2, v16", "v_and_b32 v17, 1, v13", "v_lshl_add_u32 v16, v17, 3, v16")
        a("v_and_b32 v18, 3, v0", "v_lshlrev_b32 v18, 3, v18", "v_lshl_add_u32 v19, v16, 6, v18", f"v_lshl_add_u32 v{vH}, v17, 5, v19", f"v_xor_b32 v{vH+1}, 32, v{vH}")
        a("v_lshl_add_u32 v19, v16, 7, v18", "v_bfe_u32 v18, v0, 3, 2", f"v_lshl_add_u32 v{vA}, v18, 5, v19")
        for cb in range(1, 4): a(f"v_xor_b32 v{vA+cb}, {cb*32}, v{vA}")
        a("v_lshlrev_b32 v18, 2, v0", f"v_lshl_add_u32 v{vFl}, v15, 30, v18")
    def prologue2(self):
        a, cfg = self.a, self.cfg
        a(f"s_lshr_b32 {sTmp}, {sW}, 1", f"s_lshl_b32 {sA2}, {sC}, 1", f"s_add_u32 {sA2}, {sA2}, {sTmp}", f"s_mul_i32 {sA2}, {sA2}, 36",
          f"s_add_u32 {sA2}, {sA2}, {sI}", f"s_lshl_b32 {sA2}, {sA2}, 1", f"s_and_b32 {sTmp}, {sW}, 1", f"s_add_u32 {sA2}, {sA2}, {sTmp}")
        a(f"s_lshl_b32 {sFL}, {sA2}, 8", f"s_add_u32 {sFL}, {sFL}, {WS_FLAG:#x}", f"s_lshl_b32 {sA2}, {sA2}, 12", f"s_add_u32 {sA2}, {sA2}, {WS_A2:#x}")
        for r, x in ((44, cfg.x1), (46, cfg.x4)):
            a(f"s_xor_b32 s96, {sI}, {x}", f"s_sub_u32 s96, s96, {sI}", "s_lshl_b32 s97, s96, 13", f"s_add_u32 s{r}, {sA2}, s97", "s_lshl_b32 s97, s96, 9", f"s_add_u32 s{r+1}, {sFL}, s97")
        a(f"s_mul_i32 s96, {sTB}, {36*8192}", f"s_add_u32 s96, s96, {WS_A2:#x}")
        for j in range(12):
            if cfg.rot2: a(f"s_add_u32 s97, {'s2' if cfg.rot2 == 1 else sCB}, {j%8}", f"s_and_b32 s97, s97, {7 if j < 8 else 3}", "s_lshl_b32 s97, s97, 13", f"s_add_u32 s{8+j}, s96, s97")
            else: a(f"s_add_u32 s{8+j}, s96, {(j%8)*8192}")
        a(f"s_lshl_b32 s99, {sTB}, 2", f"s_add_u32 s99, s99, {sW}", "s_lshl_b32 s99, s99, 14", f"s_lshl_b32 s97, {sCB}, 7", "s_add_u32 s99, s99, s97")
        a("s_mov_b32 s82, 0xffff0000", "s_mov_b32 s83, 0", "s_mov_b32 s84, 0", "s_mov_b32 s85, 0xffff", "s_mov_b32 s86, 0", "s_mov_b32 s87, 0xffff0000")
        a(f"s_lshl_b32 {sKV}, {sI}, 2", f"s_add_u32 {sKV}, {sKV}, {sW}", f"s_lshl_b32 {sKV}, {sKV}, 6", f"s_add_u32 {sKV}, {sKV}, {sC}",
          f"s_mul_i32 {sKV}, {sKV}, 384", f"s_add_u32 {sKV}, {sKV}, {WS_KV:#x}")
        pA, pB = make_items(cfg, "A")[1]
        a(f"s_mov_b32 s97, {pA}", f"s_mov_b32 s98, {pB}", f"s_cmp_lt_u32 {sW}, 2", "s_cselect_b32 s97, s97, s98", f"s_and_b32 s98, {sW}, 1", "s_lshl_b32 s98, s98, 12", "s_add_u32 s97, s97, s98")
        a(f"s_lshr_b32 s96, {sI}, 1", f"s_sub_u32 s96, s96, {sI}", "s_add_u32 s96, s96, 24", "s_lshl_b32 s96, s96, 2", f"s_and_b32 s98, {sI}, 1", "s_add_u32 s96, s96, s98",
          "s_lshl_b32 s100, s96, 11", f"s_add_u32 s100, s100, {sA2}", "s_lshl_b32 s101, s96, 7", f"s_add_u32 s101, s101, {sFL}")
    def tag_publish(self):
        a = self.a
        L = "L_tag1"
        a("s_cmp_lg_u32 s0, 0", f"s_cbranch_scc1 {L}")
        for x in ("s_waitcnt vmcnt(0)", f"v_add_u32 v{vTag}, 0x9e377902, v{vTag}", f"v_or_b32 v{vTag}, 0x80000000, v{vTag}", "s_mov_b64 exec, 1",
                  f"buffer_store_dword v{vTag}, off, {srd('dbg')}, 0 sc1", f"buffer_store_dword v{vTag}, off, {srd('ws')}, 0 sc1", "s_mov_b64 exec, -1"):
            a.raw("    " + x)
        a.label(L)
    def stats_fin(self, S1, S2, R):
        t = T0
        fl = [f"v_cndmask_b32 v{t+2}, 0, v{S2}, s[88:89]"] + [f"v_cndmask_b32 v{t+2}, v{t+2}, v{S2+i}, s[{88+2*i}:{89+2*i}]" for i in range(1, 4)]
        fl += [f"v_mov_b32 v{t+3}, v{t+2}", f"v_mul_f32 v{t}, 0x3b000000, v{S1}", f"v_mul_f32 v{t+1}, v{t}, v{t}", f"v_permlane32_swap_b32 v{t+2}, v{t+3}", f"v_add_f32 v{t+2}, v{t+2}, v{t+3}",
               f"v_mov_b32 v{t+3}, v{t+2}", f"v_permlane16_swap_b32 v{t+2}, v{t+3}", f"v_add_f32 v{t+2}, v{t+2}, v{t+3}"]
        fl += [f"v_mul_f32 v{t+2}, 0x3b000000, v{t+2}", f"v_sub_f32 v{t+2}, v{t+2}, v{t+1}", f"v_max_f32 v{t+2}, 0, v{t+2}"]
        if self.cfg.round_ln:
            fl += [f"v_cvt_pk_bf16_f32 v{t+1}, v{t}, v{t+2}", f"v_and_b32 v{t+2}, {sHI}, v{t+1}", f"v_lshlrev_b32 v{t}, 16, v{t+1}",
                   f"v_add_f32 v{t+2}, 0x3727c5ac, v{t+2}", f"v_cvt_pk_bf16_f32 v{t+2}, v{t+2}, v{t+2}", f"v_lshlrev_b32 v{t+2}, 16, v{t+2}",
                   f"v_sqrt_f32 v{t+2}, v{t+2}", f"v_cvt_pk_bf16_f32 v{t+2}, v{t+2}, v{t+2}", f"v_lshlrev_b32 v{t+2}, 16, v{t+2}", f"v_rcp_f32 v{R}, v{t+2}"]
        else:
            fl += [f"v_add_f32 v{t+2}, 0x3727c5ac, v{t+2}", f"v_rsq_f32 v{R}, v{t+2}"]
        fl += [f"v_mul_f32 v{R}, {sCC}, v{R}", f"v_mul_f32_e64 v{R+1}, -v{t}, v{R}"]
        return fl
    def unpack(self, t, p, buf=None):
        d = vr(Q0 + 16 * (p % 2) if buf is None else buf, 16)
        return [f"v_mfma_f32_32x32x16_bf16 {d}, {vr(K0,4)}, {vr(XF(t,2*p),4)}, 0",
                f"v_mfma_f32_32x32x16_bf16 {d}, {vr(K0+4,4)}, {vr(XF(t,2*p+1),4)}, {d}"]
    def f_center(self, t, p):
        d = Q0 + 16 * (p % 2); fl = []; R = vR if t else T0 + 4
        for g in range(0, 16, 4):
            fl += [f"v_fma_f32 v{d+g+i}, v{d+g+i}, v{R}, v{R+1}" for i in range(4)]
            fl += [f"v_cvt_pk_bf16_f32 v{XF(t,2*p)+g//2+i}, v{d+g+2*i}, v{d+g+2*i+1}" for i in range(2)]
        return fl
    def xphase(self):
        a, cfg = self.a, self.cfg
        S = P0 + 4
        done = [0]
        B0 = [XF(1, 4), XF(1, 8), XF(1, 12), WB0, WB0 + 16, Q0 + 16, Q0, Q0 + 16]
        B1 = [WB0, WB0 + 16, Q0, Q0 + 16]
        def group(g):
            self.barrier(g[-1] + 1, done[0], phase="x")
            mf = []
            for i in g:
                t, s = xord(cfg)[i]
                for e in range(2):
                    x, k = XF(t, 2 * s + e), 2 * s + e
                    self.lds("ds_read_b128", vr(x, 4), P0 + e, self.it[i]["addr"])
                    mf += [M16(S + 8 * t, ONES, x, "0" if k == 0 else S + 8 * t), M16(S + 8 * t + 4, x, x, "0" if k == 0 else S + 8 * t + 4)]
            return mf
        if cfg.pro2_at == 0: self.prologue2()
        a.out += touch_code(cfg)
        ends = [0] + [int(x) for x in cfg.xgroups.split(",")]
        for gi in range(len(ends) - 1):
            g = list(range(ends[gi], ends[gi + 1]))
            mf = group(g)
            if gi == 0: self.st("x0")
            for m in mf: a(m)
            if cfg.xv:
                for i in g:
                    t, p = xord(cfg)[i]
                    if t == 0 and p < cfg.xpu: a(*self.unpack(0, p, B0[p]))
            if gi == 0:
                for m in ([] if cfg.xv else self.unpack(0, 0) + self.unpack(0, 1)): a(m)
                a("s_waitcnt vmcnt(0)"); self.tag_publish()
                if cfg.pro2_at == 1: self.prologue2()
            done[0] = g[-1] + 1
        self.st("_x4")
        def under(chain, ms):
            ms = list(ms)
            for k, f in enumerate(chain):
                if ms and k % 7 == 0: a(ms.pop(0))
                a(f)
            a(*ms)
        under(self.stats_fin(S, S + 4, T0 + 4), [m for p in range(cfg.xpu, 7) for m in self.unpack(0, p, B0[p])] if cfg.xv else [])
        if cfg.xv:
            assert cfg.xo == 0 and cfg.xpre >= 4 and ends[-1] == 10
            pk = lambda d, R: [f"v_pk_fma_f32 {vr(d+2*i,2)}, {vr(d+2*i,2)}, {vr(R,2)}, {vr(R,2)} op_sel:[0,0,1] op_sel_hi:[1,0,1]" for i in range(8)]
            cv = lambda t, p, d: [f"v_cvt_pk_bf16_f32 v{XF(t,2*p)+i}, v{d+2*i}, v{d+2*i+1}" for i in range(8)]
            a.raw("    .p2align 3")
            for p in range(7): a(*(pk(B0[p], T0 + 4) + (cv(0, p, B0[p]) if p < 3 else [])))
            sA = group(list(range(10, cfg.xA)))
            V = [(x, -1) for p in (5, 3, 4, 6) for x in cv(0, p, B0[p])] + [(x, 1) for x in self.f_center(0, 7)]
            M = [(x, 8) for x in self.unpack(0, 7, B0[7])] + [(x, 16) for x in self.unpack(1, 0, B1[0])] + [(x, 24) for x in self.unpack(1, 1, B1[1])]
            M += [(x, 0) for x in sA]
            a.raw("    .p2align 3")
            t = free = 0; vi = mi = 0; fin_ = {-1: 0}
            while vi < len(V) or mi < len(M):
                mok = mi < len(M) and M[mi][1] <= vi
                vok = vi < len(V) and V[vi][1] < mi
                if mok and (free <= t + 2 or not vok or fin_[V[vi][1]] > t):
                    if M[mi][0] is sA[0]: a.wait(lg=0); a.raw("    .p2align 3")
                    a(M[mi][0]); st_ = max(t, free); t = st_ + 8; free = st_ + (32 if "32x32" in M[mi][0] else 16); fin_[mi] = free + 24; mi += 1
                else: a(V[vi][0]); t += 4.2; vi += 1
            done[0] = cfg.xA
            sB = group(list(range(cfg.xA, 16))); self.st("_x7")
            a(*self.unpack(1, 2, B1[2])); a(*sB); under(self.stats_fin(S + 8, S + 12, vR), self.unpack(1, 3, B1[3]))
            a.raw("    .p2align 3")
            for p in range(4): a(*pk(B1[p], vR))
            up = self.unpack(1, 4)
            seq = cv(1, 2, B1[2]) + up[:1] + cv(1, 0, B1[0]) + up[1:] + cv(1, 1, B1[1]) + cv(1, 3, B1[3])
            for q in range(4, cfg.xpre):
                c = self.f_center(1, q); up = self.unpack(1, q + 1) if q < 7 else []
                seq += up[:1] + c[:8] + up[1:] + c[8:]
            k = max(26, len(seq) - 14)
            a(*seq[:k])
            self.barrier(18, 16, phase="x")
            for n in range(cfg.PD):
                for j in range(4): self.read(n, j)
            a(*seq[k:])
            self.st("u0")
            self.split = len(a.out)
            return
        pend = []; fin = None
        late = [tuple(int(y) for y in x.split(":")) for x in cfg.xlate.split(",")]
        nxt = ends[-1]
        for q in range(8 + cfg.xpre):
            while late and late[0][0] == q:
                for m in pend: a(m)
                done[0] = nxt
                pend = group(list(range(nxt, late[0][1]))); hold = 10; nxt = late.pop(0)[1]
                if not late: self.st("_x7")
            if q == 8:
                for m in pend: a(m)
                pend = []
            if not late and not pend and fin is None: fin = self.stats_fin(S + 8, S + 12, vR)
            if q == 7 + cfg.xpre:
                self.barrier(18, 16, phase="x")
                for n in range(cfg.PD):
                    for j in range(4): self.read(n, j)
            if q == 8:
                for f in fin: a(f)
                fin = []
            assert q < 7 or xord(cfg).index((1, q - 7)) < nxt
            up = self.unpack(*divmod(q + 1, 8)) if q >= 1 else []
            a.raw("    .p2align 3")
            for k, f in enumerate(self.f_center(*divmod(q, 8))):
                if up and k in (0, 8): a(up.pop(0))
                if pend:
                    hold -= 1
                    if hold <= 0 and k % 3 == 2: a(pend.pop(0)); a.raw("    .p2align 3")
                a(f)
                if fin and k >= 2:
                    a(fin.pop(0))
        self.st("u0")
        self.split = len(a.out)
    def unit0(self):
        a = self.a
        if self.cfg.xpre == 1:
            self.gap = 0
            for p in range(8):
                fl = self.f_center(1, p + 1) if p + 1 < 8 else []
                up = self.unpack(1, p + 2) if p + 2 < 8 else []
                for e in range(4):
                    n = 4 * p + e; s = self.step(n); self.cur = n
                    if up and e % 2 == 0:
                        a(up[e // 2]); self.run_fill(fl, 4)
                    self.need_step(n)
                    for j in range(4):
                        a(s["mf"][j]); self.read(n + self.cfg.PD, j)
                        self.run_fill(fl, 1 if up else 2)
                assert not fl
            return
        fl = []
        for q in range(self.cfg.xpre, 8):
            c = self.f_center(1, q); up = self.unpack(1, q + 1) if q < 7 else [None, None]
            fl += [x for x in [up[0]] + c[:8] + [up[1]] + c[8:] if x] + [("dl", 16 * q - 1)]
        credit = 0.0
        for n in range(32):
            s = self.step(n); self.cur = n
            self.need_step(n)
            for j in range(4):
                self.gap = 4 * n + j
                a(s["mf"][j]); self.read(n + self.cfg.PD, j)
                rate = 0; c = 0
                for f in fl:
                    if isinstance(f, tuple):
                        assert c == 0 or f[1] >= self.gap
                        if c: rate = max(rate, c / max(0.5, f[1] - self.gap - 0.5))
                    c += self.cost(f)
                credit += rate
                while fl and credit > 0.5:
                    credit -= self.run_fill(fl, 6 if isinstance(fl[0], str) and fl[0].startswith("v_mfma") else 1)
        assert not [f for f in fl if isinstance(f, str)]
    def f_xres(self):
        t = vNM
        pre = [f"v_bfe_u32 v{t}, v0, 4, 1", f"v_lshrrev_b32 v{vR}, 5, v0", f"v_lshl_add_u32 v{vR}, v{t}, 1, v{vR}", f"v_lshlrev_b32 v{vR}, 4, v{vR}",
               f"v_and_b32 v{t}, 15, v0", f"v_lshl_add_u32 v{vR}, v{t}, 10, v{vR}",
               f"v_lshrrev_b32 v{t}, 5, v0", f"v_bfe_u32 v{ONES}, v0, 4, 1", f"v_sub_u32 v{t}, v{t}, v{ONES}", f"v_lshlrev_b32 v{t}, 9, v{t}",
               f"s_and_b32 s96, {sW}, 1", "s_lshl_b32 s96, s96, 10", f"v_add_u32 v{ONES+1}, s96, v{vL16}", f"v_lshl_add_u32 v{ONES+1}, {sW}, 11, v{ONES+1}", f"v_xor_b32 v{ONES+2}, 0x400, v{ONES+1}",
               f"v_xor_b32 v{ONES+3}, 0x800, v{ONES+1}",
               "s_lshl_b32 s96, s96, 2", f"v_add_u32 v{t}, s96, v{t}"]
        ld = [f"buffer_load_dwordx4 {vr(XRAW+4*k,4)}, v{vR}, {srd('x')}, s99 offen offset:{64*k}" for k in range(2)]
        post = []
        for k in range(2): post += [f"v_permlane16_swap_b32 v{XRAW+4*k}, v{XRAW+4*k+2}", f"v_permlane16_swap_b32 v{XRAW+4*k+1}, v{XRAW+4*k+3}"]
        for i in range(8): post += [f"v_lshlrev_b32 v{P0+2*i}, 16, v{XRAW+i}", f"v_and_b32 v{P0+2*i+1}, {sHI}, v{XRAW+i}"]
        return pre, ld, post
    def a2_loads(self, u):
        S, U, n = stage_of(u)
        r = f"s{8+u-S}" if n == 8 else f"s{16+u-S}"
        b = self.SL[u % 16]
        return [f"s_add_u32 {sTmp}, {r}, {U*8192}"] + [f"buffer_load_dwordx4 {vr(b[s],4)}, v{ONES+1+s*(2 if u >= 36 - self.cfg.own else 1)}, {srd('ws')}, {sTmp} offen sc1" for s in range(2)]
    @staticmethod
    def merge(*lists):
        segs = []
        for l in lists:
            for f in l:
                if isinstance(f, tuple) and f[0] == "gap": segs.append([f])
                else: segs[-1].append(f)
        return [f for sg in sorted(segs, key=lambda x: x[0][1]) for f in sg]
    def f_pre(self, g0):
        fl = []
        assert g0 >= (self.cfg.gate0_at - self.cfg.PD) * 4 + 1 or self.n_pre == 0
        for u in range(self.n_pre):
            assert u < 8 or self.cfg.gate8_at in self.BARS
            fl += [("gap", max([g0 + u * self.cfg.pre_step, (self.cfg.gate8_at - self.cfg.PD) * 4 + 1 if u >= 8 else 0] + [self.xdead(q[1]) for q in self.SQ[u]]))] + [x.replace(sTmp, "s98") for x in self.a2_loads(u)]
        return fl
    def hook(self, f):
        f.free = True; return f
    def typeA(self):
        a, cfg = self.a, self.cfg
        ld, chk = self.f_nonce()
        pA, pB = self.scr
        self.xphase()
        self.unit0()
        t = T0; R = self.accreg; xp, xl, xq = self.f_xres()
        PK = lambda h: P0 + 8 * h + 4
        fl = [("gap", 128 + 2), ld]
        for h in range(4):
            fl += [("gap", self.comp(0, h))] + self.f_phi([R(0, h, 1), R(0, h, 0)], [PK(h) + 2, PK(h)])
            if h: fl += [M16(P0 + 8 * (h - 1), ONES, PK(h - 1), "0")]
        fl += [f"v_add_u32 v{vH}, s97, v{vL16}", f"s_lshl_b32 {sTmp}, {sW}, 8", f"v_lshrrev_b32 v{t+1}, 2, v{vL16}", M16(P0 + 24, ONES, PK(3), "0"),
               f"v_and_b32 v{t+2}, 12, v{t+1}", f"v_and_b32 v{t+6}, 48, v0", f"v_add_u32 v{t+2}, v{t+2}, v{t+6}", f"v_mul_u32_u24 v{t+7}, {(6144-128)//16}, v{t+6}",
               f"v_lshl_add_u32 v{t+7}, v0, 3, v{t+7}", f"v_mul_u32_u24 v{t+6}, {(6144-256)//16}, v{t+6}", f"v_add_u32 v{t+6}, v{t+6}, v{vL16}", f"v_add_u32 v{t+1}, {sTmp}, v{t+1}", f"s_lshl_b32 {sTmp}, {sW}, 6", f"v_add_u32 v{t+2}, {sTmp}, v{t+2}",
               f"s_lshl_b32 {sTmp}, {sW}, 10", f"v_add_u32 v{t+3}, {sTmp}, v{vL16}", f"v_add_u32 v{t+4}, {pB}, v{t+3}", f"v_add_u32 v{t+3}, {pA}, v{t+3}",
               f"v_cndmask_b32 v{t}, v{P0}, v{P0+8}, {sM1}", f"v_cndmask_b32 v{t}, v{t}, v{P0+16}, {sM2}", f"v_cndmask_b32 v{t}, v{t}, v{P0+24}, {sM3}", chk]
        def wchk(): assert self.freed >= cfg.scr_need, self.freed
        fl += [("dl", self.first(2, 0))]
        wr = []
        for h in range(4):
            q = Q0 + 8 * h
            fl += [("gap", self.comp(1, h))] + [f"v_cvt_pk_bf16_f32 v{q+i}, v{q+2*i}, v{q+2*i+1}" for i in range(4)]
            if h: fl += [M16(q - 4, PK(h - 1), q - 8, "0")]
            wr += [f"ds_write_b128 v{vH}, {vr(q+4,4)} offset:{h*1024}"]
        fl += [("dl", self.first(2, 1)), f"v_mov_b32 v{t+5}, 0xff", ("gap", cfg.kvw_gap), self.hook(wchk), M16(Q0 + 28, PK(3), Q0 + 24, "0"), f"ds_write_b32 v{t+1}, v{t} offset:{ZR_OFF}"] + wr[:3] + [(wr[3], "kvw"), ("dl", cfg.kvw_gap + 8)]
        def xbar():
            k = [n for n, e in enumerate(a.lg) if e[1] == "kvw"]
            if k: a.wait(lg=len(a.lg) - 1 - k[0])
            self.barrier(0, self.freed_at(self.arrived))
        fl += [("gap", cfg.kvw_gap + cfg.kvb), xbar]
        fl += [f"ds_read_b128 {vr(Q0+4*s,4)}, v{t+3+s//2} offset:{(s%2)*4096}" for s in range(4)]
        fl += [f"ds_read_b32 v{Q0+16+s}, v{t+2} offset:{ZR_OFF+s*256}" for s in range(4)] + [("dl", cfg.kvw_gap + cfg.kvb + 7), ("gap", cfg.kvw_gap + cfg.kvb + 12)]
        for s in range(1, 4): fl += [f"v_add_f32 v{Q0+r}, v{Q0+r}, v{Q0+4*s+r}" for r in range(4)] + [f"v_add_f32 v{Q0+16}, v{Q0+16}, v{Q0+16+s}"]
        fl += [f"v_bfi_b32 v{Q0+r}, v{t+5}, v{vTag}, v{Q0+r}" for r in (0, 16)]
        fl += [f"v_mov_b32 v{Q0+17}, v{Q0+16}", f"buffer_store_dwordx4 {vr(Q0,4)}, v{t+6}, {srd('ws')}, {sKV} offen sc1", f"buffer_store_dwordx2 {vr(Q0+16,2)}, v{t+7}, {srd('ws')}, {sKV} offen offset:256 sc1"]
        def rchk(): assert self.freed < cfg.scr_rel, self.freed; self.st("kv")
        fl += [self.hook(rchk), ("dl", cfg.kvw_gap + cfg.kvb + 31)] + xp + xl
        OPK, OPZ, DEN, NUM = (XF(1, 12), XF(1, 14), Q0, Q0 + 16) if self.u4k else (XF(1, 0), XF(1, 2), Q0, Q0 + 16)
        fl += [f"v_lshrrev_b32 v{vH}, 1, v{vL16}", f"v_lshrrev_b32 v{vH+1}, 4, v0", f"v_lshlrev_b32 v{vH+1}, 3, v{vH+1}", f"s_add_u32 s88, s44, {16*8192}", f"s_add_u32 s89, s46, {28*8192}"]
        h0, h1 = self.f_h(Q0, P0, "s88", 0, "h"), self.f_h(Q0 + 8, P0 + 8, "s88", 2048, "h")
        sil = lambda u, cb: [("gap", self.comp(u, cb))] + self.f_silu([R(u, cb, 0), R(u, cb, 1)])
        fl += sil(2, 0) + sil(2, 1) + sil(2, 2) + sil(2, 3)
        fl += [("gap", self.comp(3, 1))] + h0[0] + [("dl", self.first(4, 0))] + (h0[1] + [("gap", self.comp(3, 3))] + h1[0] if not self.u4k else
              [("gap", self.comp(3, 2))] + h1[0][0:4] + h1[0][8:12] + [("dl", self.first(4, 2)), ("gap", self.comp(3, 3) - 2)] + h1[0][4:8] + h1[0][12:16] + [("dl", self.first(4, 3))] + h0[1]) + h1[1] + [("dl", cfg.hA_dl)]
        opr = []
        for h in range(4):
            opr += [f"ds_read_b64 {vr(OPK+2*h,2)}, v{vH} offset:{OP_OFF+h*576}", f"ds_read_b64 {vr(OPZ+2*h,2)}, v{vH+1} offset:{OP_OFF+h*576+512}"]
        phi = lambda h: [("gap", self.comp(4, h))] + self.f_phi([R(4, h, 0), R(4, h, 1)], [R(4, h, 0), R(4, h, 1)])
        def mm(h):
            o = []
            for tt in range(2):
                b, e = vr(R(4, h, tt), 2), h % 2
                o += [f"v_mfma_f32_16x16x16_bf16 {vr(DEN+8*tt+4*e,4)}, {vr(OPZ+2*h,2)}, {b}, 0", f"v_mfma_f32_16x16x16_bf16 {vr(NUM+8*tt+4*e,4)}, {vr(OPK+2*h,2)}, {b}, 0"]
            return o
        def post(s2, tt):
            n, d = NUM + 8 * tt, DEN + 8 * tt
            o = [f"v_add_f32 v{d+4*e}, {sEPSC}, v{d+4*e}" for e in range(2)] + [f"v_rcp_f32 v{d+4*e}, v{d+4*e}" for e in range(2)]
            o += [f"v_mul_f32 v{n+i}, v{n+i}, v{d+4*(i//4)}" for i in range(8)]
            o += [f"v_cvt_pk_bf16_f32 v{d+i}, v{n+2*i}, v{n+2*i+1}" for i in range(4)]
            return o + [(f"buffer_store_dwordx4 {vr(d,4)}, v{vL16}, {srd('ws')}, s89 offen offset:{(2*s2+tt)*1024} sc1", "o")]
        def weave(main, extra, every):
            o = []; extra = list(extra)
            for k, f in enumerate(main):
                if extra and k % every == every - 1: o.append(extra.pop(0))
                o.append(f)
            return o + extra
        assert (cfg.op_at in self.BARS or (cfg.op_at == 160 and self.u4k)) and (self.u4k or cfg.hA_dl <= self.first(4, 2)) and cfg.hA_gap > cfg.hA_dl and (cfg.gate0_at in self.BARS or cfg.gate0_at == 160)
        fl += [("gap", max((cfg.op_at - cfg.PD) * 4 + 1, self.xdead(15 if self.u4k else 3)))] + opr
        last = [phi(0), weave(phi(1), mm(0), 4), weave(phi(2), mm(1), 4), post(0, 0) + post(0, 1)]
        for k in range(5):
            if k == cfg.finA + 2 and not self.u4k: fl += [("dl", 639)]
            fl += last[k] if k < 4 else []
        self.n_pre = cfg.n_preA; assert self.n_pre + cfg.n_epi <= (12 if self.u4k else 6)
        rest = self.units(fl, self.merge(self.f_pre(cfg.preA_gap), [("gap", cfg.hA_gap), lambda: self.flag(16, "h")])); self.st("fin")
        self.cur = 160
        self.n_pre += cfg.n_epi
        self.p2_plan()
        self.barrier(56 + self.p2b[0] + 1, 56, op=cfg.op_at == 160, gate=[g for g, at in ((0, cfg.gate0_at), (8, cfg.gate8_at), (12, cfg.gate12_at)) if at == 160])
        self.st("_e0")
        lds_ = [x for u in range(cfg.n_preA, self.n_pre) for x in self.a2_loads(u)]
        self.run_fill(lds_ + rest + weave(phi(3), mm(2), 4) + mm(3), 10 ** 9)
        self.p2_start()
        self.run_fill(post(1, 0) + post(1, 1), 10 ** 9)
        self.st("p2")
        self.phase2({cfg.late_at: lambda: self.flag(28, "o")})
    def typeF(self):
        a, cfg = self.a, self.cfg
        ld, chk = self.f_nonce()
        self.xphase()
        self.unit0()
        R = self.accreg; xp, xl, xq = self.f_xres()
        sil = lambda u, cb: [("gap", self.comp(u, cb))] + self.f_silu([R(u, cb, 0), R(u, cb, 1)])
        h10, h11 = self.f_h(Q0, P0, sA2, 0, "h1"), self.f_h(Q0 + 8, P0 + 8, sA2, 2048, "h1")
        h2 = self.f_h(P0, P0 + 8, "s100", 0, "h2")
        h30, h31 = self.f_h(P0, Q0, "s88", 0, "h3"), self.f_h(P0 + 8, Q0 + 8, "s88", 2048, "h3")
        fl = [("gap", 128 + 2), ld] + sil(0, 0) + sil(0, 1) + sil(0, 2) + [chk, ("gap", self.comp(1, 1))] + h10[0] + [("dl", self.first(2, 0))] + h10[1]
        fl += sil(0, 3) + [("gap", self.comp(1, 3))] + h11[0] + h11[1] + [("dl", cfg.h1_dl)]
        fl += sil(2, 0) + sil(2, 1) + [("gap", self.comp(2, 3))] + h2[0] + h2[1] + [("dl", cfg.h2_dl)] + xp + xl + [f"s_add_u32 s88, s44, {8*8192}"]
        fl += sil(3, 0) + sil(3, 1) + sil(3, 2) + ([("dl", 639)] if cfg.finF == -1 else []) + sil(3, 3) + ([("dl", 639)] if cfg.finF == 0 else []) + [("gap", self.comp(4, 1))] + h30[0] + h30[1] + ([("dl", 639)] if cfg.finF == 1 else [])
        if MIXU == 4:
            h30, h31 = self.f_h(Q0, P0, "s88", 0, "h3"), self.f_h(Q0 + 8, P0 + 8, "s88", 2048, "h3")
            fl = [("gap", 128 + 2), ld] + sil(0, 0) + sil(0, 1) + sil(0, 2) + [chk, ("gap", self.comp(1, 1))] + h10[0] + [("dl", self.first(2, 0))]
            fl += sil(0, 3) + [("gap", self.comp(1, 3))] + h11[0] + [("dl", self.first(2, 2))] + h10[1] + h11[1] + [("dl", cfg.h1_dl)] + xp + xl + [f"s_add_u32 s88, s44, {8*8192}"]
            fl += sil(2, 0) + sil(2, 1) + sil(2, 2) + sil(2, 3) + [("gap", self.comp(3, 1))] + h30[0] + [("dl", self.first(4, 0))] + h30[1]
            fl += [("gap", self.comp(3, 3))] + h31[0] + h31[1] + [("dl", cfg.h2_dl)] + sil(4, 0) + sil(4, 1) + [("dl", 639)]
            assert cfg.h1_dl <= self.first(3, 0) and cfg.h2_dl <= self.first(4, 2) and not self.u4k
        def f2():
            self.st("_wh2"); a.wait_tag("h2"); self.st("_dh2")
            a(f"buffer_store_dword v{vTag}, v{vFl}, {srd('ws')}, s101 offen sc1")
        assert MIXU == 4 or (cfg.h1_dl <= self.first(2, 2) and cfg.h2_dl <= self.first(4, 0))
        assert cfg.n_preF + cfg.n_epiF <= (12 if self.u4k else 8) and not (self.u4k and cfg.finF == 1) and (cfg.gate0_at in self.BARS or cfg.gate0_at == 160)
        self.n_pre = cfg.n_preF; f3 = lambda: self.flag(8, "h3")
        rest = self.units(fl, self.merge(self.f_pre(cfg.preF_gap), [("gap", cfg.h1_dl + cfg.ack), lambda: self.flag(0, "h1")], [("gap", cfg.h2_dl + cfg.ack), f2 if MIXU == 2 else f3])); self.st("fin")
        self.cur = 160
        self.n_pre += cfg.n_epiF
        self.p2_plan()
        self.barrier(56 + self.p2b[0] + 1, 56, gate=[g for g, at in ((0, cfg.gate0_at), (8, cfg.gate8_at), (12, cfg.gate12_at)) if at == 160])
        for u in range(cfg.n_preF, self.n_pre):
            for x in self.a2_loads(u): a(x)
        self.p2_start()
        self.run_fill(rest + (h31[0] + h31[1] if MIXU == 2 else h2[0] + h2[1]), 10 ** 9)
        self.st("p2")
        self.phase2({cfg.late_at: f3 if MIXU == 2 else f2})
    def p2_plan(self):
        cfg = self.cfg
        assert self.n_pre <= 8 or cfg.gate8_at <= 160
        nxt = self.n_pre; self.p2l = {}; self.p2g = {}; bars = []
        last_w = max(x["need"] for x in self.it) - 57
        for u in range(36):
            ld = []
            while nxt < 36 and nxt <= u + (cfg.D if u < cfg.d_sw else cfg.D2) and len(ld) < 2:
                if nxt in STAGES and not (nxt == 8 and cfg.gate8_at <= 160) and not (nxt == 12 and cfg.gate12_at <= 160): self.p2g[u] = [nxt]
                ld.append(nxt); nxt += 1
            self.p2l[u] = ld
        g28 = [u for u in self.p2g if self.p2g[u] == [28]][0]
        if cfg.g28_u < g28:
            del self.p2g[g28]; self.p2g.setdefault(cfg.g28_u, []).append(28)
        prev = cfg.p2_first - cfg.p2_bar
        for u in range(36):
            nextg = min([g for g in self.p2g if g >= u] + [99])
            if u in self.p2g or u == cfg.p2_fin or (u - prev >= cfg.p2_bar and nextg - u >= min(2, cfg.p2_bar) and u <= (cfg.p2_lastA if self.typ == 'A' else cfg.p2_lastF)):
                bars.append(u); prev = u
        self.p2b = bars + [35]
    def p2_read(self, m, j):
        if m >= 72 - 2 * self.cfg.own: return
        u, cp = m // 2, m & 1
        w = self.find(k="w2", u=u); assert w["n"] < self.full, (m, w, self.full)
        e, t2 = j // 2, j % 2
        self.lds("ds_read_b64_tr_b16", vr(WB0 + 8 * (m % 4) + 4 * e + 2 * t2, 2), vA + 2 * cp + e, w["addr"] + t2 * 2048)
    def p2_start(self):
        for cb in range(4): self.a(f"v_add_u32 v{vA+cb}, v{vNM}, v{vA+cb}")
        for m in range(2):
            for j in range(4): self.p2_read(m, j)
    def phase2(self, hooks):
        a, cfg = self.a, self.cfg
        pa, pb = self.find(k="w2", u=20)["addr"], self.find(k="w2", u=21)["addr"]
        assert self.p2b[-2] >= 22 and max(x["need"] for x in self.it) < 57 + 20
        tail = [f"s_mov_b32 s96, {pa}", f"s_cmp_lt_u32 {sW}, 2", f"s_cselect_b32 s96, s96, {pb}", f"s_and_b32 s97, {sW}, 1", "s_lshl_b32 s97, s97, 12",
                "s_add_u32 s96, s96, s97", f"v_add_u32 v{T0}, s96, v{vL16}", f"v_xor_b32 v{T0+1}, 0x1000, v{T0}"]
        own = cfg.own; assert own in (0, 2) and cfg.D >= own
        FQ = [q for sl in self.SL[4:12] for q in sl]
        pre = []
        if own:
            tail += [f"v_xor_b32 v{T0+4+cb}, 0x1000, v{vA+cb}" for cb in range(4)]
            for u in (34, 35):
                w = self.find(k="w2", u=u)
                pre += [(FQ[8 * (u - 34) + 2 * cb + e] + 2 * t2, (vA, T0 + 4)[e] + cb, w) + (t2,) for cb in range(4) for e in range(2) for t2 in range(2)]
        if cfg.fullline: tail += [f"v_and_b32 v{T0+2}, 0x2000, v{vR}", f"v_lshrrev_b32 v{T0+3}, 7, v{T0+2}", f"v_sub_u32 v{vR}, v{vR}, v{T0+2}", f"v_add_u32 v{vR}, v{vR}, v{T0+3}", "s_add_u32 s98, s99, 0x2000"]
        M = 72 - 2 * own
        xq = self.f_xres()[2]; xa = {}
        for cb in range(4): xa[2 * (cfg.xadd_at + 4 + cb) + 1 + cb // 2] = [f"v_add_f32 v{ACC+4*cb+i}, v{ACC+4*cb+i}, v{P0+4*cb+i}" for i in range(4)]
        for m in range(M):
            u, cp = m // 2, m & 1
            buf = WB0 + 8 * (m % 4); x = self.SL[u % 16]
            extra = []
            if cp == 0:
                if u in hooks: hooks[u]()
                if u in self.p2b[:-1]:
                    a.need(vr(buf, 8))
                    self.barrier(56 + self.p2b[self.p2b.index(u) + 1] + 1, 56 + u, phase="2", gate=self.p2g.get(u))
                self.st(f"c{u}" if u in (4, 12, 20, 28, 35) else f"_c{u}")
            if len(self.p2l[u]) > cp: extra = self.a2_loads(self.p2l[u][cp])
            if u >= 18 and tail and not extra: extra = tail[:3]; tail = tail[3:]
            a.need(vr(buf, 8), vr(x[0], 4), vr(x[1], 4))
            order = ((0, 0), (0, 1), (1, 1), (1, 0)) if m < M - 1 else ((0, 1), (1, 1), (1, 0), (0, 0))
            for j, (e, t) in enumerate(order):
                d = (ACC, Q0)[t] + 4 * (2 * cp + e)
                a(M16(d, buf + 4 * e, x[t], "0" if u == 0 else d))
                self.p2_read(m + 2, j)
                if pre and (m >= M - 2 or (m >= M - 10 and j != 3)):
                    dq, ar, w, t2 = pre.pop(0); assert not tail and w["n"] < self.full and u >= 28
                    self.lds("ds_read_b64_tr_b16", vr(dq, 2), ar, w["addr"] + t2 * 2048)
                if u >= cfg.xadd_at and xq and (j == 0 or not extra): a(xq.pop(0))
                if m in xa and j == 2:
                    assert not xq
                    for f in xa.pop(m): a(f)
                if j >= 1 and extra:
                    f = extra.pop(0); a(f)
                    mm = re.match(rf"v_xor_b32 v(\d+), 0x1000, v(\d+)$", f)
                    if mm and int(mm.group(2)) in self.win: self.win[int(mm.group(1))] = self.win[int(mm.group(2))]
                if not own and m == M - 1 and j >= 2: a(f"ds_write_b128 v{T0}, {vr(Q0+4*(j-2),4)} offset:{(j-2)*1024}")
        assert not tail and not pre and not xa
        wr = [f"ds_write_b128 v{T0}, {vr(Q0+4*cb,4)} offset:{cb*1024}" for cb in range(4)]
        rd = [f"ds_read_b128 {vr(P0+4*cb,4)}, v{T0+1} offset:{cb*1024}" for cb in range(4)]
        def bar():
            self.st("_t0")
            a("s_waitcnt lgkmcnt(0)"); a.raw("    s_barrier ; compute waves only, the loaders have ended")
            self.st("_t1")
        add = lambda cb: [f"v_add_f32 v{ACC+4*cb+i}, v{ACC+4*cb+i}, v{P0+4*cb+i}" for i in range(4)] + [f"v_cvt_pk_bf16_f32 v{24+2*cb+i}, v{ACC+4*cb+2*i}, v{ACC+4*cb+2*i+1}" for i in range(2)]
        swp = lambda k: [f"v_permlane16_swap_b32 v{24+4*k}, v{26+4*k}", f"v_permlane16_swap_b32 v{25+4*k}, v{27+4*k}"]
        aux = cfg.out_aux.replace("_", " ")
        sto = lambda k: [] if cfg.fullline else [f"buffer_store_dwordx4 {vr(24+4*k,4)}, v{vR}, {srd('out')}, s99 offen offset:{64*k} {aux}"]
        if own:
            sched = {0: wr[:1], 1: wr[1:2], 2: wr[2:3], 3: wr[3:], 7: [bar] + rd, 13: add(0)[:3], 14: add(0)[3:], 15: add(1) + swp(0) + sto(0)}
            for k in range(16):
                u, cb, e = 34 + k // 8, (k % 8) // 2, k % 2
                if k == 8: self.st("c35")
                a(M16(ACC + 4 * cb, FQ[k], self.SL[u % 16][e], ACC + 4 * cb))
                self.run_fill(list(sched.get(k, [])), 10 ** 9)
            self.run_fill(add(2) + add(3) + swp(1) + sto(1), 10 ** 9)
        else:
            self.run_fill(wr[2:] + [bar] + rd + add(0) + add(1) + swp(0) + sto(0) + add(2) + add(3) + swp(1) + sto(1), 10 ** 9)
        if cfg.fullline:
            for i in range(4): a(f"v_mov_b32 v{32+i}, v{24+i}")
            for i in range(4): a(f"v_mov_b32_dpp v{24+i}, v{28+i} row_ror:8 row_mask:0xf bank_mask:0xc")
            a(f"buffer_store_dwordx4 v[24:27], v{vR}, {srd('out')}, s99 offen {aux}")
            for i in range(4): a(f"v_mov_b32_dpp v{28+i}, v{32+i} row_ror:8 row_mask:0xf bank_mask:0x3")
            a(f"buffer_store_dwordx4 v[28:31], v{vR}, {srd('out')}, s98 offen {aux}")
        self.st("_t2")
        if cfg.diag:
            a("s_waitcnt vmcnt(0)"); self.st("end")
        self.st.flush(130, 129)
        a("s_endpgm")

class Loader:
    vX, vQ, vG, vD, vHh = 2, 4, 6, 16, 10
    vTag, vPo, vPo2, vP = 13, 14, 15, 16
    def __init__(self, a, cfg, comp):
        self.a, self.cfg, self.it, self.typ, self.bars = a, cfg, comp.it, comp.typ, comp.bars
        self.issued = 0
        self.st = Stamps(a, cfg, list(range(88, 102, 2)) + [8, 10] + list(range(16, 36, 2)))
    def slow_poll(self, load, cmp):
        a = self.a
        C = a.newlabel("Lc"); L = a.newlabel("Lp")
        a(cmp, f"s_cbranch_vccz {C}")
        a.label(L)
        a.raw("    " + load); timeout(a); a.raw("    s_waitcnt vmcnt(0)"); a.raw("    " + cmp); a.raw(f"    s_cbranch_vccnz {L}")
        a.label(C)
    def prologue(self):
        a = self.a
        a("v_and_b32 v0, 63, v0", f"s_sub_u32 {sW}, {sW}, 4", f"s_lshl_b32 s77, {sW}, 11")
        a("v_lshrrev_b32 v21, 3, v0", "v_and_b32 v22, 7, v0", "v_lshrrev_b32 v23, 4, v0", "v_xor_b32 v24, v22, v23", "v_lshlrev_b32 v24, 4, v24")
        a(f"v_lshl_add_u32 v{self.vX}, v21, 10, v24", f"v_xor_b32 v{self.vX+1}, 64, v{self.vX}", f"v_add_u32 v{self.vX+1}, {8*1024-1024}, v{self.vX+1}")
        a(f"s_lshl_b32 s79, {sC}, 2", f"s_add_u32 s79, s79, {sW}", "s_lshl_b32 s79, s79, 15")
        a("s_movk_i32 s85, 0x3ff", f"s_lshl_b32 s84, {sROT}, 7" if self.cfg.rot else "s_mov_b32 s84, 0", "s_and_b32 s84, s84, s85", "s_add_u32 s78, s79, s84", "s_mov_b32 m0, s77")
        if self.cfg.lprio: a(f"s_setprio {self.cfg.lprio}")
        srd_const(a, "x")
        if "X0" in self.cfg.planX:
            a("s_lshr_b32 s82, s2, 7", "s_lshl_b32 s82, s82, 3", f"s_add_u32 s82, s82, {sI}", f"s_lshl_b32 s83, {sC}, 4", "s_add_u32 s82, s82, s83",
              "s_lshl_b32 s82, s82, 2", f"s_add_u32 s82, s82, {sW}", "s_lshl_b32 s82, s82, 11", "v_lshlrev_b32 v28, 7, v0")
        if self.cfg.prearly: self.prologue2a()
        a("s_waitcnt lgkmcnt(0)")
        srd_base(a, "x")
    def prologue2a(self):
        a = self.a
        for n in ("qkv", "gate", "up"): srd_const(a, n)
        a(f"s_lshl_b32 s76, {sW}, 4", "v_add_u32 v21, s76, v21", f"s_lshl_b32 s80, {sI}, 7")
        a("v_lshlrev_b32 v25, 1, v23", "v_and_b32 v25, 2, v25", "v_xor_b32 v24, v22, v25", "v_lshlrev_b32 v24, 4, v24", "v_xor_b32 v26, 64, v24")
        for reg, st in ((self.vQ, 3072), (self.vG, 3584)):
            a(f"v_mul_u32_u24 v25, {st}, v21", f"v_add_u32 v{reg}, v25, v24", f"v_add_u32 v{reg+1}, v25, v26", f"v_add_u32 v{reg+1}, {8*st-1024}, v{reg+1}")
    def prologue2(self):
        a = self.a
        if not self.cfg.prearly: self.prologue2a()
        for n in ("qkv", "gate", "up"): srd_base(a, n)
        a(f"s_xor_b32 s0, s80, {self.cfg.x1 << 7}", f"s_xor_b32 s1, s80, {self.cfg.x4 << 7}")
    def prologue3(self):
        a = self.a
        for n in ("down", "wo", "ws", "dbg"): srd_base(a, n); srd_const(a, n)
        a("v_lshlrev_b32 v25, 1, v23", "v_xor_b32 v24, v22, v25", "v_lshlrev_b32 v24, 4, v24", f"v_lshl_add_u32 v{self.vD}, v21, 10, v24",
          f"v_add_u32 v{self.vD+1}, {8*1024-1024}, v{self.vD}")
        a("v_lshrrev_b32 v25, 2, v0", f"s_lshl_b32 s76, {sW}, 5", "v_add_u32 v25, s76, v25", "v_mul_u32_u24 v25, 3584, v25", "v_and_b32 v26, 3, v0",
          "v_and_b32 v27, 2, v23", "v_xor_b32 v27, v26, v27", f"v_lshl_add_u32 v{self.vHh}, v27, 4, v25", f"v_add_u32 v{self.vHh+1}, {16*3584-1024}, v{self.vHh}")
        a("v_lshlrev_b32 v27, 4, v0")
        a(f"s_and_b32 s76, {sW}, 2", "s_lshl_b32 s76, s76, 7", f"s_and_b32 s82, {sW}, 1", "s_lshl_b32 s82, s82, 11", "s_add_u32 s76, s76, s82", f"v_lshl_add_u32 v{self.vPo}, v26, 9, s76")
        a(f"s_lshl_b32 s76, {sW}, 7", f"v_lshl_add_u32 v{self.vPo2}, v26, 9, s76")
        a(f"s_lshl_b32 s81, {sCB}, 7")
        a(f"s_mul_i32 s83, {sTB}, {36*512}", f"s_add_u32 s83, s83, {WS_FLAG:#x}")
        a("s_lshl_b32 s86, s2, 2", f"s_add_u32 s86, s86, {sW}", "s_lshr_b32 s87, s2, 3", "s_lshl_b32 s87, s87, 2", f"s_add_u32 s87, s87, {sW}", "v_lshlrev_b32 v28, 7, v0", "v_lshlrev_b32 v30, 10, v0")
        a(f"s_lshl_b32 s38, {sI}, 4", f"s_add_u32 s38, s38, {sC}", "s_mul_i32 s82, s38, 6144", f"s_add_u32 s82, s82, {WS_KV:#x}", "s_mul_i32 s38, s38, 384", f"s_add_u32 s38, s38, {WS_KV2:#x}")
        a(f"s_xor_b32 s39, {sI}, {self.cfg.x4}", "s_lshl_b32 s39, s39, 2", f"s_add_u32 s39, s39, {sW}", "s_mul_i32 s39, s39, 1536", f"s_add_u32 s39, s39, {WS_KV2:#x}")
        a("v_and_b32 v41, 15, v0", "v_lshl_add_u32 v42, v23, 7, v27", "v_mul_u32_u24 v40, 384, v23")
        a("v_lshrrev_b32 v39, 2, v0", "v_mul_u32_u24 v39, 384, v39", "v_lshl_add_u32 v39, v26, 3, v39")
        a("v_lshlrev_b32 v38, 2, v23", "v_lshl_add_u32 v38, v41, 4, v38", "v_lshlrev_b32 v37, 2, v0", "v_mov_b32 v36, 0xff")
        a(f"s_mul_i32 s76, {sW}, 576", "v_lshl_add_u32 v43, v0, 3, s76", "v_lshl_add_u32 v44, v23, 3, s76")
    def colbase(self, u): return (("s80", "s80", "s0", "s0", "s1") if self.typ == "A" else ("s80", "s80", "s0", "s0", "s0"))[u]
    def item(self, x, reg=None):
        a = self.a; k = x["k"]; aux = ""; rot = None
        if k == "x":
            n, t, sl = x["n"], x["t"], x["s"]
            assert x["addr"] == 8192 * (n + 1)
            a("s_addk_i32 m0, 0x2000")
            if n == 0: pass
            elif sl % 2 == 1: a("s_addk_i32 s78, 128")
            elif n == 2 and t == 1: a("s_addk_i32 s78, 0x3f80")
            else:
                if n == 10 and self.cfg.xo == 0: a("s_addk_i32 s79, 0x4000", "s_addk_i32 s84, 256")
                if n == 8 and t == 1: a("s_addk_i32 s79, 0x4000")
                a("s_addk_i32 s84, 256", "s_and_b32 s84, s84, s85", "s_add_u32 s78, s79, s84")
            a.e(f"buffer_load_dwordx4 v{self.vX}, {srd('x')}, s78 offen lds", tag=n)
            a.e(f"buffer_load_dwordx4 v{self.vX+1}, {srd('x')}, s78 offen offset:1024 lds", tag=n)
            self.issued = n + 1
            return
        elif k == "w1":
            u, i = x["u"], x["i"]
            if self.typ == "A":
                s, v, st, off = [("qkv", self.vQ, 3072, 1024), ("qkv", self.vQ, 3072, 2048), ("gate", self.vG, 3584, 16 * 128),
                                 ("up", self.vG, 3584, 16 * 128), ("qkv", self.vQ, 3072, 0)][u]
                base, rot = self.colbase(u), (i, 64 * st)
            elif u != MIXU:
                uu = u - (u > MIXU)
                s, v, base, off, rot = ("gate", "up")[uu % 2], self.vG, self.colbase(u), (uu // 2) * 8 * 128, (i, 64 * 3584)
            else:
                if i == 0: a(f"s_lshl_b32 s79, {sI}, 6")
                s, v, base, off, rot = ("gate", "up")[i // 4], self.vHh, "s79", 24 * 128, (2 * (i % 4), 64 * 3584)
        elif k == "w2":
            u = x["u"]; S, U, n = stage_of(u)
            s, v, base, off = ("down", self.vD, "s81", U * 65536) if U < 28 else ("wo", self.vD, "s81", 0)
            if self.cfg.rot2:
                a(f"s_add_u32 s84, {'s2' if self.cfg.rot2 == 1 else sCB}, {u-S}", f"s_and_b32 s84, s84, {n-1}", "s_lshl_b32 s84, s84, 16", "s_add_u32 s84, s84, s81")
                base = "s84"
            else: off += (u - S) * 65536
        if rot and self.cfg.rot:
            a(f"s_add_u32 s84, {sROT}, {rot[0]}", "s_and_b32 s84, s84, 7", f"s_mul_i32 s84, s84, {rot[1]}", f"s_add_u32 s84, s84, {base}")
            base = "s84"
        elif rot: off += rot[0] * rot[1]
        if reg is not None:
            a(f"s_add_u32 s78, {base}, {off}")
            a(f"buffer_load_dwordx4 {vr(reg,4)}, v{v}, {srd(s)}, s78 offen", f"buffer_load_dwordx4 {vr(reg+4,4)}, v{v+1}, {srd(s)}, s78 offen offset:1024")
            return
        a(f"s_add_u32 m0, s77, {x['addr']}", f"s_add_u32 s78, {base}, {off}")
        a.e(f"buffer_load_dwordx4 v{v}, {srd(s)}, s78 offen lds", tag=x["n"])
        a.e(f"buffer_load_dwordx4 v{v+1}, {srd(s)}, s78 offen offset:1024 lds", tag=x["n"])
        self.issued = x["n"] + 1
    def sub(self, loads, check, work, since):
        a = self.a
        b = Asm(); b.uid = a.uid + 1; a.uid += 10
        L, C = b.newlabel("Lr"), b.newlabel("Lc")
        b(f"s_waitcnt vmcnt({since})", *check); b(f"s_cbranch_vccz {C}")
        b.label(L); b(*loads); timeout(b); b("s_waitcnt vmcnt(0)", *check); b(f"s_cbranch_vccnz {L}")
        b.label(C); b.reset(); b("s_nop 0"); b(*work)
        return b.out
    def by_wave(self, parts):
        a = self.a; E = a.newlabel("Le")
        for w, p in enumerate(parts):
            N = a.newlabel("Ln")
            a.out += [f"    s_cmp_lg_u32 {sW}, {w}", f"    s_cbranch_scc1 {N if w + 1 < len(parts) else E}"] + p
            if w + 1 < len(parts): a.out += [f"    s_branch {E}", N + ":"]
        a.label(E); a.hist = []
    def kv(self, x):
        a, tg, ws = self.a, self.vTag, srd("ws")
        def chk(regs):
            o = [f"v_and_b32 v33, 0xff, v{tg}"] + [f"v_xor_b32 v{r}, v33, v{r}" for r in regs] + [f"v_mov_b32 v32, v{regs[0]}"]
            for k in range(1, len(regs), 2): o += [f"v_or3_b32 v32, v32, v{regs[k]}, v{regs[min(k + 1, len(regs) - 1)]}"]
            return o + ["v_and_b32 v32, 0xff, v32", "v_cmp_ne_u32 vcc, 0, v32"]
        l1 = [y for t in range(4) for y in (f"s_add_u32 s78, s82, {t*1536}", f"buffer_load_dwordx4 {vr(64+4*t,4)}, v42, {ws}, s78 offen sc1")]
        l1z = [f"buffer_load_dword v64, v39, {ws}, s82 offen offset:256 sc1"]
        l2 = [f"buffer_load_dwordx4 v[80:83], v42, {ws}, s39 offen sc1", f"buffer_load_dwordx4 v[84:87], v40, {ws}, s39 offen offset:256 sc1"]
        if x in ("G0", "G1"):
            if x == "G0": self.by_wave([["    " + y for y in l1], ["    " + y for y in l1z]])
            else: a.out += ["    " + y for y in l2]
            self.mark = a.nvm
        elif x == "S0":
            w0 = [f"v_add_f32 v{64+r}, v{64+r}, v{68+r}" for r in range(4)] + [f"v_add_f32 v{72+r}, v{72+r}, v{76+r}" for r in range(4)] + [f"v_add_f32 v{64+r}, v{64+r}, v{72+r}" for r in range(4)]
            w0 += ["v_permlane32_swap_b32 v64, v66", "v_permlane32_swap_b32 v65, v67", "v_add_f32 v64, v64, v66", "v_add_f32 v65, v65, v67", "v_permlane16_swap_b32 v64, v65", "v_add_f32 v64, v64, v65",
                   f"v_bfi_b32 v64, v36, v{tg}, v64", f"buffer_store_dword v64, v38, {ws}, s38 offen sc1"]
            w1 = ["v_add_f32_dpp v64, v64, v64 row_ror:4 row_mask:0xf bank_mask:0xf", "v_add_f32_dpp v64, v64, v64 row_ror:8 row_mask:0xf bank_mask:0xf",
                  "v_mov_b32 v65, v64", "v_permlane32_swap_b32 v64, v65", "v_add_f32 v64, v64, v65", "v_mov_b32 v65, v64", "v_permlane16_swap_b32 v64, v65", "v_add_f32 v64, v64, v65",
                  f"v_mul_f32 v64, {f2u(LOG2E):#x}, v64", f"v_bfi_b32 v64, v36, v{tg}, v64", "s_mov_b32 exec_hi, 0", f"buffer_store_dword v64, v37, {ws}, s38 offen offset:256 sc1", "s_mov_b32 exec_hi, -1"]
            k = min(63, a.nvm - self.mark)
            self.by_wave([self.sub(l1, chk([64, 68, 72, 76]), w0, k), self.sub(l1z, chk([64]), w1, k)])
        else:
            w = [f"v_cvt_pk_bf16_f32 v{88+i}, v{80+2*i}, v{81+2*i}" for i in range(4)]
            w += [f"ds_write_b64 v43, v[88:89] offset:{OP_OFF}", f"ds_write_b64 v44, v[90:91] offset:{OP_OFF+512}"]
            a.out += self.sub(l2, chk(list(range(80, 88))), w, min(63, a.nvm - self.mark)); a.hist = []
    def sweep(self, lst, idx):
        a = self.a
        for nm, nl, base in lst:
            a(f"s_mul_i32 s76, {idx}, {nl*128}")
            if base: a(f"s_add_u32 s76, s76, {base}")
            a(f"s_mov_b64 exec, {(1 << nl) - 1:#x}", f"buffer_load_dword v{140+self.npf}, v28, {srd(nm)}, s76 offen"); self.npf += 1
        a("s_mov_b64 exec, -1")
    def action(self, x):
        a, cfg = self.a, self.cfg
        nload = f"buffer_load_dword v{self.vTag}, off, {srd('dbg')}, 0 sc1"
        need = {"U": ["PR"], "V": ["PR"], "PS": ["PR"], "P1": ["PS"], "P2": ["PS"], "P2a": ["PS"], "L": ["PS"], "R": ["PS"], "R0": ["PS"], "C": ["PS"], "N0": ["PS"], "N1": ["N0"],
                "G0": ["PS"], "G1": ["S0"], "S0": ["G0", "N1"], "S1": ["G1", "S0"], "Q": ["PS"]}
        for y in need.get(x, need.get(x[0], []) if x[0] in "UVLQ" else []): assert y in self.done, (x, "before", y)
        assert x not in self.done or x == "C", x
        assert not (x == "V2" and self.issued < 16)
        self.done.add(x)
        if x[0] == "Q":
            u = int(x[1:]); a(f"s_add_u32 s76, s83, {stage_of(u)[1]*512}", "s_mov_b64 exec, 15", self.pl(u, 99), "s_mov_b64 exec, -1")
        elif x == "P1": self.sweep((("gate", 14, 0), ("up", 14, 0), ("qkv", 12, 0)), "s86")
        elif x == "P2": self.sweep((("down", 14, 0), ("wo", 4, 0)), "s86")
        elif x == "P2a": self.sweep((("down", 8, 0),), "s86")
        elif x[0] == "L":
            k = int(x[1:]); self.sweep(((("down", 16, k << 18) if k < 7 else ("wo", 16, (k - 7) << 18)),), "s87")
        elif x in ("R", "R0"):
            for nm, nl in ((("down", 14), ("wo", 4)) if x == "R" else (("qkv", 12),)):
                a(f"s_mul_i32 s76, s87, {nl*1024}", f"s_mov_b64 exec, {(1 << nl) - 1:#x}", f"buffer_load_dword v{140+self.npf}, v30, {srd(nm)}, s76 offen offset:384"); self.npf += 1
            a("s_mov_b64 exec, -1")
        elif x[0] in "UV":
            if not hasattr(self, "split"): self.split = len(a.out)
            u = int(x[1:])
            if self.typ == "A": s_, v, st, off = [("qkv", self.vQ, 3072, 1024), ("qkv", self.vQ, 3072, 2048), ("gate", self.vG, 3584, 2048), ("up", self.vG, 3584, 2048), ("qkv", self.vQ, 3072, 0)][u]
            else: uu = u - (u > MIXU); s_, v, st, off = ("gate", "up")[uu % 2], self.vG, 3584, (uu // 2) * 1024
            if x[0] == "V":
                a(f"s_lshl_b32 s76, {sC}, 2", f"s_sub_u32 s76, s76, {sW}", f"s_mul_i32 s76, s76, {8*st}", "s_mov_b32 exec_lo, 0x01010101", "s_mov_b32 exec_hi, 0x01010101")
                if self.typ == "F" and u == MIXU:
                    a(f"s_lshr_b32 s84, {sI}, 1", "s_lshl_b32 s84, s84, 7", "s_add_u32 s76, s76, s84", f"v_add_u32 v29, s76, v{v}")
                    for s_ in ("gate", "up"):
                        a(f"buffer_load_dword v{140+self.npf}, v29, {srd(s_)}, 0 offen offset:3072"); self.npf += 1
                else:
                    a(f"s_add_u32 s76, s76, {self.colbase(u)}", f"v_add_u32 v29, s76, v{v}", f"buffer_load_dword v{140+self.npf}, v29, {srd(s_)}, 0 offen offset:{off}"); self.npf += 1
                a("s_mov_b64 exec, -1")
                return
            assert cfg.grid == 24 and not (self.typ == "F" and u == MIXU)
            a(f"s_and_b32 s76, {sC}, 7", f"s_mul_i32 s76, s76, {64*st}", f"s_add_u32 s76, s76, {self.colbase(u)}", "s_mov_b32 exec_lo, 0x01010101", "s_mov_b32 exec_hi, 0x01010101")
            for t in range(2):
                a(f"buffer_load_dword v{140+self.npf}, v{v+t}, {srd(s_)}, s76 offen offset:{off+1024*t}"); self.npf += 1
            a("s_mov_b64 exec, -1")
        elif x == "X0":
            assert "PS" not in self.done
            a("s_mov_b64 exec, 0xffff", f"buffer_load_dword v139, v28, {srd('x')}, s82 offen", "s_mov_b64 exec, -1")
        elif x in ("Y0", "Y1"):
            u = int(x[1]); A, F = SRD["qkv"], SRD[("gate", "up")[u]]
            a("s_cmp_lt_u32 s2, 128", f"s_cselect_b64 s[68:69], s[{A}:{A+1}], s[{F}:{F+1}]", f"s_cselect_b32 s70, s{A+2}, s{F+2}", "s_cselect_b64 vcc, -1, 0",
              f"s_cselect_b32 s83, {1024*(u+1)}, 0", "s_movk_i32 s76, 0x7000", "s_cselect_b32 s76, 0x6000, s76", "s_mov_b32 s71, 0x20000",
              f"s_lshl_b32 s86, {sC}, 2", f"s_sub_u32 s86, s86, {sW}", "s_mul_i32 s76, s76, s86", "s_add_u32 s76, s76, s83", "s_add_u32 s76, s76, s80",
              f"v_cndmask_b32 v29, v{self.vG}, v{self.vQ}, vcc", "v_add_u32 v29, s76, v29", "s_mov_b32 exec_lo, 0x01010101", "s_mov_b32 exec_hi, 0x01010101",
              f"buffer_load_dword v{137+u}, v29, s[68:71], 0 offen", "s_mov_b64 exec, -1")
            assert "PS" not in self.done and "PR" in self.done
        elif x == "PR": self.prologue2()
        elif x == "PS": self.prologue3()
        elif x == "C":
            L = a.newlabel("Lpc")
            a("s_getpc_b64 s[70:71]"); a.label(L)
            a(f"s_sub_u32 s70, s70, {L}-{NAME}_kernel", "s_subb_u32 s71, s71, 0", "s_mul_i32 s76, s87, 640", "v_add_u32 v29, s76, v28", f"v_min_u32 v29, L_last-{NAME}_kernel, v29")
            a("s_mov_b64 exec, 31", f"global_load_dword v{140+self.npf}, v29, s[70:71]", "s_mov_b64 exec, -1"); self.npf += 1
        elif x[0] == "W": self.st(x + "a"); a("s_waitcnt vmcnt(0)"); self.st(x + "b")
        elif x[0] == "T": self.st(x)
        elif x == "N0": a(nload)
        elif x == "N1": self.slow_poll(nload, f"v_cmp_eq_u32 vcc, 0, v{self.vTag}")
        elif cfg.nogather and x in ("G0", "G1", "S0", "S1"): pass
        elif x in ("G0", "G1"): self.kv(x)
        elif x in ("S0", "S1"): a(f"s_setprio {cfg.gprio}"); self.kv(x); a(f"s_setprio {cfg.lprio}"); self.st("g" + x[1])
        else: raise KeyError(x)
    def run(self):
        a, cfg, it = self.a, self.cfg, self.it
        self.st("start"); self.npf = 0; self.done = set()
        if os.environ.get("ENTRY"):
            a.raw(f"    s_mov_b32 s{self.st.regs[self.st.n]}, s14"); self.st.n += 1; self.st.names.append("entry")
        spec = (cfg.planX + " " + (cfg.planA if self.typ == "A" else cfg.planF)).split()
        pol = {int(x.split(":")[0]): [int(y) for y in x.split(":")[1].split(",")] for x in cfg.polls.split()}
        for g in pol:
            if any(f"Q{g}" in y.split(",") for y in spec): pol[g] = [99]
        for bi, b in enumerate(self.bars):
            for g in b.get("gate") or []:
                for k in pol[g] if pol[g] != [99] else []: self.bars[bi - k].setdefault("poll", []).append((g, k))
        freed = 0; plan = []
        for bi, b in enumerate(self.bars):
            vP = lambda u, k: 200 + 4 * STAGES.index(u) + pol[u].index(k)
            pl = lambda u, k: f"buffer_load_dword v{vP(u, k)}, v{self.vPo2 if stage_of(u)[2] == 4 else self.vPo}, {srd('ws')}, s76 offen sc1"
            self.pl = pl
            for u, k in b.get("poll", []): a(f"s_add_u32 s76, s83, {stage_of(u)[1]*512}", "s_mov_b64 exec, 15", pl(u, k), "s_mov_b64 exec, -1")
            acts = spec[bi].split(",") if bi < len(spec) else [cfg.p2_cap]
            for x in acts + ["req"]:
                if x[0].isdigit() or x == "req":
                    depth = int(x.split("t")[1]) if "t" in x else None
                    lim = self.issued + int(x.split("t")[0]) if x != "req" else b["full"]
                    while self.issued < min(lim, len(it)):
                        y = it[self.issued]
                        if y["need"] > freed:
                            assert x != "req", ("deadlock", bi, b, y); break
                        if x == "req": print(f"  [{self.typ}] barrier {bi}: item {y['n']} issued only when required", file=sys.stderr)
                        if y["n"] == 16 and not hasattr(self, "split"): self.split = len(a.out)
                        if y["n"] in (16, 32, 56): self.st(f"i{y['n']}")
                        assert y["n"] < 16 or "PR" in self.done
                        assert y["n"] < 32 or "PS" in self.done
                        if depth: a.wait_tag(y["n"] - depth)
                        self.item(y)
                else: self.action(x)
            if b.get("op") and not cfg.nogather:
                assert "S1" in self.done
                a("s_waitcnt lgkmcnt(0)")
            for u in b.get("gate") or []:
                a(f"s_add_u32 s76, s83, {stage_of(u)[1]*512}", "s_mov_b64 exec, 15")
                assert "N1" in self.done and (pol[u] != [99] or f"Q{u}" in self.done)
                Cg = a.newlabel("Lc"); save = None
                for k in pol[u][:-1]:
                    a(f"v_cmp_ne_u32 vcc, v{self.vTag}, v{vP(u, k)}", f"s_cbranch_vccz {Cg}")
                    if save is None: save = list(a.vm)
                k = pol[u][-1]
                self.slow_poll(pl(u, k), f"v_cmp_ne_u32 vcc, v{self.vTag}, v{vP(u, k)}")
                a.label(Cg)
                if save is not None: a.vm = save
                a("s_mov_b64 exec, -1")
                self.st(f"f{u}")
            for n in range(b["full"] - 1, -1, -1):
                if any(e[1] == n for e in a.vm): a.wait_tag(n); break
            if cfg.bdiag: a.raw("    s_memtime s[12:13]")
            a("s_barrier")
            if cfg.bdiag:
                for x_ in ("s_memtime s[14:15]", "s_waitcnt lgkmcnt(0)", f"v_writelane_b32 v46, s12, {bi}", f"v_writelane_b32 v47, s14, {bi}"): a.raw("    " + x_)
            freed = b["freed"]
            plan.append(f"{bi}:{b['step']}:d{b['dur']:.0f}:f{b['full']}:i{self.issued}:{','.join(acts)}" + (f":gate{b['gate']}" if b.get("gate") else ""))
        assert self.issued == len(it)
        print(f"plan {self.typ}:", " ".join(plan), file=sys.stderr)
        self.st("end")
        if cfg.bdiag:
            a("s_lshl_b32 s76, s2, 2", f"s_add_u32 s76, s76, {sW}", "s_lshl_b32 s76, s76, 9", f"s_add_u32 s76, s76, {WS_DIAG+0x100000:#x}", "v_lshlrev_b32 v45, 2, v0")
            a(f"buffer_store_dword v46, v45, {srd('ws')}, s76 offen", f"buffer_store_dword v47, v45, {srd('ws')}, s76 offen offset:256")
        self.plan = plan
        if cfg.diag: a(f"s_add_u32 {sW}, {sW}, 4")
        self.st.flush(130, 129)
        a("s_endpgm")

NPAD = 8
def touch_code(cfg):
    if not cfg.pads: return []
    o = ["s_cmp_ge_u32 s2, 128", "s_cbranch_scc1 L_tF"]
    for typ in "AF":
        o += [f"L_t{typ}:"]
        for w in range(4):
            if w < 3: o += [f"s_cmp_lg_u32 {sW}, {w}", f"s_cbranch_scc1 L_t{typ}{w+1}"]
            o += [f"s_call_b64 s[30:31], L_pad{typ}{k}" for k in range(w, NPAD, 4)] + ["s_branch L_tdone"]
            if w < 3: o += [f"L_t{typ}{w+1}:"]
    return [x if x.endswith(":") else "    " + x for x in o[:-1] + ["L_tdone:"]]
def place(lines, cfg):
    import subprocess, tempfile
    ins = [l for l in lines if not l.strip().startswith(".")]
    labels = set(re.findall(r"\bL_\w+", "\n".join(ins))) - {l[:-1] for l in ins if l.endswith(":")}
    with tempfile.TemporaryDirectory() as d:
        open(d + "/x.s", "w").write(".text\n" + "\n".join(ins) + "\n" + "".join(x + ":\n" for x in labels) + "s_endpgm\n")
        subprocess.run(["clang", "-x", "assembler", "-target", "amdgcn-amd-amdhsa", "-mcpu=gfx950", "-c", d + "/x.s", "-o", d + "/x.o"], check=True)
        dis = subprocess.run(["llvm-objdump", "-d", "--mcpu=gfx950", d + "/x.o"], capture_output=True, text=True, check=True).stdout
    ad = [int(m, 16) for m in re.findall(r"// ([0-9A-F]{12}):", dis)]
    size = iter([y - x for x, y in zip(ad, ad[1:])])
    out = []; pos = 0; page = 1; typ = "S"; pads = dict(S=[], A=[], F=[]); prev = ""; live = True
    for l in lines:
        t = l.strip()
        if t == ".p2align 3":
            if pos % 8: out.append("    s_nop 0"); pos += 4
            continue
        if t == "L_compA:": typ = "A"
        if t == "L_compF:":
            while pos % 64: out.append("    s_nop 0"); pos += 4
            typ = "F"; live = True; n = f"L_pg{len(out)}"; pads["F"].append(n)
            out += [n + ":", "    s_setpc_b64 s[30:31]", "    s_nop 0"]; pos += 8; page = pos // 4096 + 1
        if t.endswith(":"): out.append(l); continue
        if pos >= 4096 * page - 4 and (prev.startswith("v_mfma") or pos >= 4096 * page + 40):
            if live and cfg.pads:
                n = f"L_pg{len(out)}"; pads[typ].append(n)
                out += [f"    s_branch {n}x", n + ":", "    s_setpc_b64 s[30:31]", n + "x:"]; pos += 8
            page += 1
        out.append(l); pos += next(size); prev = t
        if t == "s_endpgm": live = False
    for ty in "AF":
        p = pads["S"] + pads[ty]; assert len(p) <= NPAD, p
        if not cfg.pads: continue
        for k in range(NPAD): out = [re.sub(rf"\bL_pad{ty}{k}\b", p[min(k, len(p) - 1)], x) for x in out]
    return out

def generate(cfg):
    global STG, STAGES, MIXU
    MIXU = cfg.mixu
    STG = ((0, 0, 8), (8, 24, 4), (12, 16, 8), (20, 8, 8), (28, 28, 8)) if MIXU == 2 else ((0, 0, 8), (8, 16, 8), (16, 8, 8), (24, 24, 4), (28, 28, 8))
    STAGES = tuple(x[0] for x in STG)
    a = Asm()
    if os.environ.get("ENTRY"): a.raw("    s_memrealtime s[14:15]")
    a("s_cmp_ge_u32 s2, 256", "s_cbranch_scc1 L_end")
    a("s_load_dwordx16 s[16:31], s[0:1], 0", "s_load_dwordx4 s[32:35], s[0:1], 64")
    a("v_lshrrev_b32 v1, 6, v0")
    if cfg.pf_code:
        a("s_getpc_b64 s[98:99]"); a.label("L_pc")
        a("s_lshr_b32 s96, s2, 3", "s_mul_i32 s96, s96, 0x900", "v_mul_u32_u24 v2, 9, v0", "v_lshrrev_b32 v2, 1, v2", "v_and_b32 v2, 0xf80, v2", "v_add_u32 v2, s96, v2", "v_min_u32 v2, L_last-L_pc, v2")
        a.raw(f"    global_load_dword v{vNM}, v2, s[98:99]")
    a(f"v_readfirstlane_b32 {sW}, v1")
    if cfg.grid == 24:
        a("s_and_b32 s8, s2, 1", "s_bfe_u32 s9, s2, 0x20001", "s_bfe_u32 s10, s2, 0x30003", "s_lshr_b32 s11, s2, 6")
        a(f"s_lshl_b32 {sC}, s8, 3", f"s_add_u32 {sC}, {sC}, s10")
        a("s_and_b32 s12, s11, 1", f"s_lshl_b32 {sI}, s9, 1", f"s_lshl_b32 {sROT}, s8, 2", f"s_add_u32 {sROT}, {sROT}, {sI}", f"s_add_u32 {sI}, {sI}, s12")
        a(f"s_lshl_b32 {sTB}, s8, 2", f"s_add_u32 {sTB}, {sTB}, s9", f"s_lshl_b32 {sTB}, {sTB}, 2", f"s_add_u32 {sROT}, {sROT}, {cfg.rotadd}")
        if cfg.cbmap: a("s_and_b32 s12, s10, 3", f"s_add_u32 {sTB}, {sTB}, s12", f"s_bfe_u32 {sCB}, s2, 0x20005", f"s_lshl_b32 {sCB}, {sCB}, 1", "s_lshr_b32 s12, s2, 7", f"s_add_u32 {sCB}, {sCB}, s12")
        else: a(f"s_add_u32 {sTB}, {sTB}, s11", f"s_mov_b32 {sCB}, s10")
    else:
        a("s_and_b32 s8, s2, 3", "s_and_b32 s9, s2, 4", "s_bfe_u32 s10, s2, 0x20003", "s_bfe_u32 s11, s2, 0x20005")
        a(f"s_lshl_b32 {sC}, s8, 2", f"s_add_u32 {sC}, {sC}, s10", f"s_add_u32 {sI}, s9, s11")
        a("s_and_b32 s12, s11, 1", "s_lshl_b32 s12, s12, 1", f"s_add_u32 {sROT}, s9, s12")
        a(f"s_lshl_b32 {sTB}, s8, 3", f"s_add_u32 {sTB}, {sTB}, s9", f"s_add_u32 {sTB}, {sTB}, s10", f"s_lshl_b32 {sCB}, s11, 1", "s_lshr_b32 s12, s2, 7", f"s_add_u32 {sCB}, {sCB}, s12")
    a(f"s_mov_b32 {sT}, {cfg.timeout}")
    a(f"s_cmp_lt_u32 {sW}, 4", "s_cbranch_scc1 L_compute")
    info = {}
    progs = {}
    for typ in "AF":
        b = Asm(); b.uid = 1000 if typ == "A" else 2000
        c = Compute(b, cfg, typ)
        (c.typeA if typ == "A" else c.typeF)()
        progs[typ] = (b, c); info["c" + typ] = c.st.names
    lds_ = {}
    for typ in "AF":
        b = Asm(); b.uid = 3000 if typ == "A" else 4000
        l = Loader(b, cfg, progs[typ][1]); l.run()
        lds_[typ] = (b, l); info["l" + typ] = l.st.names; info["plan" + typ] = l.plan; info["bdiag"] = cfg.bdiag
        nb = lambda o: sum(x.strip() == "s_barrier" for x in o)
        assert nb(b.out) == nb(progs[typ][0].out) == len(progs[typ][1].bars)
        print(f"loader {typ}: {b.count} instrs, {b.nops} nop states; compute: {progs[typ][0].count} instrs, {progs[typ][0].nops} nop states", file=sys.stderr)
    def shared(d):
        (ba, oa), (bf, of) = d["A"], d["F"]
        assert oa.split == of.split and ba.out[:oa.split] == bf.out[:of.split]
        return ba.out[:oa.split]
    Loader(a, cfg, progs["A"][1]).prologue()
    a.out += shared(lds_)
    a("s_cmp_ge_u32 s2, 128", "s_cbranch_scc1 L_loadF")
    for typ in "AF":
        b, l = lds_[typ]
        a.label("L_load" + typ); a.out += b.out[l.split:]
    a.label("L_end"); a.raw("    s_endpgm")
    c = Asm(); c.uid = 5000
    c.label("L_compute")
    Compute(c, cfg, "A").prologue()
    c.out += shared(progs)
    c("s_cmp_ge_u32 s2, 128", "s_cbranch_scc1 L_compF")
    for typ in "AF":
        b, p = progs[typ]
        c.label("L_comp" + typ); c.out += b.out[p.split:] + b.stubs
    a.raw("    .p2align 12"); a.out += place(c.out, cfg)
    a.label("L_last"); a.raw("    s_endpgm")
    head = open("cdna_kernels/" + NAME + ".s.ref").read().split("; Override launch")[0]
    txt = head + f"; @launch grid=(256,1,1) block=(512,1,1) lds={LDS_BYTES}\n"
    txt += f""".amdgcn_target "amdgcn-amd-amdhsa--gfx950"
.text
.globl {NAME}_kernel
.p2align 8
.type {NAME}_kernel,@function
{NAME}_kernel:
""" + a.text() + f"""
.section .rodata,"a"
.p2align 6
.amdhsa_kernel {NAME}_kernel
  .amdhsa_next_free_vgpr 256
  .amdhsa_next_free_sgpr 102
  .amdhsa_accum_offset 256
  .amdhsa_group_segment_fixed_size 0
  .amdhsa_kernarg_size 80
  .amdhsa_user_sgpr_count 2
  .amdhsa_user_sgpr_kernarg_segment_ptr 1
  .amdhsa_system_sgpr_workgroup_id_x 1
.end_amdhsa_kernel
"""
    return txt, info

if __name__ == "__main__":
    cfg = Cfg()
    out = sys.argv[1]
    for kv in sys.argv[2:]:
        k, v = kv.split("="); setattr(cfg, k, type(getattr(Cfg, k))(v))
    txt, info = generate(cfg)
    open(out, "w").write(txt)
    info["mode"] = cfg.diag
    import json; json.dump(info, open(out + ".json", "w"))
```

```python
import sys, os, struct, re
from asmb import Asm

NAME = "parallel_sum__linear_attn_block__swiglu_ffn__prompt"

class Cfg:
    diag = 0
    bdiag = 0
    timeout = 400000
    round_ln = 1
    rot = 1
    pf_code = 1
    pf_tlb = 0
    nofill = 0
    cprio = 1
    lprio = 0
    gprio = 2
    xgroups = "2,6,8,10"
    grid = 24
    xo = 0
    mixu = 2
    nspl = 24
    p2xA = "4,8,10"
    p2xF = "4,8,10"
    ex_sp = 1
    ex_ld = 22
    ex_w = 1
    ex_ck = 4
    ex_n = 4
    ex_s = 4
    xv = 1
    xA = 13
    xpu = 5
    prearly = 0
    xpre = 4
    pro2_at = 0
    xlate = "3:13,5:16"
    op_at = 146
    frate = 60
    ack = 56
    h1_dl = 308
    h2_dl = 430
    kvb = 17
    kvl = 0
    kprio = 2
    scr_need = 32
    scr_rel = 36
    kvw_gap = 266
    hA_dl = 543
    hA_gap = 586
    u4kA = 0
    u4kF = 0
    finF = 1
    finA = 0
    late_at = 4
    gate0_at = 146
    gate8_at = 999
    gate12_at = 999
    n_preA = 5
    n_preF = 5
    preA_gap = 588
    preF_gap = 596
    pre_step = 10
    n_epi = 1
    n_epiF = 0
    D = 6
    D2 = 5
    d_sw = 23
    p2_cap = "2"
    polls = "0:1 8:0 12:1 20:1,0 24:0 28:0"
    nogather = 0
    pads = 1
    PD = 3
    xadd_at = 6
    x1 = 1
    x4 = 4
    rotadd = 2
    cbmap = 1
    barsA = "8,20,34,50,66,82,98,114,130,146"
    barsF = "8,18,34,50,66,82,98,114,130,146"
    out_aux = "sc1"
    planX = "7,PR,PS 4 2 2 2,U0 V1,3 3 4 6"
    planA = "N0,U2,U4,P2,U3 5,N1 8 R 4 5 G0,S0,4 5,G1 Q0,S1,3 10,Q8 5"
    planF = "V2,2,V3,U4,P2 1,N0 6 8 6,N1,R 3 Q0,4 5,Q8 4 0 5"

ZR_OFF, OP_OFF = 0, 1024
LDS_BYTES = 163840
WS_KV2, WS_EX = 0x1d0000, 0xc00000
WS_FLAG, WS_KV, WS_A2, WS_DIAG, WS_SIZE = 0x1000, 0x100000, 0x200000, 0x1000000, 0x2000000
sC, sI, sTB, sCB, sW, sROT = "s4", "s5", "s6", "s7", "s3", "s36"
sT = "s37"
SRD = dict(x=40, qkv=44, gate=48, up=52, down=56, wo=60, ws=64, out=68, dbg=72)
PTR = dict(x=16, qkv=18, wo=20, gate=24, up=26, down=28, out=30, dbg=32, ws=34)
SIZE = dict(x=2097152, qkv=1572864, wo=524288, gate=1835008, up=1835008, down=1835008, out=2097152, dbg=256, ws=WS_SIZE)
def srd(n): return f"s[{SRD[n]}:{SRD[n]+3}]"
def mk_srd(a, n):
    b = SRD[n]
    a(f"s_mov_b32 s{b}, s{PTR[n]}", f"s_mov_b32 s{b+1}, s{PTR[n]+1}", f"s_mov_b32 s{b+2}, {SIZE[n]:#x}", f"s_mov_b32 s{b+3}, 0x20000")
LOG2E = 1.4426950408889634
def f2u(x): return struct.unpack('<I', struct.pack('<f', x))[0]
def srd_const(a, n): a(f"s_mov_b32 s{SRD[n]+2}, {SIZE[n]:#x}", f"s_mov_b32 s{SRD[n]+3}, 0x20000")
def srd_base(a, n): a(f"s_mov_b64 s[{SRD[n]}:{SRD[n]+1}], s[{PTR[n]}:{PTR[n]+1}]")
def vr(b, n=1): return f"v{b}" if n == 1 else f"v[{b}:{b+n-1}]"
M16 = lambda d, x, y, c: f"v_mfma_f32_16x16x32_bf16 {vr(d,4)}, {vr(x,4)}, {vr(y,4)}, {c if isinstance(c, str) else vr(c,4)}"

STG = ((0, 0, 8), (8, 24, 4), (12, 16, 8), (20, 8, 8), (28, 28, 8))
STAGES = tuple(x[0] for x in STG)
def stage_of(j): return max(x for x in STG if x[0] <= j)
MIXU = 2
NSPL = 28
def wslot(u): return u // 2 if u < NSPL else NSPL // 2 + u - NSPL
def unit_of(a):
    S, U, n = stage_of(a)
    return (U + ((a - S) & ~1), True) if a < NSPL else (U + a - S, False)
def xord(cfg):
    if cfg.xo == 0: return [(0, 0), (0, 1), (1, 0), (1, 1)] + [(0, s) for s in range(2, 8)] + [(1, s) for s in range(2, 8)]
    return [(t, s) for t in range(2) for s in range(8)]
def make_items(cfg, typ):
    it = []
    for i, (t, s) in enumerate(xord(cfg)): it.append(dict(k="x", s=s, t=t, rel=i + 1))
    for u in range(5):
        for i in range(8): it.append(dict(k="w1", u=u, i=i, rel=17 + 8 * u + i))
    for u in range(NSPL // 2 + 36 - NSPL): it.append(dict(k="w2", u=u, rel=57 + u))
    free = [(0, p) for p in range(1, 20)] + ([(0, 20)] if typ == "F" else [])
    scr = []
    for n, x in enumerate(it):
        free.sort()
        while typ == "A" and len(scr) < 2 and free[0][0] >= cfg.scr_need - 1:
            need, p = free.pop(0); assert need <= cfg.scr_need
            scr.append(8192 * p); free.append((cfg.scr_rel, p)); free.sort()
        need, p = free.pop(0)
        assert need < x["rel"], (n, x, need)
        x["need"] = need; x["n"] = n; x["addr"] = 8192 * (p % 20)
        free.append((x["rel"], p))
    return it, scr

class Stamps:
    def __init__(self, a, cfg, regs):
        self.a, self.on, self.regs, self.n, self.names = a, cfg.diag, regs, 0, []
    def __call__(self, name):
        if not self.on: return
        sel = os.environ.get("STAMPS")
        if sel is None:
            if name.startswith("_"): return
        elif name not in sel.split(",") + ["start", "end"]: return
        r = self.regs[self.n]
        self.a.raw(f"    {'s_memrealtime' if self.on == 1 else 's_memtime'} s[{r}:{r+1}]")
        self.n += 1; self.names.append(name)
        if os.environ.get("BOTH"):
            r = self.regs[self.n]
            self.a.raw(f"    s_memtime s[{r}:{r+1}]")
            self.n += 1; self.names.append(name + "c")
    def flush(self, vt, vz):
        if not self.on: return
        a = self.a
        a("s_waitcnt lgkmcnt(0)")
        a("s_lshl_b32 s76, s2, 3", f"s_add_u32 s76, s76, {sW}", "s_lshl_b32 s76, s76, 7", f"s_add_u32 s76, s76, {WS_DIAG:#x}")
        a(f"v_mov_b32 v{vz}, 0", "s_mov_b64 exec, 1")
        for i in range(self.n):
            a(f"v_mov_b32 v{vt+i}, s{self.regs[i]}")
            a(f"buffer_store_dword v{vt+i}, v{vz}, {srd('ws')}, s76 offen offset:{4*i}")

def timeout(a):
    a.raw(f"    s_sub_u32 {sT}, {sT}, 1")
    a.raw("    s_cbranch_scc1 L_end")

X0, P0, Q0, K0, WB0 = 128, 64, 96, 56, 24
vA, vH, vL16, vR, vNM, vTag, vFl, T0, ONES = 1, 5, 7, 8, 9, 10, 11, 12, 20
sC2, sHI, sIC, sEPSC = "s38", "s39", "s76", "s77"
sCC = "s36"
sA2, sFL, sKV, sTmp = "s78", "s79", "s80", "s81"
sM1, sM2, sM3 = "s[82:83]", "s[84:85]", "s[86:87]"
def XF(t, s): return X0 + 64 * t + 4 * s
ACC, XRAW = Q0 + 16, K0
SLOTQ = [((0, 0), (0, 1)), ((0, 2), (0, 3)), ((0, 4), (1, 4)), ((0, 5), (1, 5)), ((0, 6), (1, 6)), ((0, 7), (1, 7)), ((1, 0), (1, 1)), ((1, 2), (1, 3))] + [((0, s), (1, s)) for s in range(8, 16)]
SLOT = [(XF(*a), XF(*b)) for a, b in SLOTQ]

class Compute:
    def __init__(self, a, cfg, typ):
        self.a, self.cfg, self.typ = a, cfg, typ
        self.it, self.scr = make_items(cfg, typ)
        self.bars = []; self.full = 0; self.freed = 0; self.mark = 0; self.cur = -1
        self.win = {}
        self.u4k = cfg.u4kA if typ == "A" else cfg.u4kF
        self.SQ = [((0, s), (1, s)) for s in range(16)] if (self.u4k or (typ == 'F' and MIXU == 4)) else SLOTQ
        self.SL = [(XF(*x), XF(*y)) for x, y in self.SQ]
        self.st = Stamps(a, cfg, list(range(48, 64, 2)) + list(range(20, 36, 2)))
    def find(self, **kw):
        for x in self.it:
            if all(x.get(k) == v for k, v in kw.items()): return x
        raise KeyError(kw)
    def barrier(self, full, freed, extra=0, **kw):
        slots = pipe = 0
        for l in self.a.out[self.mark:]:
            l = l.strip()
            if l.endswith(":") or l.startswith("."): continue
            if l.startswith("v_mfma"): slots += 2; pipe += 32 if "32x32" in l else 16
            elif l.startswith(("v_exp", "v_rcp", "v_sqrt", "v_rsq")): slots += 2
            else: slots += 1
        self.a("s_barrier"); self.mark = len(self.a.out)
        self.full = max(self.full, full); self.freed = max(self.freed, freed)
        self.bars.append(dict(full=self.full, freed=self.freed, dur=max(4.2 * slots, pipe) + 40 + extra, step=self.cur, **kw))
    def lds(self, op, dst, areg, addr):
        w = self.win.setdefault(areg, 0)
        if not (0 <= addr - w <= 65535):
            nw = addr & ~8191
            self.a(f"v_add_u32 v{areg}, {(nw - w) & 0xffffffff:#x}, v{areg}")
            self.win[areg] = w = nw
        self.a(f"{op} {dst}, v{areg} offset:{addr - w}")

    def geom(self, n):
        u, ks = divmod(n, 32)
        if self.typ == "F" and u == MIXU == 4 and ks >= 16: return 4 + (ks % 16) // 4, 2 + ks % 2, 2 * ((ks % 16) // 2), False
        if u == 0 or (u == 4 and self.u4k): return ks // 4, ks % 4, 2 * (ks // 4), False
        if self.typ == "F" and u == MIXU: return 4 * (ks // 16) + (ks % 8) // 2, ks // 8, 2 * (ks % 8), ks % 2 == 1
        i = 4 * (ks // 16) + ks % 4
        return i, (ks % 16) // 4, 2 * i, ks % 2 == 1
    def accreg(self, u, cb, t):
        return (P0 if u % 2 == 0 else Q0) + (8 * cb + 4 * t if (self.typ == "A" and u < 2) else 16 * t + 4 * cb)
    def comp(self, u, cb): return 4 * max(n for n in range(32 * u, 32 * u + 32) if self.geom(n)[1] == cb) + 8
    def first(self, u, cb): return 4 * min(n for n in range(32 * u, 32 * u + 32) if self.geom(n)[1] == cb) - 1
    def xdead(self, s): return 4 * max(n for n in range(128, 160) if self.geom(n)[2] == (s & ~1)) + 4
    def step(self, n):
        u = n // 32; i, cb, s0, flip = self.geom(n)
        buf = WB0 + 8 * (n % 4)
        it = self.it[self.item_of(n)]
        if self.typ == "F" and u == MIXU:
            rd = [(buf + 4 * e + 2 * t2, vH + cb % 2, it["addr"] + ((s0 + e) % 4) * 2048 + t2 * 1024) for e in range(2) for t2 in range(2)]
        else:
            rd = [(buf + 4 * e + 2 * t2, vA + cb, it["addr"] + e * 4096 + t2 * 2048) for e in range(2) for t2 in range(2)]
        nt = self.typ == "A" and u < 2
        mf = []
        for k, (e, t) in enumerate(((0, 1), (1, 1), (1, 0), (0, 0)) if flip else ((0, 0), (1, 0), (1, 1), (0, 1))):
            d = self.accreg(u, cb, t); w, x = buf + 4 * e, XF(t, s0 + e)
            mf.append(M16(d, x if nt else w, w if nt else x, "0" if (s0 == 0 and k % 2 == 0) else d))
        return dict(it=it, rd=rd, mf=mf, buf=buf)
    @property
    def BARS(self):
        return [int(x) for x in (self.cfg.barsA if self.typ == "A" else self.cfg.barsF).split(",")]
    def item_of(self, n): return 16 + 8 * (n // 32) + self.geom(n)[0]
    def freed_at(self, n):
        return min([self.item_of(m) for m in range(n + 1, 160)] + [56])
    def read(self, n, j):
        if n >= 160: return
        s = self.step(n)
        if j == 0 and n in self.BARS:
            nxt = min([b for b in self.BARS if b > n] + [160])
            self.barrier(max(self.item_of(m) for m in range(n, nxt)) + 1, self.freed_at(self.arrived), op=(self.typ == "A" and n == self.cfg.op_at),
                         gate=[g for g, at in ((0, self.cfg.gate0_at), (8, self.cfg.gate8_at), (12, self.cfg.gate12_at)) if at == n])
        assert s["it"]["n"] < self.full, (n, self.full)
        d, r, ad = s["rd"][j]
        self.lds("ds_read_b64_tr_b16", vr(d, 2), r, ad)
    def need_step(self, n):
        if self.cfg.PD == 3 and n % 2 == 0: n += 1
        self.a.need(vr(WB0 + 8 * (n % 4), 8)); self.arrived = n
    def cost(self, f):
        if isinstance(f, tuple) and f[0] in ("gap", "dl"): return 0
        if callable(f) and getattr(f, "free", False): return 0
        if isinstance(f, str) and f.startswith(("v_exp", "v_rcp", "v_mfma")): return 2
        return 1
    def run_fill(self, fl, budget):
        used = 0
        while fl and used < budget:
            f = fl[0]
            if isinstance(f, tuple) and f[0] == "gap":
                if self.gap < f[1]: break
                fl.pop(0); continue
            if isinstance(f, tuple) and f[0] == "dl": fl.pop(0); continue
            fl.pop(0); used += self.cost(f)
            if callable(f): f()
            elif isinstance(f, tuple): self.a.e(f[0], tag=f[1])
            else: self.a(f)
        return used
    def units(self, fl, side):
        fl = list(fl); side = list(side); credit = 0.0
        for n in range(32, 160):
            s = self.step(n); self.cur = n
            if n % 32 == 0: self.st(f"u{n//32}")
            self.need_step(n)
            for j in range(4):
                self.gap = 4 * n + j
                self.a(s["mf"][j])
                self.read(n + self.cfg.PD, j)
                rate = self.cfg.frate / 100; c = 0
                for f in fl:
                    if isinstance(f, tuple) and f[0] == "dl":
                        assert c == 0 or f[1] >= self.gap, ("deadline missed", f, self.gap)
                        if c: rate = max(rate, c / max(0.5, f[1] - self.gap - 0.5))
                    c += self.cost(f)
                credit = min(credit + rate, rate + 1.5)
                credit -= 0.7 * self.run_fill(side, 1)
                credit -= self.run_fill(fl, credit - 0.5)
        self.gap = 10 ** 9
        if side: print(f"  [{self.typ}] {len(side)} side fillers left over", file=sys.stderr)
        self.run_fill(side, 10 ** 9)
        return fl

    def f_silu(self, quads):
        fl = []
        for k, q in enumerate(quads):
            t = T0 + (k % 2) * 4
            fl += [f"v_exp_f32_e64 v{t+i}, -v{q+i}" for i in range(4)]
            fl += [f"v_fma_f32 v{t+i}, v{t+i}, {sC2}, {sC2}" for i in range(4)]
            fl += [f"v_rcp_f32 v{t+i}, v{t+i}" for i in range(4)]
            fl += [f"v_mul_f32 v{q+i}, v{q+i}, v{t+i}" for i in range(4)]
        return fl
    def f_phi(self, quads, packs):
        fl = []
        for k, (q, p) in enumerate(zip(quads, packs)):
            t = T0 + (k % 2) * 4
            fl += [f"v_exp_f32_e64 v{t+i}, v{q+i} clamp" for i in range(4)]
            fl += [f"v_max_f32 v{q+i}, {sEPSC}, v{q+i}" for i in range(4)]
            fl += [f"v_fmac_f32 v{t+i}, {sIC}, v{q+i}" for i in range(4)]
            fl += [f"v_cvt_pk_bf16_f32 v{p+i}, v{t+2*i}, v{t+2*i+1}" for i in range(2)]
        return fl
    def f_h(self, dst, src, soff, off, tag):
        mul = []; out = []
        for t in range(2):
            d = dst + 16 * t
            mul += [f"v_mul_f32 v{d+i}, v{d+i}, v{src+16*t+i}" for i in range(8)]
            out += [f"v_cvt_pk_bf16_f32 v{d+i}, v{d+2*i}, v{d+2*i+1}" for i in range(4)]
            out += [(f"buffer_store_dwordx4 {vr(d,4)}, v{vL16}, {srd('ws')}, {soff} offen offset:{off+t*1024} sc1", tag)]
        return mul, out
    def flag(self, U, tag):
        a = self.a
        a(f"s_add_u32 {sTmp}, {dict(h1=sFL, h='s45', h3='s45', o='s47')[tag]}, {U*512}")
        self.st("_w" + tag); a.wait_tag(tag); self.st("_d" + tag)
        a(f"buffer_store_dword v{vTag}, v{vFl}, {srd('ws')}, {sTmp} offen sc1")
    def f_nonce(self):
        a = self.a
        def chk():
            L = a.newlabel("Ln"); C = a.newlabel("Lc")
            a(f"v_cmp_eq_u32 vcc, 0, v{vTag}")
            a(f"s_cbranch_vccnz {L}")
            a.label(C)
            a.stubs += [f"{L}:", f"    buffer_load_dword v{vTag}, off, {srd('dbg')}, 0 sc1", f"    s_sub_u32 {sT}, {sT}, 1", "    s_cbranch_scc1 L_end",
                        "    s_waitcnt vmcnt(0)", f"    v_cmp_eq_u32 vcc, 0, v{vTag}", f"    s_cbranch_vccnz {L}", f"    s_branch {C}"]
        return f"buffer_load_dword v{vTag}, off, {srd('dbg')}, 0 sc1", chk

    def prologue(self):
        a, cfg = self.a, self.cfg
        a("v_and_b32 v0, 63, v0")
        if cfg.cprio: a(f"s_setprio {cfg.cprio}")
        a(f"v_lshlrev_b32 v{vL16}, 4, v0")
        a("v_and_b32 v12, 15, v0", "v_lshrrev_b32 v13, 4, v0", "v_lshrrev_b32 v14, 1, v12", "v_xor_b32 v14, v13, v14", "v_lshlrev_b32 v14, 4, v14",
          "v_lshl_add_u32 v14, v12, 7, v14", f"s_lshl_b32 {sTmp}, {sW}, 11", f"v_add_u32 v{P0}, {sTmp}, v14", f"v_xor_b32 v{P0+1}, 64, v{P0}")
        for i in range(4): a(f"v_mov_b32 v{ONES+i}, 0x3f803f80")
        a("v_and_b32 v14, 31, v0", "v_lshrrev_b32 v15, 5, v0", "v_lshlrev_b32 v15, 3, v15", "v_sub_u32 v15, v14, v15")
        a("v_and_b32 v16, 1, v15", "v_lshlrev_b32 v16, 4, v16", "v_mov_b32 v17, 0x3f80", "v_lshlrev_b32 v16, v16, v17", "v_lshrrev_b32 v15, 1, v15")
        for t in range(8):
            a(f"v_cmp_eq_u32 vcc, {t if t < 4 else t + 4}, v15", f"v_cndmask_b32 v{K0+t}, 0, v16, vcc")
        a("s_waitcnt lgkmcnt(0)")
        for n in ("ws", "out", "dbg", "x"): srd_base(a, n); srd_const(a, n)
        L = "L_tag0"
        a(f"s_or_b32 s0, s2, {sW}", "s_cmp_lg_u32 s0, 0", f"s_cbranch_scc1 {L}")
        a.raw(f"    buffer_load_dword v{vTag}, off, {srd('ws')}, 0 sc1")
        a.label(L)
        a("v_lshlrev_b32 v14, 2, v13", "v_sub_u32 v14, v12, v14")
        for i in range(4): a(f"v_cmp_eq_u32 s[{88+2*i}:{89+2*i}], {i}, v14")
        a(f"s_mov_b32 {sC2}, {f2u(LOG2E**2):#x}", f"s_mov_b32 {sIC}, {f2u(1/LOG2E):#x}", f"s_mov_b32 {sHI}, 0xffff0000", f"s_mov_b32 {sEPSC}, {f2u(1e-6*LOG2E):#x}", f"s_mov_b32 {sCC}, {f2u(LOG2E):#x}")
        a("v_lshrrev_b32 v15, 5, v0", "v_bfe_u32 v16, v0, 2, 2", "v_lshl_add_u32 v16, v15, 2, v16", "v_and_b32 v17, 1, v13", "v_lshl_add_u32 v16, v17, 3, v16")
        a("v_and_b32 v18, 3, v0", "v_lshlrev_b32 v18, 3, v18", "v_lshl_add_u32 v19, v16, 6, v18", f"v_lshl_add_u32 v{vH}, v17, 5, v19", f"v_xor_b32 v{vH+1}, 32, v{vH}")
        a("v_lshl_add_u32 v19, v16, 7, v18", "v_bfe_u32 v18, v0, 3, 2", f"v_lshl_add_u32 v{vA}, v18, 5, v19")
        for cb in range(1, 4): a(f"v_xor_b32 v{vA+cb}, {cb*32}, v{vA}")
        a("v_lshlrev_b32 v18, 2, v0", f"v_lshl_add_u32 v{vFl}, v15, 30, v18")
    def prologue2(self):
        a, cfg = self.a, self.cfg
        a(f"s_lshr_b32 {sTmp}, {sW}, 1", f"s_lshl_b32 {sA2}, {sC}, 1", f"s_add_u32 {sA2}, {sA2}, {sTmp}", f"s_mul_i32 {sA2}, {sA2}, 36",
          f"s_add_u32 {sA2}, {sA2}, {sI}", f"s_lshl_b32 {sA2}, {sA2}, 1", f"s_and_b32 {sTmp}, {sW}, 1", f"s_add_u32 {sA2}, {sA2}, {sTmp}")
        a(f"s_lshl_b32 {sFL}, {sA2}, 8", f"s_add_u32 {sFL}, {sFL}, {WS_FLAG:#x}", f"s_lshl_b32 {sA2}, {sA2}, 12", f"s_add_u32 {sA2}, {sA2}, {WS_A2:#x}")
        for r, x in ((44, cfg.x1), (46, cfg.x4)):
            a(f"s_xor_b32 s96, {sI}, {x}", f"s_sub_u32 s96, s96, {sI}", "s_lshl_b32 s97, s96, 13", f"s_add_u32 s{r}, {sA2}, s97", "s_lshl_b32 s97, s96, 9", f"s_add_u32 s{r+1}, {sFL}, s97")
        a(f"s_mul_i32 s10, {sTB}, {36*8192}", f"s_add_u32 s10, s10, {WS_A2:#x}", f"s_and_b32 s96, {sTB}, 1", "s_lshl_b32 s96, s96, 13", "s_add_u32 s8, s10, s96",
          f"s_xor_b32 s97, {sTB}, 1", f"s_mul_i32 s9, s97, {36*8192}", f"s_add_u32 s9, s9, {WS_A2:#x}", "s_add_u32 s9, s9, s96")
        for r, tb in ((11, "s97"), (12, sTB)):
            a(f"s_lshl_b32 s{r}, {tb}, 3", f"s_add_u32 s{r}, s{r}, {sCB}", f"s_lshl_b32 s{r}, s{r}, 2", f"s_add_u32 s{r}, s{r}, {sW}", f"s_lshl_b32 s{r}, s{r}, 12", f"s_add_u32 s{r}, s{r}, {WS_EX:#x}")
        a(f"s_lshl_b32 s99, {sTB}, 2", f"s_add_u32 s99, s99, {sW}", "s_lshl_b32 s99, s99, 14", f"s_lshl_b32 s97, {sCB}, 7", "s_add_u32 s99, s99, s97")
        a("s_mov_b32 s82, 0xffff0000", "s_mov_b32 s83, 0", "s_mov_b32 s84, 0", "s_mov_b32 s85, 0xffff", "s_mov_b32 s86, 0", "s_mov_b32 s87, 0xffff0000")
        a(f"s_lshl_b32 {sKV}, {sI}, 2", f"s_add_u32 {sKV}, {sKV}, {sW}", f"s_lshl_b32 {sKV}, {sKV}, 6", f"s_add_u32 {sKV}, {sKV}, {sC}",
          f"s_mul_i32 {sKV}, {sKV}, 384", f"s_add_u32 {sKV}, {sKV}, {WS_KV:#x}")
        pA, pB = make_items(cfg, "A")[1]
        a(f"s_mov_b32 s97, {pA}", f"s_mov_b32 s98, {pB}", f"s_cmp_lt_u32 {sW}, 2", "s_cselect_b32 s97, s97, s98", f"s_and_b32 s98, {sW}, 1", "s_lshl_b32 s98, s98, 12", "s_add_u32 s97, s97, s98")
        a(f"s_lshr_b32 s96, {sI}, 1", f"s_sub_u32 s96, s96, {sI}", "s_add_u32 s96, s96, 24", "s_lshl_b32 s96, s96, 2", f"s_and_b32 s98, {sI}, 1", "s_add_u32 s96, s96, s98",
          "s_lshl_b32 s100, s96, 11", f"s_add_u32 s100, s100, {sA2}", "s_lshl_b32 s101, s96, 7", f"s_add_u32 s101, s101, {sFL}")
    def tag_publish(self):
        a = self.a
        L = "L_tag1"
        a("s_cmp_lg_u32 s0, 0", f"s_cbranch_scc1 {L}")
        for x in ("s_waitcnt vmcnt(0)", f"v_add_u32 v{vTag}, 0x9e377902, v{vTag}", f"v_or_b32 v{vTag}, 0x80000000, v{vTag}", "s_mov_b64 exec, 1",
                  f"buffer_store_dword v{vTag}, off, {srd('dbg')}, 0 sc1", f"buffer_store_dword v{vTag}, off, {srd('ws')}, 0 sc1", "s_mov_b64 exec, -1"):
            a.raw("    " + x)
        a.label(L)
    def stats_fin(self, S1, S2, R):
        t = T0
        fl = [f"v_cndmask_b32 v{t+2}, 0, v{S2}, s[88:89]"] + [f"v_cndmask_b32 v{t+2}, v{t+2}, v{S2+i}, s[{88+2*i}:{89+2*i}]" for i in range(1, 4)]
        fl += [f"v_mov_b32 v{t+3}, v{t+2}", f"v_mul_f32 v{t}, 0x3b000000, v{S1}", f"v_mul_f32 v{t+1}, v{t}, v{t}", f"v_permlane32_swap_b32 v{t+2}, v{t+3}", f"v_add_f32 v{t+2}, v{t+2}, v{t+3}",
               f"v_mov_b32 v{t+3}, v{t+2}", f"v_permlane16_swap_b32 v{t+2}, v{t+3}", f"v_add_f32 v{t+2}, v{t+2}, v{t+3}"]
        fl += [f"v_mul_f32 v{t+2}, 0x3b000000, v{t+2}", f"v_sub_f32 v{t+2}, v{t+2}, v{t+1}", f"v_max_f32 v{t+2}, 0, v{t+2}"]
        if self.cfg.round_ln:
            fl += [f"v_cvt_pk_bf16_f32 v{t+1}, v{t}, v{t+2}", f"v_and_b32 v{t+2}, {sHI}, v{t+1}", f"v_lshlrev_b32 v{t}, 16, v{t+1}",
                   f"v_add_f32 v{t+2}, 0x3727c5ac, v{t+2}", f"v_cvt_pk_bf16_f32 v{t+2}, v{t+2}, v{t+2}", f"v_lshlrev_b32 v{t+2}, 16, v{t+2}",
                   f"v_sqrt_f32 v{t+2}, v{t+2}", f"v_cvt_pk_bf16_f32 v{t+2}, v{t+2}, v{t+2}", f"v_lshlrev_b32 v{t+2}, 16, v{t+2}", f"v_rcp_f32 v{R}, v{t+2}"]
        else:
            fl += [f"v_add_f32 v{t+2}, 0x3727c5ac, v{t+2}", f"v_rsq_f32 v{R}, v{t+2}"]
        fl += [f"v_mul_f32 v{R}, {sCC}, v{R}", f"v_mul_f32_e64 v{R+1}, -v{t}, v{R}"]
        return fl
    def unpack(self, t, p, buf=None):
        d = vr(Q0 + 16 * (p % 2) if buf is None else buf, 16)
        return [f"v_mfma_f32_32x32x16_bf16 {d}, {vr(K0,4)}, {vr(XF(t,2*p),4)}, 0",
                f"v_mfma_f32_32x32x16_bf16 {d}, {vr(K0+4,4)}, {vr(XF(t,2*p+1),4)}, {d}"]
    def f_center(self, t, p):
        d = Q0 + 16 * (p % 2); fl = []; R = vR if t else T0 + 4
        for g in range(0, 16, 4):
            fl += [f"v_fma_f32 v{d+g+i}, v{d+g+i}, v{R}, v{R+1}" for i in range(4)]
            fl += [f"v_cvt_pk_bf16_f32 v{XF(t,2*p)+g//2+i}, v{d+g+2*i}, v{d+g+2*i+1}" for i in range(2)]
        return fl
    def xphase(self):
        a, cfg = self.a, self.cfg
        S = P0 + 4
        done = [0]
        B0 = [XF(1, 4), XF(1, 8), XF(1, 12), WB0, WB0 + 16, Q0 + 16, Q0, Q0 + 16]
        B1 = [WB0, WB0 + 16, Q0, Q0 + 16]
        def group(g):
            self.barrier(g[-1] + 1, done[0], phase="x")
            mf = []
            for i in g:
                t, s = xord(cfg)[i]
                for e in range(2):
                    x, k = XF(t, 2 * s + e), 2 * s + e
                    self.lds("ds_read_b128", vr(x, 4), P0 + e, self.it[i]["addr"])
                    mf += [M16(S + 8 * t, ONES, x, "0" if k == 0 else S + 8 * t), M16(S + 8 * t + 4, x, x, "0" if k == 0 else S + 8 * t + 4)]
            return mf
        if cfg.pro2_at == 0: self.prologue2()
        a.out += touch_code(cfg)
        ends = [0] + [int(x) for x in cfg.xgroups.split(",")]
        for gi in range(len(ends) - 1):
            g = list(range(ends[gi], ends[gi + 1]))
            mf = group(g)
            if gi == 0: self.st("x0")
            for m in mf: a(m)
            if cfg.xv:
                for i in g:
                    t, p = xord(cfg)[i]
                    if t == 0 and p < cfg.xpu: a(*self.unpack(0, p, B0[p]))
            if gi == 0:
                for m in ([] if cfg.xv else self.unpack(0, 0) + self.unpack(0, 1)): a(m)
                a("s_waitcnt vmcnt(0)"); self.tag_publish()
                if cfg.pro2_at == 1: self.prologue2()
            done[0] = g[-1] + 1
        self.st("_x4")
        def under(chain, ms):
            ms = list(ms)
            for k, f in enumerate(chain):
                if ms and k % 7 == 0: a(ms.pop(0))
                a(f)
            a(*ms)
        under(self.stats_fin(S, S + 4, T0 + 4), [m for p in range(cfg.xpu, 7) for m in self.unpack(0, p, B0[p])] if cfg.xv else [])
        if cfg.xv:
            assert cfg.xo == 0 and cfg.xpre >= 4 and ends[-1] == 10
            pk = lambda d, R: [f"v_pk_fma_f32 {vr(d+2*i,2)}, {vr(d+2*i,2)}, {vr(R,2)}, {vr(R,2)} op_sel:[0,0,1] op_sel_hi:[1,0,1]" for i in range(8)]
            cv = lambda t, p, d: [f"v_cvt_pk_bf16_f32 v{XF(t,2*p)+i}, v{d+2*i}, v{d+2*i+1}" for i in range(8)]
            a.raw("    .p2align 3")
            for p in range(7): a(*(pk(B0[p], T0 + 4) + (cv(0, p, B0[p]) if p < 3 else [])))
            sA = group(list(range(10, cfg.xA)))
            V = [(x, -1) for p in (5, 3, 4, 6) for x in cv(0, p, B0[p])] + [(x, 1) for x in self.f_center(0, 7)]
            M = [(x, 8) for x in self.unpack(0, 7, B0[7])] + [(x, 16) for x in self.unpack(1, 0, B1[0])] + [(x, 24) for x in self.unpack(1, 1, B1[1])]
            M += [(x, 0) for x in sA]
            a.raw("    .p2align 3")
            t = free = 0; vi = mi = 0; fin_ = {-1: 0}
            while vi < len(V) or mi < len(M):
                mok = mi < len(M) and M[mi][1] <= vi
                vok = vi < len(V) and V[vi][1] < mi
                if mok and (free <= t + 2 or not vok or fin_[V[vi][1]] > t):
                    if M[mi][0] is sA[0]: a.wait(lg=0); a.raw("    .p2align 3")
                    a(M[mi][0]); st_ = max(t, free); t = st_ + 8; free = st_ + (32 if "32x32" in M[mi][0] else 16); fin_[mi] = free + 24; mi += 1
                else: a(V[vi][0]); t += 4.2; vi += 1
            done[0] = cfg.xA
            sB = group(list(range(cfg.xA, 16))); self.st("_x7")
            a(*self.unpack(1, 2, B1[2])); a(*sB); under(self.stats_fin(S + 8, S + 12, vR), self.unpack(1, 3, B1[3]))
            a.raw("    .p2align 3")
            for p in range(4): a(*pk(B1[p], vR))
            up = self.unpack(1, 4)
            seq = cv(1, 2, B1[2]) + up[:1] + cv(1, 0, B1[0]) + up[1:] + cv(1, 1, B1[1]) + cv(1, 3, B1[3])
            for q in range(4, cfg.xpre):
                c = self.f_center(1, q); up = self.unpack(1, q + 1) if q < 7 else []
                seq += up[:1] + c[:8] + up[1:] + c[8:]
            k = max(26, len(seq) - 14)
            a(*seq[:k])
            self.barrier(18, 16, phase="x")
            for n in range(cfg.PD):
                for j in range(4): self.read(n, j)
            a(*seq[k:])
            self.st("u0")
            self.split = len(a.out)
            return
        pend = []; fin = None
        late = [tuple(int(y) for y in x.split(":")) for x in cfg.xlate.split(",")]
        nxt = ends[-1]
        for q in range(8 + cfg.xpre):
            while late and late[0][0] == q:
                for m in pend: a(m)
                done[0] = nxt
                pend = group(list(range(nxt, late[0][1]))); hold = 10; nxt = late.pop(0)[1]
                if not late: self.st("_x7")
            if q == 8:
                for m in pend: a(m)
                pend = []
            if not late and not pend and fin is None: fin = self.stats_fin(S + 8, S + 12, vR)
            if q == 7 + cfg.xpre:
                self.barrier(18, 16, phase="x")
                for n in range(cfg.PD):
                    for j in range(4): self.read(n, j)
            if q == 8:
                for f in fin: a(f)
                fin = []
            assert q < 7 or xord(cfg).index((1, q - 7)) < nxt
            up = self.unpack(*divmod(q + 1, 8)) if q >= 1 else []
            a.raw("    .p2align 3")
            for k, f in enumerate(self.f_center(*divmod(q, 8))):
                if up and k in (0, 8): a(up.pop(0))
                if pend:
                    hold -= 1
                    if hold <= 0 and k % 3 == 2: a(pend.pop(0)); a.raw("    .p2align 3")
                a(f)
                if fin and k >= 2:
                    a(fin.pop(0))
        self.st("u0")
        self.split = len(a.out)
    def unit0(self):
        a = self.a
        if self.cfg.xpre == 1:
            self.gap = 0
            for p in range(8):
                fl = self.f_center(1, p + 1) if p + 1 < 8 else []
                up = self.unpack(1, p + 2) if p + 2 < 8 else []
                for e in range(4):
                    n = 4 * p + e; s = self.step(n); self.cur = n
                    if up and e % 2 == 0:
                        a(up[e // 2]); self.run_fill(fl, 4)
                    self.need_step(n)
                    for j in range(4):
                        a(s["mf"][j]); self.read(n + self.cfg.PD, j)
                        self.run_fill(fl, 1 if up else 2)
                assert not fl
            return
        fl = []
        for q in range(self.cfg.xpre, 8):
            c = self.f_center(1, q); up = self.unpack(1, q + 1) if q < 7 else [None, None]
            fl += [x for x in [up[0]] + c[:8] + [up[1]] + c[8:] if x] + [("dl", 16 * q - 1)]
        credit = 0.0
        for n in range(32):
            s = self.step(n); self.cur = n
            self.need_step(n)
            for j in range(4):
                self.gap = 4 * n + j
                a(s["mf"][j]); self.read(n + self.cfg.PD, j)
                rate = 0; c = 0
                for f in fl:
                    if isinstance(f, tuple):
                        assert c == 0 or f[1] >= self.gap
                        if c: rate = max(rate, c / max(0.5, f[1] - self.gap - 0.5))
                    c += self.cost(f)
                credit += rate
                while fl and credit > 0.5:
                    credit -= self.run_fill(fl, 6 if isinstance(fl[0], str) and fl[0].startswith("v_mfma") else 1)
        assert not [f for f in fl if isinstance(f, str)]
    def f_xres(self):
        t = vNM
        pre = [f"v_bfe_u32 v{t}, v0, 4, 1", f"v_lshrrev_b32 v{vR}, 5, v0", f"v_lshl_add_u32 v{vR}, v{t}, 1, v{vR}", f"v_lshlrev_b32 v{vR}, 4, v{vR}",
               f"v_and_b32 v{t}, 15, v0", f"v_lshl_add_u32 v{vR}, v{t}, 10, v{vR}",
               f"v_lshrrev_b32 v{t}, 5, v0", f"v_bfe_u32 v{ONES}, v0, 4, 1", f"v_sub_u32 v{t}, v{t}, v{ONES}", f"v_lshlrev_b32 v{t}, 9, v{t}",
               f"s_and_b32 s96, {sW}, 2", f"s_add_u32 s96, s96, {sW}", f"v_lshl_add_u32 v{ONES+1}, s96, 10, v{vL16}"]
        ld = [f"buffer_load_dwordx4 {vr(XRAW+4*k,4)}, v{vR}, {srd('x')}, s99 offen offset:{64*k}" for k in range(2)]
        post = []
        for k in range(2): post += [f"v_permlane16_swap_b32 v{XRAW+4*k}, v{XRAW+4*k+2}", f"v_permlane16_swap_b32 v{XRAW+4*k+1}, v{XRAW+4*k+3}"]
        for i in range(8): post += [f"v_lshlrev_b32 v{P0+2*i}, 16, v{XRAW+i}", f"v_and_b32 v{P0+2*i+1}, {sHI}, v{XRAW+i}"]
        return pre, ld, post
    def a2_loads(self, u):
        U, split = unit_of(u)
        b = self.SL[u % 16]
        return [f"s_add_u32 {sTmp}, s{8+u%2 if split else 10}, {U*8192}"] + [f"buffer_load_dwordx4 {vr(b[s],4)}, v{ONES+1}, {srd('ws')}, {sTmp} offen offset:{2048*s} sc1" for s in range(2)]
    @staticmethod
    def merge(*lists):
        segs = []
        for l in lists:
            for f in l:
                if isinstance(f, tuple) and f[0] == "gap": segs.append([f])
                else: segs[-1].append(f)
        return [f for sg in sorted(segs, key=lambda x: x[0][1]) for f in sg]
    def f_pre(self, g0):
        fl = []
        assert g0 >= (self.cfg.gate0_at - self.cfg.PD) * 4 + 1 or self.n_pre == 0
        for u in range(self.n_pre):
            assert u < 8 or self.cfg.gate8_at in self.BARS
            fl += [("gap", max([g0 + u * self.cfg.pre_step, (self.cfg.gate8_at - self.cfg.PD) * 4 + 1 if u >= 8 else 0] + [self.xdead(q[1]) for q in self.SQ[u]]))] + [x.replace(sTmp, "s98") for x in self.a2_loads(u)]
        return fl
    def hook(self, f):
        f.free = True; return f
    def typeA(self):
        a, cfg = self.a, self.cfg
        ld, chk = self.f_nonce()
        pA, pB = self.scr
        self.xphase()
        self.unit0()
        t = T0; R = self.accreg; xp, xl, xq = self.f_xres()
        PK = lambda h: P0 + 8 * h + 4
        fl = [("gap", 128 + 2), ld]
        for h in range(4):
            fl += [("gap", self.comp(0, h))] + self.f_phi([R(0, h, 1), R(0, h, 0)], [PK(h) + 2, PK(h)])
            if h: fl += [M16(P0 + 8 * (h - 1), ONES, PK(h - 1), "0")]
        if not cfg.kvl:
            fl += [f"v_add_u32 v{vH}, s97, v{vL16}", f"s_lshl_b32 {sTmp}, {sW}, 8", f"v_lshrrev_b32 v{t+1}, 2, v{vL16}", M16(P0 + 24, ONES, PK(3), "0"),
                   f"v_and_b32 v{t+2}, 12, v{t+1}", f"v_and_b32 v{t+6}, 48, v0", f"v_add_u32 v{t+2}, v{t+2}, v{t+6}", f"v_mul_u32_u24 v{t+7}, {(6144-128)//16}, v{t+6}",
                   f"v_lshl_add_u32 v{t+7}, v0, 3, v{t+7}", f"v_mul_u32_u24 v{t+6}, {(6144-256)//16}, v{t+6}", f"v_add_u32 v{t+6}, v{t+6}, v{vL16}", f"v_add_u32 v{t+1}, {sTmp}, v{t+1}", f"s_lshl_b32 {sTmp}, {sW}, 6", f"v_add_u32 v{t+2}, {sTmp}, v{t+2}",
                   f"s_lshl_b32 {sTmp}, {sW}, 10", f"v_add_u32 v{t+3}, {sTmp}, v{vL16}", f"v_add_u32 v{t+4}, {pB}, v{t+3}", f"v_add_u32 v{t+3}, {pA}, v{t+3}",
                   f"v_cndmask_b32 v{t}, v{P0}, v{P0+8}, {sM1}", f"v_cndmask_b32 v{t}, v{t}, v{P0+16}, {sM2}", f"v_cndmask_b32 v{t}, v{t}, v{P0+24}, {sM3}", chk]
        else:
            fl += [f"v_add_u32 v{vH}, s97, v{vL16}", f"v_lshrrev_b32 v{t+1}, 2, v{vL16}", M16(P0 + 24, ONES, PK(3), "0"), f"v_lshl_add_u32 v{t+1}, {sW}, 8, v{t+1}", chk,
                   f"v_cndmask_b32 v{t}, v{P0}, v{P0+8}, {sM1}", f"v_cndmask_b32 v{t}, v{t}, v{P0+16}, {sM2}", f"v_cndmask_b32 v{t}, v{t}, v{P0+24}, {sM3}"]
        def wchk(): assert self.freed >= cfg.scr_need, self.freed
        fl += [("dl", self.first(2, 0))]
        wr = []
        for h in range(4):
            q = Q0 + 8 * h
            fl += [("gap", self.comp(1, h))] + [f"v_cvt_pk_bf16_f32 v{q+i}, v{q+2*i}, v{q+2*i+1}" for i in range(4)]
            if h: fl += [M16(q - 4, PK(h - 1), q - 8, "0")]
            wr += [f"ds_write_b128 v{vH}, {vr(q+4,4)} offset:{h*1024}"]
        fl += [("dl", self.first(2, 1)), f"v_mov_b32 v{t+5}, 0xff", ("gap", cfg.kvw_gap), self.hook(wchk), M16(Q0 + 28, PK(3), Q0 + 24, "0"), f"ds_write_b32 v{t+1}, v{t} offset:{ZR_OFF}"] + wr[:3] + [(wr[3], "kvw"), ("dl", cfg.kvw_gap + 8)]
        def xbar():
            k = [n for n, e in enumerate(a.lg) if e[1] == "kvw"]
            if k: a.wait(lg=len(a.lg) - 1 - k[0])
            self.barrier(0, self.freed_at(self.arrived), kvx=True)
        fl += [("gap", cfg.kvw_gap + cfg.kvb), xbar]
        if not cfg.kvl:
            fl += [f"ds_read_b128 {vr(Q0+4*s,4)}, v{t+3+s//2} offset:{(s%2)*4096}" for s in range(4)]
            fl += [f"ds_read_b32 v{Q0+16+s}, v{t+2} offset:{ZR_OFF+s*256}" for s in range(4)] + [("dl", cfg.kvw_gap + cfg.kvb + 7), ("gap", cfg.kvw_gap + cfg.kvb + 12)]
            for s in range(1, 4): fl += [f"v_add_f32 v{Q0+r}, v{Q0+r}, v{Q0+4*s+r}" for r in range(4)] + [f"v_add_f32 v{Q0+16}, v{Q0+16}, v{Q0+16+s}"]
            fl += [f"v_bfi_b32 v{Q0+r}, v{t+5}, v{vTag}, v{Q0+r}" for r in (0, 16)]
            fl += [f"v_mov_b32 v{Q0+17}, v{Q0+16}", f"buffer_store_dwordx4 {vr(Q0,4)}, v{t+6}, {srd('ws')}, {sKV} offen sc1", f"buffer_store_dwordx2 {vr(Q0+16,2)}, v{t+7}, {srd('ws')}, {sKV} offen offset:256 sc1"]
        def rchk(): assert self.freed < cfg.scr_rel, self.freed; self.st("kv")
        fl += [self.hook(rchk), ("dl", cfg.kvw_gap + cfg.kvb + 31)] + xp + xl
        OPK, OPZ, DEN, NUM = (XF(1, 12), XF(1, 14), Q0, Q0 + 16) if self.u4k else (XF(1, 0), XF(1, 2), Q0, Q0 + 16)
        fl += [f"v_lshrrev_b32 v{vH}, 1, v{vL16}", f"v_lshrrev_b32 v{vH+1}, 4, v0", f"v_lshlrev_b32 v{vH+1}, 3, v{vH+1}", f"s_add_u32 s88, s44, {16*8192}", f"s_add_u32 s89, s46, {28*8192}"]
        h0, h1 = self.f_h(Q0, P0, "s88", 0, "h"), self.f_h(Q0 + 8, P0 + 8, "s88", 2048, "h")
        sil = lambda u, cb: [("gap", self.comp(u, cb))] + self.f_silu([R(u, cb, 0), R(u, cb, 1)])
        fl += sil(2, 0) + sil(2, 1) + sil(2, 2) + sil(2, 3)
        fl += [("gap", self.comp(3, 1))] + h0[0] + [("dl", self.first(4, 0))] + (h0[1] + [("gap", self.comp(3, 3))] + h1[0] if not self.u4k else
              [("gap", self.comp(3, 2))] + h1[0][0:4] + h1[0][8:12] + [("dl", self.first(4, 2)), ("gap", self.comp(3, 3) - 2)] + h1[0][4:8] + h1[0][12:16] + [("dl", self.first(4, 3))] + h0[1]) + h1[1] + [("dl", cfg.hA_dl)]
        opr = []
        for h in range(4):
            opr += [f"ds_read_b64 {vr(OPK+2*h,2)}, v{vH} offset:{OP_OFF+h*576}", f"ds_read_b64 {vr(OPZ+2*h,2)}, v{vH+1} offset:{OP_OFF+h*576+512}"]
        phi = lambda h: [("gap", self.comp(4, h))] + self.f_phi([R(4, h, 0), R(4, h, 1)], [R(4, h, 0), R(4, h, 1)])
        def mm(h):
            o = []
            for tt in range(2):
                b, e = vr(R(4, h, tt), 2), h % 2
                o += [f"v_mfma_f32_16x16x16_bf16 {vr(DEN+8*tt+4*e,4)}, {vr(OPZ+2*h,2)}, {b}, 0", f"v_mfma_f32_16x16x16_bf16 {vr(NUM+8*tt+4*e,4)}, {vr(OPK+2*h,2)}, {b}, 0"]
            return o
        def post(s2, tt):
            n, d = NUM + 8 * tt, DEN + 8 * tt
            o = [f"v_add_f32 v{d+4*e}, {sEPSC}, v{d+4*e}" for e in range(2)] + [f"v_rcp_f32 v{d+4*e}, v{d+4*e}" for e in range(2)]
            o += [f"v_mul_f32 v{n+i}, v{n+i}, v{d+4*(i//4)}" for i in range(8)]
            o += [f"v_cvt_pk_bf16_f32 v{d+i}, v{n+2*i}, v{n+2*i+1}" for i in range(4)]
            return o + [(f"buffer_store_dwordx4 {vr(d,4)}, v{vL16}, {srd('ws')}, s89 offen offset:{(2*s2+tt)*1024} sc1", "o")]
        def weave(main, extra, every):
            o = []; extra = list(extra)
            for k, f in enumerate(main):
                if extra and k % every == every - 1: o.append(extra.pop(0))
                o.append(f)
            return o + extra
        assert (cfg.op_at in self.BARS or (cfg.op_at == 160 and self.u4k)) and (self.u4k or cfg.hA_dl <= self.first(4, 2)) and cfg.hA_gap > cfg.hA_dl and (cfg.gate0_at in self.BARS or cfg.gate0_at == 160)
        fl += [("gap", max((cfg.op_at - cfg.PD) * 4 + 1, self.xdead(15 if self.u4k else 3)))] + opr
        last = [phi(0), weave(phi(1), mm(0), 4), weave(phi(2), mm(1), 4), post(0, 0) + post(0, 1)]
        for k in range(5):
            if k == cfg.finA + 2 and not self.u4k: fl += [("dl", 639)]
            fl += last[k] if k < 4 else []
        self.n_pre = cfg.n_preA; assert self.n_pre + cfg.n_epi <= (12 if self.u4k else 6)
        rest = self.units(fl, self.merge(self.f_pre(cfg.preA_gap), [("gap", cfg.hA_gap), lambda: self.flag(16, "h")])); self.st("fin")
        self.cur = 160
        self.n_pre += cfg.n_epi
        self.p2_plan()
        self.barrier(56 + wslot(self.p2b[0]) + 1, 56, op=cfg.op_at == 160, gate=[g for g, at in ((0, cfg.gate0_at), (8, cfg.gate8_at), (12, cfg.gate12_at)) if at == 160])
        self.st("_e0")
        lds_ = [x for u in range(cfg.n_preA, self.n_pre) for x in self.a2_loads(u)]
        self.run_fill(lds_ + rest + weave(phi(3), mm(2), 4) + mm(3), 10 ** 9)
        self.p2_start()
        self.run_fill(post(1, 0) + post(1, 1), 10 ** 9)
        self.st("p2")
        self.phase2({cfg.late_at: lambda: self.flag(28, "o")})
    def typeF(self):
        a, cfg = self.a, self.cfg
        ld, chk = self.f_nonce()
        self.xphase()
        self.unit0()
        R = self.accreg; xp, xl, xq = self.f_xres()
        sil = lambda u, cb: [("gap", self.comp(u, cb))] + self.f_silu([R(u, cb, 0), R(u, cb, 1)])
        h10, h11 = self.f_h(Q0, P0, sA2, 0, "h1"), self.f_h(Q0 + 8, P0 + 8, sA2, 2048, "h1")
        h2 = self.f_h(P0, P0 + 8, "s100", 0, "h2")
        h30, h31 = self.f_h(P0, Q0, "s88", 0, "h3"), self.f_h(P0 + 8, Q0 + 8, "s88", 2048, "h3")
        fl = [("gap", 128 + 2), ld] + sil(0, 0) + sil(0, 1) + sil(0, 2) + [chk, ("gap", self.comp(1, 1))] + h10[0] + [("dl", self.first(2, 0))] + h10[1]
        fl += sil(0, 3) + [("gap", self.comp(1, 3))] + h11[0] + h11[1] + [("dl", cfg.h1_dl)]
        fl += sil(2, 0) + sil(2, 1) + [("gap", self.comp(2, 3))] + h2[0] + h2[1] + [("dl", cfg.h2_dl)] + xp + xl + [f"s_add_u32 s88, s44, {8*8192}"]
        fl += sil(3, 0) + sil(3, 1) + sil(3, 2) + ([("dl", 639)] if cfg.finF == -1 else []) + sil(3, 3) + ([("dl", 639)] if cfg.finF == 0 else []) + [("gap", self.comp(4, 1))] + h30[0] + h30[1] + ([("dl", 639)] if cfg.finF == 1 else [])
        if MIXU == 4:
            h30, h31 = self.f_h(Q0, P0, "s88", 0, "h3"), self.f_h(Q0 + 8, P0 + 8, "s88", 2048, "h3")
            fl = [("gap", 128 + 2), ld] + sil(0, 0) + sil(0, 1) + sil(0, 2) + [chk, ("gap", self.comp(1, 1))] + h10[0] + [("dl", self.first(2, 0))]
            fl += sil(0, 3) + [("gap", self.comp(1, 3))] + h11[0] + [("dl", self.first(2, 2))] + h10[1] + h11[1] + [("dl", cfg.h1_dl)] + xp + xl + [f"s_add_u32 s88, s44, {8*8192}"]
            fl += sil(2, 0) + sil(2, 1) + sil(2, 2) + sil(2, 3) + [("gap", self.comp(3, 1))] + h30[0] + [("dl", self.first(4, 0))] + h30[1]
            fl += [("gap", self.comp(3, 3))] + h31[0] + h31[1] + [("dl", cfg.h2_dl)] + sil(4, 0) + sil(4, 1) + [("dl", 639)]
            assert cfg.h1_dl <= self.first(3, 0) and cfg.h2_dl <= self.first(4, 2) and not self.u4k
        def f2():
            self.st("_wh2"); a.wait_tag("h2"); self.st("_dh2")
            a(f"buffer_store_dword v{vTag}, v{vFl}, {srd('ws')}, s101 offen sc1")
        assert MIXU == 4 or (cfg.h1_dl <= self.first(2, 2) and cfg.h2_dl <= self.first(4, 0))
        assert cfg.n_preF + cfg.n_epiF <= (12 if self.u4k else 8) and not (self.u4k and cfg.finF == 1) and (cfg.gate0_at in self.BARS or cfg.gate0_at == 160)
        self.n_pre = cfg.n_preF; f3 = lambda: self.flag(8, "h3")
        rest = self.units(fl, self.merge(self.f_pre(cfg.preF_gap), [("gap", cfg.h1_dl + cfg.ack), lambda: self.flag(0, "h1")], [("gap", cfg.h2_dl + cfg.ack), f2 if MIXU == 2 else f3])); self.st("fin")
        self.cur = 160
        self.n_pre += cfg.n_epiF
        self.p2_plan()
        self.barrier(56 + wslot(self.p2b[0]) + 1, 56, gate=[g for g, at in ((0, cfg.gate0_at), (8, cfg.gate8_at), (12, cfg.gate12_at)) if at == 160])
        for u in range(cfg.n_preF, self.n_pre):
            for x in self.a2_loads(u): a(x)
        self.p2_start()
        self.run_fill(rest + (h31[0] + h31[1] if MIXU == 2 else h2[0] + h2[1]), 10 ** 9)
        self.st("p2")
        self.phase2({cfg.late_at: f3 if MIXU == 2 else f2})
    def p2_plan(self):
        cfg = self.cfg
        assert self.n_pre <= 8 or cfg.gate8_at <= 160
        nxt = self.n_pre; self.p2l = {}; self.p2g = {}
        for u in range(36):
            ld = []
            while nxt < 36 and nxt <= u + (cfg.D if u < cfg.d_sw else cfg.D2) and len(ld) < 2:
                if nxt in STAGES and not (nxt == 8 and cfg.gate8_at <= 160) and not (nxt == 12 and cfg.gate12_at <= 160): self.p2g.setdefault(u & ~1, []).append(nxt)
                ld.append(nxt); nxt += 1
            self.p2l[u] = ld
            assert nxt > min(35, (u + 1) | 1 if u + 1 < NSPL else u + 1) and nxt - (u & ~1) <= 16
        extra = [int(x) for x in (cfg.p2xA if self.typ == "A" else cfg.p2xF).split(",") if x]
        assert all(x % 2 == 0 for x in extra + list(self.p2g))
        self.p2b = sorted(set(list(self.p2g) + extra)) + [35]
        self.NM = 2 * NSPL + 4 * (36 - NSPL)
    def p2_read(self, m, j):
        if m >= self.NM: return
        w = self.find(k="w2", u=m // 4); assert w["n"] < self.full, (m, w, self.full)
        e, t2 = j // 2, j % 2
        self.lds("ds_read_b64_tr_b16", vr(WB0 + 8 * (m % 4) + 4 * e + 2 * t2, 2), vA + m % 4, w["addr"] + e * 4096 + t2 * 2048)
    def p2_start(self):
        for cb in range(4): self.a(f"v_add_u32 v{vA+cb}, v{vNM}, v{vA+cb}")
        for m in range(3):
            for j in range(4): self.p2_read(m, j)
    def phase2(self, hooks):
        a, cfg = self.a, self.cfg
        xq = self.f_xres()[2] + [f"v_mov_b32 v{T0}, 0xff", f"v_and_b32 v{T0+1}, 0xff, v{vTag}"]; xa = {}
        for cb in range(4): xa[4 * (cfg.xadd_at // 2 + 3) + cb + 2] = [f"v_add_f32 v{ACC+4*cb+i}, v{ACC+4*cb+i}, v{P0+4*cb+i}" for i in range(4)]
        exl = [f"buffer_load_dwordx4 {vr(P0+4*cb,4)}, v{vL16}, {srd('ws')}, s12 offen offset:{cb*1024} sc1" for cb in range(4)]
        exc = [f"v_xor_b32 v{P0+4*cb}, v{T0+1}, v{P0+4*cb}" for cb in range(4)] + [f"v_or3_b32 v{T0+2}, v{P0}, v{P0+4}, v{P0+8}", f"v_or_b32 v{T0+2}, v{T0+2}, v{P0+12}",
               f"v_and_b32 v{T0+2}, 0xff, v{T0+2}", f"v_cmp_ne_u32 vcc, 0, v{T0+2}"]
        def check():
            L = a.newlabel("Lx"); C = a.newlabel("Lc")
            self.st("_t0"); a(*exc); a(f"s_cbranch_vccnz {L}"); a.label(C); self.st("_t1")
            a.stubs += [f"{L}:"] + ["    " + y for y in [f"s_sleep {cfg.ex_s}"] + exl + [f"s_sub_u32 {sT}, {sT}, 1", "s_cbranch_scc1 L_end", "s_waitcnt vmcnt(0)"] + exc + [f"s_cbranch_vccnz {L}", f"s_branch {C}"]]
        add = lambda cb: [f"v_add_f32 v{ACC+4*cb+i}, v{ACC+4*cb+i}, v{P0+4*cb+i}" for i in range(4)] + [f"v_cvt_pk_bf16_f32 v{K0+2*cb+i}, v{ACC+4*cb+2*i}, v{ACC+4*cb+2*i+1}" for i in range(2)]
        swp = lambda k: [f"v_permlane16_swap_b32 v{K0+4*k}, v{K0+2+4*k}", f"v_permlane16_swap_b32 v{K0+1+4*k}, v{K0+3+4*k}"]
        sto = lambda k: [f"buffer_store_dwordx4 {vr(K0+4*k,4)}, v{vR}, {srd('out')}, s99 offen offset:{64*k} {cfg.out_aux.replace('_', ' ')}"]
        M0 = 2 * NSPL; sched = {}
        for cb in range(4):
            sched.setdefault(M0 - 2 + cb * cfg.ex_sp, []).extend([f"v_bfi_b32 v{Q0+4*cb}, v{T0}, v{vTag}, v{Q0+4*cb}", f"buffer_store_dwordx4 {vr(Q0+4*cb,4)}, v{vL16}, {srd('ws')}, s11 offen offset:{cb*1024} sc1;ex"])
            sched.setdefault(self.NM - cfg.ex_ld + cb // cfg.ex_n, []).append(exl[cb])
        assert cfg.ex_sp >= 1 and M0 - 2 + 3 * cfg.ex_sp < self.NM - cfg.ex_ld and cfg.ex_ld >= 4 // cfg.ex_n
        fin = [check] + add(0) + add(1) + swp(0) + sto(0) + add(2) + add(3) + swp(1) + sto(1)
        if cfg.ex_ck:
            m1 = self.NM - cfg.ex_ck; assert 4 <= cfg.ex_ck <= cfg.ex_ld - 4 // cfg.ex_n
            sched.setdefault(m1, []).append(check)
            for k in range(4): sched.setdefault(m1 + k, []).extend(add((m1 + k + 2) % 4)[:4])
            fin = add(0)[4:] + add(1)[4:] + swp(0) + sto(0) + add(2)[4:] + add(3)[4:] + swp(1) + sto(1)
        for m in range(self.NM):
            split = m < M0; cb = m % 4
            u, h = (m // 2, m % 2) if split else (NSPL + (m - M0) // 4, cb // 2 if cb % 2 == 0 else None)
            buf = WB0 + 8 * (m % 4)
            if h == 0:
                if u in hooks: hooks[u]()
                if u in self.p2b[:-1]:
                    a.need(vr(buf, 8))
                    self.barrier(56 + wslot(self.p2b[self.p2b.index(u) + 1]) + 1, 56 + wslot(u), phase="2", gate=self.p2g.get(u))
                self.st(f"c{u}" if u in (4, 12, 20, 28, 35) else f"_c{u}")
            extra = self.a2_loads(self.p2l[u][h]) if h is not None and len(self.p2l[u]) > h else []
            x = [self.SL[(u & ~1) % 16], self.SL[(u | 1) % 16]] if split else [self.SL[u % 16]]
            a.need(vr(WB0 + 8 * ((m | 1) % 4) if split else buf, 8), *[vr(q, 4) for y in x for q in y])
            order = ((0, 0), (1, 0), (1, 1), (0, 1)) if split else ((0, 0), (1, 0))
            for j, (e, t) in enumerate(order):
                d = (ACC, Q0)[t] + 4 * cb
                a(M16(d, buf + 4 * e, x[t][e], "0" if (m < 4 and j % 2 == 0) else d))
                for jj in ((j,) if split else (2 * j, 2 * j + 1)): self.p2_read(m + 3, jj)
                if u >= cfg.xadd_at and xq and (j == 0 or not extra): a(xq.pop(0))
                if m in xa and j == 2:
                    assert not xq
                    a(*xa.pop(m))
                if j >= 1 and extra: a(extra.pop(0))
            a(*extra)
            if cfg.ex_w and m == self.NM - cfg.ex_ld: a.wait_tag("ex")
            for f in sched.get(m, []):
                if callable(f): f()
                else: a.e(f.split(";")[0], tag="ex" if f.endswith(";ex") else None)
        assert not xa
        self.run_fill(fin, 10 ** 9)
        self.st("_t2")
        if cfg.diag:
            a("s_waitcnt vmcnt(0)"); self.st("end")
        self.st.flush(130, 129)
        a("s_endpgm")

class Loader:
    vX, vQ, vG, vD, vHh = 2, 4, 6, 16, 10
    vTag, vPo, vPo2, vP = 13, 14, 15, 16
    def __init__(self, a, cfg, comp):
        self.a, self.cfg, self.it, self.typ, self.bars = a, cfg, comp.it, comp.typ, comp.bars
        self.issued = 0
        self.st = Stamps(a, cfg, list(range(88, 102, 2)) + [8, 10] + list(range(16, 36, 2)))
    def slow_poll(self, load, cmp):
        a = self.a
        C = a.newlabel("Lc"); L = a.newlabel("Lp")
        a(cmp, f"s_cbranch_vccz {C}")
        a.label(L)
        a.raw("    " + load); timeout(a); a.raw("    s_waitcnt vmcnt(0)"); a.raw("    " + cmp); a.raw(f"    s_cbranch_vccnz {L}")
        a.label(C)
    def prologue(self):
        a = self.a
        a("v_and_b32 v0, 63, v0", f"s_sub_u32 {sW}, {sW}, 4", f"s_lshl_b32 s77, {sW}, 11")
        a("v_lshrrev_b32 v21, 3, v0", "v_and_b32 v22, 7, v0", "v_lshrrev_b32 v23, 4, v0", "v_xor_b32 v24, v22, v23", "v_lshlrev_b32 v24, 4, v24")
        a(f"v_lshl_add_u32 v{self.vX}, v21, 10, v24", f"v_xor_b32 v{self.vX+1}, 64, v{self.vX}", f"v_add_u32 v{self.vX+1}, {8*1024-1024}, v{self.vX+1}")
        a(f"s_lshl_b32 s79, {sC}, 2", f"s_add_u32 s79, s79, {sW}", "s_lshl_b32 s79, s79, 15")
        a("s_movk_i32 s85, 0x3ff", f"s_lshl_b32 s84, {sROT}, 7" if self.cfg.rot else "s_mov_b32 s84, 0", "s_and_b32 s84, s84, s85", "s_add_u32 s78, s79, s84", "s_mov_b32 m0, s77")
        if self.cfg.lprio: a(f"s_setprio {self.cfg.lprio}")
        srd_const(a, "x")
        if "X0" in self.cfg.planX:
            a("s_lshr_b32 s82, s2, 7", "s_lshl_b32 s82, s82, 3", f"s_add_u32 s82, s82, {sI}", f"s_lshl_b32 s83, {sC}, 4", "s_add_u32 s82, s82, s83",
              "s_lshl_b32 s82, s82, 2", f"s_add_u32 s82, s82, {sW}", "s_lshl_b32 s82, s82, 11", "v_lshlrev_b32 v28, 7, v0")
        if self.cfg.prearly: self.prologue2a()
        a("s_waitcnt lgkmcnt(0)")
        srd_base(a, "x")
    def prologue2a(self):
        a = self.a
        for n in ("qkv", "gate", "up"): srd_const(a, n)
        a(f"s_lshl_b32 s76, {sW}, 4", "v_add_u32 v21, s76, v21", f"s_lshl_b32 s80, {sI}, 7")
        a("v_lshlrev_b32 v25, 1, v23", "v_and_b32 v25, 2, v25", "v_xor_b32 v24, v22, v25", "v_lshlrev_b32 v24, 4, v24", "v_xor_b32 v26, 64, v24")
        for reg, st in ((self.vQ, 3072), (self.vG, 3584)):
            a(f"v_mul_u32_u24 v25, {st}, v21", f"v_add_u32 v{reg}, v25, v24", f"v_add_u32 v{reg+1}, v25, v26", f"v_add_u32 v{reg+1}, {8*st-1024}, v{reg+1}")
    def prologue2(self):
        a = self.a
        if not self.cfg.prearly: self.prologue2a()
        for n in ("qkv", "gate", "up"): srd_base(a, n)
        a(f"s_xor_b32 s0, s80, {self.cfg.x1 << 7}", f"s_xor_b32 s1, s80, {self.cfg.x4 << 7}")
    def prologue3(self):
        a = self.a
        for n in ("down", "wo", "ws", "dbg"): srd_base(a, n); srd_const(a, n)
        a("v_lshlrev_b32 v25, 1, v23", "v_xor_b32 v24, v22, v25", "v_lshlrev_b32 v24, 4, v24", f"v_lshl_add_u32 v{self.vD}, v21, 10, v24",
          f"v_add_u32 v{self.vD+1}, {8*1024-1024}, v{self.vD}")
        a("v_lshrrev_b32 v25, 2, v0", f"s_lshl_b32 s76, {sW}, 5", "v_add_u32 v25, s76, v25", "v_mul_u32_u24 v25, 3584, v25", "v_and_b32 v26, 3, v0",
          "v_and_b32 v27, 2, v23", "v_xor_b32 v27, v26, v27", f"v_lshl_add_u32 v{self.vHh}, v27, 4, v25", f"v_add_u32 v{self.vHh+1}, {16*3584-1024}, v{self.vHh}")
        a("v_lshlrev_b32 v27, 4, v0")
        a(f"s_and_b32 s76, {sW}, 2", "s_lshl_b32 s76, s76, 7", f"s_and_b32 s82, {sW}, 1", "s_lshl_b32 s82, s82, 11", "s_add_u32 s76, s76, s82", f"v_lshl_add_u32 v{self.vPo}, v26, 9, s76")
        a("v_lshlrev_b32 v18, 10, v26", "v_lshrrev_b32 v25, 1, v26", "v_lshlrev_b32 v25, 10, v25", f"v_and_b32 v{self.vPo2}, 1, v26", f"v_lshl_add_u32 v{self.vPo2}, v{self.vPo2}, 7, v25")
        a(f"s_lshl_b32 s81, {sCB}, 7")
        a(f"s_mul_i32 s83, {sTB}, {36*512}", f"s_add_u32 s83, s83, {WS_FLAG:#x}")
        a(f"s_and_b32 s76, {sTB}, 1", "s_lshl_b32 s69, s76, 16", "s_add_u32 s69, s69, s81")
        a(f"s_and_b32 s71, {sTB}, 30", f"s_lshr_b32 s70, {sW}, 1", "s_add_u32 s71, s71, s70", "s_mul_i32 s71, s71, 36", "s_add_u32 s71, s71, s76", "s_lshl_b32 s71, s71, 1",
          f"s_and_b32 s70, {sW}, 1", "s_add_u32 s71, s71, s70", "s_lshl_b32 s71, s71, 8", f"s_add_u32 s71, s71, {WS_FLAG:#x}")
        a("s_lshl_b32 s86, s2, 2", f"s_add_u32 s86, s86, {sW}", "s_lshr_b32 s87, s2, 3", "s_lshl_b32 s87, s87, 2", f"s_add_u32 s87, s87, {sW}", "v_lshlrev_b32 v28, 7, v0", "v_lshlrev_b32 v30, 10, v0")
        a(f"s_lshl_b32 s38, {sI}, 4", f"s_add_u32 s38, s38, {sC}", "s_mul_i32 s82, s38, 6144", f"s_add_u32 s82, s82, {WS_KV:#x}", "s_mul_i32 s38, s38, 384", f"s_add_u32 s38, s38, {WS_KV2:#x}")
        a(f"s_xor_b32 s39, {sI}, {self.cfg.x4}", "s_lshl_b32 s39, s39, 2", f"s_add_u32 s39, s39, {sW}", "s_mul_i32 s39, s39, 1536", f"s_add_u32 s39, s39, {WS_KV2:#x}")
        a("v_and_b32 v41, 15, v0", "v_lshl_add_u32 v42, v23, 7, v27", "v_mul_u32_u24 v40, 384, v23")
        a("v_lshrrev_b32 v39, 2, v0", "v_mul_u32_u24 v39, 384, v39", "v_lshl_add_u32 v39, v26, 3, v39")
        a("v_lshlrev_b32 v38, 2, v23", "v_lshl_add_u32 v38, v41, 4, v38", "v_lshlrev_b32 v37, 2, v0", "v_mov_b32 v36, 0xff")
        a(f"s_mul_i32 s76, {sW}, 576", "v_lshl_add_u32 v43, v0, 3, s76", "v_lshl_add_u32 v44, v23, 3, s76")
    def prologue4(self):
        a, cfg = self.a, self.cfg
        pA, pB = make_items(cfg, "A")[1]
        a(f"v_lshl_add_u32 v48, {sW}, 10, v27", f"v_add_u32 v49, {pB}, v48", f"v_add_u32 v48, {pA}, v48")
        a("v_lshlrev_b32 v50, 2, v26", "v_lshl_add_u32 v50, v23, 4, v50", f"v_lshl_add_u32 v50, {sW}, 6, v50")
        a("v_mul_u32_u24 v51, 5888, v23", "v_add_u32 v51, v51, v27", "v_mul_u32_u24 v52, 6016, v23", "v_lshl_add_u32 v52, v0, 3, v52")
        a(f"s_lshl_b32 s68, {sI}, 2", f"s_add_u32 s68, s68, {sW}", "s_lshl_b32 s68, s68, 6", f"s_add_u32 s68, s68, {sC}", "s_mul_i32 s68, s68, 384", f"s_add_u32 s68, s68, {WS_KV:#x}")
    def kv_publish(self):
        a = self.a
        for s in range(4): a(f"ds_read_b128 {vr(96+4*s,4)}, v{48+s//2} offset:{(s%2)*4096}")
        for s in range(4): a(f"ds_read_b32 v{112+s}, v50 offset:{ZR_OFF+s*256}")
        a.wait(lg=0)
        for s in range(1, 4): a(*[f"v_add_f32 v{96+r}, v{96+r}, v{96+4*s+r}" for r in range(4)], f"v_add_f32 v112, v112, v{112+s}")
        a(*[f"v_bfi_b32 v{r}, v36, v{self.vTag}, v{r}" for r in (96, 112)], "v_mov_b32 v113, v112")
        a(f"buffer_store_dwordx4 v[96:99], v51, {srd('ws')}, s68 offen sc1", f"buffer_store_dwordx2 v[112:113], v52, {srd('ws')}, s68 offen offset:256 sc1")
    def colbase(self, u): return (("s80", "s80", "s0", "s0", "s1") if self.typ == "A" else ("s80", "s80", "s0", "s0", "s0"))[u]
    def item(self, x, reg=None):
        a = self.a; k = x["k"]; aux = ""; rot = None
        if k == "x":
            n, t, sl = x["n"], x["t"], x["s"]
            assert x["addr"] == 8192 * (n + 1)
            a("s_addk_i32 m0, 0x2000")
            if n == 0: pass
            elif sl % 2 == 1: a("s_addk_i32 s78, 128")
            elif n == 2 and t == 1: a("s_addk_i32 s78, 0x3f80")
            else:
                if n == 10 and self.cfg.xo == 0: a("s_addk_i32 s79, 0x4000", "s_addk_i32 s84, 256")
                if n == 8 and t == 1: a("s_addk_i32 s79, 0x4000")
                a("s_addk_i32 s84, 256", "s_and_b32 s84, s84, s85", "s_add_u32 s78, s79, s84")
            a.e(f"buffer_load_dwordx4 v{self.vX}, {srd('x')}, s78 offen lds", tag=n)
            a.e(f"buffer_load_dwordx4 v{self.vX+1}, {srd('x')}, s78 offen offset:1024 lds", tag=n)
            self.issued = n + 1
            return
        elif k == "w1":
            u, i = x["u"], x["i"]
            if self.typ == "A":
                s, v, st, off = [("qkv", self.vQ, 3072, 1024), ("qkv", self.vQ, 3072, 2048), ("gate", self.vG, 3584, 16 * 128),
                                 ("up", self.vG, 3584, 16 * 128), ("qkv", self.vQ, 3072, 0)][u]
                base, rot = self.colbase(u), (i, 64 * st)
            elif u != MIXU:
                uu = u - (u > MIXU)
                s, v, base, off, rot = ("gate", "up")[uu % 2], self.vG, self.colbase(u), (uu // 2) * 8 * 128, (i, 64 * 3584)
            else:
                if i == 0: a(f"s_lshl_b32 s79, {sI}, 6")
                s, v, base, off, rot = ("gate", "up")[i // 4], self.vHh, "s79", 24 * 128, (2 * (i % 4), 64 * 3584)
        elif k == "w2":
            u = x["u"]; U, split = unit_of(2 * u if 2 * u < NSPL else u - NSPL // 2 + NSPL)
            s, v, base, off = ("down", self.vD, "s69" if split else "s81", U * 65536) if U < 28 else ("wo", self.vD, "s69" if split else "s81", (U - 28) * 65536)
        if rot and self.cfg.rot:
            a(f"s_add_u32 s84, {sROT}, {rot[0]}", "s_and_b32 s84, s84, 7", f"s_mul_i32 s84, s84, {rot[1]}", f"s_add_u32 s84, s84, {base}")
            base = "s84"
        elif rot: off += rot[0] * rot[1]
        if reg is not None:
            a(f"s_add_u32 s78, {base}, {off}")
            a(f"buffer_load_dwordx4 {vr(reg,4)}, v{v}, {srd(s)}, s78 offen", f"buffer_load_dwordx4 {vr(reg+4,4)}, v{v+1}, {srd(s)}, s78 offen offset:1024")
            return
        a(f"s_add_u32 m0, s77, {x['addr']}", f"s_add_u32 s78, {base}, {off}")
        a.e(f"buffer_load_dwordx4 v{v}, {srd(s)}, s78 offen lds", tag=x["n"])
        a.e(f"buffer_load_dwordx4 v{v+1}, {srd(s)}, s78 offen offset:1024 lds", tag=x["n"])
        self.issued = x["n"] + 1
    def sub(self, loads, check, work, since):
        a = self.a
        b = Asm(); b.uid = a.uid + 1; a.uid += 10
        L, C = b.newlabel("Lr"), b.newlabel("Lc")
        b(f"s_waitcnt vmcnt({since})", *check); b(f"s_cbranch_vccz {C}")
        b.label(L); b(*loads); timeout(b); b("s_waitcnt vmcnt(0)", *check); b(f"s_cbranch_vccnz {L}")
        b.label(C); b.reset(); b("s_nop 0"); b(*work)
        return b.out
    def by_wave(self, parts):
        a = self.a; E = a.newlabel("Le")
        for w, p in enumerate(parts):
            N = a.newlabel("Ln")
            a.out += [f"    s_cmp_lg_u32 {sW}, {w}", f"    s_cbranch_scc1 {N if w + 1 < len(parts) else E}"] + p
            if w + 1 < len(parts): a.out += [f"    s_branch {E}", N + ":"]
        a.label(E); a.hist = []
    def kv(self, x):
        a, tg, ws = self.a, self.vTag, srd("ws")
        def chk(regs):
            o = [f"v_and_b32 v33, 0xff, v{tg}"] + [f"v_xor_b32 v{r}, v33, v{r}" for r in regs] + [f"v_mov_b32 v32, v{regs[0]}"]
            for k in range(1, len(regs), 2): o += [f"v_or3_b32 v32, v32, v{regs[k]}, v{regs[min(k + 1, len(regs) - 1)]}"]
            return o + ["v_and_b32 v32, 0xff, v32", "v_cmp_ne_u32 vcc, 0, v32"]
        l1 = [y for t in range(4) for y in (f"s_add_u32 s78, s82, {t*1536}", f"buffer_load_dwordx4 {vr(64+4*t,4)}, v42, {ws}, s78 offen sc1")]
        l1z = [f"buffer_load_dword v64, v39, {ws}, s82 offen offset:256 sc1"]
        l2 = [f"buffer_load_dwordx4 v[80:83], v42, {ws}, s39 offen sc1", f"buffer_load_dwordx4 v[84:87], v40, {ws}, s39 offen offset:256 sc1"]
        if x in ("G0", "G1"):
            if x == "G0": self.by_wave([["    " + y for y in l1], ["    " + y for y in l1z]])
            else: a.out += ["    " + y for y in l2]
            self.mark = a.nvm
        elif x == "S0":
            w0 = [f"v_add_f32 v{64+r}, v{64+r}, v{68+r}" for r in range(4)] + [f"v_add_f32 v{72+r}, v{72+r}, v{76+r}" for r in range(4)] + [f"v_add_f32 v{64+r}, v{64+r}, v{72+r}" for r in range(4)]
            w0 += ["v_permlane32_swap_b32 v64, v66", "v_permlane32_swap_b32 v65, v67", "v_add_f32 v64, v64, v66", "v_add_f32 v65, v65, v67", "v_permlane16_swap_b32 v64, v65", "v_add_f32 v64, v64, v65",
                   f"v_bfi_b32 v64, v36, v{tg}, v64", f"buffer_store_dword v64, v38, {ws}, s38 offen sc1"]
            w1 = ["v_add_f32_dpp v64, v64, v64 row_ror:4 row_mask:0xf bank_mask:0xf", "v_add_f32_dpp v64, v64, v64 row_ror:8 row_mask:0xf bank_mask:0xf",
                  "v_mov_b32 v65, v64", "v_permlane32_swap_b32 v64, v65", "v_add_f32 v64, v64, v65", "v_mov_b32 v65, v64", "v_permlane16_swap_b32 v64, v65", "v_add_f32 v64, v64, v65",
                  f"v_mul_f32 v64, {f2u(LOG2E):#x}, v64", f"v_bfi_b32 v64, v36, v{tg}, v64", "s_mov_b32 exec_hi, 0", f"buffer_store_dword v64, v37, {ws}, s38 offen offset:256 sc1", "s_mov_b32 exec_hi, -1"]
            k = min(63, a.nvm - self.mark)
            self.by_wave([self.sub(l1, chk([64, 68, 72, 76]), w0, k), self.sub(l1z, chk([64]), w1, k)])
        else:
            w = [f"v_cvt_pk_bf16_f32 v{88+i}, v{80+2*i}, v{81+2*i}" for i in range(4)]
            w += [f"ds_write_b64 v43, v[88:89] offset:{OP_OFF}", f"ds_write_b64 v44, v[90:91] offset:{OP_OFF+512}"]
            a.out += self.sub(l2, chk(list(range(80, 88))), w, min(63, a.nvm - self.mark)); a.hist = []
    def sweep(self, lst, idx):
        a = self.a
        for nm, nl, base in lst:
            a(f"s_mul_i32 s76, {idx}, {nl*128}")
            if base: a(f"s_add_u32 s76, s76, {base}")
            a(f"s_mov_b64 exec, {(1 << nl) - 1:#x}", f"buffer_load_dword v{140+self.npf}, v28, {srd(nm)}, s76 offen"); self.npf += 1
        a("s_mov_b64 exec, -1")
    def action(self, x):
        a, cfg = self.a, self.cfg
        nload = f"buffer_load_dword v{self.vTag}, off, {srd('dbg')}, 0 sc1"
        need = {"U": ["PR"], "V": ["PR"], "PS": ["PR"], "P1": ["PS"], "P2": ["PS"], "P2a": ["PS"], "L": ["PS"], "R": ["PS"], "R0": ["PS"], "C": ["PS"], "N0": ["PS"], "N1": ["N0"],
                "G0": ["PS"], "G1": ["S0"], "S0": ["G0", "N1"], "S1": ["G1", "S0"], "Q": ["PS"]}
        for y in need.get(x, need.get(x[0], []) if x[0] in "UVLQ" else []): assert y in self.done, (x, "before", y)
        assert x not in self.done and x != "C" and x[0] not in "YZ" and NSPL in (20, 24, 28) and MIXU == 2, x
        assert not (x == "V2" and self.issued < 16)
        self.done.add(x)
        if x[0] == "Q":
            u = int(x[1:]); a(f"s_add_u32 s76, {'s71' if u < NSPL else 's83'}, {(8 if u == 24 else stage_of(u)[1])*512}", "s_mov_b64 exec, 15", self.pl(u, 99), "s_mov_b64 exec, -1")
        elif x == "P1": self.sweep((("gate", 14, 0), ("up", 14, 0), ("qkv", 12, 0)), "s86")
        elif x == "P2": self.sweep((("down", 14, 0), ("wo", 4, 0)), "s86")
        elif x == "P2a": self.sweep((("down", 8, 0),), "s86")
        elif x[0] == "L":
            k = int(x[1:]); self.sweep(((("down", 16, k << 18) if k < 7 else ("wo", 16, (k - 7) << 18)),), "s87")
        elif x in ("R", "R0"):
            for nm, nl in ((("down", 14), ("wo", 4)) if x == "R" else (("qkv", 12),)):
                a(f"s_mul_i32 s76, s87, {nl*1024}", f"s_mov_b64 exec, {(1 << nl) - 1:#x}", f"buffer_load_dword v{140+self.npf}, v30, {srd(nm)}, s76 offen offset:384"); self.npf += 1
            a("s_mov_b64 exec, -1")
        elif x[0] in "UV":
            if not hasattr(self, "split"): self.split = len(a.out)
            u = int(x[1:])
            if self.typ == "A": s_, v, st, off = [("qkv", self.vQ, 3072, 1024), ("qkv", self.vQ, 3072, 2048), ("gate", self.vG, 3584, 2048), ("up", self.vG, 3584, 2048), ("qkv", self.vQ, 3072, 0)][u]
            else: uu = u - (u > MIXU); s_, v, st, off = ("gate", "up")[uu % 2], self.vG, 3584, (uu // 2) * 1024
            if x[0] == "V":
                a(f"s_lshl_b32 s76, {sC}, 2", f"s_sub_u32 s76, s76, {sW}", f"s_mul_i32 s76, s76, {8*st}", "s_mov_b32 exec_lo, 0x01010101", "s_mov_b32 exec_hi, 0x01010101")
                if self.typ == "F" and u == MIXU:
                    a(f"s_lshr_b32 s84, {sI}, 1", "s_lshl_b32 s84, s84, 7", "s_add_u32 s76, s76, s84", f"v_add_u32 v29, s76, v{v}")
                    for s_ in ("gate", "up"):
                        a(f"buffer_load_dword v{140+self.npf}, v29, {srd(s_)}, 0 offen offset:3072"); self.npf += 1
                else:
                    a(f"s_add_u32 s76, s76, {self.colbase(u)}", f"v_add_u32 v29, s76, v{v}", f"buffer_load_dword v{140+self.npf}, v29, {srd(s_)}, 0 offen offset:{off}"); self.npf += 1
                a("s_mov_b64 exec, -1")
                return
            assert cfg.grid == 24 and not (self.typ == "F" and u == MIXU)
            a(f"s_and_b32 s76, {sC}, 7", f"s_mul_i32 s76, s76, {64*st}", f"s_add_u32 s76, s76, {self.colbase(u)}", "s_mov_b32 exec_lo, 0x01010101", "s_mov_b32 exec_hi, 0x01010101")
            for t in range(2):
                a(f"buffer_load_dword v{140+self.npf}, v{v+t}, {srd(s_)}, s76 offen offset:{off+1024*t}"); self.npf += 1
            a("s_mov_b64 exec, -1")
        elif x[0] == "Z":
            assert "PS" in self.done
            if x[1] in "dw":
                nm, nl = (("down", 14) if x[1] == "d" else ("wo", 4)); offs = range(14 * int(x[2]), 14 * int(x[2]) + 14) if x[1] == "d" else range(8)
                a(f"s_mul_i32 s76, s86, {nl*128}"); offs = [64 * k for k in offs]
            else:
                u = int(x[1])
                if self.typ == "A": nm, st, off = [("qkv", 3072, 1024), ("qkv", 3072, 2048), ("gate", 3584, 2048), ("up", 3584, 2048), ("qkv", 3072, 0)][u]
                else: uu = u - (u > MIXU); nm, st, off = ("gate", "up")[uu % 2], 3584, (uu // 2) * 1024; assert u != MIXU
                a(f"s_lshl_b32 s76, {sC}, 2", f"s_add_u32 s76, s76, {sW}", f"s_mul_i32 s76, s76, {8*st}", f"s_add_u32 s76, s76, {self.colbase(u)}")
                offs = [off + r * st + 64 * h for r in range(8) for h in range(2)]
            a(f"s_add_u32 s70, s{SRD[nm]}, s76", f"s_addc_u32 s71, s{SRD[nm]+1}, 0")
            for o in offs: a(f"s_load_dword s69, s[70:71], {o}")
        elif x == "X0":
            assert "PS" not in self.done
            a("s_mov_b64 exec, 0xffff", f"buffer_load_dword v139, v28, {srd('x')}, s82 offen", "s_mov_b64 exec, -1")
        elif x in ("Y0", "Y1"):
            u = int(x[1]); A, F = SRD["qkv"], SRD[("gate", "up")[u]]
            a("s_cmp_lt_u32 s2, 128", f"s_cselect_b64 s[68:69], s[{A}:{A+1}], s[{F}:{F+1}]", f"s_cselect_b32 s70, s{A+2}, s{F+2}", "s_cselect_b64 vcc, -1, 0",
              f"s_cselect_b32 s83, {1024*(u+1)}, 0", "s_movk_i32 s76, 0x7000", "s_cselect_b32 s76, 0x6000, s76", "s_mov_b32 s71, 0x20000",
              f"s_lshl_b32 s86, {sC}, 2", f"s_sub_u32 s86, s86, {sW}", "s_mul_i32 s76, s76, s86", "s_add_u32 s76, s76, s83", "s_add_u32 s76, s76, s80",
              f"v_cndmask_b32 v29, v{self.vG}, v{self.vQ}, vcc", "v_add_u32 v29, s76, v29", "s_mov_b32 exec_lo, 0x01010101", "s_mov_b32 exec_hi, 0x01010101",
              f"buffer_load_dword v{137+u}, v29, s[68:71], 0 offen", "s_mov_b64 exec, -1")
            assert "PS" not in self.done and "PR" in self.done
        elif x == "PR": self.prologue2()
        elif x == "PS": self.prologue3()
        elif x == "PK": assert "PS" in self.done; self.prologue4()
        elif x == "C":
            L = a.newlabel("Lpc")
            a("s_getpc_b64 s[70:71]"); a.label(L)
            a(f"s_sub_u32 s70, s70, {L}-{NAME}_kernel", "s_subb_u32 s71, s71, 0", "s_mul_i32 s76, s87, 640", "v_add_u32 v29, s76, v28", f"v_min_u32 v29, L_last-{NAME}_kernel, v29")
            a("s_mov_b64 exec, 31", f"global_load_dword v{140+self.npf}, v29, s[70:71]", "s_mov_b64 exec, -1"); self.npf += 1
        elif x[0] == "W": self.st(x + "a"); a("s_waitcnt vmcnt(0)"); self.st(x + "b")
        elif x[0] == "T": self.st(x)
        elif x == "N0": a(nload)
        elif x == "N1": self.slow_poll(nload, f"v_cmp_eq_u32 vcc, 0, v{self.vTag}")
        elif cfg.nogather and x in ("G0", "G1", "S0", "S1"): pass
        elif x in ("G0", "G1"): self.kv(x)
        elif x in ("S0", "S1"): a(f"s_setprio {cfg.gprio}"); self.kv(x); a(f"s_setprio {cfg.lprio}"); self.st("g" + x[1])
        else: raise KeyError(x)
    def run(self):
        a, cfg, it = self.a, self.cfg, self.it
        self.st("start"); self.npf = 0; self.done = set()
        if os.environ.get("ENTRY"):
            a.raw(f"    s_mov_b32 s{self.st.regs[self.st.n]}, s14"); self.st.n += 1; self.st.names.append("entry")
        spec = (cfg.planX + " " + (cfg.planA if self.typ == "A" else cfg.planF)).split()
        pol = {int(x.split(":")[0]): [int(y) for y in x.split(":")[1].split(",")] for x in cfg.polls.split()}
        for g in pol:
            if any(f"Q{g}" in y.split(",") for y in spec): pol[g] = [99]
        for bi, b in enumerate(self.bars):
            for g in b.get("gate") or []:
                for k in pol[g] if pol[g] != [99] else []: self.bars[bi - k].setdefault("poll", []).append((g, k))
        freed = 0; plan = []
        for bi, b in enumerate(self.bars):
            vP = lambda u, k: 200 + 4 * STAGES.index(u) + pol[u].index(k)
            pl = lambda u, k: f"buffer_load_dword v{vP(u, k)}, v{self.vPo2 if stage_of(u)[2] == 4 else 18 if u < NSPL else self.vPo}, {srd('ws')}, s76 offen sc1"
            self.pl = pl
            if cfg.kvl and bi and self.bars[bi - 1].get("kvx"):
                assert "N1" in self.done and "PK" in self.done and freed < cfg.scr_rel
                a(f"s_setprio {cfg.kprio}"); self.kv_publish(); a(f"s_setprio {cfg.lprio}")
            for u, k in b.get("poll", []): a(f"s_add_u32 s76, {'s71' if u < NSPL else 's83'}, {(8 if u == 24 else stage_of(u)[1])*512}", "s_mov_b64 exec, 15", pl(u, k), "s_mov_b64 exec, -1")
            acts = spec[bi].split(",") if bi < len(spec) else [cfg.p2_cap]
            for x in acts + ["req"]:
                if x[0].isdigit() or x == "req":
                    depth = int(x.split("t")[1]) if "t" in x else None
                    lim = self.issued + int(x.split("t")[0]) if x != "req" else b["full"]
                    while self.issued < min(lim, len(it)):
                        y = it[self.issued]
                        if y["need"] > freed:
                            assert x != "req", ("deadlock", bi, b, y); break
                        if x == "req": print(f"  [{self.typ}] barrier {bi}: item {y['n']} issued only when required", file=sys.stderr)
                        if y["n"] == 16 and not hasattr(self, "split"): self.split = len(a.out)
                        if y["n"] in (16, 32, 56): self.st(f"i{y['n']}")
                        assert y["n"] < 16 or "PR" in self.done
                        assert y["n"] < 32 or "PS" in self.done
                        if depth: a.wait_tag(y["n"] - depth)
                        self.item(y)
                else: self.action(x)
            if b.get("op") and not cfg.nogather:
                assert "S1" in self.done
                a("s_waitcnt lgkmcnt(0)")
            for u in b.get("gate") or []:
                a(f"s_add_u32 s76, {'s71' if u < NSPL else 's83'}, {(8 if u == 24 else stage_of(u)[1])*512}", "s_mov_b64 exec, 15")
                assert "N1" in self.done and (pol[u] != [99] or f"Q{u}" in self.done)
                Cg = a.newlabel("Lc"); save = None
                for k in pol[u][:-1]:
                    a(f"v_cmp_ne_u32 vcc, v{self.vTag}, v{vP(u, k)}", f"s_cbranch_vccz {Cg}")
                    if save is None: save = list(a.vm)
                k = pol[u][-1]
                self.slow_poll(pl(u, k), f"v_cmp_ne_u32 vcc, v{self.vTag}, v{vP(u, k)}")
                a.label(Cg)
                if save is not None: a.vm = save
                a("s_mov_b64 exec, -1")
                self.st(f"f{u}")
            for n in range(b["full"] - 1, -1, -1):
                if any(e[1] == n for e in a.vm): a.wait_tag(n); break
            if cfg.bdiag: a.raw("    s_memtime s[12:13]")
            a("s_barrier")
            if cfg.bdiag:
                for x_ in ("s_memtime s[14:15]", "s_waitcnt lgkmcnt(0)", f"v_writelane_b32 v46, s12, {bi}", f"v_writelane_b32 v47, s14, {bi}"): a.raw("    " + x_)
            freed = b["freed"]
            plan.append(f"{bi}:{b['step']}:d{b['dur']:.0f}:f{b['full']}:i{self.issued}:{','.join(acts)}" + (f":gate{b['gate']}" if b.get("gate") else ""))
        assert self.issued == len(it)
        print(f"plan {self.typ}:", " ".join(plan), file=sys.stderr)
        self.st("end")
        if cfg.bdiag:
            a("s_lshl_b32 s76, s2, 2", f"s_add_u32 s76, s76, {sW}", "s_lshl_b32 s76, s76, 9", f"s_add_u32 s76, s76, {WS_DIAG+0x100000:#x}", "v_lshlrev_b32 v45, 2, v0")
            a(f"buffer_store_dword v46, v45, {srd('ws')}, s76 offen", f"buffer_store_dword v47, v45, {srd('ws')}, s76 offen offset:256")
        self.plan = plan
        if cfg.diag: a(f"s_add_u32 {sW}, {sW}, 4")
        self.st.flush(130, 129)
        a("s_endpgm")

NPAD = 8
def touch_code(cfg):
    if not cfg.pads: return []
    o = ["s_cmp_ge_u32 s2, 128", "s_cbranch_scc1 L_tF"]
    for typ in "AF":
        o += [f"L_t{typ}:"]
        for w in range(4):
            if w < 3: o += [f"s_cmp_lg_u32 {sW}, {w}", f"s_cbranch_scc1 L_t{typ}{w+1}"]
            o += [f"s_call_b64 s[30:31], L_pad{typ}{k}" for k in range(w, NPAD, 4)] + ["s_branch L_tdone"]
            if w < 3: o += [f"L_t{typ}{w+1}:"]
    return [x if x.endswith(":") else "    " + x for x in o[:-1] + ["L_tdone:"]]
def place(lines, cfg):
    import subprocess, tempfile
    ins = [l for l in lines if not l.strip().startswith(".")]
    labels = set(re.findall(r"\bL_\w+", "\n".join(ins))) - {l[:-1] for l in ins if l.endswith(":")}
    with tempfile.TemporaryDirectory() as d:
        open(d + "/x.s", "w").write(".text\n" + "\n".join(ins) + "\n" + "".join(x + ":\n" for x in labels) + "s_endpgm\n")
        subprocess.run(["clang", "-x", "assembler", "-target", "amdgcn-amd-amdhsa", "-mcpu=gfx950", "-c", d + "/x.s", "-o", d + "/x.o"], check=True)
        dis = subprocess.run(["llvm-objdump", "-d", "--mcpu=gfx950", d + "/x.o"], capture_output=True, text=True, check=True).stdout
    ad = [int(m, 16) for m in re.findall(r"// ([0-9A-F]{12}):", dis)]
    size = iter([y - x for x, y in zip(ad, ad[1:])])
    out = []; pos = 0; page = 1; typ = "S"; pads = dict(S=[], A=[], F=[]); prev = ""; live = True
    for l in lines:
        t = l.strip()
        if t == ".p2align 3":
            if pos % 8: out.append("    s_nop 0"); pos += 4
            continue
        if t == "L_compA:": typ = "A"
        if t == "L_compF:":
            while pos % 64: out.append("    s_nop 0"); pos += 4
            typ = "F"; live = True; n = f"L_pg{len(out)}"; pads["F"].append(n)
            out += [n + ":", "    s_setpc_b64 s[30:31]", "    s_nop 0"]; pos += 8; page = pos // 4096 + 1
        if t.endswith(":"): out.append(l); continue
        if pos >= 4096 * page - 4 and (prev.startswith("v_mfma") or pos >= 4096 * page + 40):
            if live and cfg.pads:
                n = f"L_pg{len(out)}"; pads[typ].append(n)
                out += [f"    s_branch {n}x", n + ":", "    s_setpc_b64 s[30:31]", n + "x:"]; pos += 8
            page += 1
        out.append(l); pos += next(size); prev = t
        if t == "s_endpgm": live = False
    for ty in "AF":
        p = pads["S"] + pads[ty]; assert len(p) <= NPAD, p
        if not cfg.pads: continue
        for k in range(NPAD): out = [re.sub(rf"\bL_pad{ty}{k}\b", p[min(k, len(p) - 1)], x) for x in out]
    return out

def generate(cfg):
    global STG, STAGES, MIXU, NSPL
    MIXU = cfg.mixu; NSPL = cfg.nspl
    STG = ((0, 0, 8), (8, 24, 4), (12, 16, 8), (20, 8, 8), (28, 28, 8)) if MIXU == 2 else ((0, 0, 8), (8, 16, 8), (16, 8, 8), (24, 24, 4), (28, 28, 8))
    if NSPL == 24: STG = STG[:4] + ((24, 12, 8),) + STG[4:]
    STAGES = tuple(x[0] for x in STG)
    a = Asm()
    if os.environ.get("ENTRY"): a.raw("    s_memrealtime s[14:15]")
    a("s_cmp_ge_u32 s2, 256", "s_cbranch_scc1 L_end")
    a("s_load_dwordx16 s[16:31], s[0:1], 0", "s_load_dwordx4 s[32:35], s[0:1], 64")
    a("v_lshrrev_b32 v1, 6, v0")
    if cfg.pf_code:
        a("s_getpc_b64 s[98:99]"); a.label("L_pc")
        a("s_lshr_b32 s96, s2, 3", "s_mul_i32 s96, s96, 0x900", "v_mul_u32_u24 v2, 9, v0", "v_lshrrev_b32 v2, 1, v2", "v_and_b32 v2, 0xf80, v2", "v_add_u32 v2, s96, v2", "v_min_u32 v2, L_last-L_pc, v2")
        a.raw(f"    global_load_dword v{vNM}, v2, s[98:99]")
    a(f"v_readfirstlane_b32 {sW}, v1")
    if cfg.grid == 24:
        a("s_and_b32 s8, s2, 1", "s_bfe_u32 s9, s2, 0x20001", "s_bfe_u32 s10, s2, 0x30003", "s_lshr_b32 s11, s2, 6")
        a(f"s_lshl_b32 {sC}, s8, 3", f"s_add_u32 {sC}, {sC}, s10")
        a("s_and_b32 s12, s11, 1", f"s_lshl_b32 {sI}, s9, 1", f"s_lshl_b32 {sROT}, s8, 2", f"s_add_u32 {sROT}, {sROT}, {sI}", f"s_add_u32 {sI}, {sI}, s12")
        a(f"s_lshl_b32 {sTB}, s8, 2", f"s_add_u32 {sTB}, {sTB}, s9", f"s_lshl_b32 {sTB}, {sTB}, 2", f"s_add_u32 {sROT}, {sROT}, {cfg.rotadd}")
        if cfg.cbmap: a("s_and_b32 s12, s10, 3", f"s_add_u32 {sTB}, {sTB}, s12", f"s_bfe_u32 {sCB}, s2, 0x20005", f"s_lshl_b32 {sCB}, {sCB}, 1", "s_lshr_b32 s12, s2, 7", f"s_add_u32 {sCB}, {sCB}, s12")
        else: a(f"s_add_u32 {sTB}, {sTB}, s11", f"s_mov_b32 {sCB}, s10")
    else:
        a("s_and_b32 s8, s2, 3", "s_and_b32 s9, s2, 4", "s_bfe_u32 s10, s2, 0x20003", "s_bfe_u32 s11, s2, 0x20005")
        a(f"s_lshl_b32 {sC}, s8, 2", f"s_add_u32 {sC}, {sC}, s10", f"s_add_u32 {sI}, s9, s11")
        a("s_and_b32 s12, s11, 1", "s_lshl_b32 s12, s12, 1", f"s_add_u32 {sROT}, s9, s12")
        a(f"s_lshl_b32 {sTB}, s8, 3", f"s_add_u32 {sTB}, {sTB}, s9", f"s_add_u32 {sTB}, {sTB}, s10", f"s_lshl_b32 {sCB}, s11, 1", "s_lshr_b32 s12, s2, 7", f"s_add_u32 {sCB}, {sCB}, s12")
    a(f"s_mov_b32 {sT}, {cfg.timeout}")
    a(f"s_cmp_lt_u32 {sW}, 4", "s_cbranch_scc1 L_compute")
    info = {}
    progs = {}
    for typ in "AF":
        b = Asm(); b.uid = 1000 if typ == "A" else 2000
        c = Compute(b, cfg, typ)
        (c.typeA if typ == "A" else c.typeF)()
        progs[typ] = (b, c); info["c" + typ] = c.st.names
    lds_ = {}
    for typ in "AF":
        b = Asm(); b.uid = 3000 if typ == "A" else 4000
        l = Loader(b, cfg, progs[typ][1]); l.run()
        lds_[typ] = (b, l); info["l" + typ] = l.st.names; info["plan" + typ] = l.plan; info["bdiag"] = cfg.bdiag
        nb = lambda o: sum(x.strip() == "s_barrier" for x in o)
        assert nb(b.out) == nb(progs[typ][0].out) == len(progs[typ][1].bars)
        print(f"loader {typ}: {b.count} instrs, {b.nops} nop states; compute: {progs[typ][0].count} instrs, {progs[typ][0].nops} nop states", file=sys.stderr)
    def shared(d):
        (ba, oa), (bf, of) = d["A"], d["F"]
        assert oa.split == of.split and ba.out[:oa.split] == bf.out[:of.split]
        return ba.out[:oa.split]
    Loader(a, cfg, progs["A"][1]).prologue()
    a.out += shared(lds_)
    a("s_cmp_ge_u32 s2, 128", "s_cbranch_scc1 L_loadF")
    for typ in "AF":
        b, l = lds_[typ]
        a.label("L_load" + typ); a.out += b.out[l.split:]
    a.label("L_end"); a.raw("    s_endpgm")
    c = Asm(); c.uid = 5000
    c.label("L_compute")
    Compute(c, cfg, "A").prologue()
    c.out += shared(progs)
    c("s_cmp_ge_u32 s2, 128", "s_cbranch_scc1 L_compF")
    for typ in "AF":
        b, p = progs[typ]
        c.label("L_comp" + typ); c.out += b.out[p.split:] + b.stubs
    a.raw("    .p2align 12"); a.out += place(c.out, cfg)
    a.label("L_last"); a.raw("    s_endpgm")
    head = open("cdna_kernels/" + NAME + ".s.ref").read().split("; Override launch")[0]
    txt = head + f"; @launch grid=(256,1,1) block=(512,1,1) lds={LDS_BYTES}\n"
    txt += f""".amdgcn_target "amdgcn-amd-amdhsa--gfx950"
.text
.globl {NAME}_kernel
.p2align 8
.type {NAME}_kernel,@function
{NAME}_kernel:
""" + a.text() + f"""
.section .rodata,"a"
.p2align 6
.amdhsa_kernel {NAME}_kernel
  .amdhsa_next_free_vgpr 256
  .amdhsa_next_free_sgpr 102
  .amdhsa_accum_offset 256
  .amdhsa_group_segment_fixed_size 0
  .amdhsa_kernarg_size 80
  .amdhsa_user_sgpr_count 2
  .amdhsa_user_sgpr_kernarg_segment_ptr 1
  .amdhsa_system_sgpr_workgroup_id_x 1
.end_amdhsa_kernel
"""
    return txt, info

if __name__ == "__main__":
    cfg = Cfg()
    out = sys.argv[1]
    for kv in sys.argv[2:]:
        k, v = kv.split("="); setattr(cfg, k, type(getattr(Cfg, k))(v))
    txt, info = generate(cfg)
    open(out, "w").write(txt)
    info["mode"] = cfg.diag
    import json; json.dump(info, open(out + ".json", "w"))
```

```python
import sys, os, struct, re
from asmb import Asm

NAME = "parallel_sum__linear_attn_block__swiglu_ffn__prompt"

class Cfg:
    diag = 0
    bdiag = 0
    timeout = 400000
    round_ln = 1
    rot = 1
    pf_code = 1
    pf_tlb = 0
    nofill = 0
    cprio = 1
    lprio = 0
    gprio = 2
    xgroups = "2,6,8,10"
    grid = 24
    xo = 0
    mixu = 2
    nspl = 24
    nsplF = 24
    ndef = 0
    slowF = 3
    ndefF = 0
    p2xA = "4,8,10"
    p2xF = "4,8,10"
    ex_sp = 1
    ex_ldA = 18
    ex_ldF = 18
    ex_w = 1
    ex_ck = 0
    ex_n = 4
    ex_s = 0
    xv = 1
    xA = 13
    xpu = 5
    prearly = 0
    xpre = 4
    pro2_at = 0
    xlate = "3:13,5:16"
    op_at = 146
    frate = 60
    ack = 56
    h1_dl = 308
    h2_dl = 430
    kvb = 17
    kvl = 0
    kprio = 2
    scr_need = 32
    scr_rel = 36
    kvw_gap = 266
    hA_dl = 543
    hA_gap = 586
    u4kA = 0
    u4kF = 0
    finF = 1
    finA = 0
    late_at = 4
    gate0_at = 146
    gate8_at = 999
    gate12_at = 999
    n_preA = 5
    n_preF = 5
    preA_gap = 588
    preF_gap = 596
    pre_step = 10
    n_epi = 1
    n_epiF = 0
    D = 6
    D2 = 5
    d_sw = 23
    p2_cap = "2"
    polls = "0:1 8:0 12:1 20:1,0 24:0 28:0"
    nogather = 0
    pads = 1
    PD = 3
    xadd_at = 6
    x1 = 1
    x4 = 4
    rotadd = 2
    cbmap = 1
    barsA = "8,20,34,50,66,82,98,114,130,146"
    barsF = "8,18,34,50,66,82,98,114,130,146"
    out_aux = "sc1"
    planX = "7,PR,PS 4 2 2 2,U0 V1,3 3 4 6"
    planA = "N0,U2,U4,P2,U3 5,N1 8 R 4 5 G0,S0,4 5,G1 Q0,S1,3 10,Q8 5"
    planF = "V2,2,V3,U4,P2 1,N0 6 8 6,N1,R 3 4,Q0 5 Q8,4 0 5"

ZR_OFF, OP_OFF = 0, 1024
LDS_BYTES = 163840
WS_KV2, WS_EX = 0x1d0000, 0xc00000
WS_FLAG, WS_KV, WS_A2, WS_DIAG, WS_SIZE = 0x1000, 0x100000, 0x200000, 0x1000000, 0x2000000
sC, sI, sTB, sCB, sW, sROT = "s4", "s5", "s6", "s7", "s3", "s36"
sT = "s37"
SRD = dict(x=40, qkv=44, gate=48, up=52, down=56, wo=60, ws=64, out=68, dbg=72)
PTR = dict(x=16, qkv=18, wo=20, gate=24, up=26, down=28, out=30, dbg=32, ws=34)
SIZE = dict(x=2097152, qkv=1572864, wo=524288, gate=1835008, up=1835008, down=1835008, out=2097152, dbg=256, ws=WS_SIZE)
def srd(n): return f"s[{SRD[n]}:{SRD[n]+3}]"
def mk_srd(a, n):
    b = SRD[n]
    a(f"s_mov_b32 s{b}, s{PTR[n]}", f"s_mov_b32 s{b+1}, s{PTR[n]+1}", f"s_mov_b32 s{b+2}, {SIZE[n]:#x}", f"s_mov_b32 s{b+3}, 0x20000")
LOG2E = 1.4426950408889634
def f2u(x): return struct.unpack('<I', struct.pack('<f', x))[0]
def srd_const(a, n): a(f"s_mov_b32 s{SRD[n]+2}, {SIZE[n]:#x}", f"s_mov_b32 s{SRD[n]+3}, 0x20000")
def srd_base(a, n): a(f"s_mov_b64 s[{SRD[n]}:{SRD[n]+1}], s[{PTR[n]}:{PTR[n]+1}]")
def vr(b, n=1): return f"v{b}" if n == 1 else f"v[{b}:{b+n-1}]"
M16 = lambda d, x, y, c: f"v_mfma_f32_16x16x32_bf16 {vr(d,4)}, {vr(x,4)}, {vr(y,4)}, {c if isinstance(c, str) else vr(c,4)}"

STG = ((0, 0, 8), (8, 24, 4), (12, 16, 8), (20, 8, 8), (28, 28, 8))
STAGES = tuple(x[0] for x in STG)
def stage_of(j): return max(x for x in STG if x[0] <= j)
MIXU = 2
NSPL = 28
NDEF = 0
def seq_of(a):
    n0 = NSPL - 2 * NDEF
    if a < n0: return "split", a // 2, a % 2, a & ~1
    if a < NSPL:
        j = n0 // 2 + (a - n0) % NDEF
        return "half", j, int(a < n0 + NDEF), 2 * j
    return "own", NSPL // 2 + a - NSPL, 0, a
def wslot(u): return seq_of(u)[1]
def unit_at(p):
    S, U, n = stage_of(p)
    return U + p - S
def xord(cfg):
    if cfg.xo == 0: return [(0, 0), (0, 1), (1, 0), (1, 1)] + [(0, s) for s in range(2, 8)] + [(1, s) for s in range(2, 8)]
    return [(t, s) for t in range(2) for s in range(8)]
def make_items(cfg, typ):
    it = []
    for i, (t, s) in enumerate(xord(cfg)): it.append(dict(k="x", s=s, t=t, rel=i + 1))
    for u in range(5):
        for i in range(8): it.append(dict(k="w1", u=u, i=i, rel=17 + 8 * u + i))
    for u in range(NSPL // 2 + 36 - NSPL): it.append(dict(k="w2", u=u, rel=57 + u))
    free = [(0, p) for p in range(1, 20)] + ([(0, 20)] if typ == "F" else [])
    scr = []
    for n, x in enumerate(it):
        free.sort()
        while typ == "A" and len(scr) < 2 and free[0][0] >= cfg.scr_need - 1:
            need, p = free.pop(0); assert need <= cfg.scr_need
            scr.append(8192 * p); free.append((cfg.scr_rel, p)); free.sort()
        need, p = free.pop(0)
        assert need < x["rel"], (n, x, need)
        x["need"] = need; x["n"] = n; x["addr"] = 8192 * (p % 20)
        free.append((x["rel"], p))
    return it, scr

class Stamps:
    def __init__(self, a, cfg, regs):
        self.a, self.on, self.regs, self.n, self.names = a, cfg.diag, regs, 0, []
    def __call__(self, name):
        if not self.on: return
        sel = os.environ.get("STAMPS")
        if sel is None:
            if name.startswith("_"): return
        elif name not in sel.split(",") + ["start", "end"]: return
        r = self.regs[self.n]
        self.a.raw(f"    {'s_memrealtime' if self.on == 1 else 's_memtime'} s[{r}:{r+1}]")
        self.n += 1; self.names.append(name)
        if os.environ.get("BOTH"):
            r = self.regs[self.n]
            self.a.raw(f"    s_memtime s[{r}:{r+1}]")
            self.n += 1; self.names.append(name + "c")
    def flush(self, vt, vz):
        if not self.on: return
        a = self.a
        a("s_waitcnt lgkmcnt(0)")
        a("s_lshl_b32 s76, s2, 3", f"s_add_u32 s76, s76, {sW}", "s_lshl_b32 s76, s76, 7", f"s_add_u32 s76, s76, {WS_DIAG:#x}")
        a(f"v_mov_b32 v{vz}, 0", "s_mov_b64 exec, 1")
        for i in range(self.n):
            a(f"v_mov_b32 v{vt+i}, s{self.regs[i]}")
            a(f"buffer_store_dword v{vt+i}, v{vz}, {srd('ws')}, s76 offen offset:{4*i}")

SITE = [None]
def timeout(a):
    if os.environ.get("SITES") and SITE[0] is not None: a.raw(f"    s_bitset1_b32 s68, {SITE[0]}")
    a.raw(f"    s_sub_u32 {sT}, {sT}, 1")
    a.raw("    s_cbranch_scc1 L_end")

X0, P0, Q0, K0, WB0 = 128, 64, 96, 56, 24
vA, vH, vL16, vR, vNM, vTag, vFl, T0, ONES = 1, 5, 7, 8, 9, 10, 11, 12, 20
sC2, sHI, sIC, sEPSC = "s38", "s39", "s76", "s77"
sCC = "s36"
sA2, sFL, sKV, sTmp = "s78", "s79", "s80", "s81"
sM1, sM2, sM3 = "s[82:83]", "s[84:85]", "s[86:87]"
def XF(t, s): return X0 + 64 * t + 4 * s
ACC, XRAW = Q0 + 16, K0
SLOTQ = [((0, 0), (0, 1)), ((0, 2), (0, 3)), ((0, 4), (1, 4)), ((0, 5), (1, 5)), ((0, 6), (1, 6)), ((0, 7), (1, 7)), ((1, 0), (1, 1)), ((1, 2), (1, 3))] + [((0, s), (1, s)) for s in range(8, 16)]
SLOT = [(XF(*a), XF(*b)) for a, b in SLOTQ]

class Compute:
    def __init__(self, a, cfg, typ):
        self.a, self.cfg, self.typ = a, cfg, typ
        self.it, self.scr = make_items(cfg, typ)
        self.bars = []; self.full = 0; self.freed = 0; self.mark = 0; self.cur = -1
        self.win = {}
        self.u4k = cfg.u4kA if typ == "A" else cfg.u4kF
        self.SQ = [((0, s), (1, s)) for s in range(16)] if (self.u4k or (typ == 'F' and MIXU == 4)) else SLOTQ
        self.SL = [(XF(*x), XF(*y)) for x, y in self.SQ]
        self.st = Stamps(a, cfg, list(range(48, 64, 2)) + list(range(20, 36, 2)))
    def find(self, **kw):
        for x in self.it:
            if all(x.get(k) == v for k, v in kw.items()): return x
        raise KeyError(kw)
    def barrier(self, full, freed, extra=0, **kw):
        slots = pipe = 0
        for l in self.a.out[self.mark:]:
            l = l.strip()
            if l.endswith(":") or l.startswith("."): continue
            if l.startswith("v_mfma"): slots += 2; pipe += 32 if "32x32" in l else 16
            elif l.startswith(("v_exp", "v_rcp", "v_sqrt", "v_rsq")): slots += 2
            else: slots += 1
        self.a("s_barrier"); self.mark = len(self.a.out)
        self.full = max(self.full, full); self.freed = max(self.freed, freed)
        self.bars.append(dict(full=self.full, freed=self.freed, dur=max(4.2 * slots, pipe) + 40 + extra, step=self.cur, **kw))
    def lds(self, op, dst, areg, addr):
        w = self.win.setdefault(areg, 0)
        if not (0 <= addr - w <= 65535):
            nw = addr & ~8191
            self.a(f"v_add_u32 v{areg}, {(nw - w) & 0xffffffff:#x}, v{areg}")
            self.win[areg] = w = nw
        self.a(f"{op} {dst}, v{areg} offset:{addr - w}")

    def geom(self, n):
        u, ks = divmod(n, 32)
        if self.typ == "F" and u == MIXU == 4 and ks >= 16: return 4 + (ks % 16) // 4, 2 + ks % 2, 2 * ((ks % 16) // 2), False
        if u == 0 or (u == 4 and self.u4k): return ks // 4, ks % 4, 2 * (ks // 4), False
        if self.typ == "F" and u == MIXU: return 4 * (ks // 16) + (ks % 8) // 2, ks // 8, 2 * (ks % 8), ks % 2 == 1
        i = 4 * (ks // 16) + ks % 4
        return i, (ks % 16) // 4, 2 * i, ks % 2 == 1
    def accreg(self, u, cb, t):
        return (P0 if u % 2 == 0 else Q0) + (8 * cb + 4 * t if (self.typ == "A" and u < 2) else 16 * t + 4 * cb)
    def comp(self, u, cb): return 4 * max(n for n in range(32 * u, 32 * u + 32) if self.geom(n)[1] == cb) + 8
    def first(self, u, cb): return 4 * min(n for n in range(32 * u, 32 * u + 32) if self.geom(n)[1] == cb) - 1
    def xdead(self, s): return 4 * max(n for n in range(128, 160) if self.geom(n)[2] == (s & ~1)) + 4
    def step(self, n):
        u = n // 32; i, cb, s0, flip = self.geom(n)
        buf = WB0 + 8 * (n % 4)
        it = self.it[self.item_of(n)]
        if self.typ == "F" and u == MIXU:
            rd = [(buf + 4 * e + 2 * t2, vH + cb % 2, it["addr"] + ((s0 + e) % 4) * 2048 + t2 * 1024) for e in range(2) for t2 in range(2)]
        else:
            rd = [(buf + 4 * e + 2 * t2, vA + cb, it["addr"] + e * 4096 + t2 * 2048) for e in range(2) for t2 in range(2)]
        nt = self.typ == "A" and u < 2
        mf = []
        for k, (e, t) in enumerate(((0, 1), (1, 1), (1, 0), (0, 0)) if flip else ((0, 0), (1, 0), (1, 1), (0, 1))):
            d = self.accreg(u, cb, t); w, x = buf + 4 * e, XF(t, s0 + e)
            mf.append(M16(d, x if nt else w, w if nt else x, "0" if (s0 == 0 and k % 2 == 0) else d))
        return dict(it=it, rd=rd, mf=mf, buf=buf)
    @property
    def BARS(self):
        return [int(x) for x in (self.cfg.barsA if self.typ == "A" else self.cfg.barsF).split(",")]
    def item_of(self, n): return 16 + 8 * (n // 32) + self.geom(n)[0]
    def freed_at(self, n):
        return min([self.item_of(m) for m in range(n + 1, 160)] + [56])
    def read(self, n, j):
        if n >= 160: return
        s = self.step(n)
        if j == 0 and n in self.BARS:
            nxt = min([b for b in self.BARS if b > n] + [160])
            self.barrier(max(self.item_of(m) for m in range(n, nxt)) + 1, self.freed_at(self.arrived), op=(self.typ == "A" and n == self.cfg.op_at),
                         gate=[g for g, at in ((0, self.cfg.gate0_at), (8, self.cfg.gate8_at), (12, self.cfg.gate12_at)) if at == n])
        assert s["it"]["n"] < self.full, (n, self.full)
        d, r, ad = s["rd"][j]
        self.lds("ds_read_b64_tr_b16", vr(d, 2), r, ad)
    def need_step(self, n):
        if self.cfg.PD == 3 and n % 2 == 0: n += 1
        self.a.need(vr(WB0 + 8 * (n % 4), 8)); self.arrived = n
    def cost(self, f):
        if isinstance(f, tuple) and f[0] in ("gap", "dl"): return 0
        if callable(f) and getattr(f, "free", False): return 0
        if isinstance(f, str) and f.startswith(("v_exp", "v_rcp", "v_mfma")): return 2
        return 1
    def run_fill(self, fl, budget):
        used = 0
        while fl and used < budget:
            f = fl[0]
            if isinstance(f, tuple) and f[0] == "gap":
                if self.gap < f[1]: break
                fl.pop(0); continue
            if isinstance(f, tuple) and f[0] == "dl": fl.pop(0); continue
            fl.pop(0); used += self.cost(f)
            if callable(f): f()
            elif isinstance(f, tuple): self.a.e(f[0], tag=f[1])
            else: self.a(f)
        return used
    def units(self, fl, side):
        fl = list(fl); side = list(side); credit = 0.0
        for n in range(32, 160):
            s = self.step(n); self.cur = n
            if n % 32 == 0: self.st(f"u{n//32}")
            self.need_step(n)
            for j in range(4):
                self.gap = 4 * n + j
                self.a(s["mf"][j])
                self.read(n + self.cfg.PD, j)
                rate = self.cfg.frate / 100; c = 0
                for f in fl:
                    if isinstance(f, tuple) and f[0] == "dl":
                        assert c == 0 or f[1] >= self.gap, ("deadline missed", f, self.gap)
                        if c: rate = max(rate, c / max(0.5, f[1] - self.gap - 0.5))
                    c += self.cost(f)
                credit = min(credit + rate, rate + 1.5)
                credit -= 0.7 * self.run_fill(side, 1)
                credit -= self.run_fill(fl, credit - 0.5)
        self.gap = 10 ** 9
        if side: print(f"  [{self.typ}] {len(side)} side fillers left over", file=sys.stderr)
        self.run_fill(side, 10 ** 9)
        return fl

    def f_silu(self, quads):
        fl = []
        for k, q in enumerate(quads):
            t = T0 + (k % 2) * 4
            fl += [f"v_exp_f32_e64 v{t+i}, -v{q+i}" for i in range(4)]
            fl += [f"v_fma_f32 v{t+i}, v{t+i}, {sC2}, {sC2}" for i in range(4)]
            fl += [f"v_rcp_f32 v{t+i}, v{t+i}" for i in range(4)]
            fl += [f"v_mul_f32 v{q+i}, v{q+i}, v{t+i}" for i in range(4)]
        return fl
    def f_phi(self, quads, packs):
        fl = []
        for k, (q, p) in enumerate(zip(quads, packs)):
            t = T0 + (k % 2) * 4
            fl += [f"v_exp_f32_e64 v{t+i}, v{q+i} clamp" for i in range(4)]
            fl += [f"v_max_f32 v{q+i}, {sEPSC}, v{q+i}" for i in range(4)]
            fl += [f"v_fmac_f32 v{t+i}, {sIC}, v{q+i}" for i in range(4)]
            fl += [f"v_cvt_pk_bf16_f32 v{p+i}, v{t+2*i}, v{t+2*i+1}" for i in range(2)]
        return fl
    def f_h(self, dst, src, soff, off, tag):
        mul = []; out = []
        for t in range(2):
            d = dst + 16 * t
            mul += [f"v_mul_f32 v{d+i}, v{d+i}, v{src+16*t+i}" for i in range(8)]
            out += [f"v_cvt_pk_bf16_f32 v{d+i}, v{d+2*i}, v{d+2*i+1}" for i in range(4)]
            out += [(f"buffer_store_dwordx4 {vr(d,4)}, v{vL16}, {srd('ws')}, {soff} offen offset:{off+t*1024} sc1", tag)]
        return mul, out
    def flag(self, U, tag):
        a = self.a
        a(f"s_add_u32 {sTmp}, {dict(h1=sFL, h='s45', h3='s45', o='s47')[tag]}, {U*512}")
        self.st("_w" + tag); a.wait_tag(tag); self.st("_d" + tag)
        a(f"buffer_store_dword v{vTag}, v{vFl}, {srd('ws')}, {sTmp} offen sc1")
    def f_nonce(self):
        a = self.a
        def chk():
            L = a.newlabel("Ln"); C = a.newlabel("Lc")
            a(f"v_cmp_eq_u32 vcc, 0, v{vTag}")
            a(f"s_cbranch_vccnz {L}")
            a.label(C)
            a.stubs += [f"{L}:", f"    buffer_load_dword v{vTag}, off, {srd('dbg')}, 0 sc1", f"    s_sub_u32 {sT}, {sT}, 1", "    s_cbranch_scc1 L_end",
                        "    s_waitcnt vmcnt(0)", f"    v_cmp_eq_u32 vcc, 0, v{vTag}", f"    s_cbranch_vccnz {L}", f"    s_branch {C}"]
        return f"buffer_load_dword v{vTag}, off, {srd('dbg')}, 0 sc1", chk

    def prologue(self):
        a, cfg = self.a, self.cfg
        a("v_and_b32 v0, 63, v0")
        if cfg.cprio: a(f"s_setprio {cfg.cprio}")
        a(f"v_lshlrev_b32 v{vL16}, 4, v0")
        a("v_and_b32 v12, 15, v0", "v_lshrrev_b32 v13, 4, v0", "v_lshrrev_b32 v14, 1, v12", "v_xor_b32 v14, v13, v14", "v_lshlrev_b32 v14, 4, v14",
          "v_lshl_add_u32 v14, v12, 7, v14", f"s_lshl_b32 {sTmp}, {sW}, 11", f"v_add_u32 v{P0}, {sTmp}, v14", f"v_xor_b32 v{P0+1}, 64, v{P0}")
        for i in range(4): a(f"v_mov_b32 v{ONES+i}, 0x3f803f80")
        a("v_and_b32 v14, 31, v0", "v_lshrrev_b32 v15, 5, v0", "v_lshlrev_b32 v15, 3, v15", "v_sub_u32 v15, v14, v15")
        a("v_and_b32 v16, 1, v15", "v_lshlrev_b32 v16, 4, v16", "v_mov_b32 v17, 0x3f80", "v_lshlrev_b32 v16, v16, v17", "v_lshrrev_b32 v15, 1, v15")
        for t in range(8):
            a(f"v_cmp_eq_u32 vcc, {t if t < 4 else t + 4}, v15", f"v_cndmask_b32 v{K0+t}, 0, v16, vcc")
        a("s_waitcnt lgkmcnt(0)")
        for n in ("ws", "out", "dbg", "x"): srd_base(a, n); srd_const(a, n)
        L = "L_tag0"
        a(f"s_or_b32 s0, s2, {sW}", "s_cmp_lg_u32 s0, 0", f"s_cbranch_scc1 {L}")
        a.raw(f"    buffer_load_dword v{vTag}, off, {srd('ws')}, 0 sc1")
        a.label(L)
        a("v_lshlrev_b32 v14, 2, v13", "v_sub_u32 v14, v12, v14")
        for i in range(4): a(f"v_cmp_eq_u32 s[{88+2*i}:{89+2*i}], {i}, v14")
        a(f"s_mov_b32 {sC2}, {f2u(LOG2E**2):#x}", f"s_mov_b32 {sIC}, {f2u(1/LOG2E):#x}", f"s_mov_b32 {sHI}, 0xffff0000", f"s_mov_b32 {sEPSC}, {f2u(1e-6*LOG2E):#x}", f"s_mov_b32 {sCC}, {f2u(LOG2E):#x}")
        a("v_lshrrev_b32 v15, 5, v0", "v_bfe_u32 v16, v0, 2, 2", "v_lshl_add_u32 v16, v15, 2, v16", "v_and_b32 v17, 1, v13", "v_lshl_add_u32 v16, v17, 3, v16")
        a("v_and_b32 v18, 3, v0", "v_lshlrev_b32 v18, 3, v18", "v_lshl_add_u32 v19, v16, 6, v18", f"v_lshl_add_u32 v{vH}, v17, 5, v19", f"v_xor_b32 v{vH+1}, 32, v{vH}")
        a("v_lshl_add_u32 v19, v16, 7, v18", "v_bfe_u32 v18, v0, 3, 2", f"v_lshl_add_u32 v{vA}, v18, 5, v19")
        for cb in range(1, 4): a(f"v_xor_b32 v{vA+cb}, {cb*32}, v{vA}")
        a("v_lshlrev_b32 v18, 2, v0", f"v_lshl_add_u32 v{vFl}, v15, 30, v18")
    def prologue2(self):
        a, cfg = self.a, self.cfg
        a(f"s_lshr_b32 {sTmp}, {sW}, 1", f"s_lshl_b32 {sA2}, {sC}, 1", f"s_add_u32 {sA2}, {sA2}, {sTmp}", f"s_mul_i32 {sA2}, {sA2}, 36",
          f"s_add_u32 {sA2}, {sA2}, {sI}", f"s_lshl_b32 {sA2}, {sA2}, 1", f"s_and_b32 {sTmp}, {sW}, 1", f"s_add_u32 {sA2}, {sA2}, {sTmp}")
        a(f"s_lshl_b32 {sFL}, {sA2}, 8", f"s_add_u32 {sFL}, {sFL}, {WS_FLAG:#x}", f"s_lshl_b32 {sA2}, {sA2}, 12", f"s_add_u32 {sA2}, {sA2}, {WS_A2:#x}")
        for r, x in ((44, cfg.x1), (46, cfg.x4)):
            a(f"s_xor_b32 s96, {sI}, {x}", f"s_sub_u32 s96, s96, {sI}", "s_lshl_b32 s97, s96, 13", f"s_add_u32 s{r}, {sA2}, s97", "s_lshl_b32 s97, s96, 9", f"s_add_u32 s{r+1}, {sFL}, s97")
        a(f"s_mul_i32 s10, {sTB}, {36*8192}", f"s_add_u32 s10, s10, {WS_A2:#x}", f"s_and_b32 s96, {sTB}, 1", "s_lshl_b32 s96, s96, 13", "s_add_u32 s8, s10, s96",
          f"s_xor_b32 s97, {sTB}, 1", f"s_mul_i32 s9, s97, {36*8192}", f"s_add_u32 s9, s9, {WS_A2:#x}", "s_add_u32 s9, s9, s96")
        for r, tb in ((11, "s97"), (12, sTB)):
            a(f"s_lshl_b32 s{r}, {tb}, 3", f"s_add_u32 s{r}, s{r}, {sCB}", f"s_lshl_b32 s{r}, s{r}, 2", f"s_add_u32 s{r}, s{r}, {sW}", f"s_lshl_b32 s{r}, s{r}, 12", f"s_add_u32 s{r}, s{r}, {WS_EX:#x}")
        a(f"s_lshl_b32 s99, {sTB}, 2", f"s_add_u32 s99, s99, {sW}", "s_lshl_b32 s99, s99, 14", f"s_lshl_b32 s97, {sCB}, 7", "s_add_u32 s99, s99, s97")
        a("s_mov_b32 s82, 0xffff0000", "s_mov_b32 s83, 0", "s_mov_b32 s84, 0", "s_mov_b32 s85, 0xffff", "s_mov_b32 s86, 0", "s_mov_b32 s87, 0xffff0000")
        a(f"s_lshl_b32 {sKV}, {sI}, 2", f"s_add_u32 {sKV}, {sKV}, {sW}", f"s_lshl_b32 {sKV}, {sKV}, 6", f"s_add_u32 {sKV}, {sKV}, {sC}",
          f"s_mul_i32 {sKV}, {sKV}, 384", f"s_add_u32 {sKV}, {sKV}, {WS_KV:#x}")
        pA, pB = make_items(cfg, "A")[1]
        a(f"s_mov_b32 s97, {pA}", f"s_mov_b32 s98, {pB}", f"s_cmp_lt_u32 {sW}, 2", "s_cselect_b32 s97, s97, s98", f"s_and_b32 s98, {sW}, 1", "s_lshl_b32 s98, s98, 12", "s_add_u32 s97, s97, s98")
        a(f"s_lshr_b32 s96, {sI}, 1", f"s_sub_u32 s96, s96, {sI}", "s_add_u32 s96, s96, 24", "s_lshl_b32 s96, s96, 2", f"s_and_b32 s98, {sI}, 1", "s_add_u32 s96, s96, s98",
          "s_lshl_b32 s100, s96, 11", f"s_add_u32 s100, s100, {sA2}", "s_lshl_b32 s101, s96, 7", f"s_add_u32 s101, s101, {sFL}")
    def tag_publish(self):
        a = self.a
        L = "L_tag1"
        a("s_cmp_lg_u32 s0, 0", f"s_cbranch_scc1 {L}")
        for x in ("s_waitcnt vmcnt(0)", f"v_add_u32 v{vTag}, 0x9e377902, v{vTag}", f"v_or_b32 v{vTag}, 0x80000000, v{vTag}", "s_mov_b64 exec, 1",
                  f"buffer_store_dword v{vTag}, off, {srd('dbg')}, 0 sc1", f"buffer_store_dword v{vTag}, off, {srd('ws')}, 0 sc1", "s_mov_b64 exec, -1"):
            a.raw("    " + x)
        a.label(L)
    def stats_fin(self, S1, S2, R):
        t = T0
        fl = [f"v_cndmask_b32 v{t+2}, 0, v{S2}, s[88:89]"] + [f"v_cndmask_b32 v{t+2}, v{t+2}, v{S2+i}, s[{88+2*i}:{89+2*i}]" for i in range(1, 4)]
        fl += [f"v_mov_b32 v{t+3}, v{t+2}", f"v_mul_f32 v{t}, 0x3b000000, v{S1}", f"v_mul_f32 v{t+1}, v{t}, v{t}", f"v_permlane32_swap_b32 v{t+2}, v{t+3}", f"v_add_f32 v{t+2}, v{t+2}, v{t+3}",
               f"v_mov_b32 v{t+3}, v{t+2}", f"v_permlane16_swap_b32 v{t+2}, v{t+3}", f"v_add_f32 v{t+2}, v{t+2}, v{t+3}"]
        fl += [f"v_mul_f32 v{t+2}, 0x3b000000, v{t+2}", f"v_sub_f32 v{t+2}, v{t+2}, v{t+1}", f"v_max_f32 v{t+2}, 0, v{t+2}"]
        if self.cfg.round_ln:
            fl += [f"v_cvt_pk_bf16_f32 v{t+1}, v{t}, v{t+2}", f"v_and_b32 v{t+2}, {sHI}, v{t+1}", f"v_lshlrev_b32 v{t}, 16, v{t+1}",
                   f"v_add_f32 v{t+2}, 0x3727c5ac, v{t+2}", f"v_cvt_pk_bf16_f32 v{t+2}, v{t+2}, v{t+2}", f"v_lshlrev_b32 v{t+2}, 16, v{t+2}",
                   f"v_sqrt_f32 v{t+2}, v{t+2}", f"v_cvt_pk_bf16_f32 v{t+2}, v{t+2}, v{t+2}", f"v_lshlrev_b32 v{t+2}, 16, v{t+2}", f"v_rcp_f32 v{R}, v{t+2}"]
        else:
            fl += [f"v_add_f32 v{t+2}, 0x3727c5ac, v{t+2}", f"v_rsq_f32 v{R}, v{t+2}"]
        fl += [f"v_mul_f32 v{R}, {sCC}, v{R}", f"v_mul_f32_e64 v{R+1}, -v{t}, v{R}"]
        return fl
    def unpack(self, t, p, buf=None):
        d = vr(Q0 + 16 * (p % 2) if buf is None else buf, 16)
        return [f"v_mfma_f32_32x32x16_bf16 {d}, {vr(K0,4)}, {vr(XF(t,2*p),4)}, 0",
                f"v_mfma_f32_32x32x16_bf16 {d}, {vr(K0+4,4)}, {vr(XF(t,2*p+1),4)}, {d}"]
    def f_center(self, t, p):
        d = Q0 + 16 * (p % 2); fl = []; R = vR if t else T0 + 4
        for g in range(0, 16, 4):
            fl += [f"v_fma_f32 v{d+g+i}, v{d+g+i}, v{R}, v{R+1}" for i in range(4)]
            fl += [f"v_cvt_pk_bf16_f32 v{XF(t,2*p)+g//2+i}, v{d+g+2*i}, v{d+g+2*i+1}" for i in range(2)]
        return fl
    def xphase(self):
        a, cfg = self.a, self.cfg
        S = P0 + 4
        done = [0]
        B0 = [XF(1, 4), XF(1, 8), XF(1, 12), WB0, WB0 + 16, Q0 + 16, Q0, Q0 + 16]
        B1 = [WB0, WB0 + 16, Q0, Q0 + 16]
        def group(g):
            self.barrier(g[-1] + 1, done[0], phase="x")
            mf = []
            for i in g:
                t, s = xord(cfg)[i]
                for e in range(2):
                    x, k = XF(t, 2 * s + e), 2 * s + e
                    self.lds("ds_read_b128", vr(x, 4), P0 + e, self.it[i]["addr"])
                    mf += [M16(S + 8 * t, ONES, x, "0" if k == 0 else S + 8 * t), M16(S + 8 * t + 4, x, x, "0" if k == 0 else S + 8 * t + 4)]
            return mf
        if cfg.pro2_at == 0: self.prologue2()
        a.out += touch_code(cfg)
        ends = [0] + [int(x) for x in cfg.xgroups.split(",")]
        for gi in range(len(ends) - 1):
            g = list(range(ends[gi], ends[gi + 1]))
            mf = group(g)
            if gi == 0: self.st("x0")
            for m in mf: a(m)
            if cfg.xv:
                for i in g:
                    t, p = xord(cfg)[i]
                    if t == 0 and p < cfg.xpu: a(*self.unpack(0, p, B0[p]))
            if gi == 0:
                for m in ([] if cfg.xv else self.unpack(0, 0) + self.unpack(0, 1)): a(m)
                a("s_waitcnt vmcnt(0)"); self.tag_publish()
                if cfg.pro2_at == 1: self.prologue2()
            done[0] = g[-1] + 1
        self.st("_x4")
        def under(chain, ms):
            ms = list(ms)
            for k, f in enumerate(chain):
                if ms and k % 7 == 0: a(ms.pop(0))
                a(f)
            a(*ms)
        under(self.stats_fin(S, S + 4, T0 + 4), [m for p in range(cfg.xpu, 7) for m in self.unpack(0, p, B0[p])] if cfg.xv else [])
        if cfg.xv:
            assert cfg.xo == 0 and cfg.xpre >= 4 and ends[-1] == 10
            pk = lambda d, R: [f"v_pk_fma_f32 {vr(d+2*i,2)}, {vr(d+2*i,2)}, {vr(R,2)}, {vr(R,2)} op_sel:[0,0,1] op_sel_hi:[1,0,1]" for i in range(8)]
            cv = lambda t, p, d: [f"v_cvt_pk_bf16_f32 v{XF(t,2*p)+i}, v{d+2*i}, v{d+2*i+1}" for i in range(8)]
            a.raw("    .p2align 3")
            for p in range(7): a(*(pk(B0[p], T0 + 4) + (cv(0, p, B0[p]) if p < 3 else [])))
            sA = group(list(range(10, cfg.xA)))
            V = [(x, -1) for p in (5, 3, 4, 6) for x in cv(0, p, B0[p])] + [(x, 1) for x in self.f_center(0, 7)]
            M = [(x, 8) for x in self.unpack(0, 7, B0[7])] + [(x, 16) for x in self.unpack(1, 0, B1[0])] + [(x, 24) for x in self.unpack(1, 1, B1[1])]
            M += [(x, 0) for x in sA]
            a.raw("    .p2align 3")
            t = free = 0; vi = mi = 0; fin_ = {-1: 0}
            while vi < len(V) or mi < len(M):
                mok = mi < len(M) and M[mi][1] <= vi
                vok = vi < len(V) and V[vi][1] < mi
                if mok and (free <= t + 2 or not vok or fin_[V[vi][1]] > t):
                    if M[mi][0] is sA[0]: a.wait(lg=0); a.raw("    .p2align 3")
                    a(M[mi][0]); st_ = max(t, free); t = st_ + 8; free = st_ + (32 if "32x32" in M[mi][0] else 16); fin_[mi] = free + 24; mi += 1
                else: a(V[vi][0]); t += 4.2; vi += 1
            done[0] = cfg.xA
            sB = group(list(range(cfg.xA, 16))); self.st("_x7")
            a(*self.unpack(1, 2, B1[2])); a(*sB); under(self.stats_fin(S + 8, S + 12, vR), self.unpack(1, 3, B1[3]))
            a.raw("    .p2align 3")
            for p in range(4): a(*pk(B1[p], vR))
            up = self.unpack(1, 4)
            seq = cv(1, 2, B1[2]) + up[:1] + cv(1, 0, B1[0]) + up[1:] + cv(1, 1, B1[1]) + cv(1, 3, B1[3])
            for q in range(4, cfg.xpre):
                c = self.f_center(1, q); up = self.unpack(1, q + 1) if q < 7 else []
                seq += up[:1] + c[:8] + up[1:] + c[8:]
            k = max(26, len(seq) - 14)
            a(*seq[:k])
            self.barrier(18, 16, phase="x")
            for n in range(cfg.PD):
                for j in range(4): self.read(n, j)
            a(*seq[k:])
            self.st("u0")
            self.split = len(a.out)
            return
        pend = []; fin = None
        late = [tuple(int(y) for y in x.split(":")) for x in cfg.xlate.split(",")]
        nxt = ends[-1]
        for q in range(8 + cfg.xpre):
            while late and late[0][0] == q:
                for m in pend: a(m)
                done[0] = nxt
                pend = group(list(range(nxt, late[0][1]))); hold = 10; nxt = late.pop(0)[1]
                if not late: self.st("_x7")
            if q == 8:
                for m in pend: a(m)
                pend = []
            if not late and not pend and fin is None: fin = self.stats_fin(S + 8, S + 12, vR)
            if q == 7 + cfg.xpre:
                self.barrier(18, 16, phase="x")
                for n in range(cfg.PD):
                    for j in range(4): self.read(n, j)
            if q == 8:
                for f in fin: a(f)
                fin = []
            assert q < 7 or xord(cfg).index((1, q - 7)) < nxt
            up = self.unpack(*divmod(q + 1, 8)) if q >= 1 else []
            a.raw("    .p2align 3")
            for k, f in enumerate(self.f_center(*divmod(q, 8))):
                if up and k in (0, 8): a(up.pop(0))
                if pend:
                    hold -= 1
                    if hold <= 0 and k % 3 == 2: a(pend.pop(0)); a.raw("    .p2align 3")
                a(f)
                if fin and k >= 2:
                    a(fin.pop(0))
        self.st("u0")
        self.split = len(a.out)
    def unit0(self):
        a = self.a
        if self.cfg.xpre == 1:
            self.gap = 0
            for p in range(8):
                fl = self.f_center(1, p + 1) if p + 1 < 8 else []
                up = self.unpack(1, p + 2) if p + 2 < 8 else []
                for e in range(4):
                    n = 4 * p + e; s = self.step(n); self.cur = n
                    if up and e % 2 == 0:
                        a(up[e // 2]); self.run_fill(fl, 4)
                    self.need_step(n)
                    for j in range(4):
                        a(s["mf"][j]); self.read(n + self.cfg.PD, j)
                        self.run_fill(fl, 1 if up else 2)
                assert not fl
            return
        fl = []
        for q in range(self.cfg.xpre, 8):
            c = self.f_center(1, q); up = self.unpack(1, q + 1) if q < 7 else [None, None]
            fl += [x for x in [up[0]] + c[:8] + [up[1]] + c[8:] if x] + [("dl", 16 * q - 1)]
        credit = 0.0
        for n in range(32):
            s = self.step(n); self.cur = n
            self.need_step(n)
            for j in range(4):
                self.gap = 4 * n + j
                a(s["mf"][j]); self.read(n + self.cfg.PD, j)
                rate = 0; c = 0
                for f in fl:
                    if isinstance(f, tuple):
                        assert c == 0 or f[1] >= self.gap
                        if c: rate = max(rate, c / max(0.5, f[1] - self.gap - 0.5))
                    c += self.cost(f)
                credit += rate
                while fl and credit > 0.5:
                    credit -= self.run_fill(fl, 6 if isinstance(fl[0], str) and fl[0].startswith("v_mfma") else 1)
        assert not [f for f in fl if isinstance(f, str)]
    def f_xres(self):
        t = vNM
        pre = [f"v_bfe_u32 v{t}, v0, 4, 1", f"v_lshrrev_b32 v{vR}, 5, v0", f"v_lshl_add_u32 v{vR}, v{t}, 1, v{vR}", f"v_lshlrev_b32 v{vR}, 4, v{vR}",
               f"v_and_b32 v{t}, 15, v0", f"v_lshl_add_u32 v{vR}, v{t}, 10, v{vR}",
               f"v_lshrrev_b32 v{t}, 5, v0", f"v_bfe_u32 v{ONES}, v0, 4, 1", f"v_sub_u32 v{t}, v{t}, v{ONES}", f"v_lshlrev_b32 v{t}, 9, v{t}",
               f"s_and_b32 s96, {sW}, 2", f"s_add_u32 s96, s96, {sW}", f"v_lshl_add_u32 v{ONES+1}, s96, 10, v{vL16}"]
        ld = [f"buffer_load_dwordx4 {vr(XRAW+4*k,4)}, v{vR}, {srd('x')}, s99 offen offset:{64*k}" for k in range(2)]
        post = []
        for k in range(2): post += [f"v_permlane16_swap_b32 v{XRAW+4*k}, v{XRAW+4*k+2}", f"v_permlane16_swap_b32 v{XRAW+4*k+1}, v{XRAW+4*k+3}"]
        for i in range(8): post += [f"v_lshlrev_b32 v{P0+2*i}, 16, v{XRAW+i}", f"v_and_b32 v{P0+2*i+1}, {sHI}, v{XRAW+i}"]
        return pre, ld, post
    def a2_loads(self, u):
        mode, j, who, p = seq_of(u)
        b = self.SL[u % 16]
        return [f"s_add_u32 {sTmp}, s{10 if mode == 'own' else 8+who}, {unit_at(p)*8192}"] + [f"buffer_load_dwordx4 {vr(b[s],4)}, v{ONES+1}, {srd('ws')}, {sTmp} offen offset:{2048*s} sc1" for s in range(2)]
    @staticmethod
    def merge(*lists):
        segs = []
        for l in lists:
            for f in l:
                if isinstance(f, tuple) and f[0] == "gap": segs.append([f])
                else: segs[-1].append(f)
        return [f for sg in sorted(segs, key=lambda x: x[0][1]) for f in sg]
    def f_pre(self, g0):
        fl = []
        assert g0 >= (self.cfg.gate0_at - self.cfg.PD) * 4 + 1 or self.n_pre == 0
        for u in range(self.n_pre):
            assert u < 8 or self.cfg.gate8_at in self.BARS
            fl += [("gap", max([g0 + u * self.cfg.pre_step, (self.cfg.gate8_at - self.cfg.PD) * 4 + 1 if u >= 8 else 0] + [self.xdead(q[1]) for q in self.SQ[u]]))] + [x.replace(sTmp, "s98") for x in self.a2_loads(u)]
        return fl
    def hook(self, f):
        f.free = True; return f
    def typeA(self):
        a, cfg = self.a, self.cfg
        ld, chk = self.f_nonce()
        pA, pB = self.scr
        self.xphase()
        self.unit0()
        t = T0; R = self.accreg; xp, xl, xq = self.f_xres()
        PK = lambda h: P0 + 8 * h + 4
        fl = [("gap", 128 + 2), ld]
        for h in range(4):
            fl += [("gap", self.comp(0, h))] + self.f_phi([R(0, h, 1), R(0, h, 0)], [PK(h) + 2, PK(h)])
            if h: fl += [M16(P0 + 8 * (h - 1), ONES, PK(h - 1), "0")]
        if not cfg.kvl:
            fl += [f"v_add_u32 v{vH}, s97, v{vL16}", f"s_lshl_b32 {sTmp}, {sW}, 8", f"v_lshrrev_b32 v{t+1}, 2, v{vL16}", M16(P0 + 24, ONES, PK(3), "0"),
                   f"v_and_b32 v{t+2}, 12, v{t+1}", f"v_and_b32 v{t+6}, 48, v0", f"v_add_u32 v{t+2}, v{t+2}, v{t+6}", f"v_mul_u32_u24 v{t+7}, {(6144-128)//16}, v{t+6}",
                   f"v_lshl_add_u32 v{t+7}, v0, 3, v{t+7}", f"v_mul_u32_u24 v{t+6}, {(6144-256)//16}, v{t+6}", f"v_add_u32 v{t+6}, v{t+6}, v{vL16}", f"v_add_u32 v{t+1}, {sTmp}, v{t+1}", f"s_lshl_b32 {sTmp}, {sW}, 6", f"v_add_u32 v{t+2}, {sTmp}, v{t+2}",
                   f"s_lshl_b32 {sTmp}, {sW}, 10", f"v_add_u32 v{t+3}, {sTmp}, v{vL16}", f"v_add_u32 v{t+4}, {pB}, v{t+3}", f"v_add_u32 v{t+3}, {pA}, v{t+3}",
                   f"v_cndmask_b32 v{t}, v{P0}, v{P0+8}, {sM1}", f"v_cndmask_b32 v{t}, v{t}, v{P0+16}, {sM2}", f"v_cndmask_b32 v{t}, v{t}, v{P0+24}, {sM3}", chk]
        else:
            fl += [f"v_add_u32 v{vH}, s97, v{vL16}", f"v_lshrrev_b32 v{t+1}, 2, v{vL16}", M16(P0 + 24, ONES, PK(3), "0"), f"v_lshl_add_u32 v{t+1}, {sW}, 8, v{t+1}", chk,
                   f"v_cndmask_b32 v{t}, v{P0}, v{P0+8}, {sM1}", f"v_cndmask_b32 v{t}, v{t}, v{P0+16}, {sM2}", f"v_cndmask_b32 v{t}, v{t}, v{P0+24}, {sM3}"]
        def wchk(): assert self.freed >= cfg.scr_need, self.freed
        fl += [("dl", self.first(2, 0))]
        wr = []
        for h in range(4):
            q = Q0 + 8 * h
            fl += [("gap", self.comp(1, h))] + [f"v_cvt_pk_bf16_f32 v{q+i}, v{q+2*i}, v{q+2*i+1}" for i in range(4)]
            if h: fl += [M16(q - 4, PK(h - 1), q - 8, "0")]
            wr += [f"ds_write_b128 v{vH}, {vr(q+4,4)} offset:{h*1024}"]
        fl += [("dl", self.first(2, 1)), f"v_mov_b32 v{t+5}, 0xff", ("gap", cfg.kvw_gap), self.hook(wchk), M16(Q0 + 28, PK(3), Q0 + 24, "0"), f"ds_write_b32 v{t+1}, v{t} offset:{ZR_OFF}"] + wr[:3] + [(wr[3], "kvw"), ("dl", cfg.kvw_gap + 8)]
        def xbar():
            k = [n for n, e in enumerate(a.lg) if e[1] == "kvw"]
            if k: a.wait(lg=len(a.lg) - 1 - k[0])
            self.barrier(0, self.freed_at(self.arrived), kvx=True)
        fl += [("gap", cfg.kvw_gap + cfg.kvb), xbar]
        if not cfg.kvl:
            fl += [f"ds_read_b128 {vr(Q0+4*s,4)}, v{t+3+s//2} offset:{(s%2)*4096}" for s in range(4)]
            fl += [f"ds_read_b32 v{Q0+16+s}, v{t+2} offset:{ZR_OFF+s*256}" for s in range(4)] + [("dl", cfg.kvw_gap + cfg.kvb + 7), ("gap", cfg.kvw_gap + cfg.kvb + 12)]
            for s in range(1, 4): fl += [f"v_add_f32 v{Q0+r}, v{Q0+r}, v{Q0+4*s+r}" for r in range(4)] + [f"v_add_f32 v{Q0+16}, v{Q0+16}, v{Q0+16+s}"]
            fl += [f"v_bfi_b32 v{Q0+r}, v{t+5}, v{vTag}, v{Q0+r}" for r in (0, 16)]
            fl += [f"v_mov_b32 v{Q0+17}, v{Q0+16}", f"buffer_store_dwordx4 {vr(Q0,4)}, v{t+6}, {srd('ws')}, {sKV} offen sc1", f"buffer_store_dwordx2 {vr(Q0+16,2)}, v{t+7}, {srd('ws')}, {sKV} offen offset:256 sc1"]
        def rchk(): assert self.freed < cfg.scr_rel, self.freed; self.st("kv")
        fl += [self.hook(rchk), ("dl", cfg.kvw_gap + cfg.kvb + 31)] + xp + xl
        OPK, OPZ, DEN, NUM = (XF(1, 12), XF(1, 14), Q0, Q0 + 16) if self.u4k else (XF(1, 0), XF(1, 2), Q0, Q0 + 16)
        fl += [f"v_lshrrev_b32 v{vH}, 1, v{vL16}", f"v_lshrrev_b32 v{vH+1}, 4, v0", f"v_lshlrev_b32 v{vH+1}, 3, v{vH+1}", f"s_add_u32 s88, s44, {16*8192}", f"s_add_u32 s89, s46, {28*8192}"]
        h0, h1 = self.f_h(Q0, P0, "s88", 0, "h"), self.f_h(Q0 + 8, P0 + 8, "s88", 2048, "h")
        sil = lambda u, cb: [("gap", self.comp(u, cb))] + self.f_silu([R(u, cb, 0), R(u, cb, 1)])
        fl += sil(2, 0) + sil(2, 1) + sil(2, 2) + sil(2, 3)
        fl += [("gap", self.comp(3, 1))] + h0[0] + [("dl", self.first(4, 0))] + (h0[1] + [("gap", self.comp(3, 3))] + h1[0] if not self.u4k else
              [("gap", self.comp(3, 2))] + h1[0][0:4] + h1[0][8:12] + [("dl", self.first(4, 2)), ("gap", self.comp(3, 3) - 2)] + h1[0][4:8] + h1[0][12:16] + [("dl", self.first(4, 3))] + h0[1]) + h1[1] + [("dl", cfg.hA_dl)]
        opr = []
        for h in range(4):
            opr += [f"ds_read_b64 {vr(OPK+2*h,2)}, v{vH} offset:{OP_OFF+h*576}", f"ds_read_b64 {vr(OPZ+2*h,2)}, v{vH+1} offset:{OP_OFF+h*576+512}"]
        phi = lambda h: [("gap", self.comp(4, h))] + self.f_phi([R(4, h, 0), R(4, h, 1)], [R(4, h, 0), R(4, h, 1)])
        def mm(h):
            o = []
            for tt in range(2):
                b, e = vr(R(4, h, tt), 2), h % 2
                o += [f"v_mfma_f32_16x16x16_bf16 {vr(DEN+8*tt+4*e,4)}, {vr(OPZ+2*h,2)}, {b}, 0", f"v_mfma_f32_16x16x16_bf16 {vr(NUM+8*tt+4*e,4)}, {vr(OPK+2*h,2)}, {b}, 0"]
            return o
        def post(s2, tt):
            n, d = NUM + 8 * tt, DEN + 8 * tt
            o = [f"v_add_f32 v{d+4*e}, {sEPSC}, v{d+4*e}" for e in range(2)] + [f"v_rcp_f32 v{d+4*e}, v{d+4*e}" for e in range(2)]
            o += [f"v_mul_f32 v{n+i}, v{n+i}, v{d+4*(i//4)}" for i in range(8)]
            o += [f"v_cvt_pk_bf16_f32 v{d+i}, v{n+2*i}, v{n+2*i+1}" for i in range(4)]
            return o + [(f"buffer_store_dwordx4 {vr(d,4)}, v{vL16}, {srd('ws')}, s89 offen offset:{(2*s2+tt)*1024} sc1", "o")]
        def weave(main, extra, every):
            o = []; extra = list(extra)
            for k, f in enumerate(main):
                if extra and k % every == every - 1: o.append(extra.pop(0))
                o.append(f)
            return o + extra
        assert (cfg.op_at in self.BARS or (cfg.op_at == 160 and self.u4k)) and (self.u4k or cfg.hA_dl <= self.first(4, 2)) and cfg.hA_gap > cfg.hA_dl and (cfg.gate0_at in self.BARS or cfg.gate0_at == 160)
        fl += [("gap", max((cfg.op_at - cfg.PD) * 4 + 1, self.xdead(15 if self.u4k else 3)))] + opr
        last = [phi(0), weave(phi(1), mm(0), 4), weave(phi(2), mm(1), 4), post(0, 0) + post(0, 1)]
        for k in range(5):
            if k == cfg.finA + 2 and not self.u4k: fl += [("dl", 639)]
            fl += last[k] if k < 4 else []
        self.n_pre = cfg.n_preA; assert self.n_pre + cfg.n_epi <= (12 if self.u4k else 6)
        rest = self.units(fl, self.merge(self.f_pre(cfg.preA_gap), [("gap", cfg.hA_gap), lambda: self.flag(16, "h")])); self.st("fin")
        self.cur = 160
        self.n_pre += cfg.n_epi
        self.p2_plan()
        self.barrier(self.p2_full(-1), 56, op=cfg.op_at == 160, gate=[g for g, at in ((0, cfg.gate0_at), (8, cfg.gate8_at), (12, cfg.gate12_at)) if at == 160])
        self.st("_e0")
        lds_ = [x for u in range(cfg.n_preA, self.n_pre) for x in self.a2_loads(u)]
        self.run_fill(lds_ + rest + weave(phi(3), mm(2), 4) + mm(3), 10 ** 9)
        self.p2_start()
        self.run_fill(post(1, 0) + post(1, 1), 10 ** 9)
        self.st("p2")
        self.phase2({cfg.late_at: lambda: self.flag(28, "o")})
    def typeF(self):
        a, cfg = self.a, self.cfg
        ld, chk = self.f_nonce()
        self.xphase()
        self.unit0()
        R = self.accreg; xp, xl, xq = self.f_xres()
        sil = lambda u, cb: [("gap", self.comp(u, cb))] + self.f_silu([R(u, cb, 0), R(u, cb, 1)])
        h10, h11 = self.f_h(Q0, P0, sA2, 0, "h1"), self.f_h(Q0 + 8, P0 + 8, sA2, 2048, "h1")
        h2 = self.f_h(P0, P0 + 8, "s100", 0, "h2")
        h30, h31 = self.f_h(P0, Q0, "s88", 0, "h3"), self.f_h(P0 + 8, Q0 + 8, "s88", 2048, "h3")
        fl = [("gap", 128 + 2), ld] + sil(0, 0) + sil(0, 1) + sil(0, 2) + [chk, ("gap", self.comp(1, 1))] + h10[0] + [("dl", self.first(2, 0))] + h10[1]
        fl += sil(0, 3) + [("gap", self.comp(1, 3))] + h11[0] + h11[1] + [("dl", cfg.h1_dl)]
        fl += sil(2, 0) + sil(2, 1) + [("gap", self.comp(2, 3))] + h2[0] + h2[1] + [("dl", cfg.h2_dl)] + xp + xl + [f"s_add_u32 s88, s44, {8*8192}"]
        fl += sil(3, 0) + sil(3, 1) + sil(3, 2) + ([("dl", 639)] if cfg.finF == -1 else []) + sil(3, 3) + ([("dl", 639)] if cfg.finF == 0 else []) + [("gap", self.comp(4, 1))] + h30[0] + h30[1] + ([("dl", 639)] if cfg.finF == 1 else [])
        if MIXU == 4:
            h30, h31 = self.f_h(Q0, P0, "s88", 0, "h3"), self.f_h(Q0 + 8, P0 + 8, "s88", 2048, "h3")
            fl = [("gap", 128 + 2), ld] + sil(0, 0) + sil(0, 1) + sil(0, 2) + [chk, ("gap", self.comp(1, 1))] + h10[0] + [("dl", self.first(2, 0))]
            fl += sil(0, 3) + [("gap", self.comp(1, 3))] + h11[0] + [("dl", self.first(2, 2))] + h10[1] + h11[1] + [("dl", cfg.h1_dl)] + xp + xl + [f"s_add_u32 s88, s44, {8*8192}"]
            fl += sil(2, 0) + sil(2, 1) + sil(2, 2) + sil(2, 3) + [("gap", self.comp(3, 1))] + h30[0] + [("dl", self.first(4, 0))] + h30[1]
            fl += [("gap", self.comp(3, 3))] + h31[0] + h31[1] + [("dl", cfg.h2_dl)] + sil(4, 0) + sil(4, 1) + [("dl", 639)]
            assert cfg.h1_dl <= self.first(3, 0) and cfg.h2_dl <= self.first(4, 2) and not self.u4k
        def f2():
            self.st("_wh2"); a.wait_tag("h2"); self.st("_dh2")
            a(f"buffer_store_dword v{vTag}, v{vFl}, {srd('ws')}, s101 offen sc1")
        assert MIXU == 4 or (cfg.h1_dl <= self.first(2, 2) and cfg.h2_dl <= self.first(4, 0))
        assert cfg.n_preF + cfg.n_epiF <= (12 if self.u4k else 8) and not (self.u4k and cfg.finF == 1) and (cfg.gate0_at in self.BARS or cfg.gate0_at == 160)
        self.n_pre = cfg.n_preF; f3 = lambda: self.flag(8, "h3")
        rest = self.units(fl, self.merge(self.f_pre(cfg.preF_gap), [("gap", cfg.h1_dl + cfg.ack), lambda: self.flag(0, "h1")], [("gap", cfg.h2_dl + cfg.ack), f2 if MIXU == 2 else f3])); self.st("fin")
        self.cur = 160
        self.n_pre += cfg.n_epiF
        self.p2_plan()
        self.barrier(self.p2_full(-1), 56, gate=[g for g, at in ((0, cfg.gate0_at), (8, cfg.gate8_at), (12, cfg.gate12_at)) if at == 160])
        for u in range(cfg.n_preF, self.n_pre):
            for x in self.a2_loads(u): a(x)
        self.p2_start()
        self.run_fill(rest + (h31[0] + h31[1] if MIXU == 2 else h2[0] + h2[1]), 10 ** 9)
        self.st("p2")
        self.phase2({cfg.late_at: f3 if MIXU == 2 else f2})
    def p2_plan(self):
        cfg = self.cfg
        n0 = NSPL - 2 * NDEF; ev = lambda u: u & ~1 if u < n0 else u
        gated = {0} | ({8} if cfg.gate8_at <= 160 else set()) | ({12} if cfg.gate12_at <= 160 else set())
        assert all(stage_of(seq_of(a)[3])[0] in gated for a in range(self.n_pre))
        nxt = self.n_pre; self.p2l = {}; self.p2g = {}
        for u in range(36):
            ld = []
            while nxt < 36 and nxt <= u + (cfg.D if u < cfg.d_sw else cfg.D2) and len(ld) < 2:
                g = stage_of(seq_of(nxt)[3])[0]
                if g not in gated: gated.add(g); self.p2g.setdefault(ev(u), []).append(g)
                ld.append(nxt); nxt += 1
            self.p2l[u] = ld
            assert nxt > min(35, (u + 1) | 1 if u + 1 < n0 else u + 1) and nxt - ev(u) <= 16
        extra = [int(x) for x in (cfg.p2xA if self.typ == "A" else cfg.p2xF).split(",") if x]
        assert all(x == ev(x) for x in extra)
        assert all(cfg.late_at <= u for u in self.p2g for g in self.p2g[u] if g >= 20)
        self.p2b = sorted(set(list(self.p2g) + extra))
        self.steps = [(u, cb) for u in range(36) for cb in (((2 * u) % 4, (2 * u) % 4 + 1) if u < n0 else range(4))]
        self.NM = len(self.steps)
    def p2_full(self, u):
        nxt = min([b for b in self.p2b if b > u] + [35])
        return 56 + max(wslot(v) for v in range(nxt + 1)) + 1
    def p2_read(self, m, j):
        if m >= self.NM: return
        u, cb = self.steps[m]
        w = self.find(k="w2", u=wslot(u)); assert w["n"] < self.full, (m, w, self.full)
        e, t2 = j // 2, j % 2
        self.lds("ds_read_b64_tr_b16", vr(WB0 + 8 * (m % 4) + 4 * e + 2 * t2, 2), vA + cb, w["addr"] + e * 4096 + t2 * 2048)
    def p2_start(self):
        for cb in range(4): self.a(f"v_add_u32 v{vA+cb}, v{vNM}, v{vA+cb}")
        for m in range(3):
            for j in range(4): self.p2_read(m, j)
    def phase2(self, hooks):
        a, cfg = self.a, self.cfg
        xq = self.f_xres()[2] + [f"v_mov_b32 v{T0}, 0xff", f"v_and_b32 v{T0+1}, 0xff, v{vTag}"]; xa = {}
        for cb in range(4): xa[4 * (cfg.xadd_at // 2 + 3) + cb + 2] = [f"v_add_f32 v{ACC+4*cb+i}, v{ACC+4*cb+i}, v{P0+4*cb+i}" for i in range(4)]
        exl = [f"buffer_load_dwordx4 {vr(P0+4*cb,4)}, v{vL16}, {srd('ws')}, s12 offen offset:{cb*1024} sc1" for cb in range(4)]
        exc = [f"v_xor_b32 v{P0+4*cb}, v{T0+1}, v{P0+4*cb}" for cb in range(4)] + [f"v_or3_b32 v{T0+2}, v{P0}, v{P0+4}, v{P0+8}", f"v_or_b32 v{T0+2}, v{T0+2}, v{P0+12}",
               f"v_and_b32 v{T0+2}, 0xff, v{T0+2}", f"v_cmp_ne_u32 vcc, 0, v{T0+2}"]
        def check():
            L = a.newlabel("Lx"); C = a.newlabel("Lc")
            self.st("_t0"); a.need(vr(P0, 16)); a(*exc); a(f"s_cbranch_vccnz {L}"); a.label(C); self.st("_t1")
            a.stubs += [f"{L}:"] + ["    " + y for y in ([f"s_sleep {cfg.ex_s}"] if cfg.ex_s else []) + exl + [f"s_sub_u32 {sT}, {sT}, 1", "s_cbranch_scc1 L_end", "s_waitcnt vmcnt(0)"] + exc + [f"s_cbranch_vccnz {L}", f"s_branch {C}"]]
        add = lambda cb: [f"v_add_f32 v{ACC+4*cb+i}, v{ACC+4*cb+i}, v{P0+4*cb+i}" for i in range(4)] + [f"v_cvt_pk_bf16_f32 v{K0+2*cb+i}, v{ACC+4*cb+2*i}, v{ACC+4*cb+2*i+1}" for i in range(2)]
        swp = lambda k: [f"v_permlane16_swap_b32 v{K0+4*k}, v{K0+2+4*k}", f"v_permlane16_swap_b32 v{K0+1+4*k}, v{K0+3+4*k}"]
        sto = lambda k: [f"buffer_store_dwordx4 {vr(K0+4*k,4)}, v{vR}, {srd('out')}, s99 offen offset:{64*k} {cfg.out_aux.replace('_', ' ')}"]
        M0 = self.steps.index((NSPL - NDEF, 0)); sched = {}
        for cb in range(4):
            sched.setdefault(M0 - 2 + cb * cfg.ex_sp, []).extend([f"v_bfi_b32 v{Q0+4*cb}, v{T0}, v{vTag}, v{Q0+4*cb}", f"buffer_store_dwordx4 {vr(Q0+4*cb,4)}, v{vL16}, {srd('ws')}, s11 offen offset:{cb*1024} sc1;ex"])
            sched.setdefault(self.NM - cfg.ex_ld + cb // cfg.ex_n, []).append(exl[cb])
        assert cfg.ex_sp >= 1 and M0 - 2 + 3 * cfg.ex_sp < self.NM - cfg.ex_ld and cfg.ex_ld >= 4 // cfg.ex_n and max(xa) < M0 - 2
        fin = [check] + add(0) + add(1) + swp(0) + sto(0) + add(2) + add(3) + swp(1) + sto(1)
        if cfg.ex_ck:
            m1 = self.NM - cfg.ex_ck; assert 4 <= cfg.ex_ck <= cfg.ex_ld - 4 // cfg.ex_n
            sched.setdefault(m1, []).append(check)
            for k in range(4): sched.setdefault(m1 + k, []).extend(add((m1 + k + 2) % 4)[:4])
            fin = add(0)[4:] + add(1)[4:] + swp(0) + sto(0) + add(2)[4:] + add(3)[4:] + swp(1) + sto(1)
        for m, (u, cb) in enumerate(self.steps):
            mode, slot, who, _ = seq_of(u); split = mode == "split"
            h = cb % 2 if split else (cb // 2 if cb % 2 == 0 else None)
            buf = WB0 + 8 * (m % 4)
            if h == 0:
                if u in hooks: hooks[u]()
                if u in self.p2b:
                    a.need(vr(buf, 8))
                    self.barrier(self.p2_full(u), 56 + min(wslot(v) for v in range(u, 36)), phase="2", gate=self.p2g.get(u))
                self.st(f"c{u}" if u in (4, 12, 20, 28, 35) else f"_c{u}")
            extra = self.a2_loads(self.p2l[u][h]) if h is not None and len(self.p2l[u]) > h else []
            x = {0: self.SL[(u & ~1) % 16], 1: self.SL[(u | 1) % 16]} if split else {who: self.SL[u % 16]}
            a.need(vr(WB0 + 8 * ((m | 1) % 4) if split else buf, 8), *[vr(q, 4) for y in x.values() for q in y])
            order = ((0, 0), (1, 0), (1, 1), (0, 1)) if split else ((0, who), (1, who))
            for j, (e, t) in enumerate(order):
                d = (ACC, Q0)[t] + 4 * cb
                a(M16(d, buf + 4 * e, x[t][e], "0" if (m < 4 and j % 2 == 0) else d))
                for jj in ((j,) if split else (2 * j, 2 * j + 1)): self.p2_read(m + 3, jj)
                if u >= cfg.xadd_at and xq and (j == 0 or not extra): a(xq.pop(0))
                if m in xa and j == len(order) // 2:
                    assert not xq
                    a(*xa.pop(m))
                if j >= 1 and extra: a(extra.pop(0))
            a(*extra)
            if cfg.ex_w and m == self.NM - cfg.ex_ld: a.wait_tag("ex")
            for f in sched.get(m, []):
                if callable(f): f()
                else: a.e(f.split(";")[0], tag="ex" if f.endswith(";ex") else None)
        assert not xa
        self.run_fill(fin, 10 ** 9)
        self.st("_t2")
        if cfg.diag:
            a("s_waitcnt vmcnt(0)"); self.st("end")
            a.raw(f"    s_mov_b32 s{self.st.regs[self.st.n]}, {sT}"); self.st.n += 1
        self.st.flush(130, 129)
        a("s_endpgm")

class Loader:
    vX, vQ, vG, vD, vHh = 2, 4, 6, 16, 10
    vTag, vPo, vPo2, vP = 13, 14, 15, 16
    def __init__(self, a, cfg, comp):
        self.a, self.cfg, self.it, self.typ, self.bars = a, cfg, comp.it, comp.typ, comp.bars
        self.issued = 0
        self.st = Stamps(a, cfg, list(range(88, 102, 2)) + [8, 10] + list(range(16, 36, 2)))
    def slow_poll(self, load, cmp):
        a = self.a
        C = a.newlabel("Lc"); L = a.newlabel("Lp")
        a(cmp, f"s_cbranch_vccz {C}")
        a.label(L)
        a.raw("    " + load); timeout(a); a.raw("    s_waitcnt vmcnt(0)"); a.raw("    " + cmp); a.raw(f"    s_cbranch_vccnz {L}")
        a.label(C)
    def prologue(self):
        a = self.a
        a("v_and_b32 v0, 63, v0", f"s_sub_u32 {sW}, {sW}, 4", f"s_lshl_b32 s77, {sW}, 11")
        a("v_lshrrev_b32 v21, 3, v0", "v_and_b32 v22, 7, v0", "v_lshrrev_b32 v23, 4, v0", "v_xor_b32 v24, v22, v23", "v_lshlrev_b32 v24, 4, v24")
        a(f"v_lshl_add_u32 v{self.vX}, v21, 10, v24", f"v_xor_b32 v{self.vX+1}, 64, v{self.vX}", f"v_add_u32 v{self.vX+1}, {8*1024-1024}, v{self.vX+1}")
        a(f"s_lshl_b32 s79, {sC}, 2", f"s_add_u32 s79, s79, {sW}", "s_lshl_b32 s79, s79, 15")
        a("s_movk_i32 s85, 0x3ff", f"s_lshl_b32 s84, {sROT}, 7" if self.cfg.rot else "s_mov_b32 s84, 0", "s_and_b32 s84, s84, s85", "s_add_u32 s78, s79, s84", "s_mov_b32 m0, s77")
        if self.cfg.lprio: a(f"s_setprio {self.cfg.lprio}")
        srd_const(a, "x")
        if "X0" in self.cfg.planX:
            a("s_lshr_b32 s82, s2, 7", "s_lshl_b32 s82, s82, 3", f"s_add_u32 s82, s82, {sI}", f"s_lshl_b32 s83, {sC}, 4", "s_add_u32 s82, s82, s83",
              "s_lshl_b32 s82, s82, 2", f"s_add_u32 s82, s82, {sW}", "s_lshl_b32 s82, s82, 11", "v_lshlrev_b32 v28, 7, v0")
        if self.cfg.prearly: self.prologue2a()
        a("s_waitcnt lgkmcnt(0)")
        srd_base(a, "x")
    def prologue2a(self):
        a = self.a
        for n in ("qkv", "gate", "up"): srd_const(a, n)
        a(f"s_lshl_b32 s76, {sW}, 4", "v_add_u32 v21, s76, v21", f"s_lshl_b32 s80, {sI}, 7")
        a("v_lshlrev_b32 v25, 1, v23", "v_and_b32 v25, 2, v25", "v_xor_b32 v24, v22, v25", "v_lshlrev_b32 v24, 4, v24", "v_xor_b32 v26, 64, v24")
        for reg, st in ((self.vQ, 3072), (self.vG, 3584)):
            a(f"v_mul_u32_u24 v25, {st}, v21", f"v_add_u32 v{reg}, v25, v24", f"v_add_u32 v{reg+1}, v25, v26", f"v_add_u32 v{reg+1}, {8*st-1024}, v{reg+1}")
    def prologue2(self):
        a = self.a
        if not self.cfg.prearly: self.prologue2a()
        for n in ("qkv", "gate", "up"): srd_base(a, n)
        a(f"s_xor_b32 s0, s80, {self.cfg.x1 << 7}", f"s_xor_b32 s1, s80, {self.cfg.x4 << 7}")
    def prologue3(self):
        a = self.a
        for n in ("down", "wo", "ws", "dbg"): srd_base(a, n); srd_const(a, n)
        a("v_lshlrev_b32 v25, 1, v23", "v_xor_b32 v24, v22, v25", "v_lshlrev_b32 v24, 4, v24", f"v_lshl_add_u32 v{self.vD}, v21, 10, v24",
          f"v_add_u32 v{self.vD+1}, {8*1024-1024}, v{self.vD}")
        a("v_lshrrev_b32 v25, 2, v0", f"s_lshl_b32 s76, {sW}, 5", "v_add_u32 v25, s76, v25", "v_mul_u32_u24 v25, 3584, v25", "v_and_b32 v26, 3, v0",
          "v_and_b32 v27, 2, v23", "v_xor_b32 v27, v26, v27", f"v_lshl_add_u32 v{self.vHh}, v27, 4, v25", f"v_add_u32 v{self.vHh+1}, {16*3584-1024}, v{self.vHh}")
        a("v_lshlrev_b32 v27, 4, v0")
        a(f"s_and_b32 s76, {sW}, 2", "s_lshl_b32 s76, s76, 7", f"s_and_b32 s82, {sW}, 1", "s_lshl_b32 s82, s82, 11", "s_add_u32 s76, s76, s82", f"v_lshl_add_u32 v{self.vPo}, v26, 9, s76")
        a("v_lshlrev_b32 v18, 10, v26", "v_lshrrev_b32 v25, 1, v26", "v_lshlrev_b32 v25, 10, v25", f"v_and_b32 v{self.vPo2}, 1, v26", f"v_lshl_add_u32 v{self.vPo2}, v{self.vPo2}, 7, v25")
        a(f"s_lshl_b32 s81, {sCB}, 7")
        a(f"s_mul_i32 s83, {sTB}, {36*512}", f"s_add_u32 s83, s83, {WS_FLAG:#x}")
        a(f"s_and_b32 s76, {sTB}, 1", "s_lshl_b32 s69, s76, 16", "s_add_u32 s69, s69, s81")
        a(f"s_and_b32 s71, {sTB}, 30", f"s_lshr_b32 s70, {sW}, 1", "s_add_u32 s71, s71, s70", "s_mul_i32 s71, s71, 36", "s_add_u32 s71, s71, s76", "s_lshl_b32 s71, s71, 1",
          f"s_and_b32 s70, {sW}, 1", "s_add_u32 s71, s71, s70", "s_lshl_b32 s71, s71, 8", f"s_add_u32 s71, s71, {WS_FLAG:#x}")
        a("s_lshl_b32 s86, s2, 2", f"s_add_u32 s86, s86, {sW}", "s_lshr_b32 s87, s2, 3", "s_lshl_b32 s87, s87, 2", f"s_add_u32 s87, s87, {sW}", "v_lshlrev_b32 v28, 7, v0", "v_lshlrev_b32 v30, 10, v0")
        a(f"s_lshl_b32 s38, {sI}, 4", f"s_add_u32 s38, s38, {sC}", "s_mul_i32 s82, s38, 6144", f"s_add_u32 s82, s82, {WS_KV:#x}", "s_mul_i32 s38, s38, 384", f"s_add_u32 s38, s38, {WS_KV2:#x}")
        a(f"s_xor_b32 s39, {sI}, {self.cfg.x4}", "s_lshl_b32 s39, s39, 2", f"s_add_u32 s39, s39, {sW}", "s_mul_i32 s39, s39, 1536", f"s_add_u32 s39, s39, {WS_KV2:#x}")
        a("v_and_b32 v41, 15, v0", "v_lshl_add_u32 v42, v23, 7, v27", "v_mul_u32_u24 v40, 384, v23")
        a("v_lshrrev_b32 v39, 2, v0", "v_mul_u32_u24 v39, 384, v39", "v_lshl_add_u32 v39, v26, 3, v39")
        a("v_lshlrev_b32 v38, 2, v23", "v_lshl_add_u32 v38, v41, 4, v38", "v_lshlrev_b32 v37, 2, v0", "v_mov_b32 v36, 0xff")
        a(f"s_mul_i32 s76, {sW}, 576", "v_lshl_add_u32 v43, v0, 3, s76", "v_lshl_add_u32 v44, v23, 3, s76")
    def prologue4(self):
        a, cfg = self.a, self.cfg
        pA, pB = make_items(cfg, "A")[1]
        a(f"v_lshl_add_u32 v48, {sW}, 10, v27", f"v_add_u32 v49, {pB}, v48", f"v_add_u32 v48, {pA}, v48")
        a("v_lshlrev_b32 v50, 2, v26", "v_lshl_add_u32 v50, v23, 4, v50", f"v_lshl_add_u32 v50, {sW}, 6, v50")
        a("v_mul_u32_u24 v51, 5888, v23", "v_add_u32 v51, v51, v27", "v_mul_u32_u24 v52, 6016, v23", "v_lshl_add_u32 v52, v0, 3, v52")
        a(f"s_lshl_b32 s68, {sI}, 2", f"s_add_u32 s68, s68, {sW}", "s_lshl_b32 s68, s68, 6", f"s_add_u32 s68, s68, {sC}", "s_mul_i32 s68, s68, 384", f"s_add_u32 s68, s68, {WS_KV:#x}")
    def kv_publish(self):
        a = self.a
        for s in range(4): a(f"ds_read_b128 {vr(96+4*s,4)}, v{48+s//2} offset:{(s%2)*4096}")
        for s in range(4): a(f"ds_read_b32 v{112+s}, v50 offset:{ZR_OFF+s*256}")
        a.wait(lg=0)
        for s in range(1, 4): a(*[f"v_add_f32 v{96+r}, v{96+r}, v{96+4*s+r}" for r in range(4)], f"v_add_f32 v112, v112, v{112+s}")
        a(*[f"v_bfi_b32 v{r}, v36, v{self.vTag}, v{r}" for r in (96, 112)], "v_mov_b32 v113, v112")
        a(f"buffer_store_dwordx4 v[96:99], v51, {srd('ws')}, s68 offen sc1", f"buffer_store_dwordx2 v[112:113], v52, {srd('ws')}, s68 offen offset:256 sc1")
    def colbase(self, u): return (("s80", "s80", "s0", "s0", "s1") if self.typ == "A" else ("s80", "s80", "s0", "s0", "s0"))[u]
    def item(self, x, reg=None):
        a = self.a; k = x["k"]; aux = ""; rot = None
        if k == "x":
            n, t, sl = x["n"], x["t"], x["s"]
            assert x["addr"] == 8192 * (n + 1)
            a("s_addk_i32 m0, 0x2000")
            if n == 0: pass
            elif sl % 2 == 1: a("s_addk_i32 s78, 128")
            elif n == 2 and t == 1: a("s_addk_i32 s78, 0x3f80")
            else:
                if n == 10 and self.cfg.xo == 0: a("s_addk_i32 s79, 0x4000", "s_addk_i32 s84, 256")
                if n == 8 and t == 1: a("s_addk_i32 s79, 0x4000")
                a("s_addk_i32 s84, 256", "s_and_b32 s84, s84, s85", "s_add_u32 s78, s79, s84")
            a.e(f"buffer_load_dwordx4 v{self.vX}, {srd('x')}, s78 offen lds", tag=n)
            a.e(f"buffer_load_dwordx4 v{self.vX+1}, {srd('x')}, s78 offen offset:1024 lds", tag=n)
            self.issued = n + 1
            return
        elif k == "w1":
            u, i = x["u"], x["i"]
            if self.typ == "A":
                s, v, st, off = [("qkv", self.vQ, 3072, 1024), ("qkv", self.vQ, 3072, 2048), ("gate", self.vG, 3584, 16 * 128),
                                 ("up", self.vG, 3584, 16 * 128), ("qkv", self.vQ, 3072, 0)][u]
                base, rot = self.colbase(u), (i, 64 * st)
            elif u != MIXU:
                uu = u - (u > MIXU)
                s, v, base, off, rot = ("gate", "up")[uu % 2], self.vG, self.colbase(u), (uu // 2) * 8 * 128, (i, 64 * 3584)
            else:
                if i == 0: a(f"s_lshl_b32 s79, {sI}, 6")
                s, v, base, off, rot = ("gate", "up")[i // 4], self.vHh, "s79", 24 * 128, (2 * (i % 4), 64 * 3584)
        elif k == "w2":
            u = x["u"]; split = 2 * u < NSPL; U = unit_at(2 * u if split else u - NSPL // 2 + NSPL)
            s, v, base, off = ("down", self.vD, "s69" if split else "s81", U * 65536) if U < 28 else ("wo", self.vD, "s69" if split else "s81", (U - 28) * 65536)
        if rot and self.cfg.rot:
            a(f"s_add_u32 s84, {sROT}, {rot[0]}", "s_and_b32 s84, s84, 7", f"s_mul_i32 s84, s84, {rot[1]}", f"s_add_u32 s84, s84, {base}")
            base = "s84"
        elif rot: off += rot[0] * rot[1]
        if reg is not None:
            a(f"s_add_u32 s78, {base}, {off}")
            a(f"buffer_load_dwordx4 {vr(reg,4)}, v{v}, {srd(s)}, s78 offen", f"buffer_load_dwordx4 {vr(reg+4,4)}, v{v+1}, {srd(s)}, s78 offen offset:1024")
            return
        a(f"s_add_u32 m0, s77, {x['addr']}", f"s_add_u32 s78, {base}, {off}")
        a.e(f"buffer_load_dwordx4 v{v}, {srd(s)}, s78 offen lds", tag=x["n"])
        a.e(f"buffer_load_dwordx4 v{v+1}, {srd(s)}, s78 offen offset:1024 lds", tag=x["n"])
        self.issued = x["n"] + 1
    def sub(self, loads, check, work, since):
        a = self.a
        b = Asm(); b.uid = a.uid + 1; a.uid += 10
        L, C = b.newlabel("Lr"), b.newlabel("Lc")
        b(f"s_waitcnt vmcnt({since})", *check); b(f"s_cbranch_vccz {C}")
        b.label(L); b(*loads); timeout(b); b("s_waitcnt vmcnt(0)", *check); b(f"s_cbranch_vccnz {L}")
        b.label(C); b.reset(); b("s_nop 0"); b(*work)
        return b.out
    def by_wave(self, parts):
        a = self.a; E = a.newlabel("Le")
        for w, p in enumerate(parts):
            N = a.newlabel("Ln")
            a.out += [f"    s_cmp_lg_u32 {sW}, {w}", f"    s_cbranch_scc1 {N if w + 1 < len(parts) else E}"] + p
            if w + 1 < len(parts): a.out += [f"    s_branch {E}", N + ":"]
        a.label(E); a.hist = []
    def kv(self, x):
        a, tg, ws = self.a, self.vTag, srd("ws")
        def chk(regs):
            o = [f"v_and_b32 v33, 0xff, v{tg}"] + [f"v_xor_b32 v{r}, v33, v{r}" for r in regs] + [f"v_mov_b32 v32, v{regs[0]}"]
            for k in range(1, len(regs), 2): o += [f"v_or3_b32 v32, v32, v{regs[k]}, v{regs[min(k + 1, len(regs) - 1)]}"]
            return o + ["v_and_b32 v32, 0xff, v32", "v_cmp_ne_u32 vcc, 0, v32"]
        l1 = [y for t in range(4) for y in (f"s_add_u32 s78, s82, {t*1536}", f"buffer_load_dwordx4 {vr(64+4*t,4)}, v42, {ws}, s78 offen sc1")]
        l1z = [f"buffer_load_dword v64, v39, {ws}, s82 offen offset:256 sc1"]
        l2 = [f"buffer_load_dwordx4 v[80:83], v42, {ws}, s39 offen sc1", f"buffer_load_dwordx4 v[84:87], v40, {ws}, s39 offen offset:256 sc1"]
        if x in ("G0", "G1"):
            if x == "G0": self.by_wave([["    " + y for y in l1], ["    " + y for y in l1z]])
            else: a.out += ["    " + y for y in l2]
            self.mark = a.nvm
        elif x == "S0":
            w0 = [f"v_add_f32 v{64+r}, v{64+r}, v{68+r}" for r in range(4)] + [f"v_add_f32 v{72+r}, v{72+r}, v{76+r}" for r in range(4)] + [f"v_add_f32 v{64+r}, v{64+r}, v{72+r}" for r in range(4)]
            w0 += ["v_permlane32_swap_b32 v64, v66", "v_permlane32_swap_b32 v65, v67", "v_add_f32 v64, v64, v66", "v_add_f32 v65, v65, v67", "v_permlane16_swap_b32 v64, v65", "v_add_f32 v64, v64, v65",
                   f"v_bfi_b32 v64, v36, v{tg}, v64", f"buffer_store_dword v64, v38, {ws}, s38 offen sc1"]
            w1 = ["v_add_f32_dpp v64, v64, v64 row_ror:4 row_mask:0xf bank_mask:0xf", "v_add_f32_dpp v64, v64, v64 row_ror:8 row_mask:0xf bank_mask:0xf",
                  "v_mov_b32 v65, v64", "v_permlane32_swap_b32 v64, v65", "v_add_f32 v64, v64, v65", "v_mov_b32 v65, v64", "v_permlane16_swap_b32 v64, v65", "v_add_f32 v64, v64, v65",
                  f"v_mul_f32 v64, {f2u(LOG2E):#x}, v64", f"v_bfi_b32 v64, v36, v{tg}, v64", "s_mov_b32 exec_hi, 0", f"buffer_store_dword v64, v37, {ws}, s38 offen offset:256 sc1", "s_mov_b32 exec_hi, -1"]
            k = min(63, a.nvm - self.mark)
            self.by_wave([self.sub(l1, chk([64, 68, 72, 76]), w0, k), self.sub(l1z, chk([64]), w1, k)])
        else:
            w = [f"v_cvt_pk_bf16_f32 v{88+i}, v{80+2*i}, v{81+2*i}" for i in range(4)]
            w += [f"ds_write_b64 v43, v[88:89] offset:{OP_OFF}", f"ds_write_b64 v44, v[90:91] offset:{OP_OFF+512}"]
            a.out += self.sub(l2, chk(list(range(80, 88))), w, min(63, a.nvm - self.mark)); a.hist = []
    def sweep(self, lst, idx):
        a = self.a
        for nm, nl, base in lst:
            a(f"s_mul_i32 s76, {idx}, {nl*128}")
            if base: a(f"s_add_u32 s76, s76, {base}")
            a(f"s_mov_b64 exec, {(1 << nl) - 1:#x}", f"buffer_load_dword v{140+self.npf}, v28, {srd(nm)}, s76 offen"); self.npf += 1
        a("s_mov_b64 exec, -1")
    def action(self, x):
        a, cfg = self.a, self.cfg
        nload = f"buffer_load_dword v{self.vTag}, off, {srd('dbg')}, 0 sc1"
        need = {"U": ["PR"], "V": ["PR"], "PS": ["PR"], "P1": ["PS"], "P2": ["PS"], "P2a": ["PS"], "L": ["PS"], "R": ["PS"], "R0": ["PS"], "C": ["PS"], "N0": ["PS"], "N1": ["N0"],
                "G0": ["PS"], "G1": ["S0"], "S0": ["G0", "N1"], "S1": ["G1", "S0"], "Q": ["PS"]}
        for y in need.get(x, need.get(x[0], []) if x[0] in "UVLQ" else []): assert y in self.done, (x, "before", y)
        assert x not in self.done and x != "C" and x[0] not in "YZ" and NSPL in (20, 24, 28, 36) and MIXU == 2, x
        assert not (x == "V2" and self.issued < 16)
        self.done.add(x); SITE[0] = {"N1": 0, "S0": 1, "S1": 2}.get(x)
        if x == "PS" and os.environ.get("SITES"): a("s_mov_b32 s68, 0")
        if x[0] == "Q":
            u = int(x[1:]); a(f"s_add_u32 s76, {'s71' if u < NSPL else 's83'}, {(8 if u == 24 else stage_of(u)[1])*512}", "s_mov_b64 exec, 15", self.pl(u, 99), "s_mov_b64 exec, -1")
        elif x == "P1": self.sweep((("gate", 14, 0), ("up", 14, 0), ("qkv", 12, 0)), "s86")
        elif x == "P2": self.sweep((("down", 14, 0), ("wo", 4, 0)), "s86")
        elif x == "P2a": self.sweep((("down", 8, 0),), "s86")
        elif x[0] == "L":
            k = int(x[1:]); self.sweep(((("down", 16, k << 18) if k < 7 else ("wo", 16, (k - 7) << 18)),), "s87")
        elif x in ("R", "R0"):
            for nm, nl in ((("down", 14), ("wo", 4)) if x == "R" else (("qkv", 12),)):
                a(f"s_mul_i32 s76, s87, {nl*1024}", f"s_mov_b64 exec, {(1 << nl) - 1:#x}", f"buffer_load_dword v{140+self.npf}, v30, {srd(nm)}, s76 offen offset:384"); self.npf += 1
            a("s_mov_b64 exec, -1")
        elif x[0] in "UV":
            if not hasattr(self, "split"): self.split = len(a.out)
            u = int(x[1:])
            if self.typ == "A": s_, v, st, off = [("qkv", self.vQ, 3072, 1024), ("qkv", self.vQ, 3072, 2048), ("gate", self.vG, 3584, 2048), ("up", self.vG, 3584, 2048), ("qkv", self.vQ, 3072, 0)][u]
            else: uu = u - (u > MIXU); s_, v, st, off = ("gate", "up")[uu % 2], self.vG, 3584, (uu // 2) * 1024
            if x[0] == "V":
                a(f"s_lshl_b32 s76, {sC}, 2", f"s_sub_u32 s76, s76, {sW}", f"s_mul_i32 s76, s76, {8*st}", "s_mov_b32 exec_lo, 0x01010101", "s_mov_b32 exec_hi, 0x01010101")
                if self.typ == "F" and u == MIXU:
                    a(f"s_lshr_b32 s84, {sI}, 1", "s_lshl_b32 s84, s84, 7", "s_add_u32 s76, s76, s84", f"v_add_u32 v29, s76, v{v}")
                    for s_ in ("gate", "up"):
                        a(f"buffer_load_dword v{140+self.npf}, v29, {srd(s_)}, 0 offen offset:3072"); self.npf += 1
                else:
                    a(f"s_add_u32 s76, s76, {self.colbase(u)}", f"v_add_u32 v29, s76, v{v}", f"buffer_load_dword v{140+self.npf}, v29, {srd(s_)}, 0 offen offset:{off}"); self.npf += 1
                a("s_mov_b64 exec, -1")
                return
            assert cfg.grid == 24 and not (self.typ == "F" and u == MIXU)
            a(f"s_and_b32 s76, {sC}, 7", f"s_mul_i32 s76, s76, {64*st}", f"s_add_u32 s76, s76, {self.colbase(u)}", "s_mov_b32 exec_lo, 0x01010101", "s_mov_b32 exec_hi, 0x01010101")
            for t in range(2):
                a(f"buffer_load_dword v{140+self.npf}, v{v+t}, {srd(s_)}, s76 offen offset:{off+1024*t}"); self.npf += 1
            a("s_mov_b64 exec, -1")
        elif x[0] == "Z":
            assert "PS" in self.done
            if x[1] in "dw":
                nm, nl = (("down", 14) if x[1] == "d" else ("wo", 4)); offs = range(14 * int(x[2]), 14 * int(x[2]) + 14) if x[1] == "d" else range(8)
                a(f"s_mul_i32 s76, s86, {nl*128}"); offs = [64 * k for k in offs]
            else:
                u = int(x[1])
                if self.typ == "A": nm, st, off = [("qkv", 3072, 1024), ("qkv", 3072, 2048), ("gate", 3584, 2048), ("up", 3584, 2048), ("qkv", 3072, 0)][u]
                else: uu = u - (u > MIXU); nm, st, off = ("gate", "up")[uu % 2], 3584, (uu // 2) * 1024; assert u != MIXU
                a(f"s_lshl_b32 s76, {sC}, 2", f"s_add_u32 s76, s76, {sW}", f"s_mul_i32 s76, s76, {8*st}", f"s_add_u32 s76, s76, {self.colbase(u)}")
                offs = [off + r * st + 64 * h for r in range(8) for h in range(2)]
            a(f"s_add_u32 s70, s{SRD[nm]}, s76", f"s_addc_u32 s71, s{SRD[nm]+1}, 0")
            for o in offs: a(f"s_load_dword s69, s[70:71], {o}")
        elif x == "X0":
            assert "PS" not in self.done
            a("s_mov_b64 exec, 0xffff", f"buffer_load_dword v139, v28, {srd('x')}, s82 offen", "s_mov_b64 exec, -1")
        elif x in ("Y0", "Y1"):
            u = int(x[1]); A, F = SRD["qkv"], SRD[("gate", "up")[u]]
            a("s_cmp_lt_u32 s2, 128", f"s_cselect_b64 s[68:69], s[{A}:{A+1}], s[{F}:{F+1}]", f"s_cselect_b32 s70, s{A+2}, s{F+2}", "s_cselect_b64 vcc, -1, 0",
              f"s_cselect_b32 s83, {1024*(u+1)}, 0", "s_movk_i32 s76, 0x7000", "s_cselect_b32 s76, 0x6000, s76", "s_mov_b32 s71, 0x20000",
              f"s_lshl_b32 s86, {sC}, 2", f"s_sub_u32 s86, s86, {sW}", "s_mul_i32 s76, s76, s86", "s_add_u32 s76, s76, s83", "s_add_u32 s76, s76, s80",
              f"v_cndmask_b32 v29, v{self.vG}, v{self.vQ}, vcc", "v_add_u32 v29, s76, v29", "s_mov_b32 exec_lo, 0x01010101", "s_mov_b32 exec_hi, 0x01010101",
              f"buffer_load_dword v{137+u}, v29, s[68:71], 0 offen", "s_mov_b64 exec, -1")
            assert "PS" not in self.done and "PR" in self.done
        elif x == "PR": self.prologue2()
        elif x == "PS": self.prologue3()
        elif x == "PK": assert "PS" in self.done; self.prologue4()
        elif x == "C":
            L = a.newlabel("Lpc")
            a("s_getpc_b64 s[70:71]"); a.label(L)
            a(f"s_sub_u32 s70, s70, {L}-{NAME}_kernel", "s_subb_u32 s71, s71, 0", "s_mul_i32 s76, s87, 640", "v_add_u32 v29, s76, v28", f"v_min_u32 v29, L_last-{NAME}_kernel, v29")
            a("s_mov_b64 exec, 31", f"global_load_dword v{140+self.npf}, v29, s[70:71]", "s_mov_b64 exec, -1"); self.npf += 1
        elif x[0] == "W": self.st(x + "a"); a("s_waitcnt vmcnt(0)"); self.st(x + "b")
        elif x[0] == "T": self.st(x)
        elif x == "N0": a(nload)
        elif x == "N1": self.slow_poll(nload, f"v_cmp_eq_u32 vcc, 0, v{self.vTag}")
        elif cfg.nogather and x in ("G0", "G1", "S0", "S1"): pass
        elif x in ("G0", "G1"): self.kv(x)
        elif x in ("S0", "S1"): a(f"s_setprio {cfg.gprio}"); self.kv(x); a(f"s_setprio {cfg.lprio}"); self.st("g" + x[1])
        else: raise KeyError(x)
    def run(self):
        a, cfg, it = self.a, self.cfg, self.it
        self.st("start"); self.npf = 0; self.done = set()
        if os.environ.get("ENTRY"):
            a.raw(f"    s_mov_b32 s{self.st.regs[self.st.n]}, s14"); self.st.n += 1; self.st.names.append("entry")
        spec = (cfg.planX + " " + (cfg.planA if self.typ == "A" else cfg.planF)).split()
        pol = {int(x.split(":")[0]): [int(y) for y in x.split(":")[1].split(",")] for x in cfg.polls.split()}
        for g in pol:
            if any(f"Q{g}" in y.split(",") for y in spec): pol[g] = [99]
        for bi, b in enumerate(self.bars):
            for g in b.get("gate") or []:
                for k in pol[g] if pol[g] != [99] else []: self.bars[bi - k].setdefault("poll", []).append((g, k))
        freed = 0; plan = []
        for bi, b in enumerate(self.bars):
            vP = lambda u, k: 200 + 4 * STAGES.index(u) + pol[u].index(k)
            pl = lambda u, k: f"buffer_load_dword v{vP(u, k)}, v{self.vPo2 if stage_of(u)[2] == 4 else 18 if u < NSPL else self.vPo}, {srd('ws')}, s76 offen sc1"
            self.pl = pl
            if cfg.kvl and bi and self.bars[bi - 1].get("kvx"):
                assert "N1" in self.done and "PK" in self.done and freed < cfg.scr_rel
                a(f"s_setprio {cfg.kprio}"); self.kv_publish(); a(f"s_setprio {cfg.lprio}")
            for u, k in b.get("poll", []): a(f"s_add_u32 s76, {'s71' if u < NSPL else 's83'}, {(8 if u == 24 else stage_of(u)[1])*512}", "s_mov_b64 exec, 15", pl(u, k), "s_mov_b64 exec, -1")
            acts = spec[bi].split(",") if bi < len(spec) else [cfg.p2_cap]
            early = None
            for x in acts + ["req"]:
                if x == "|":
                    assert self.issued >= b["full"] and hasattr(self, "split") and not b.get("gate") and not b.get("op") and not cfg.bdiag
                    early = a.newlabel("Ly"); N = a.newlabel("Ln"); save = list(a.vm)
                    a(f"s_and_b32 s76, {sI}, {7 if self.typ == 'A' else cfg.slowF}", "s_cmp_eq_u32 s76, 3", "s_cselect_b32 s70, 1, 0", f"s_cbranch_scc0 {N}")
                    for n in range(b["full"] - 1, -1, -1):
                        if any(e[1] == n for e in a.vm): a.wait_tag(n); break
                    a.raw("    s_barrier ; early"); a.label(N); a.vm = save
                elif x[0].isdigit() or x == "req":
                    depth = int(x.split("t")[1]) if "t" in x else None
                    lim = self.issued + int(x.split("t")[0]) if x != "req" else b["full"]
                    while self.issued < min(lim, len(it)):
                        y = it[self.issued]
                        if y["need"] > freed:
                            assert x != "req", ("deadlock", bi, b, y); break
                        if x == "req": print(f"  [{self.typ}] barrier {bi}: item {y['n']} issued only when required", file=sys.stderr)
                        if y["n"] == 16 and not hasattr(self, "split"): self.split = len(a.out)
                        if y["n"] in (16, 32, 56): self.st(f"i{y['n']}")
                        assert y["n"] < 16 or "PR" in self.done
                        assert y["n"] < 32 or "PS" in self.done
                        if depth: a.wait_tag(y["n"] - depth)
                        self.item(y)
                else: self.action(x)
            if b.get("op") and not cfg.nogather:
                assert "S1" in self.done
                a("s_waitcnt lgkmcnt(0)")
            for u in b.get("gate") or []:
                a(f"s_add_u32 s76, {'s71' if u < NSPL else 's83'}, {(8 if u == 24 else stage_of(u)[1])*512}", "s_mov_b64 exec, 15")
                assert "N1" in self.done and (pol[u] != [99] or f"Q{u}" in self.done)
                SITE[0] = 3 + STAGES.index(u)
                Cg = a.newlabel("Lc"); save = None
                for k in pol[u][:-1]:
                    a(f"v_cmp_ne_u32 vcc, v{self.vTag}, v{vP(u, k)}", f"s_cbranch_vccz {Cg}")
                    if save is None: save = list(a.vm)
                k = pol[u][-1]
                self.slow_poll(pl(u, k), f"v_cmp_ne_u32 vcc, v{self.vTag}, v{vP(u, k)}")
                a.label(Cg)
                if save is not None: a.vm = save
                a("s_mov_b64 exec, -1")
                self.st(f"f{u}")
            for n in range(b["full"] - 1, -1, -1):
                if any(e[1] == n for e in a.vm): a.wait_tag(n); break
            if cfg.bdiag: a.raw("    s_memtime s[12:13]")
            if early: a("s_cmp_eq_u32 s70, 1", f"s_cbranch_scc1 {early}")
            a("s_barrier")
            if early: a.label(early)
            if cfg.bdiag:
                for x_ in ("s_memtime s[14:15]", "s_waitcnt lgkmcnt(0)", f"v_writelane_b32 v46, s12, {bi}", f"v_writelane_b32 v47, s14, {bi}"): a.raw("    " + x_)
            freed = b["freed"]
            plan.append(f"{bi}:{b['step']}:d{b['dur']:.0f}:f{b['full']}:i{self.issued}:{','.join(acts)}" + (f":gate{b['gate']}" if b.get("gate") else ""))
        assert self.issued == len(it)
        print(f"plan {self.typ}:", " ".join(plan), file=sys.stderr)
        self.st("end")
        if cfg.diag: a.raw(f"    s_mov_b32 s{self.st.regs[self.st.n]}, {'s68' if os.environ.get('SITES') else sT}"); self.st.n += 1
        if cfg.bdiag:
            a("s_lshl_b32 s76, s2, 2", f"s_add_u32 s76, s76, {sW}", "s_lshl_b32 s76, s76, 9", f"s_add_u32 s76, s76, {WS_DIAG+0x100000:#x}", "v_lshlrev_b32 v45, 2, v0")
            a(f"buffer_store_dword v46, v45, {srd('ws')}, s76 offen", f"buffer_store_dword v47, v45, {srd('ws')}, s76 offen offset:256")
        self.plan = plan
        if cfg.diag: a(f"s_add_u32 {sW}, {sW}, 4")
        self.st.flush(130, 129)
        a("s_endpgm")

NPAD = 8
def touch_code(cfg):
    if not cfg.pads: return []
    o = ["s_cmp_ge_u32 s2, 128", "s_cbranch_scc1 L_tF"]
    for typ in "AF":
        o += [f"L_t{typ}:"]
        for w in range(4):
            if w < 3: o += [f"s_cmp_lg_u32 {sW}, {w}", f"s_cbranch_scc1 L_t{typ}{w+1}"]
            o += [f"s_call_b64 s[30:31], L_pad{typ}{k}" for k in range(w, NPAD, 4)] + ["s_branch L_tdone"]
            if w < 3: o += [f"L_t{typ}{w+1}:"]
    return [x if x.endswith(":") else "    " + x for x in o[:-1] + ["L_tdone:"]]
def place(lines, cfg):
    import subprocess, tempfile
    ins = [l for l in lines if not l.strip().startswith(".")]
    labels = set(re.findall(r"\bL_\w+", "\n".join(ins))) - {l[:-1] for l in ins if l.endswith(":")}
    with tempfile.TemporaryDirectory() as d:
        open(d + "/x.s", "w").write(".text\n" + "\n".join(ins) + "\n" + "".join(x + ":\n" for x in labels) + "s_endpgm\n")
        subprocess.run(["clang", "-x", "assembler", "-target", "amdgcn-amd-amdhsa", "-mcpu=gfx950", "-c", d + "/x.s", "-o", d + "/x.o"], check=True)
        dis = subprocess.run(["llvm-objdump", "-d", "--mcpu=gfx950", d + "/x.o"], capture_output=True, text=True, check=True).stdout
    ad = [int(m, 16) for m in re.findall(r"// ([0-9A-F]{12}):", dis)]
    size = iter([y - x for x, y in zip(ad, ad[1:])])
    out = []; pos = 0; page = 1; typ = "S"; pads = dict(S=[], A=[], F=[]); prev = ""; live = True
    for l in lines:
        t = l.strip()
        if t == ".p2align 3":
            if pos % 8: out.append("    s_nop 0"); pos += 4
            continue
        if t == "L_compA:": typ = "A"
        if t == "L_compF:":
            while pos % 64: out.append("    s_nop 0"); pos += 4
            typ = "F"; live = True; n = f"L_pg{len(out)}"; pads["F"].append(n)
            out += [n + ":", "    s_setpc_b64 s[30:31]", "    s_nop 0"]; pos += 8; page = pos // 4096 + 1
        if t.endswith(":"): out.append(l); continue
        if pos >= 4096 * page - 4 and (prev.startswith("v_mfma") or pos >= 4096 * page + 40):
            if live and cfg.pads:
                n = f"L_pg{len(out)}"; pads[typ].append(n)
                out += [f"    s_branch {n}x", n + ":", "    s_setpc_b64 s[30:31]", n + "x:"]; pos += 8
            page += 1
        out.append(l); pos += next(size); prev = t
        if t == "s_endpgm": live = False
    for ty in "AF":
        p = pads["S"] + pads[ty]; assert len(p) <= NPAD, p
        if not cfg.pads: continue
        for k in range(NPAD): out = [re.sub(rf"\bL_pad{ty}{k}\b", p[min(k, len(p) - 1)], x) for x in out]
    return out

def set_type(cfg, typ):
    global STG, STAGES, MIXU, NSPL, NDEF
    MIXU = cfg.mixu; NSPL = cfg.nspl if typ == 'A' else cfg.nsplF; NDEF = cfg.ndef if typ == 'A' else cfg.ndefF
    STG = ((0, 0, 8), (8, 24, 4), (12, 16, 8), (20, 8, 8), (28, 28, 8)) if MIXU == 2 else ((0, 0, 8), (8, 16, 8), (16, 8, 8), (24, 24, 4), (28, 28, 8))
    if NSPL == 24: STG = STG[:4] + ((24, 12, 8),) + STG[4:]
    STAGES = tuple(x[0] for x in STG)
    cfg.ex_ld = cfg.ex_ldA if typ == 'A' else cfg.ex_ldF

def generate(cfg):
    a = Asm()
    if os.environ.get("ENTRY"): a.raw("    s_memrealtime s[14:15]")
    a("s_cmp_ge_u32 s2, 256", "s_cbranch_scc1 L_end")
    a("s_load_dwordx16 s[16:31], s[0:1], 0", "s_load_dwordx4 s[32:35], s[0:1], 64")
    a("v_lshrrev_b32 v1, 6, v0")
    if cfg.pf_code:
        a("s_getpc_b64 s[98:99]"); a.label("L_pc")
        a("s_lshr_b32 s96, s2, 3", "s_mul_i32 s96, s96, 0x900", "v_mul_u32_u24 v2, 9, v0", "v_lshrrev_b32 v2, 1, v2", "v_and_b32 v2, 0xf80, v2", "v_add_u32 v2, s96, v2", "v_min_u32 v2, L_last-L_pc, v2")
        a.raw(f"    global_load_dword v{vNM}, v2, s[98:99]")
    a(f"v_readfirstlane_b32 {sW}, v1")
    if cfg.grid == 24:
        a("s_and_b32 s8, s2, 1", "s_bfe_u32 s9, s2, 0x20001", "s_bfe_u32 s10, s2, 0x30003", "s_lshr_b32 s11, s2, 6")
        a(f"s_lshl_b32 {sC}, s8, 3", f"s_add_u32 {sC}, {sC}, s10")
        a("s_and_b32 s12, s11, 1", f"s_lshl_b32 {sI}, s9, 1", f"s_lshl_b32 {sROT}, s8, 2", f"s_add_u32 {sROT}, {sROT}, {sI}", f"s_add_u32 {sI}, {sI}, s12")
        a(f"s_lshl_b32 {sTB}, s8, 2", f"s_add_u32 {sTB}, {sTB}, s9", f"s_lshl_b32 {sTB}, {sTB}, 2", f"s_add_u32 {sROT}, {sROT}, {cfg.rotadd}")
        if cfg.cbmap: a("s_and_b32 s12, s10, 3", f"s_add_u32 {sTB}, {sTB}, s12", f"s_bfe_u32 {sCB}, s2, 0x20005", f"s_lshl_b32 {sCB}, {sCB}, 1", "s_lshr_b32 s12, s2, 7", f"s_add_u32 {sCB}, {sCB}, s12")
        else: a(f"s_add_u32 {sTB}, {sTB}, s11", f"s_mov_b32 {sCB}, s10")
    else:
        a("s_and_b32 s8, s2, 3", "s_and_b32 s9, s2, 4", "s_bfe_u32 s10, s2, 0x20003", "s_bfe_u32 s11, s2, 0x20005")
        a(f"s_lshl_b32 {sC}, s8, 2", f"s_add_u32 {sC}, {sC}, s10", f"s_add_u32 {sI}, s9, s11")
        a("s_and_b32 s12, s11, 1", "s_lshl_b32 s12, s12, 1", f"s_add_u32 {sROT}, s9, s12")
        a(f"s_lshl_b32 {sTB}, s8, 3", f"s_add_u32 {sTB}, {sTB}, s9", f"s_add_u32 {sTB}, {sTB}, s10", f"s_lshl_b32 {sCB}, s11, 1", "s_lshr_b32 s12, s2, 7", f"s_add_u32 {sCB}, {sCB}, s12")
    a(f"s_mov_b32 {sT}, {cfg.timeout}")
    a(f"s_cmp_lt_u32 {sW}, 4", "s_cbranch_scc1 L_compute")
    info = {}
    progs = {}
    for typ in "AF":
        b = Asm(); b.uid = 1000 if typ == "A" else 2000
        set_type(cfg, typ)
        c = Compute(b, cfg, typ)
        (c.typeA if typ == "A" else c.typeF)()
        progs[typ] = (b, c); info["c" + typ] = c.st.names
    lds_ = {}
    for typ in "AF":
        b = Asm(); b.uid = 3000 if typ == "A" else 4000
        set_type(cfg, typ)
        l = Loader(b, cfg, progs[typ][1]); l.run()
        lds_[typ] = (b, l); info["l" + typ] = l.st.names; info["plan" + typ] = l.plan; info["bdiag"] = cfg.bdiag
        nb = lambda o: sum(x.strip() == "s_barrier" for x in o)
        assert nb(b.out) == nb(progs[typ][0].out) == len(progs[typ][1].bars)
        print(f"loader {typ}: {b.count} instrs, {b.nops} nop states; compute: {progs[typ][0].count} instrs, {progs[typ][0].nops} nop states", file=sys.stderr)
    def shared(d):
        (ba, oa), (bf, of) = d["A"], d["F"]
        assert oa.split == of.split and ba.out[:oa.split] == bf.out[:of.split]
        return ba.out[:oa.split]
    Loader(a, cfg, progs["A"][1]).prologue()
    a.out += shared(lds_)
    a("s_cmp_ge_u32 s2, 128", "s_cbranch_scc1 L_loadF")
    for typ in "AF":
        b, l = lds_[typ]
        a.label("L_load" + typ); a.out += b.out[l.split:]
    a.label("L_end"); a.raw("    s_endpgm")
    c = Asm(); c.uid = 5000
    c.label("L_compute")
    Compute(c, cfg, "A").prologue()
    c.out += shared(progs)
    c("s_cmp_ge_u32 s2, 128", "s_cbranch_scc1 L_compF")
    for typ in "AF":
        b, p = progs[typ]
        c.label("L_comp" + typ); c.out += b.out[p.split:] + b.stubs
    a.raw("    .p2align 12"); a.out += place(c.out, cfg)
    a.label("L_last"); a.raw("    s_endpgm")
    head = open("cdna_kernels/" + NAME + ".s.ref").read().split("; Override launch")[0]
    txt = head + f"; @launch grid=(256,1,1) block=(512,1,1) lds={LDS_BYTES}\n"
    txt += f""".amdgcn_target "amdgcn-amd-amdhsa--gfx950"
.text
.globl {NAME}_kernel
.p2align 8
.type {NAME}_kernel,@function
{NAME}_kernel:
""" + a.text() + f"""
.section .rodata,"a"
.p2align 6
.amdhsa_kernel {NAME}_kernel
  .amdhsa_next_free_vgpr 256
  .amdhsa_next_free_sgpr 102
  .amdhsa_accum_offset 256
  .amdhsa_group_segment_fixed_size 0
  .amdhsa_kernarg_size 80
  .amdhsa_user_sgpr_count 2
  .amdhsa_user_sgpr_kernarg_segment_ptr 1
  .amdhsa_system_sgpr_workgroup_id_x 1
.end_amdhsa_kernel
"""
    return txt, info

if __name__ == "__main__":
    cfg = Cfg()
    out = sys.argv[1]
    for kv in sys.argv[2:]:
        k, v = kv.split("="); setattr(cfg, k, type(getattr(Cfg, k))(v))
    txt, info = generate(cfg)
    open(out, "w").write(txt)
    info["mode"] = cfg.diag
    import json; json.dump(info, open(out + ".json", "w"))
```

```python
import sys, os, struct, re
from asmb import Asm

NAME = "parallel_sum__linear_attn_block__swiglu_ffn__prompt"

class Cfg:
    diag = 0
    bdiag = 0
    timeout = 400000
    round_ln = 1
    rot = 1
    pf_code = 1
    pf_tlb = 0
    nofill = 0
    cprio = 1
    lprio = 0
    gprio = 2
    xgroups = "2,6,8,10"
    grid = 24
    xo = 0
    mixu = 2
    nspl = 28
    nsplF = 28
    ndef = 4
    ex16 = 1
    nkeep = 2
    exg = 1
    exgF = 1
    slowF = 3
    ndefF = 4
    p2xA = "4,10"
    p2xF = "4,10"
    ex_sp = 1
    ex_ldA = 18
    ex_ldF = 18
    ex_w = 1
    ex_ck = 0
    ex_n = 4
    ex_s = 0
    xv = 1
    xA = 13
    xpu = 5
    prearly = 0
    xpre = 4
    pro2_at = 0
    xlate = "3:13,5:16"
    op_at = 160
    frate = 60
    ack = 56
    h1_dl = 308
    h2_dl = 430
    kvb = 17
    kvl = 0
    kprio = 2
    scr_need = 32
    scr_rel = 36
    kvw_gap = 266
    hA_dl = 543
    hA_gap = 586
    u4kA = 0
    u4kF = 0
    finF = 1
    finA = 0
    late_at = 4
    gate0_at = 146
    gate8_at = 999
    gate12_at = 999
    n_preA = 5
    n_preF = 5
    preA_gap = 588
    preF_gap = 596
    pre_step = 10
    n_epi = 1
    n_epiF = 0
    D = 6
    D2 = 6
    d_sw = 23
    p2_cap = "2"
    polls = "0:1 8:0 12:1 20:0 24:0 28:0"
    nogather = 0
    pads = 1
    PD = 3
    xadd_at = 6
    x1 = 1
    x4 = 4
    rotadd = 2
    cbmap = 1
    barsA = "8,20,34,50,66,82,98,114,130,146"
    barsF = "8,18,34,50,66,82,98,114,130,146"
    w_aux = ""
    x_aux = ""
    a_aux = "sc1"
    out_aux = "sc1"
    planX = "7,PR,PS 4 2 2 2,U0 V1,3 3 4 6"
    planA = "N0,U2,U4,P2,U3 5,N1 8 R 4 5 4,G0 S0,5 Q0,4 G1,10,S1,Q8 5"
    planF = "V2,2,V3,U4,P2 1,N0 6 8 6,N1,R 3 4,Q0 5 4,Q8 0 5"

ZR_OFF, OP_OFF = 0, 1024
LDS_BYTES = 163840
WS_KV2, WS_EX = 0x1d0000, 0xc00000
WS_FLAG, WS_KV, WS_A2, WS_DIAG, WS_SIZE = 0x1000, 0x100000, 0x200000, 0x1000000, 0x2000000
sC, sI, sTB, sCB, sW, sROT = "s4", "s5", "s6", "s7", "s3", "s36"
sT = "s37"
SRD = dict(x=40, qkv=44, gate=48, up=52, down=56, wo=60, ws=64, out=68, dbg=72)
PTR = dict(x=16, qkv=18, wo=20, gate=24, up=26, down=28, out=30, dbg=32, ws=34)
SIZE = dict(x=2097152, qkv=1572864, wo=524288, gate=1835008, up=1835008, down=1835008, out=2097152, dbg=256, ws=WS_SIZE)
def srd(n): return f"s[{SRD[n]}:{SRD[n]+3}]"
def mk_srd(a, n):
    b = SRD[n]
    a(f"s_mov_b32 s{b}, s{PTR[n]}", f"s_mov_b32 s{b+1}, s{PTR[n]+1}", f"s_mov_b32 s{b+2}, {SIZE[n]:#x}", f"s_mov_b32 s{b+3}, 0x20000")
LOG2E = 1.4426950408889634
def f2u(x): return struct.unpack('<I', struct.pack('<f', x))[0]
def srd_const(a, n): a(f"s_mov_b32 s{SRD[n]+2}, {SIZE[n]:#x}", f"s_mov_b32 s{SRD[n]+3}, 0x20000")
def srd_base(a, n): a(f"s_mov_b64 s[{SRD[n]}:{SRD[n]+1}], s[{PTR[n]}:{PTR[n]+1}]")
def vr(b, n=1): return f"v{b}" if n == 1 else f"v[{b}:{b+n-1}]"
M16 = lambda d, x, y, c: f"v_mfma_f32_16x16x32_bf16 {vr(d,4)}, {vr(x,4)}, {vr(y,4)}, {c if isinstance(c, str) else vr(c,4)}"

STG = ((0, 0, 8), (8, 24, 4), (12, 16, 8), (20, 8, 8), (28, 28, 8))
STAGES = tuple(x[0] for x in STG)
def stage_of(j): return max(x for x in STG if x[0] <= j)
MIXU = 2
NSPL = 28
NDEF = 0
NKEEP = 0
def seq_of(a):
    n0 = NSPL - 2 * NDEF
    if a < n0: return "split", a // 2, a % 2, a & ~1
    if a >= 36 - NKEEP:
        j = NSPL // 2 + a - 36
        return "kept", j, 0, 2 * j
    if a < NSPL - NKEEP:
        j = n0 // 2 + (a - n0) % NDEF
        return "half", j, int(a < n0 + NDEF), 2 * j
    return "own", NSPL // 2 + a + NKEEP - NSPL, 0, a + NKEEP
def wslot(u): return seq_of(u)[1]
def unit_at(p):
    S, U, n = stage_of(p)
    return U + p - S
def xord(cfg):
    if cfg.xo == 0: return [(0, 0), (0, 1), (1, 0), (1, 1)] + [(0, s) for s in range(2, 8)] + [(1, s) for s in range(2, 8)]
    return [(t, s) for t in range(2) for s in range(8)]
def make_items(cfg, typ):
    it = []
    for i, (t, s) in enumerate(xord(cfg)): it.append(dict(k="x", s=s, t=t, rel=i + 1))
    for u in range(5):
        for i in range(8): it.append(dict(k="w1", u=u, i=i, rel=17 + 8 * u + i))
    for u in range(NSPL // 2 + 36 - NSPL): it.append(dict(k="w2", u=u, rel=57 + u))
    free = [(0, p) for p in range(1, 20)] + ([(0, 20)] if typ == "F" else [])
    scr = []
    for n, x in enumerate(it):
        free.sort()
        while typ == "A" and len(scr) < 2 and free[0][0] >= cfg.scr_need - 1:
            need, p = free.pop(0); assert need <= cfg.scr_need
            scr.append(8192 * p); free.append((cfg.scr_rel, p)); free.sort()
        need, p = free.pop(0)
        assert need < x["rel"], (n, x, need)
        x["need"] = need; x["n"] = n; x["addr"] = 8192 * (p % 20)
        free.append((x["rel"], p))
    return it, scr

class Stamps:
    def __init__(self, a, cfg, regs):
        self.a, self.on, self.regs, self.n, self.names = a, cfg.diag, regs, 0, []
    def __call__(self, name):
        if not self.on: return
        sel = os.environ.get("STAMPS")
        if sel is None:
            if name.startswith("_"): return
        elif name not in sel.split(",") + ["start", "end"]: return
        r = self.regs[self.n]
        self.a.raw(f"    {'s_memrealtime' if self.on == 1 else 's_memtime'} s[{r}:{r+1}]")
        self.n += 1; self.names.append(name)
        if os.environ.get("BOTH"):
            r = self.regs[self.n]
            self.a.raw(f"    s_memtime s[{r}:{r+1}]")
            self.n += 1; self.names.append(name + "c")
    def flush(self, vt, vz):
        if not self.on: return
        a = self.a
        a("s_waitcnt lgkmcnt(0)")
        a("s_lshl_b32 s76, s2, 3", f"s_add_u32 s76, s76, {sW}", "s_lshl_b32 s76, s76, 7", f"s_add_u32 s76, s76, {WS_DIAG:#x}")
        a(f"v_mov_b32 v{vz}, 0", "s_mov_b64 exec, 1")
        for i in range(self.n):
            a(f"v_mov_b32 v{vt+i}, s{self.regs[i]}")
            a(f"buffer_store_dword v{vt+i}, v{vz}, {srd('ws')}, s76 offen offset:{4*i}")

SITE = [None]
def timeout(a):
    if os.environ.get("SITES") and SITE[0] is not None: a.raw(f"    s_bitset1_b32 s68, {SITE[0]}")
    a.raw(f"    s_sub_u32 {sT}, {sT}, 1")
    a.raw("    s_cbranch_scc1 L_end")

X0, P0, Q0, K0, WB0 = 128, 64, 96, 56, 24
vA, vH, vL16, vR, vNM, vTag, vFl, T0, ONES = 1, 5, 7, 8, 9, 10, 11, 12, 20
sC2, sHI, sIC, sEPSC = "s38", "s39", "s76", "s77"
sCC = "s36"
sA2, sFL, sKV, sTmp = "s78", "s79", "s80", "s81"
sM1, sM2, sM3 = "s[82:83]", "s[84:85]", "s[86:87]"
def XF(t, s): return X0 + 64 * t + 4 * s
ACC, XRAW = Q0 + 16, K0
SLOTQ = [((0, 0), (0, 1)), ((0, 2), (0, 3)), ((0, 4), (1, 4)), ((0, 5), (1, 5)), ((0, 6), (1, 6)), ((0, 7), (1, 7)), ((1, 0), (1, 1)), ((1, 2), (1, 3))] + [((0, s), (1, s)) for s in range(8, 16)]
SLOT = [(XF(*a), XF(*b)) for a, b in SLOTQ]

class Compute:
    def __init__(self, a, cfg, typ):
        self.a, self.cfg, self.typ = a, cfg, typ
        self.it, self.scr = make_items(cfg, typ)
        self.bars = []; self.full = 0; self.freed = 0; self.mark = 0; self.cur = -1
        self.win = {}
        self.NR = 16 - 4 * cfg.nkeep; assert cfg.nkeep <= min(2, NDEF)
        self.u4k = cfg.u4kA if typ == "A" else cfg.u4kF
        self.SQ = [((0, s), (1, s)) for s in range(16)] if (self.u4k or (typ == 'F' and MIXU == 4)) else SLOTQ
        self.SL = [(XF(*x), XF(*y)) for x, y in self.SQ]
        self.st = Stamps(a, cfg, list(range(48, 64, 2)) + list(range(20, 36, 2)))
    def find(self, **kw):
        for x in self.it:
            if all(x.get(k) == v for k, v in kw.items()): return x
        raise KeyError(kw)
    def barrier(self, full, freed, extra=0, **kw):
        slots = pipe = 0
        for l in self.a.out[self.mark:]:
            l = l.strip()
            if l.endswith(":") or l.startswith("."): continue
            if l.startswith("v_mfma"): slots += 2; pipe += 32 if "32x32" in l else 16
            elif l.startswith(("v_exp", "v_rcp", "v_sqrt", "v_rsq")): slots += 2
            else: slots += 1
        self.a("s_barrier"); self.mark = len(self.a.out)
        self.full = max(self.full, full); self.freed = max(self.freed, freed)
        self.bars.append(dict(full=self.full, freed=self.freed, dur=max(4.2 * slots, pipe) + 40 + extra, step=self.cur, **kw))
    def lds(self, op, dst, areg, addr):
        w = self.win.setdefault(areg, 0)
        if not (0 <= addr - w <= 65535):
            nw = addr & ~8191
            self.a(f"v_add_u32 v{areg}, {(nw - w) & 0xffffffff:#x}, v{areg}")
            self.win[areg] = w = nw
        self.a(f"{op} {dst}, v{areg} offset:{addr - w}")

    def geom(self, n):
        u, ks = divmod(n, 32)
        if self.typ == "F" and u == MIXU == 4 and ks >= 16: return 4 + (ks % 16) // 4, 2 + ks % 2, 2 * ((ks % 16) // 2), False
        if u == 0 or (u == 4 and self.u4k): return ks // 4, ks % 4, 2 * (ks // 4), False
        if self.typ == "F" and u == MIXU: return 4 * (ks // 16) + (ks % 8) // 2, ks // 8, 2 * (ks % 8), ks % 2 == 1
        i = 4 * (ks // 16) + ks % 4
        return i, (ks % 16) // 4, 2 * i, ks % 2 == 1
    def accreg(self, u, cb, t):
        return (P0 if u % 2 == 0 else Q0) + (8 * cb + 4 * t if (self.typ == "A" and u < 2) else 16 * t + 4 * cb)
    def comp(self, u, cb): return 4 * max(n for n in range(32 * u, 32 * u + 32) if self.geom(n)[1] == cb) + 8
    def first(self, u, cb): return 4 * min(n for n in range(32 * u, 32 * u + 32) if self.geom(n)[1] == cb) - 1
    def xdead(self, s): return 4 * max(n for n in range(128, 160) if self.geom(n)[2] == (s & ~1)) + 4
    def step(self, n):
        u = n // 32; i, cb, s0, flip = self.geom(n)
        buf = WB0 + 8 * (n % 4)
        it = self.it[self.item_of(n)]
        if self.typ == "F" and u == MIXU:
            rd = [(buf + 4 * e + 2 * t2, vH + cb % 2, it["addr"] + ((s0 + e) % 4) * 2048 + t2 * 1024) for e in range(2) for t2 in range(2)]
        else:
            rd = [(buf + 4 * e + 2 * t2, vA + cb, it["addr"] + e * 4096 + t2 * 2048) for e in range(2) for t2 in range(2)]
        nt = self.typ == "A" and u < 2
        mf = []
        for k, (e, t) in enumerate(((0, 1), (1, 1), (1, 0), (0, 0)) if flip else ((0, 0), (1, 0), (1, 1), (0, 1))):
            d = self.accreg(u, cb, t); w, x = buf + 4 * e, XF(t, s0 + e)
            mf.append(M16(d, x if nt else w, w if nt else x, "0" if (s0 == 0 and k % 2 == 0) else d))
        return dict(it=it, rd=rd, mf=mf, buf=buf)
    @property
    def BARS(self):
        return [int(x) for x in (self.cfg.barsA if self.typ == "A" else self.cfg.barsF).split(",")]
    def item_of(self, n): return 16 + 8 * (n // 32) + self.geom(n)[0]
    def freed_at(self, n):
        return min([self.item_of(m) for m in range(n + 1, 160)] + [56])
    def read(self, n, j):
        if n >= 160: return
        s = self.step(n)
        if j == 0 and n in self.BARS:
            nxt = min([b for b in self.BARS if b > n] + [160])
            self.barrier(max(self.item_of(m) for m in range(n, nxt)) + 1, self.freed_at(self.arrived), op=(self.typ == "A" and n == self.cfg.op_at),
                         gate=[g for g, at in ((0, self.cfg.gate0_at), (8, self.cfg.gate8_at), (12, self.cfg.gate12_at)) if at == n])
        assert s["it"]["n"] < self.full, (n, self.full)
        d, r, ad = s["rd"][j]
        self.lds("ds_read_b64_tr_b16", vr(d, 2), r, ad)
    def need_step(self, n):
        if self.cfg.PD == 3 and n % 2 == 0: n += 1
        self.a.need(vr(WB0 + 8 * (n % 4), 8)); self.arrived = n
    def cost(self, f):
        if isinstance(f, tuple) and f[0] in ("gap", "dl"): return 0
        if callable(f) and getattr(f, "free", False): return 0
        if isinstance(f, str) and f.startswith(("v_exp", "v_rcp", "v_mfma")): return 2
        return 1
    def run_fill(self, fl, budget):
        used = 0
        while fl and used < budget:
            f = fl[0]
            if isinstance(f, tuple) and f[0] == "gap":
                if self.gap < f[1]: break
                fl.pop(0); continue
            if isinstance(f, tuple) and f[0] == "dl": fl.pop(0); continue
            fl.pop(0); used += self.cost(f)
            if callable(f): f()
            elif isinstance(f, tuple): self.a.e(f[0], tag=f[1])
            else: self.a(f)
        return used
    def units(self, fl, side):
        fl = list(fl); side = list(side); credit = 0.0
        for n in range(32, 160):
            s = self.step(n); self.cur = n
            if n % 32 == 0: self.st(f"u{n//32}")
            self.need_step(n)
            for j in range(4):
                self.gap = 4 * n + j
                self.a(s["mf"][j])
                self.read(n + self.cfg.PD, j)
                rate = self.cfg.frate / 100; c = 0
                for f in fl:
                    if isinstance(f, tuple) and f[0] == "dl":
                        assert c == 0 or f[1] >= self.gap, ("deadline missed", f, self.gap)
                        if c: rate = max(rate, c / max(0.5, f[1] - self.gap - 0.5))
                    c += self.cost(f)
                credit = min(credit + rate, rate + 1.5)
                credit -= 0.7 * self.run_fill(side, 1)
                credit -= self.run_fill(fl, credit - 0.5)
        self.gap = 10 ** 9
        if side: print(f"  [{self.typ}] {len(side)} side fillers left over", file=sys.stderr)
        self.run_fill(side, 10 ** 9)
        return fl

    def f_silu(self, quads):
        fl = []
        for k, q in enumerate(quads):
            t = T0 + (k % 2) * 4
            fl += [f"v_exp_f32_e64 v{t+i}, -v{q+i}" for i in range(4)]
            fl += [f"v_fma_f32 v{t+i}, v{t+i}, {sC2}, {sC2}" for i in range(4)]
            fl += [f"v_rcp_f32 v{t+i}, v{t+i}" for i in range(4)]
            fl += [f"v_mul_f32 v{q+i}, v{q+i}, v{t+i}" for i in range(4)]
        return fl
    def f_phi(self, quads, packs):
        fl = []
        for k, (q, p) in enumerate(zip(quads, packs)):
            t = T0 + (k % 2) * 4
            fl += [f"v_exp_f32_e64 v{t+i}, v{q+i} clamp" for i in range(4)]
            fl += [f"v_max_f32 v{q+i}, {sEPSC}, v{q+i}" for i in range(4)]
            fl += [f"v_fmac_f32 v{t+i}, {sIC}, v{q+i}" for i in range(4)]
            fl += [f"v_cvt_pk_bf16_f32 v{p+i}, v{t+2*i}, v{t+2*i+1}" for i in range(2)]
        return fl
    def f_h(self, dst, src, soff, off, tag):
        mul = []; out = []
        for t in range(2):
            d = dst + 16 * t
            mul += [f"v_mul_f32 v{d+i}, v{d+i}, v{src+16*t+i}" for i in range(8)]
            out += [f"v_cvt_pk_bf16_f32 v{d+i}, v{d+2*i}, v{d+2*i+1}" for i in range(4)]
            out += [(f"buffer_store_dwordx4 {vr(d,4)}, v{vL16}, {srd('ws')}, {soff} offen offset:{off+t*1024} sc1", tag)]
        return mul, out
    def flag(self, U, tag):
        a = self.a
        a(f"s_add_u32 {sTmp}, {dict(h1=sFL, h='s45', h3='s45', o='s47')[tag]}, {U*512}")
        self.st("_w" + tag); a.wait_tag(tag); self.st("_d" + tag)
        a(f"buffer_store_dword v{vTag}, v{vFl}, {srd('ws')}, {sTmp} offen sc1")
    def f_nonce(self):
        a = self.a
        def chk():
            L = a.newlabel("Ln"); C = a.newlabel("Lc")
            a(f"v_cmp_eq_u32 vcc, 0, v{vTag}")
            a(f"s_cbranch_vccnz {L}")
            a.label(C)
            a.stubs += [f"{L}:", f"    buffer_load_dword v{vTag}, off, {srd('dbg')}, 0 sc1", f"    s_sub_u32 {sT}, {sT}, 1", "    s_cbranch_scc1 L_end",
                        "    s_waitcnt vmcnt(0)", f"    v_cmp_eq_u32 vcc, 0, v{vTag}", f"    s_cbranch_vccnz {L}", f"    s_branch {C}"]
        return f"buffer_load_dword v{vTag}, off, {srd('dbg')}, 0 sc1", chk

    def prologue(self):
        a, cfg = self.a, self.cfg
        a("v_and_b32 v0, 63, v0")
        if cfg.cprio: a(f"s_setprio {cfg.cprio}")
        a(f"v_lshlrev_b32 v{vL16}, 4, v0")
        a("v_and_b32 v12, 15, v0", "v_lshrrev_b32 v13, 4, v0", "v_lshrrev_b32 v14, 1, v12", "v_xor_b32 v14, v13, v14", "v_lshlrev_b32 v14, 4, v14",
          "v_lshl_add_u32 v14, v12, 7, v14", f"s_lshl_b32 {sTmp}, {sW}, 11", f"v_add_u32 v{P0}, {sTmp}, v14", f"v_xor_b32 v{P0+1}, 64, v{P0}")
        for i in range(4): a(f"v_mov_b32 v{ONES+i}, 0x3f803f80")
        a("v_and_b32 v14, 31, v0", "v_lshrrev_b32 v15, 5, v0", "v_lshlrev_b32 v15, 3, v15", "v_sub_u32 v15, v14, v15")
        a("v_and_b32 v16, 1, v15", "v_lshlrev_b32 v16, 4, v16", "v_mov_b32 v17, 0x3f80", "v_lshlrev_b32 v16, v16, v17", "v_lshrrev_b32 v15, 1, v15")
        for t in range(8):
            a(f"v_cmp_eq_u32 vcc, {t if t < 4 else t + 4}, v15", f"v_cndmask_b32 v{K0+t}, 0, v16, vcc")
        a("s_waitcnt lgkmcnt(0)")
        for n in ("ws", "out", "dbg", "x"): srd_base(a, n); srd_const(a, n)
        L = "L_tag0"
        a(f"s_or_b32 s0, s2, {sW}", "s_cmp_lg_u32 s0, 0", f"s_cbranch_scc1 {L}")
        a.raw(f"    buffer_load_dword v{vTag}, off, {srd('ws')}, 0 sc1")
        a.label(L)
        a("v_lshlrev_b32 v14, 2, v13", "v_sub_u32 v14, v12, v14")
        for i in range(4): a(f"v_cmp_eq_u32 s[{88+2*i}:{89+2*i}], {i}, v14")
        a(f"s_mov_b32 {sC2}, {f2u(LOG2E**2):#x}", f"s_mov_b32 {sIC}, {f2u(1/LOG2E):#x}", f"s_mov_b32 {sHI}, 0xffff0000", f"s_mov_b32 {sEPSC}, {f2u(1e-6*LOG2E):#x}", f"s_mov_b32 {sCC}, {f2u(LOG2E):#x}")
        a("v_lshrrev_b32 v15, 5, v0", "v_bfe_u32 v16, v0, 2, 2", "v_lshl_add_u32 v16, v15, 2, v16", "v_and_b32 v17, 1, v13", "v_lshl_add_u32 v16, v17, 3, v16")
        a("v_and_b32 v18, 3, v0", "v_lshlrev_b32 v18, 3, v18", "v_lshl_add_u32 v19, v16, 6, v18", f"v_lshl_add_u32 v{vH}, v17, 5, v19", f"v_xor_b32 v{vH+1}, 32, v{vH}")
        a("v_lshl_add_u32 v19, v16, 7, v18", "v_bfe_u32 v18, v0, 3, 2", f"v_lshl_add_u32 v{vA}, v18, 5, v19")
        for cb in range(1, 4): a(f"v_xor_b32 v{vA+cb}, {cb*32}, v{vA}")
        a("v_lshlrev_b32 v18, 2, v0", f"v_lshl_add_u32 v{vFl}, v15, 30, v18")
    def prologue2(self):
        a, cfg = self.a, self.cfg
        a(f"s_lshr_b32 {sTmp}, {sW}, 1", f"s_lshl_b32 {sA2}, {sC}, 1", f"s_add_u32 {sA2}, {sA2}, {sTmp}", f"s_mul_i32 {sA2}, {sA2}, 36",
          f"s_add_u32 {sA2}, {sA2}, {sI}", f"s_lshl_b32 {sA2}, {sA2}, 1", f"s_and_b32 {sTmp}, {sW}, 1", f"s_add_u32 {sA2}, {sA2}, {sTmp}")
        a(f"s_lshl_b32 {sFL}, {sA2}, 8", f"s_add_u32 {sFL}, {sFL}, {WS_FLAG:#x}", f"s_lshl_b32 {sA2}, {sA2}, 12", f"s_add_u32 {sA2}, {sA2}, {WS_A2:#x}")
        for r, x in ((44, cfg.x1), (46, cfg.x4)):
            a(f"s_xor_b32 s96, {sI}, {x}", f"s_sub_u32 s96, s96, {sI}", "s_lshl_b32 s97, s96, 13", f"s_add_u32 s{r}, {sA2}, s97", "s_lshl_b32 s97, s96, 9", f"s_add_u32 s{r+1}, {sFL}, s97")
        a(f"s_mul_i32 s10, {sTB}, {36*8192}", f"s_add_u32 s10, s10, {WS_A2:#x}", f"s_and_b32 s96, {sTB}, 1", "s_lshl_b32 s96, s96, 13", "s_add_u32 s8, s10, s96",
          f"s_xor_b32 s97, {sTB}, 1", f"s_mul_i32 s9, s97, {36*8192}", f"s_add_u32 s9, s9, {WS_A2:#x}", "s_add_u32 s9, s9, s96")
        for r, tb in ((11, "s97"), (12, sTB)):
            a(f"s_lshl_b32 s{r}, {tb}, 3", f"s_add_u32 s{r}, s{r}, {sCB}", f"s_lshl_b32 s{r}, s{r}, 2", f"s_add_u32 s{r}, s{r}, {sW}", f"s_lshl_b32 s{r}, s{r}, 12", f"s_add_u32 s{r}, s{r}, {WS_EX:#x}")
        a(f"s_lshl_b32 s99, {sTB}, 2", f"s_add_u32 s99, s99, {sW}", "s_lshl_b32 s99, s99, 14", f"s_lshl_b32 s97, {sCB}, 7", "s_add_u32 s99, s99, s97")
        a("s_mov_b32 s82, 0xffff0000", "s_mov_b32 s83, 0", "s_mov_b32 s84, 0", "s_mov_b32 s85, 0xffff", "s_mov_b32 s86, 0", "s_mov_b32 s87, 0xffff0000")
        a(f"s_lshl_b32 {sKV}, {sI}, 2", f"s_add_u32 {sKV}, {sKV}, {sW}", f"s_lshl_b32 {sKV}, {sKV}, 6", f"s_add_u32 {sKV}, {sKV}, {sC}",
          f"s_mul_i32 {sKV}, {sKV}, 384", f"s_add_u32 {sKV}, {sKV}, {WS_KV:#x}")
        pA, pB = make_items(cfg, "A")[1]
        a(f"s_mov_b32 s97, {pA}", f"s_mov_b32 s98, {pB}", f"s_cmp_lt_u32 {sW}, 2", "s_cselect_b32 s97, s97, s98", f"s_and_b32 s98, {sW}, 1", "s_lshl_b32 s98, s98, 12", "s_add_u32 s97, s97, s98")
        a(f"s_lshr_b32 s96, {sI}, 1", f"s_sub_u32 s96, s96, {sI}", "s_add_u32 s96, s96, 24", "s_lshl_b32 s96, s96, 2", f"s_and_b32 s98, {sI}, 1", "s_add_u32 s96, s96, s98",
          "s_lshl_b32 s100, s96, 11", f"s_add_u32 s100, s100, {sA2}", "s_lshl_b32 s101, s96, 7", f"s_add_u32 s101, s101, {sFL}")
    def tag_publish(self):
        a = self.a
        L = "L_tag1"
        a("s_cmp_lg_u32 s0, 0", f"s_cbranch_scc1 {L}")
        for x in ("s_waitcnt vmcnt(0)", f"v_add_u32 v{vTag}, 0x9e377902, v{vTag}", f"v_or_b32 v{vTag}, 0x80000000, v{vTag}", "s_mov_b64 exec, 1",
                  f"buffer_store_dword v{vTag}, off, {srd('dbg')}, 0 sc1", f"buffer_store_dword v{vTag}, off, {srd('ws')}, 0 sc1", "s_mov_b64 exec, -1"):
            a.raw("    " + x)
        a.label(L)
    def stats_fin(self, S1, S2, R):
        t = T0
        fl = [f"v_cndmask_b32 v{t+2}, 0, v{S2}, s[88:89]"] + [f"v_cndmask_b32 v{t+2}, v{t+2}, v{S2+i}, s[{88+2*i}:{89+2*i}]" for i in range(1, 4)]
        fl += [f"v_mov_b32 v{t+3}, v{t+2}", f"v_mul_f32 v{t}, 0x3b000000, v{S1}", f"v_mul_f32 v{t+1}, v{t}, v{t}", f"v_permlane32_swap_b32 v{t+2}, v{t+3}", f"v_add_f32 v{t+2}, v{t+2}, v{t+3}",
               f"v_mov_b32 v{t+3}, v{t+2}", f"v_permlane16_swap_b32 v{t+2}, v{t+3}", f"v_add_f32 v{t+2}, v{t+2}, v{t+3}"]
        fl += [f"v_mul_f32 v{t+2}, 0x3b000000, v{t+2}", f"v_sub_f32 v{t+2}, v{t+2}, v{t+1}", f"v_max_f32 v{t+2}, 0, v{t+2}"]
        if self.cfg.round_ln:
            fl += [f"v_cvt_pk_bf16_f32 v{t+1}, v{t}, v{t+2}", f"v_and_b32 v{t+2}, {sHI}, v{t+1}", f"v_lshlrev_b32 v{t}, 16, v{t+1}",
                   f"v_add_f32 v{t+2}, 0x3727c5ac, v{t+2}", f"v_cvt_pk_bf16_f32 v{t+2}, v{t+2}, v{t+2}", f"v_lshlrev_b32 v{t+2}, 16, v{t+2}",
                   f"v_sqrt_f32 v{t+2}, v{t+2}", f"v_cvt_pk_bf16_f32 v{t+2}, v{t+2}, v{t+2}", f"v_lshlrev_b32 v{t+2}, 16, v{t+2}", f"v_rcp_f32 v{R}, v{t+2}"]
        else:
            fl += [f"v_add_f32 v{t+2}, 0x3727c5ac, v{t+2}", f"v_rsq_f32 v{R}, v{t+2}"]
        fl += [f"v_mul_f32 v{R}, {sCC}, v{R}", f"v_mul_f32_e64 v{R+1}, -v{t}, v{R}"]
        return fl
    def unpack(self, t, p, buf=None):
        d = vr(Q0 + 16 * (p % 2) if buf is None else buf, 16)
        return [f"v_mfma_f32_32x32x16_bf16 {d}, {vr(K0,4)}, {vr(XF(t,2*p),4)}, 0",
                f"v_mfma_f32_32x32x16_bf16 {d}, {vr(K0+4,4)}, {vr(XF(t,2*p+1),4)}, {d}"]
    def f_center(self, t, p):
        d = Q0 + 16 * (p % 2); fl = []; R = vR if t else T0 + 4
        for g in range(0, 16, 4):
            fl += [f"v_fma_f32 v{d+g+i}, v{d+g+i}, v{R}, v{R+1}" for i in range(4)]
            fl += [f"v_cvt_pk_bf16_f32 v{XF(t,2*p)+g//2+i}, v{d+g+2*i}, v{d+g+2*i+1}" for i in range(2)]
        return fl
    def xphase(self):
        a, cfg = self.a, self.cfg
        S = P0 + 4
        done = [0]
        B0 = [XF(1, 4), XF(1, 8), XF(1, 12), WB0, WB0 + 16, Q0 + 16, Q0, Q0 + 16]
        B1 = [WB0, WB0 + 16, Q0, Q0 + 16]
        def group(g):
            self.barrier(g[-1] + 1, done[0], phase="x")
            mf = []
            for i in g:
                t, s = xord(cfg)[i]
                for e in range(2):
                    x, k = XF(t, 2 * s + e), 2 * s + e
                    self.lds("ds_read_b128", vr(x, 4), P0 + e, self.it[i]["addr"])
                    mf += [M16(S + 8 * t, ONES, x, "0" if k == 0 else S + 8 * t), M16(S + 8 * t + 4, x, x, "0" if k == 0 else S + 8 * t + 4)]
            return mf
        if cfg.pro2_at == 0: self.prologue2()
        a.out += touch_code(cfg)
        ends = [0] + [int(x) for x in cfg.xgroups.split(",")]
        for gi in range(len(ends) - 1):
            g = list(range(ends[gi], ends[gi + 1]))
            mf = group(g)
            if gi == 0: self.st("x0")
            for m in mf: a(m)
            if cfg.xv:
                for i in g:
                    t, p = xord(cfg)[i]
                    if t == 0 and p < cfg.xpu: a(*self.unpack(0, p, B0[p]))
            if gi == 0:
                for m in ([] if cfg.xv else self.unpack(0, 0) + self.unpack(0, 1)): a(m)
                a("s_waitcnt vmcnt(0)"); self.tag_publish()
                if cfg.pro2_at == 1: self.prologue2()
            done[0] = g[-1] + 1
        self.st("_x4")
        def under(chain, ms):
            ms = list(ms)
            for k, f in enumerate(chain):
                if ms and k % 7 == 0: a(ms.pop(0))
                a(f)
            a(*ms)
        under(self.stats_fin(S, S + 4, T0 + 4), [m for p in range(cfg.xpu, 7) for m in self.unpack(0, p, B0[p])] if cfg.xv else [])
        if cfg.xv:
            assert cfg.xo == 0 and cfg.xpre >= 4 and ends[-1] == 10
            pk = lambda d, R: [f"v_pk_fma_f32 {vr(d+2*i,2)}, {vr(d+2*i,2)}, {vr(R,2)}, {vr(R,2)} op_sel:[0,0,1] op_sel_hi:[1,0,1]" for i in range(8)]
            cv = lambda t, p, d: [f"v_cvt_pk_bf16_f32 v{XF(t,2*p)+i}, v{d+2*i}, v{d+2*i+1}" for i in range(8)]
            a.raw("    .p2align 3")
            for p in range(7): a(*(pk(B0[p], T0 + 4) + (cv(0, p, B0[p]) if p < 3 else [])))
            sA = group(list(range(10, cfg.xA)))
            V = [(x, -1) for p in (5, 3, 4, 6) for x in cv(0, p, B0[p])] + [(x, 1) for x in self.f_center(0, 7)]
            M = [(x, 8) for x in self.unpack(0, 7, B0[7])] + [(x, 16) for x in self.unpack(1, 0, B1[0])] + [(x, 24) for x in self.unpack(1, 1, B1[1])]
            M += [(x, 0) for x in sA]
            a.raw("    .p2align 3")
            t = free = 0; vi = mi = 0; fin_ = {-1: 0}
            while vi < len(V) or mi < len(M):
                mok = mi < len(M) and M[mi][1] <= vi
                vok = vi < len(V) and V[vi][1] < mi
                if mok and (free <= t + 2 or not vok or fin_[V[vi][1]] > t):
                    if M[mi][0] is sA[0]: a.wait(lg=0); a.raw("    .p2align 3")
                    a(M[mi][0]); st_ = max(t, free); t = st_ + 8; free = st_ + (32 if "32x32" in M[mi][0] else 16); fin_[mi] = free + 24; mi += 1
                else: a(V[vi][0]); t += 4.2; vi += 1
            done[0] = cfg.xA
            sB = group(list(range(cfg.xA, 16))); self.st("_x7")
            a(*self.unpack(1, 2, B1[2])); a(*sB); under(self.stats_fin(S + 8, S + 12, vR), self.unpack(1, 3, B1[3]))
            a.raw("    .p2align 3")
            for p in range(4): a(*pk(B1[p], vR))
            up = self.unpack(1, 4)
            seq = cv(1, 2, B1[2]) + up[:1] + cv(1, 0, B1[0]) + up[1:] + cv(1, 1, B1[1]) + cv(1, 3, B1[3])
            for q in range(4, cfg.xpre):
                c = self.f_center(1, q); up = self.unpack(1, q + 1) if q < 7 else []
                seq += up[:1] + c[:8] + up[1:] + c[8:]
            k = max(26, len(seq) - 14)
            a(*seq[:k])
            self.barrier(18, 16, phase="x")
            for n in range(cfg.PD):
                for j in range(4): self.read(n, j)
            a(*seq[k:])
            self.st("u0")
            self.split = len(a.out)
            return
        pend = []; fin = None
        late = [tuple(int(y) for y in x.split(":")) for x in cfg.xlate.split(",")]
        nxt = ends[-1]
        for q in range(8 + cfg.xpre):
            while late and late[0][0] == q:
                for m in pend: a(m)
                done[0] = nxt
                pend = group(list(range(nxt, late[0][1]))); hold = 10; nxt = late.pop(0)[1]
                if not late: self.st("_x7")
            if q == 8:
                for m in pend: a(m)
                pend = []
            if not late and not pend and fin is None: fin = self.stats_fin(S + 8, S + 12, vR)
            if q == 7 + cfg.xpre:
                self.barrier(18, 16, phase="x")
                for n in range(cfg.PD):
                    for j in range(4): self.read(n, j)
            if q == 8:
                for f in fin: a(f)
                fin = []
            assert q < 7 or xord(cfg).index((1, q - 7)) < nxt
            up = self.unpack(*divmod(q + 1, 8)) if q >= 1 else []
            a.raw("    .p2align 3")
            for k, f in enumerate(self.f_center(*divmod(q, 8))):
                if up and k in (0, 8): a(up.pop(0))
                if pend:
                    hold -= 1
                    if hold <= 0 and k % 3 == 2: a(pend.pop(0)); a.raw("    .p2align 3")
                a(f)
                if fin and k >= 2:
                    a(fin.pop(0))
        self.st("u0")
        self.split = len(a.out)
    def unit0(self):
        a = self.a
        if self.cfg.xpre == 1:
            self.gap = 0
            for p in range(8):
                fl = self.f_center(1, p + 1) if p + 1 < 8 else []
                up = self.unpack(1, p + 2) if p + 2 < 8 else []
                for e in range(4):
                    n = 4 * p + e; s = self.step(n); self.cur = n
                    if up and e % 2 == 0:
                        a(up[e // 2]); self.run_fill(fl, 4)
                    self.need_step(n)
                    for j in range(4):
                        a(s["mf"][j]); self.read(n + self.cfg.PD, j)
                        self.run_fill(fl, 1 if up else 2)
                assert not fl
            return
        fl = []
        for q in range(self.cfg.xpre, 8):
            c = self.f_center(1, q); up = self.unpack(1, q + 1) if q < 7 else [None, None]
            fl += [x for x in [up[0]] + c[:8] + [up[1]] + c[8:] if x] + [("dl", 16 * q - 1)]
        credit = 0.0
        for n in range(32):
            s = self.step(n); self.cur = n
            self.need_step(n)
            for j in range(4):
                self.gap = 4 * n + j
                a(s["mf"][j]); self.read(n + self.cfg.PD, j)
                rate = 0; c = 0
                for f in fl:
                    if isinstance(f, tuple):
                        assert c == 0 or f[1] >= self.gap
                        if c: rate = max(rate, c / max(0.5, f[1] - self.gap - 0.5))
                    c += self.cost(f)
                credit += rate
                while fl and credit > 0.5:
                    credit -= self.run_fill(fl, 6 if isinstance(fl[0], str) and fl[0].startswith("v_mfma") else 1)
        assert not [f for f in fl if isinstance(f, str)]
    def f_xres(self):
        t = vNM
        pre = [f"v_bfe_u32 v{t}, v0, 4, 1", f"v_lshrrev_b32 v{vR}, 5, v0", f"v_lshl_add_u32 v{vR}, v{t}, 1, v{vR}", f"v_lshlrev_b32 v{vR}, 4, v{vR}",
               f"v_and_b32 v{t}, 15, v0", f"v_lshl_add_u32 v{vR}, v{t}, 10, v{vR}",
               f"v_lshrrev_b32 v{t}, 5, v0", f"v_bfe_u32 v{ONES}, v0, 4, 1", f"v_sub_u32 v{t}, v{t}, v{ONES}", f"v_lshlrev_b32 v{t}, 9, v{t}",
               f"s_and_b32 s96, {sW}, 2", f"s_add_u32 s96, s96, {sW}", f"v_lshl_add_u32 v{ONES+1}, s96, 10, v{vL16}"]
        ld = [f"buffer_load_dwordx4 {vr(XRAW+4*k,4)}, v{vR}, {srd('x')}, s99 offen offset:{64*k}" for k in range(2)]
        post = []
        for k in range(2): post += [f"v_permlane16_swap_b32 v{XRAW+4*k}, v{XRAW+4*k+2}", f"v_permlane16_swap_b32 v{XRAW+4*k+1}, v{XRAW+4*k+3}"]
        for i in range(8): post += [f"v_lshlrev_b32 v{P0+2*i}, 16, v{XRAW+i}", f"v_and_b32 v{P0+2*i+1}, {sHI}, v{XRAW+i}"]
        return pre, ld, post
    def a2_loads(self, u):
        mode, j, who, p = seq_of(u)
        b = self.SL[u % self.NR]
        return [f"s_add_u32 {sTmp}, s{10 if mode == 'own' else 8+who}, {unit_at(p)*8192}"] + [f"buffer_load_dwordx4 {vr(b[s],4)}, v{ONES+1}, {srd('ws')}, {sTmp} offen offset:{2048*s} {self.cfg.a_aux.replace('_', ' ')}" for s in range(2)]
    @staticmethod
    def merge(*lists):
        segs = []
        for l in lists:
            for f in l:
                if isinstance(f, tuple) and f[0] == "gap": segs.append([f])
                else: segs[-1].append(f)
        return [f for sg in sorted(segs, key=lambda x: x[0][1]) for f in sg]
    def f_pre(self, g0):
        fl = []
        assert g0 >= (self.cfg.gate0_at - self.cfg.PD) * 4 + 1 or self.n_pre == 0
        for u in range(self.n_pre):
            assert u < 8 or self.cfg.gate8_at in self.BARS
            fl += [("gap", max([g0 + u * self.cfg.pre_step, (self.cfg.gate8_at - self.cfg.PD) * 4 + 1 if u >= 8 else 0] + [self.xdead(q[1]) for q in self.SQ[u]]))] + [x.replace(sTmp, "s98") for x in self.a2_loads(u)]
        return fl
    def hook(self, f):
        f.free = True; return f
    def typeA(self):
        a, cfg = self.a, self.cfg
        ld, chk = self.f_nonce()
        pA, pB = self.scr
        self.xphase()
        self.unit0()
        t = T0; R = self.accreg; xp, xl, xq = self.f_xres()
        PK = lambda h: P0 + 8 * h + 4
        fl = [("gap", 128 + 2), ld]
        for h in range(4):
            fl += [("gap", self.comp(0, h))] + self.f_phi([R(0, h, 1), R(0, h, 0)], [PK(h) + 2, PK(h)])
            if h: fl += [M16(P0 + 8 * (h - 1), ONES, PK(h - 1), "0")]
        if not cfg.kvl:
            fl += [f"v_add_u32 v{vH}, s97, v{vL16}", f"s_lshl_b32 {sTmp}, {sW}, 8", f"v_lshrrev_b32 v{t+1}, 2, v{vL16}", M16(P0 + 24, ONES, PK(3), "0"),
                   f"v_and_b32 v{t+2}, 12, v{t+1}", f"v_and_b32 v{t+6}, 48, v0", f"v_add_u32 v{t+2}, v{t+2}, v{t+6}", f"v_mul_u32_u24 v{t+7}, {(6144-128)//16}, v{t+6}",
                   f"v_lshl_add_u32 v{t+7}, v0, 3, v{t+7}", f"v_mul_u32_u24 v{t+6}, {(6144-256)//16}, v{t+6}", f"v_add_u32 v{t+6}, v{t+6}, v{vL16}", f"v_add_u32 v{t+1}, {sTmp}, v{t+1}", f"s_lshl_b32 {sTmp}, {sW}, 6", f"v_add_u32 v{t+2}, {sTmp}, v{t+2}",
                   f"s_lshl_b32 {sTmp}, {sW}, 10", f"v_add_u32 v{t+3}, {sTmp}, v{vL16}", f"v_add_u32 v{t+4}, {pB}, v{t+3}", f"v_add_u32 v{t+3}, {pA}, v{t+3}",
                   f"v_cndmask_b32 v{t}, v{P0}, v{P0+8}, {sM1}", f"v_cndmask_b32 v{t}, v{t}, v{P0+16}, {sM2}", f"v_cndmask_b32 v{t}, v{t}, v{P0+24}, {sM3}", chk]
        else:
            fl += [f"v_add_u32 v{vH}, s97, v{vL16}", f"v_lshrrev_b32 v{t+1}, 2, v{vL16}", M16(P0 + 24, ONES, PK(3), "0"), f"v_lshl_add_u32 v{t+1}, {sW}, 8, v{t+1}", chk,
                   f"v_cndmask_b32 v{t}, v{P0}, v{P0+8}, {sM1}", f"v_cndmask_b32 v{t}, v{t}, v{P0+16}, {sM2}", f"v_cndmask_b32 v{t}, v{t}, v{P0+24}, {sM3}"]
        def wchk(): assert self.freed >= cfg.scr_need, self.freed
        fl += [("dl", self.first(2, 0))]
        wr = []
        for h in range(4):
            q = Q0 + 8 * h
            fl += [("gap", self.comp(1, h))] + [f"v_cvt_pk_bf16_f32 v{q+i}, v{q+2*i}, v{q+2*i+1}" for i in range(4)]
            if h: fl += [M16(q - 4, PK(h - 1), q - 8, "0")]
            wr += [f"ds_write_b128 v{vH}, {vr(q+4,4)} offset:{h*1024}"]
        fl += [("dl", self.first(2, 1)), f"v_mov_b32 v{t+5}, 0xff", ("gap", cfg.kvw_gap), self.hook(wchk), M16(Q0 + 28, PK(3), Q0 + 24, "0"), f"ds_write_b32 v{t+1}, v{t} offset:{ZR_OFF}"] + wr[:3] + [(wr[3], "kvw"), ("dl", cfg.kvw_gap + 8)]
        def xbar():
            k = [n for n, e in enumerate(a.lg) if e[1] == "kvw"]
            if k: a.wait(lg=len(a.lg) - 1 - k[0])
            self.barrier(0, self.freed_at(self.arrived), kvx=True)
        fl += [("gap", cfg.kvw_gap + cfg.kvb), xbar]
        if not cfg.kvl:
            fl += [f"ds_read_b128 {vr(Q0+4*s,4)}, v{t+3+s//2} offset:{(s%2)*4096}" for s in range(4)]
            fl += [f"ds_read_b32 v{Q0+16+s}, v{t+2} offset:{ZR_OFF+s*256}" for s in range(4)] + [("dl", cfg.kvw_gap + cfg.kvb + 7), ("gap", cfg.kvw_gap + cfg.kvb + 12)]
            for s in range(1, 4): fl += [f"v_add_f32 v{Q0+r}, v{Q0+r}, v{Q0+4*s+r}" for r in range(4)] + [f"v_add_f32 v{Q0+16}, v{Q0+16}, v{Q0+16+s}"]
            fl += [f"v_bfi_b32 v{Q0+r}, v{t+5}, v{vTag}, v{Q0+r}" for r in (0, 16)]
            fl += [f"v_mov_b32 v{Q0+17}, v{Q0+16}", f"buffer_store_dwordx4 {vr(Q0,4)}, v{t+6}, {srd('ws')}, {sKV} offen sc1", f"buffer_store_dwordx2 {vr(Q0+16,2)}, v{t+7}, {srd('ws')}, {sKV} offen offset:256 sc1"]
        def rchk(): assert self.freed < cfg.scr_rel, self.freed; self.st("kv")
        fl += [self.hook(rchk), ("dl", cfg.kvw_gap + cfg.kvb + 31)] + xp + xl
        OPK, OPZ, DEN, NUM = (XF(1, 12), XF(1, 14), Q0, Q0 + 16) if self.u4k else (XF(1, 0), XF(1, 2), Q0, Q0 + 16)
        fl += [f"v_lshrrev_b32 v{vH}, 1, v{vL16}", f"v_lshrrev_b32 v{vH+1}, 4, v0", f"v_lshlrev_b32 v{vH+1}, 3, v{vH+1}", f"s_add_u32 s88, s44, {16*8192}", f"s_add_u32 s89, s46, {28*8192}"]
        h0, h1 = self.f_h(Q0, P0, "s88", 0, "h"), self.f_h(Q0 + 8, P0 + 8, "s88", 2048, "h")
        sil = lambda u, cb: [("gap", self.comp(u, cb))] + self.f_silu([R(u, cb, 0), R(u, cb, 1)])
        fl += sil(2, 0) + sil(2, 1) + sil(2, 2) + sil(2, 3)
        fl += [("gap", self.comp(3, 1))] + h0[0] + [("dl", self.first(4, 0))] + (h0[1] + [("gap", self.comp(3, 3))] + h1[0] if not self.u4k else
              [("gap", self.comp(3, 2))] + h1[0][0:4] + h1[0][8:12] + [("dl", self.first(4, 2)), ("gap", self.comp(3, 3) - 2)] + h1[0][4:8] + h1[0][12:16] + [("dl", self.first(4, 3))] + h0[1]) + h1[1] + [("dl", cfg.hA_dl)]
        opr = []
        for h in range(4):
            opr += [f"ds_read_b64 {vr(OPK+2*h,2)}, v{vH} offset:{OP_OFF+h*576}", f"ds_read_b64 {vr(OPZ+2*h,2)}, v{vH+1} offset:{OP_OFF+h*576+512}"]
        phi = lambda h: [("gap", self.comp(4, h))] + self.f_phi([R(4, h, 0), R(4, h, 1)], [R(4, h, 0), R(4, h, 1)])
        def mm(h):
            o = []
            for tt in range(2):
                b, e = vr(R(4, h, tt), 2), h % 2
                o += [f"v_mfma_f32_16x16x16_bf16 {vr(DEN+8*tt+4*e,4)}, {vr(OPZ+2*h,2)}, {b}, 0", f"v_mfma_f32_16x16x16_bf16 {vr(NUM+8*tt+4*e,4)}, {vr(OPK+2*h,2)}, {b}, 0"]
            return o
        def post(s2, tt):
            n, d = NUM + 8 * tt, DEN + 8 * tt
            o = [f"v_add_f32 v{d+4*e}, {sEPSC}, v{d+4*e}" for e in range(2)] + [f"v_rcp_f32 v{d+4*e}, v{d+4*e}" for e in range(2)]
            o += [f"v_mul_f32 v{n+i}, v{n+i}, v{d+4*(i//4)}" for i in range(8)]
            o += [f"v_cvt_pk_bf16_f32 v{d+i}, v{n+2*i}, v{n+2*i+1}" for i in range(4)]
            return o + [(f"buffer_store_dwordx4 {vr(d,4)}, v{vL16}, {srd('ws')}, s89 offen offset:{(2*s2+tt)*1024} sc1", "o")]
        def weave(main, extra, every):
            o = []; extra = list(extra)
            for k, f in enumerate(main):
                if extra and k % every == every - 1: o.append(extra.pop(0))
                o.append(f)
            return o + extra
        assert (cfg.op_at in self.BARS or cfg.op_at == 160) and (self.u4k or cfg.hA_dl <= self.first(4, 2)) and cfg.hA_gap > cfg.hA_dl and (cfg.gate0_at in self.BARS or cfg.gate0_at == 160)
        lateop = cfg.op_at == 160 and not self.u4k
        if not lateop: fl += [("gap", max((cfg.op_at - cfg.PD) * 4 + 1, self.xdead(15 if self.u4k else 3)))] + opr
        last = [phi(0), phi(1), phi(2), []] if lateop else [phi(0), weave(phi(1), mm(0), 4), weave(phi(2), mm(1), 4), post(0, 0) + post(0, 1)]
        for k in range(5):
            if k == cfg.finA + 2 and not self.u4k: fl += [("dl", 639)]
            fl += last[k] if k < 4 else []
        self.n_pre = cfg.n_preA; assert self.n_pre + cfg.n_epi <= (12 if self.u4k else 6)
        rest = self.units(fl, self.merge(self.f_pre(cfg.preA_gap), [("gap", cfg.hA_gap), lambda: self.flag(16, "h")])); self.st("fin")
        self.cur = 160
        self.n_pre += cfg.n_epi
        self.p2_plan()
        self.barrier(self.p2_full(-1), 56, op=cfg.op_at == 160, gate=[g for g, at in ((0, cfg.gate0_at), (8, cfg.gate8_at), (12, cfg.gate12_at)) if at == 160])
        self.st("_e0")
        lds_ = [x for u in range(cfg.n_preA, self.n_pre) for x in self.a2_loads(u)]
        if lateop:
            m0, m1 = mm(2)[:2] + mm(3)[:2], mm(2)[2:] + mm(3)[2:]
            self.run_fill(opr + lds_ + rest + weave(phi(3), mm(0) + mm(1), 3) + post(0, 0) + weave(post(0, 1), m0, 3) + m1[:1], 10 ** 9)
            self.run_fill(weave(post(1, 0), m1[1:], 3), 10 ** 9)
            self.p2_start()
            self.run_fill(post(1, 1), 10 ** 9)
        else:
            self.run_fill(lds_ + rest + weave(phi(3), mm(2), 4) + mm(3), 10 ** 9)
            self.p2_start()
            self.run_fill(post(1, 0) + post(1, 1), 10 ** 9)
        self.st("p2")
        self.phase2({cfg.late_at: lambda: self.flag(28, "o")})
    def typeF(self):
        a, cfg = self.a, self.cfg
        ld, chk = self.f_nonce()
        self.xphase()
        self.unit0()
        R = self.accreg; xp, xl, xq = self.f_xres()
        sil = lambda u, cb: [("gap", self.comp(u, cb))] + self.f_silu([R(u, cb, 0), R(u, cb, 1)])
        h10, h11 = self.f_h(Q0, P0, sA2, 0, "h1"), self.f_h(Q0 + 8, P0 + 8, sA2, 2048, "h1")
        h2 = self.f_h(P0, P0 + 8, "s100", 0, "h2")
        h30, h31 = self.f_h(P0, Q0, "s88", 0, "h3"), self.f_h(P0 + 8, Q0 + 8, "s88", 2048, "h3")
        fl = [("gap", 128 + 2), ld] + sil(0, 0) + sil(0, 1) + sil(0, 2) + [chk, ("gap", self.comp(1, 1))] + h10[0] + [("dl", self.first(2, 0))] + h10[1]
        fl += sil(0, 3) + [("gap", self.comp(1, 3))] + h11[0] + h11[1] + [("dl", cfg.h1_dl)]
        fl += sil(2, 0) + sil(2, 1) + [("gap", self.comp(2, 3))] + h2[0] + h2[1] + [("dl", cfg.h2_dl)] + xp + xl + [f"s_add_u32 s88, s44, {8*8192}"]
        fl += sil(3, 0) + sil(3, 1) + sil(3, 2) + ([("dl", 639)] if cfg.finF == -1 else []) + sil(3, 3) + ([("dl", 639)] if cfg.finF == 0 else []) + [("gap", self.comp(4, 1))] + h30[0] + h30[1] + ([("dl", 639)] if cfg.finF == 1 else [])
        if MIXU == 4:
            h30, h31 = self.f_h(Q0, P0, "s88", 0, "h3"), self.f_h(Q0 + 8, P0 + 8, "s88", 2048, "h3")
            fl = [("gap", 128 + 2), ld] + sil(0, 0) + sil(0, 1) + sil(0, 2) + [chk, ("gap", self.comp(1, 1))] + h10[0] + [("dl", self.first(2, 0))]
            fl += sil(0, 3) + [("gap", self.comp(1, 3))] + h11[0] + [("dl", self.first(2, 2))] + h10[1] + h11[1] + [("dl", cfg.h1_dl)] + xp + xl + [f"s_add_u32 s88, s44, {8*8192}"]
            fl += sil(2, 0) + sil(2, 1) + sil(2, 2) + sil(2, 3) + [("gap", self.comp(3, 1))] + h30[0] + [("dl", self.first(4, 0))] + h30[1]
            fl += [("gap", self.comp(3, 3))] + h31[0] + h31[1] + [("dl", cfg.h2_dl)] + sil(4, 0) + sil(4, 1) + [("dl", 639)]
            assert cfg.h1_dl <= self.first(3, 0) and cfg.h2_dl <= self.first(4, 2) and not self.u4k
        def f2():
            self.st("_wh2"); a.wait_tag("h2"); self.st("_dh2")
            a(f"buffer_store_dword v{vTag}, v{vFl}, {srd('ws')}, s101 offen sc1")
        assert MIXU == 4 or (cfg.h1_dl <= self.first(2, 2) and cfg.h2_dl <= self.first(4, 0))
        assert cfg.n_preF + cfg.n_epiF <= (12 if self.u4k else 8) and not (self.u4k and cfg.finF == 1) and (cfg.gate0_at in self.BARS or cfg.gate0_at == 160)
        self.n_pre = cfg.n_preF; f3 = lambda: self.flag(8, "h3")
        rest = self.units(fl, self.merge(self.f_pre(cfg.preF_gap), [("gap", cfg.h1_dl + cfg.ack), lambda: self.flag(0, "h1")], [("gap", cfg.h2_dl + cfg.ack), f2 if MIXU == 2 else f3])); self.st("fin")
        self.cur = 160
        self.n_pre += cfg.n_epiF
        self.p2_plan()
        self.barrier(self.p2_full(-1), 56, gate=[g for g, at in ((0, cfg.gate0_at), (8, cfg.gate8_at), (12, cfg.gate12_at)) if at == 160])
        for u in range(cfg.n_preF, self.n_pre):
            for x in self.a2_loads(u): a(x)
        self.p2_start()
        self.run_fill(rest + (h31[0] + h31[1] if MIXU == 2 else h2[0] + h2[1]), 10 ** 9)
        self.st("p2")
        self.phase2({cfg.late_at: f3 if MIXU == 2 else f2})
    def p2_plan(self):
        cfg = self.cfg
        n0 = NSPL - 2 * NDEF; ev = lambda u: u & ~1 if u < n0 else u
        gated = {0} | ({8} if cfg.gate8_at <= 160 else set()) | ({12} if cfg.gate12_at <= 160 else set())
        assert all(stage_of(seq_of(a)[3])[0] in gated for a in range(self.n_pre))
        nxt = self.n_pre; self.p2l = {}; self.p2g = {}
        for u in range(36):
            ld = []
            while nxt < 36 and nxt <= u + (cfg.D if u < cfg.d_sw else cfg.D2) and len(ld) < 2:
                g = stage_of(seq_of(nxt)[3])[0]
                if g not in gated: gated.add(g); self.p2g.setdefault(ev(u), []).append(g)
                ld.append(nxt); nxt += 1
            self.p2l[u] = ld
            assert nxt > min(35, (u + 1) | 1 if u + 1 < n0 else u + 1) and nxt - ev(u) <= self.NR
        extra = [int(x) for x in (cfg.p2xA if self.typ == "A" else cfg.p2xF).split(",") if x]
        assert all(x == ev(x) for x in extra)
        assert all(cfg.late_at <= u for u in self.p2g for g in self.p2g[u] if g >= 20)
        self.p2b = sorted(set(list(self.p2g) + extra))
        self.steps = [(u, cb) for u in range(36) for cb in (((2 * u) % 4, (2 * u) % 4 + 1) if u < n0 else range(4))]
        self.NM = len(self.steps)
        G = cfg.exg if self.typ == "A" else cfg.exgF; self.geo = {}
        assert G == 1 or NDEF == 0
        for k in range(4 * G): self.geo[2 * n0 - 4 * G + k] = (k // G, n0 // 2 - G + k % G, k % G % 2 == 1)
        self.G = G
    def p2_full(self, u):
        nxt = min([b for b in self.p2b if b > u] + [35])
        m1 = [m for m, st in enumerate(self.steps) if st[0] == nxt][0] + 2
        return 56 + max(self.p2_geo(m)[1] for m in range(self.NM if nxt == 35 else m1 + 1)) + 1
    def p2_geo(self, m):
        u, cb = self.steps[m]
        return self.geo.get(m, (cb, wslot(u), False))
    def p2_read(self, m, j):
        if m >= self.NM: return
        cb, slot, _ = self.p2_geo(m)
        w = self.find(k="w2", u=slot); assert w["n"] < self.full, (m, w, self.full)
        e, t2 = j // 2, j % 2
        if seq_of(self.steps[m][0])[0] == "kept": return
        self.lds("ds_read_b64_tr_b16", vr(self.p2_frag(m, e) + 2 * t2, 2), vA + cb, w["addr"] + e * 4096 + t2 * 2048)
    def p2_frag(self, m, e):
        cb, slot, _ = self.p2_geo(m); k = slot - (NSPL // 2 - NKEEP)
        return self.SL[self.NR + 4 * k + cb][e] if 0 <= k < NKEEP else WB0 + 8 * (m % 4) + 4 * e
    def p2_start(self):
        for cb in range(4): self.a(f"v_add_u32 v{vA+cb}, v{vNM}, v{vA+cb}")
        for m in range(3):
            for j in range(4): self.p2_read(m, j)
    def phase2(self, hooks):
        a, cfg = self.a, self.cfg
        xq = self.f_xres()[2] + [f"v_mov_b32 v{T0}, 0xff", f"v_and_b32 v{T0+1}, 0xff, v{vTag}"]; xa = {}
        for cb in range(4): xa[4 * (cfg.xadd_at // 2 + 3) + cb + 2] = [f"v_add_f32 v{ACC+4*cb+i}, v{ACC+4*cb+i}, v{P0+4*cb+i}" for i in range(4)]
        exl = [f"buffer_load_dwordx4 {vr(P0+4*cb,4)}, v{vL16}, {srd('ws')}, s12 offen offset:{cb*1024} sc1" for cb in range(4)]
        exc = [f"v_xor_b32 v{P0+4*cb}, v{T0+1}, v{P0+4*cb}" for cb in range(4)] + [f"v_or3_b32 v{T0+2}, v{P0}, v{P0+4}, v{P0+8}", f"v_or_b32 v{T0+2}, v{T0+2}, v{P0+12}",
               f"v_and_b32 v{T0+2}, 0xff, v{T0+2}", f"v_cmp_ne_u32 vcc, 0, v{T0+2}"]
        if cfg.ex16:
            xq[-2:] = [f"v_mov_b32 v{T0}, 0x3f80", f"v_mov_b32 v{T0+1}, 0x3f800000", f"v_lshlrev_b32 v{T0+3}, 2, v0"]
            x3 = lambda d, p, q, r: f"v_add3_u32 v{d}, v{p}, v{q}, v{r}"
            exl = [f"buffer_load_dwordx4 {vr(P0+4*k,4)}, v{vL16}, {srd('ws')}, s12 offen offset:{k*1024} sc1" for k in range(2)] + [f"buffer_load_dword v{P0+8}, v{T0+3}, {srd('ws')}, s12 offen offset:2048 sc1"]
            exc = [x3(T0 + 2, T0 + 2 if k else vTag, P0 + 2 * k, P0 + 2 * k + 1) for k in range(4)] + [f"v_cmp_ne_u32 vcc, v{T0+2}, v{P0+8}"]
        def check():
            L = a.newlabel("Lx"); C = a.newlabel("Lc")
            self.st("_t0"); a.need(vr(P0, 16)); a(*exc); a(f"s_cbranch_vccnz {L}"); a.label(C); self.st("_t1")
            a.stubs += [f"{L}:"] + ["    " + y for y in ([f"s_sleep {cfg.ex_s}"] if cfg.ex_s else []) + exl + [f"s_sub_u32 {sT}, {sT}, 1", "s_cbranch_scc1 L_end", "s_waitcnt vmcnt(0)"] + exc + [f"s_cbranch_vccnz {L}", f"s_branch {C}"]]
        add = lambda cb: [f"v_add_f32 v{ACC+4*cb+i}, v{ACC+4*cb+i}, v{P0+4*cb+i}" for i in range(4)] + [f"v_cvt_pk_bf16_f32 v{K0+2*cb+i}, v{ACC+4*cb+2*i}, v{ACC+4*cb+2*i+1}" for i in range(2)]
        if cfg.ex16:
            assert not cfg.ex_ck
            add = lambda cb: [f"v_dot2_f32_bf16 v{ACC+4*cb+i}, v{P0+2*cb+i//2}, v{T0+i%2}, v{ACC+4*cb+i}" for i in range(4)] + [f"v_cvt_pk_bf16_f32 v{K0+2*cb+i}, v{ACC+4*cb+2*i}, v{ACC+4*cb+2*i+1}" for i in range(2)]
        swp = lambda k: [f"v_permlane16_swap_b32 v{K0+4*k}, v{K0+2+4*k}", f"v_permlane16_swap_b32 v{K0+1+4*k}, v{K0+3+4*k}"]
        sto = lambda k: [f"buffer_store_dwordx4 {vr(K0+4*k,4)}, v{vR}, {srd('out')}, s99 offen offset:{64*k} {cfg.out_aux.replace('_', ' ')}"]
        M0 = self.steps.index((NSPL - NDEF, 0)); sched = {}
        for cb in range(4 if cfg.ex16 else 0):
            o = [f"v_cvt_pk_bf16_f32 v{Q0+2*cb+i}, v{Q0+4*cb+2*i}, v{Q0+4*cb+2*i+1}" for i in range(2)] + [x3(T0 + 2, T0 + 2 if cb else vTag, Q0 + 2 * cb, Q0 + 2 * cb + 1)]
            if cb % 2: o += [f"buffer_store_dwordx4 {vr(Q0+2*cb-2,4)}, v{vL16}, {srd('ws')}, s11 offen offset:{cb//2*1024} sc1;ex"]
            if cb == 3: o += [f"buffer_store_dword v{T0+2}, v{T0+3}, {srd('ws')}, s11 offen offset:2048 sc1;ex"]
            sched.setdefault(M0 - 2 + cb if self.G == 1 else M0 - (3 - cb) * self.G, []).extend(o)
            if cb < 3: sched.setdefault(self.NM - cfg.ex_ld, []).append(exl[cb])
        for cb in range(0 if cfg.ex16 else 4):
            sched.setdefault(M0 - 2 + cb * cfg.ex_sp if self.G == 1 else M0 - (3 - cb) * self.G, []).extend([f"v_bfi_b32 v{Q0+4*cb}, v{T0}, v{vTag}, v{Q0+4*cb}", f"buffer_store_dwordx4 {vr(Q0+4*cb,4)}, v{vL16}, {srd('ws')}, s11 offen offset:{cb*1024} sc1;ex"])
            sched.setdefault(self.NM - cfg.ex_ld + cb // cfg.ex_n, []).append(exl[cb])
        assert cfg.ex_sp >= 1 and M0 - 2 + 3 * cfg.ex_sp < self.NM - cfg.ex_ld and cfg.ex_ld >= 4 // cfg.ex_n and max(xa) < M0 - 4 * self.G
        fin = [check] + add(0) + add(1) + swp(0) + sto(0) + add(2) + add(3) + swp(1) + sto(1)
        if cfg.ex16: fin = [check] + add(0)[:4] + add(1)[:4] + add(2)[:4] + add(0)[4:] + add(1)[4:] + add(3)[:4] + swp(0) + sto(0) + add(2)[4:] + add(3)[4:] + swp(1) + sto(1)
        if cfg.ex_ck:
            m1 = self.NM - cfg.ex_ck; assert 4 <= cfg.ex_ck <= cfg.ex_ld - 4 // cfg.ex_n
            sched.setdefault(m1, []).append(check)
            for k in range(4): sched.setdefault(m1 + k, []).extend(add((m1 + k + 2) % 4)[:4])
            fin = add(0)[4:] + add(1)[4:] + swp(0) + sto(0) + add(2)[4:] + add(3)[4:] + swp(1) + sto(1)
        loaded = set(range(self.n_pre))
        for m, (u, cb) in enumerate(self.steps):
            mode, slot, who, _ = seq_of(u); split = mode == "split"
            h = cb % 2 if split else (cb // 2 if cb % 2 == 0 else None)
            buf = WB0 + 8 * (m % 4)
            if h == 0:
                if u in hooks: hooks[u]()
                if u in self.p2b:
                    a.need(vr(self.p2_frag(m, 1), 4))
                    self.barrier(self.p2_full(u), 56 + min(self.p2_geo(k)[1] for k in range(m, self.NM)), phase="2", gate=self.p2g.get(u))
                self.st(f"c{u}" if u in (4, 12, 20, 28, 35) else f"_c{u}")
            extra = self.a2_loads(self.p2l[u][h]) if h is not None and len(self.p2l[u]) > h else []
            cb, slot, flip = self.p2_geo(m)
            loaded.update(self.p2l[u - 1] if h == 0 and u else [])
            assert not split or 2 * slot + 1 in loaded, (m, slot)
            assert all(y - self.NR < (2 * min(self.p2_geo(k)[1] for k in range(m, M0)) if split else u) for y in self.p2l[u])
            x = {0: self.SL[(2 * slot) % self.NR], 1: self.SL[(2 * slot + 1) % self.NR]} if split else {who: self.SL[u % self.NR]}
            a.need(*[vr(self.p2_frag(m | 1 if split else m, e), 4) for e in range(2)], *[vr(q, 4) for y in x.values() for q in y])
            order = (((0, 1), (1, 1), (1, 0), (0, 0)) if flip else ((0, 0), (1, 0), (1, 1), (0, 1))) if split else ((0, who), (1, who))
            for j, (e, t) in enumerate(order):
                d = (ACC, Q0)[t] + 4 * cb
                a(M16(d, self.p2_frag(m, e), x[t][e], "0" if (m < 4 and j % 2 == 0) else d))
                for jj in ((j,) if split else (2 * j, 2 * j + 1)): self.p2_read(m + 3, jj)
                if u >= cfg.xadd_at and xq and (j == 0 or not extra): a(xq.pop(0))
                if m in xa and j == len(order) // 2:
                    assert not xq
                    a(*xa.pop(m))
                if j >= 1 and extra: a(extra.pop(0))
            a(*extra)
            if cfg.ex_w and m == self.NM - cfg.ex_ld: a.wait_tag("ex")
            for f in sched.get(m, []):
                if callable(f): f()
                else: a.e(f.split(";")[0], tag="ex" if f.endswith(";ex") else None)
        assert not xa
        self.run_fill(fin, 10 ** 9)
        self.st("_t2")
        if cfg.diag:
            a("s_waitcnt vmcnt(0)"); self.st("end")
            a.raw(f"    s_mov_b32 s{self.st.regs[self.st.n]}, {sT}"); self.st.n += 1
        self.st.flush(130, 129)
        a("s_endpgm")

class Loader:
    vX, vQ, vG, vD, vHh = 2, 4, 6, 16, 10
    vTag, vPo, vPo2, vP = 13, 14, 15, 16
    def __init__(self, a, cfg, comp):
        self.a, self.cfg, self.it, self.typ, self.bars = a, cfg, comp.it, comp.typ, comp.bars
        self.issued = 0
        self.st = Stamps(a, cfg, list(range(88, 102, 2)) + [8, 10] + list(range(16, 36, 2)))
    def slow_poll(self, load, cmp):
        a = self.a
        C = a.newlabel("Lc"); L = a.newlabel("Lp")
        a(cmp, f"s_cbranch_vccz {C}")
        a.label(L)
        a.raw("    " + load); timeout(a); a.raw("    s_waitcnt vmcnt(0)"); a.raw("    " + cmp); a.raw(f"    s_cbranch_vccnz {L}")
        a.label(C)
    def prologue(self):
        a = self.a
        a("v_and_b32 v0, 63, v0", f"s_sub_u32 {sW}, {sW}, 4", f"s_lshl_b32 s77, {sW}, 11")
        a("v_lshrrev_b32 v21, 3, v0", "v_and_b32 v22, 7, v0", "v_lshrrev_b32 v23, 4, v0", "v_xor_b32 v24, v22, v23", "v_lshlrev_b32 v24, 4, v24")
        a(f"v_lshl_add_u32 v{self.vX}, v21, 10, v24", f"v_xor_b32 v{self.vX+1}, 64, v{self.vX}", f"v_add_u32 v{self.vX+1}, {8*1024-1024}, v{self.vX+1}")
        a(f"s_lshl_b32 s79, {sC}, 2", f"s_add_u32 s79, s79, {sW}", "s_lshl_b32 s79, s79, 15")
        a("s_movk_i32 s85, 0x3ff", f"s_lshl_b32 s84, {sROT}, 7" if self.cfg.rot else "s_mov_b32 s84, 0", "s_and_b32 s84, s84, s85", "s_add_u32 s78, s79, s84", "s_mov_b32 m0, s77")
        if self.cfg.lprio: a(f"s_setprio {self.cfg.lprio}")
        srd_const(a, "x")
        if "X0" in self.cfg.planX:
            a("s_lshr_b32 s82, s2, 7", "s_lshl_b32 s82, s82, 3", f"s_add_u32 s82, s82, {sI}", f"s_lshl_b32 s83, {sC}, 4", "s_add_u32 s82, s82, s83",
              "s_lshl_b32 s82, s82, 2", f"s_add_u32 s82, s82, {sW}", "s_lshl_b32 s82, s82, 11", "v_lshlrev_b32 v28, 7, v0")
        if self.cfg.prearly: self.prologue2a()
        a("s_waitcnt lgkmcnt(0)")
        srd_base(a, "x")
    def prologue2a(self):
        a = self.a
        for n in ("qkv", "gate", "up"): srd_const(a, n)
        a(f"s_lshl_b32 s76, {sW}, 4", "v_add_u32 v21, s76, v21", f"s_lshl_b32 s80, {sI}, 7")
        a("v_lshlrev_b32 v25, 1, v23", "v_and_b32 v25, 2, v25", "v_xor_b32 v24, v22, v25", "v_lshlrev_b32 v24, 4, v24", "v_xor_b32 v26, 64, v24")
        for reg, st in ((self.vQ, 3072), (self.vG, 3584)):
            a(f"v_mul_u32_u24 v25, {st}, v21", f"v_add_u32 v{reg}, v25, v24", f"v_add_u32 v{reg+1}, v25, v26", f"v_add_u32 v{reg+1}, {8*st-1024}, v{reg+1}")
    def prologue2(self):
        a = self.a
        if not self.cfg.prearly: self.prologue2a()
        for n in ("qkv", "gate", "up"): srd_base(a, n)
        a(f"s_xor_b32 s0, s80, {self.cfg.x1 << 7}", f"s_xor_b32 s1, s80, {self.cfg.x4 << 7}")
    def prologue3(self):
        a = self.a
        for n in ("down", "wo", "ws", "dbg"): srd_base(a, n); srd_const(a, n)
        a("v_lshlrev_b32 v25, 1, v23", "v_xor_b32 v24, v22, v25", "v_lshlrev_b32 v24, 4, v24", f"v_lshl_add_u32 v{self.vD}, v21, 10, v24",
          f"v_add_u32 v{self.vD+1}, {8*1024-1024}, v{self.vD}")
        a("v_lshrrev_b32 v25, 2, v0", f"s_lshl_b32 s76, {sW}, 5", "v_add_u32 v25, s76, v25", "v_mul_u32_u24 v25, 3584, v25", "v_and_b32 v26, 3, v0",
          "v_and_b32 v27, 2, v23", "v_xor_b32 v27, v26, v27", f"v_lshl_add_u32 v{self.vHh}, v27, 4, v25", f"v_add_u32 v{self.vHh+1}, {16*3584-1024}, v{self.vHh}")
        a("v_lshlrev_b32 v27, 4, v0")
        a(f"s_and_b32 s76, {sW}, 2", "s_lshl_b32 s76, s76, 7", f"s_and_b32 s82, {sW}, 1", "s_lshl_b32 s82, s82, 11", "s_add_u32 s76, s76, s82", f"v_lshl_add_u32 v{self.vPo}, v26, 9, s76")
        a("v_lshlrev_b32 v18, 10, v26", "v_lshrrev_b32 v25, 1, v26", "v_lshlrev_b32 v25, 10, v25", f"v_and_b32 v{self.vPo2}, 1, v26", f"v_lshl_add_u32 v{self.vPo2}, v{self.vPo2}, 7, v25")
        a(f"s_lshl_b32 s81, {sCB}, 7")
        a(f"s_mul_i32 s83, {sTB}, {36*512}", f"s_add_u32 s83, s83, {WS_FLAG:#x}")
        a(f"s_and_b32 s76, {sTB}, 1", "s_lshl_b32 s69, s76, 16", "s_add_u32 s69, s69, s81")
        a(f"s_and_b32 s71, {sTB}, 30", f"s_lshr_b32 s70, {sW}, 1", "s_add_u32 s71, s71, s70", "s_mul_i32 s71, s71, 36", "s_add_u32 s71, s71, s76", "s_lshl_b32 s71, s71, 1",
          f"s_and_b32 s70, {sW}, 1", "s_add_u32 s71, s71, s70", "s_lshl_b32 s71, s71, 8", f"s_add_u32 s71, s71, {WS_FLAG:#x}")
        a("s_lshl_b32 s86, s2, 2", f"s_add_u32 s86, s86, {sW}", "s_lshr_b32 s87, s2, 3", "s_lshl_b32 s87, s87, 2", f"s_add_u32 s87, s87, {sW}", "v_lshlrev_b32 v28, 7, v0", "v_lshlrev_b32 v30, 10, v0")
        a(f"s_lshl_b32 s38, {sI}, 4", f"s_add_u32 s38, s38, {sC}", "s_mul_i32 s82, s38, 6144", f"s_add_u32 s82, s82, {WS_KV:#x}", "s_mul_i32 s38, s38, 384", f"s_add_u32 s38, s38, {WS_KV2:#x}")
        a(f"s_xor_b32 s39, {sI}, {self.cfg.x4}", "s_lshl_b32 s39, s39, 2", f"s_add_u32 s39, s39, {sW}", "s_mul_i32 s39, s39, 1536", f"s_add_u32 s39, s39, {WS_KV2:#x}")
        a("v_and_b32 v41, 15, v0", "v_lshl_add_u32 v42, v23, 7, v27", "v_mul_u32_u24 v40, 384, v23")
        a("v_lshrrev_b32 v39, 2, v0", "v_mul_u32_u24 v39, 384, v39", "v_lshl_add_u32 v39, v26, 3, v39")
        a("v_lshlrev_b32 v38, 2, v23", "v_lshl_add_u32 v38, v41, 4, v38", "v_lshlrev_b32 v37, 2, v0", "v_mov_b32 v36, 0xff")
        a(f"s_mul_i32 s76, {sW}, 576", "v_lshl_add_u32 v43, v0, 3, s76", "v_lshl_add_u32 v44, v23, 3, s76")
    def prologue4(self):
        a, cfg = self.a, self.cfg
        pA, pB = make_items(cfg, "A")[1]
        a(f"v_lshl_add_u32 v48, {sW}, 10, v27", f"v_add_u32 v49, {pB}, v48", f"v_add_u32 v48, {pA}, v48")
        a("v_lshlrev_b32 v50, 2, v26", "v_lshl_add_u32 v50, v23, 4, v50", f"v_lshl_add_u32 v50, {sW}, 6, v50")
        a("v_mul_u32_u24 v51, 5888, v23", "v_add_u32 v51, v51, v27", "v_mul_u32_u24 v52, 6016, v23", "v_lshl_add_u32 v52, v0, 3, v52")
        a(f"s_lshl_b32 s68, {sI}, 2", f"s_add_u32 s68, s68, {sW}", "s_lshl_b32 s68, s68, 6", f"s_add_u32 s68, s68, {sC}", "s_mul_i32 s68, s68, 384", f"s_add_u32 s68, s68, {WS_KV:#x}")
    def kv_publish(self):
        a = self.a
        for s in range(4): a(f"ds_read_b128 {vr(96+4*s,4)}, v{48+s//2} offset:{(s%2)*4096}")
        for s in range(4): a(f"ds_read_b32 v{112+s}, v50 offset:{ZR_OFF+s*256}")
        a.wait(lg=0)
        for s in range(1, 4): a(*[f"v_add_f32 v{96+r}, v{96+r}, v{96+4*s+r}" for r in range(4)], f"v_add_f32 v112, v112, v{112+s}")
        a(*[f"v_bfi_b32 v{r}, v36, v{self.vTag}, v{r}" for r in (96, 112)], "v_mov_b32 v113, v112")
        a(f"buffer_store_dwordx4 v[96:99], v51, {srd('ws')}, s68 offen sc1", f"buffer_store_dwordx2 v[112:113], v52, {srd('ws')}, s68 offen offset:256 sc1")
    def colbase(self, u): return (("s80", "s80", "s0", "s0", "s1") if self.typ == "A" else ("s80", "s80", "s0", "s0", "s0"))[u]
    def item(self, x, reg=None):
        a = self.a; k = x["k"]; aux = ""; rot = None
        if k == "x":
            n, t, sl = x["n"], x["t"], x["s"]
            assert x["addr"] == 8192 * (n + 1)
            a("s_addk_i32 m0, 0x2000")
            if n == 0: pass
            elif sl % 2 == 1: a("s_addk_i32 s78, 128")
            elif n == 2 and t == 1: a("s_addk_i32 s78, 0x3f80")
            else:
                if n == 10 and self.cfg.xo == 0: a("s_addk_i32 s79, 0x4000", "s_addk_i32 s84, 256")
                if n == 8 and t == 1: a("s_addk_i32 s79, 0x4000")
                a("s_addk_i32 s84, 256", "s_and_b32 s84, s84, s85", "s_add_u32 s78, s79, s84")
            a.e(f"buffer_load_dwordx4 v{self.vX}, {srd('x')}, s78 offen {self.cfg.x_aux.replace('_', ' ')} lds", tag=n)
            a.e(f"buffer_load_dwordx4 v{self.vX+1}, {srd('x')}, s78 offen offset:1024 {self.cfg.x_aux.replace('_', ' ')} lds", tag=n)
            self.issued = n + 1
            return
        elif k == "w1":
            u, i = x["u"], x["i"]
            if self.typ == "A":
                s, v, st, off = [("qkv", self.vQ, 3072, 1024), ("qkv", self.vQ, 3072, 2048), ("gate", self.vG, 3584, 16 * 128),
                                 ("up", self.vG, 3584, 16 * 128), ("qkv", self.vQ, 3072, 0)][u]
                base, rot = self.colbase(u), (i, 64 * st)
            elif u != MIXU:
                uu = u - (u > MIXU)
                s, v, base, off, rot = ("gate", "up")[uu % 2], self.vG, self.colbase(u), (uu // 2) * 8 * 128, (i, 64 * 3584)
            else:
                if i == 0: a(f"s_lshl_b32 s79, {sI}, 6")
                s, v, base, off, rot = ("gate", "up")[i // 4], self.vHh, "s79", 24 * 128, (2 * (i % 4), 64 * 3584)
        elif k == "w2":
            u = x["u"]; split = 2 * u < NSPL; U = unit_at(2 * u if split else u - NSPL // 2 + NSPL)
            s, v, base, off = ("down", self.vD, "s69" if split else "s81", U * 65536) if U < 28 else ("wo", self.vD, "s69" if split else "s81", (U - 28) * 65536)
        if rot and self.cfg.rot:
            a(f"s_add_u32 s84, {sROT}, {rot[0]}", "s_and_b32 s84, s84, 7", f"s_mul_i32 s84, s84, {rot[1]}", f"s_add_u32 s84, s84, {base}")
            base = "s84"
        elif rot: off += rot[0] * rot[1]
        if reg is not None:
            a(f"s_add_u32 s78, {base}, {off}")
            a(f"buffer_load_dwordx4 {vr(reg,4)}, v{v}, {srd(s)}, s78 offen", f"buffer_load_dwordx4 {vr(reg+4,4)}, v{v+1}, {srd(s)}, s78 offen offset:1024")
            return
        a(f"s_add_u32 m0, s77, {x['addr']}", f"s_add_u32 s78, {base}, {off}")
        a.e(f"buffer_load_dwordx4 v{v}, {srd(s)}, s78 offen {self.cfg.w_aux.replace('_', ' ')} lds", tag=x["n"])
        a.e(f"buffer_load_dwordx4 v{v+1}, {srd(s)}, s78 offen offset:1024 {self.cfg.w_aux.replace('_', ' ')} lds", tag=x["n"])
        self.issued = x["n"] + 1
    def sub(self, loads, check, work, since):
        a = self.a
        b = Asm(); b.uid = a.uid + 1; a.uid += 10
        L, C = b.newlabel("Lr"), b.newlabel("Lc")
        b(f"s_waitcnt vmcnt({since})", *check); b(f"s_cbranch_vccz {C}")
        b.label(L); b(*loads); timeout(b); b("s_waitcnt vmcnt(0)", *check); b(f"s_cbranch_vccnz {L}")
        b.label(C); b.reset(); b("s_nop 0"); b(*work)
        return b.out
    def by_wave(self, parts):
        a = self.a; E = a.newlabel("Le")
        for w, p in enumerate(parts):
            N = a.newlabel("Ln")
            a.out += [f"    s_cmp_lg_u32 {sW}, {w}", f"    s_cbranch_scc1 {N if w + 1 < len(parts) else E}"] + p
            if w + 1 < len(parts): a.out += [f"    s_branch {E}", N + ":"]
        a.label(E); a.hist = []
    def kv(self, x):
        a, tg, ws = self.a, self.vTag, srd("ws")
        def chk(regs):
            o = [f"v_and_b32 v33, 0xff, v{tg}"] + [f"v_xor_b32 v{r}, v33, v{r}" for r in regs] + [f"v_mov_b32 v32, v{regs[0]}"]
            for k in range(1, len(regs), 2): o += [f"v_or3_b32 v32, v32, v{regs[k]}, v{regs[min(k + 1, len(regs) - 1)]}"]
            return o + ["v_and_b32 v32, 0xff, v32", "v_cmp_ne_u32 vcc, 0, v32"]
        l1 = [y for t in range(4) for y in (f"s_add_u32 s78, s82, {t*1536}", f"buffer_load_dwordx4 {vr(64+4*t,4)}, v42, {ws}, s78 offen sc1")]
        l1z = [f"buffer_load_dword v64, v39, {ws}, s82 offen offset:256 sc1"]
        l2 = [f"buffer_load_dwordx4 v[80:83], v42, {ws}, s39 offen sc1", f"buffer_load_dwordx4 v[84:87], v40, {ws}, s39 offen offset:256 sc1"]
        if x in ("G0", "G1"):
            if x == "G0": self.by_wave([["    " + y for y in l1], ["    " + y for y in l1z]])
            else: a.out += ["    " + y for y in l2]
            self.mark = a.nvm
        elif x == "S0":
            w0 = [f"v_add_f32 v{64+r}, v{64+r}, v{68+r}" for r in range(4)] + [f"v_add_f32 v{72+r}, v{72+r}, v{76+r}" for r in range(4)] + [f"v_add_f32 v{64+r}, v{64+r}, v{72+r}" for r in range(4)]
            w0 += ["v_permlane32_swap_b32 v64, v66", "v_permlane32_swap_b32 v65, v67", "v_add_f32 v64, v64, v66", "v_add_f32 v65, v65, v67", "v_permlane16_swap_b32 v64, v65", "v_add_f32 v64, v64, v65",
                   f"v_bfi_b32 v64, v36, v{tg}, v64", f"buffer_store_dword v64, v38, {ws}, s38 offen sc1"]
            w1 = ["v_add_f32_dpp v64, v64, v64 row_ror:4 row_mask:0xf bank_mask:0xf", "v_add_f32_dpp v64, v64, v64 row_ror:8 row_mask:0xf bank_mask:0xf",
                  "v_mov_b32 v65, v64", "v_permlane32_swap_b32 v64, v65", "v_add_f32 v64, v64, v65", "v_mov_b32 v65, v64", "v_permlane16_swap_b32 v64, v65", "v_add_f32 v64, v64, v65",
                  f"v_mul_f32 v64, {f2u(LOG2E):#x}, v64", f"v_bfi_b32 v64, v36, v{tg}, v64", "s_mov_b32 exec_hi, 0", f"buffer_store_dword v64, v37, {ws}, s38 offen offset:256 sc1", "s_mov_b32 exec_hi, -1"]
            k = min(63, a.nvm - self.mark)
            self.by_wave([self.sub(l1, chk([64, 68, 72, 76]), w0, k), self.sub(l1z, chk([64]), w1, k)])
        else:
            w = [f"v_cvt_pk_bf16_f32 v{88+i}, v{80+2*i}, v{81+2*i}" for i in range(4)]
            w += [f"ds_write_b64 v43, v[88:89] offset:{OP_OFF}", f"ds_write_b64 v44, v[90:91] offset:{OP_OFF+512}"]
            a.out += self.sub(l2, chk(list(range(80, 88))), w, min(63, a.nvm - self.mark)); a.hist = []
    def sweep(self, lst, idx):
        a = self.a
        for nm, nl, base in lst:
            a(f"s_mul_i32 s76, {idx}, {nl*128}")
            if base: a(f"s_add_u32 s76, s76, {base}")
            a(f"s_mov_b64 exec, {(1 << nl) - 1:#x}", f"buffer_load_dword v{140+self.npf}, v28, {srd(nm)}, s76 offen"); self.npf += 1
        a("s_mov_b64 exec, -1")
    def action(self, x):
        a, cfg = self.a, self.cfg
        nload = f"buffer_load_dword v{self.vTag}, off, {srd('dbg')}, 0 sc1"
        need = {"U": ["PR"], "V": ["PR"], "PS": ["PR"], "P1": ["PS"], "P2": ["PS"], "P2a": ["PS"], "L": ["PS"], "R": ["PS"], "R0": ["PS"], "C": ["PS"], "N0": ["PS"], "N1": ["N0"],
                "G0": ["PS"], "G1": ["S0"], "S0": ["G0", "N1"], "S1": ["G1", "S0"], "Q": ["PS"]}
        for y in need.get(x, need.get(x[0], []) if x[0] in "UVLQ" else []): assert y in self.done, (x, "before", y)
        assert x not in self.done and x != "C" and x[0] not in "YZ" and NSPL in (20, 22, 24, 26, 28, 36) and MIXU == 2, x
        assert not (x == "V2" and self.issued < 16)
        self.done.add(x); SITE[0] = {"N1": 0, "S0": 1, "S1": 2}.get(x)
        if x == "PS" and os.environ.get("SITES"): a("s_mov_b32 s68, 0")
        if x[0] == "Q":
            u = int(x[1:]); a(f"s_add_u32 s76, {'s71' if u < NSPL else 's83'}, {(8 if u in (22, 24, 26) else stage_of(u)[1])*512}", "s_mov_b64 exec, 15", self.pl(u, 99), "s_mov_b64 exec, -1")
        elif x == "P1": self.sweep((("gate", 14, 0), ("up", 14, 0), ("qkv", 12, 0)), "s86")
        elif x == "P2": self.sweep((("down", 14, 0), ("wo", 4, 0)), "s86")
        elif x == "P2a": self.sweep((("down", 8, 0),), "s86")
        elif x[0] == "L":
            k = int(x[1:]); self.sweep(((("down", 16, k << 18) if k < 7 else ("wo", 16, (k - 7) << 18)),), "s87")
        elif x in ("R", "R0"):
            for nm, nl in ((("down", 14), ("wo", 4)) if x == "R" else (("qkv", 12),)):
                a(f"s_mul_i32 s76, s87, {nl*1024}", f"s_mov_b64 exec, {(1 << nl) - 1:#x}", f"buffer_load_dword v{140+self.npf}, v30, {srd(nm)}, s76 offen offset:384"); self.npf += 1
            a("s_mov_b64 exec, -1")
        elif x[0] in "UV":
            if not hasattr(self, "split"): self.split = len(a.out)
            u = int(x[1:])
            if self.typ == "A": s_, v, st, off = [("qkv", self.vQ, 3072, 1024), ("qkv", self.vQ, 3072, 2048), ("gate", self.vG, 3584, 2048), ("up", self.vG, 3584, 2048), ("qkv", self.vQ, 3072, 0)][u]
            else: uu = u - (u > MIXU); s_, v, st, off = ("gate", "up")[uu % 2], self.vG, 3584, (uu // 2) * 1024
            if x[0] == "V":
                a(f"s_lshl_b32 s76, {sC}, 2", f"s_sub_u32 s76, s76, {sW}", f"s_mul_i32 s76, s76, {8*st}", "s_mov_b32 exec_lo, 0x01010101", "s_mov_b32 exec_hi, 0x01010101")
                if self.typ == "F" and u == MIXU:
                    a(f"s_lshr_b32 s84, {sI}, 1", "s_lshl_b32 s84, s84, 7", "s_add_u32 s76, s76, s84", f"v_add_u32 v29, s76, v{v}")
                    for s_ in ("gate", "up"):
                        a(f"buffer_load_dword v{140+self.npf}, v29, {srd(s_)}, 0 offen offset:3072"); self.npf += 1
                else:
                    a(f"s_add_u32 s76, s76, {self.colbase(u)}", f"v_add_u32 v29, s76, v{v}", f"buffer_load_dword v{140+self.npf}, v29, {srd(s_)}, 0 offen offset:{off}"); self.npf += 1
                a("s_mov_b64 exec, -1")
                return
            assert cfg.grid == 24 and not (self.typ == "F" and u == MIXU)
            a(f"s_and_b32 s76, {sC}, 7", f"s_mul_i32 s76, s76, {64*st}", f"s_add_u32 s76, s76, {self.colbase(u)}", "s_mov_b32 exec_lo, 0x01010101", "s_mov_b32 exec_hi, 0x01010101")
            for t in range(2):
                a(f"buffer_load_dword v{140+self.npf}, v{v+t}, {srd(s_)}, s76 offen offset:{off+1024*t}"); self.npf += 1
            a("s_mov_b64 exec, -1")
        elif x[0] == "Z":
            assert "PS" in self.done
            if x[1] in "dw":
                nm, nl = (("down", 14) if x[1] == "d" else ("wo", 4)); offs = range(14 * int(x[2]), 14 * int(x[2]) + 14) if x[1] == "d" else range(8)
                a(f"s_mul_i32 s76, s86, {nl*128}"); offs = [64 * k for k in offs]
            else:
                u = int(x[1])
                if self.typ == "A": nm, st, off = [("qkv", 3072, 1024), ("qkv", 3072, 2048), ("gate", 3584, 2048), ("up", 3584, 2048), ("qkv", 3072, 0)][u]
                else: uu = u - (u > MIXU); nm, st, off = ("gate", "up")[uu % 2], 3584, (uu // 2) * 1024; assert u != MIXU
                a(f"s_lshl_b32 s76, {sC}, 2", f"s_add_u32 s76, s76, {sW}", f"s_mul_i32 s76, s76, {8*st}", f"s_add_u32 s76, s76, {self.colbase(u)}")
                offs = [off + r * st + 64 * h for r in range(8) for h in range(2)]
            a(f"s_add_u32 s70, s{SRD[nm]}, s76", f"s_addc_u32 s71, s{SRD[nm]+1}, 0")
            for o in offs: a(f"s_load_dword s69, s[70:71], {o}")
        elif x == "X0":
            assert "PS" not in self.done
            a("s_mov_b64 exec, 0xffff", f"buffer_load_dword v139, v28, {srd('x')}, s82 offen", "s_mov_b64 exec, -1")
        elif x in ("Y0", "Y1"):
            u = int(x[1]); A, F = SRD["qkv"], SRD[("gate", "up")[u]]
            a("s_cmp_lt_u32 s2, 128", f"s_cselect_b64 s[68:69], s[{A}:{A+1}], s[{F}:{F+1}]", f"s_cselect_b32 s70, s{A+2}, s{F+2}", "s_cselect_b64 vcc, -1, 0",
              f"s_cselect_b32 s83, {1024*(u+1)}, 0", "s_movk_i32 s76, 0x7000", "s_cselect_b32 s76, 0x6000, s76", "s_mov_b32 s71, 0x20000",
              f"s_lshl_b32 s86, {sC}, 2", f"s_sub_u32 s86, s86, {sW}", "s_mul_i32 s76, s76, s86", "s_add_u32 s76, s76, s83", "s_add_u32 s76, s76, s80",
              f"v_cndmask_b32 v29, v{self.vG}, v{self.vQ}, vcc", "v_add_u32 v29, s76, v29", "s_mov_b32 exec_lo, 0x01010101", "s_mov_b32 exec_hi, 0x01010101",
              f"buffer_load_dword v{137+u}, v29, s[68:71], 0 offen", "s_mov_b64 exec, -1")
            assert "PS" not in self.done and "PR" in self.done
        elif x == "PR": self.prologue2()
        elif x == "PS": self.prologue3()
        elif x == "PK": assert "PS" in self.done; self.prologue4()
        elif x == "C":
            L = a.newlabel("Lpc")
            a("s_getpc_b64 s[70:71]"); a.label(L)
            a(f"s_sub_u32 s70, s70, {L}-{NAME}_kernel", "s_subb_u32 s71, s71, 0", "s_mul_i32 s76, s87, 640", "v_add_u32 v29, s76, v28", f"v_min_u32 v29, L_last-{NAME}_kernel, v29")
            a("s_mov_b64 exec, 31", f"global_load_dword v{140+self.npf}, v29, s[70:71]", "s_mov_b64 exec, -1"); self.npf += 1
        elif x[0] == "W": self.st(x + "a"); a("s_waitcnt vmcnt(0)"); self.st(x + "b")
        elif x[0] == "T": self.st(x)
        elif x == "N0": a(nload)
        elif x == "N1": self.slow_poll(nload, f"v_cmp_eq_u32 vcc, 0, v{self.vTag}")
        elif cfg.nogather and x in ("G0", "G1", "S0", "S1"): pass
        elif x in ("G0", "G1"): self.kv(x)
        elif x in ("S0", "S1"): a(f"s_setprio {cfg.gprio}"); self.kv(x); a(f"s_setprio {cfg.lprio}"); self.st("g" + x[1])
        else: raise KeyError(x)
    def run(self):
        a, cfg, it = self.a, self.cfg, self.it
        self.st("start"); self.npf = 0; self.done = set()
        if os.environ.get("ENTRY"):
            a.raw(f"    s_mov_b32 s{self.st.regs[self.st.n]}, s14"); self.st.n += 1; self.st.names.append("entry")
        spec = (cfg.planX + " " + (cfg.planA if self.typ == "A" else cfg.planF)).split()
        pol = {int(x.split(":")[0]): [int(y) for y in x.split(":")[1].split(",")] for x in cfg.polls.split()}
        pol[22] = pol[26] = pol[24]
        for g in pol:
            if any(f"Q{g}" in y.split(",") for y in spec): pol[g] = [99]
        for bi, b in enumerate(self.bars):
            for g in b.get("gate") or []:
                for k in pol[g] if pol[g] != [99] else []: self.bars[bi - k].setdefault("poll", []).append((g, k))
        freed = 0; plan = []
        for bi, b in enumerate(self.bars):
            vP = lambda u, k: 200 + 4 * STAGES.index(u) + pol[u].index(k)
            pl = lambda u, k: f"buffer_load_dword v{vP(u, k)}, v{self.vPo2 if stage_of(u)[2] == 4 else 18 if u < NSPL else self.vPo}, {srd('ws')}, s76 offen sc1"
            self.pl = pl
            if cfg.kvl and bi and self.bars[bi - 1].get("kvx"):
                assert "N1" in self.done and "PK" in self.done and freed < cfg.scr_rel
                a(f"s_setprio {cfg.kprio}"); self.kv_publish(); a(f"s_setprio {cfg.lprio}")
            for u, k in b.get("poll", []): a(f"s_add_u32 s76, {'s71' if u < NSPL else 's83'}, {(8 if u in (22, 24, 26) else stage_of(u)[1])*512}", "s_mov_b64 exec, 15", pl(u, k), "s_mov_b64 exec, -1")
            acts = spec[bi].split(",") if bi < len(spec) else [cfg.p2_cap]
            early = None
            for x in acts + ["req"]:
                if x == "|":
                    assert self.issued >= b["full"] and hasattr(self, "split") and not b.get("gate") and not b.get("op") and not cfg.bdiag
                    early = a.newlabel("Ly"); N = a.newlabel("Ln"); save = list(a.vm)
                    a(f"s_and_b32 s76, {sI}, {7 if self.typ == 'A' else cfg.slowF}", "s_cmp_eq_u32 s76, 3", "s_cselect_b32 s70, 1, 0", f"s_cbranch_scc0 {N}")
                    for n in range(b["full"] - 1, -1, -1):
                        if any(e[1] == n for e in a.vm): a.wait_tag(n); break
                    a.raw("    s_barrier ; early"); a.label(N); a.vm = save
                elif x[0].isdigit() or x == "req":
                    depth = int(x.split("t")[1]) if "t" in x else None
                    lim = self.issued + int(x.split("t")[0]) if x != "req" else b["full"]
                    while self.issued < min(lim, len(it)):
                        y = it[self.issued]
                        if y["need"] > freed:
                            assert x != "req", ("deadlock", bi, b, y); break
                        if x == "req": print(f"  [{self.typ}] barrier {bi}: item {y['n']} issued only when required", file=sys.stderr)
                        if y["n"] == 16 and not hasattr(self, "split"): self.split = len(a.out)
                        if y["n"] in (16, 32, 56): self.st(f"i{y['n']}")
                        assert y["n"] < 16 or "PR" in self.done
                        assert y["n"] < 32 or "PS" in self.done
                        if depth: a.wait_tag(y["n"] - depth)
                        self.item(y)
                else: self.action(x)
            if b.get("op") and not cfg.nogather:
                assert "S1" in self.done
                a("s_waitcnt lgkmcnt(0)")
            for u in b.get("gate") or []:
                a(f"s_add_u32 s76, {'s71' if u < NSPL else 's83'}, {(8 if u in (22, 24, 26) else stage_of(u)[1])*512}", "s_mov_b64 exec, 15")
                assert "N1" in self.done and (pol[u] != [99] or f"Q{u}" in self.done)
                SITE[0] = 3 + STAGES.index(u)
                Cg = a.newlabel("Lc"); save = None
                for k in pol[u][:-1]:
                    a(f"v_cmp_ne_u32 vcc, v{self.vTag}, v{vP(u, k)}", f"s_cbranch_vccz {Cg}")
                    if save is None: save = list(a.vm)
                k = pol[u][-1]
                self.slow_poll(pl(u, k), f"v_cmp_ne_u32 vcc, v{self.vTag}, v{vP(u, k)}")
                a.label(Cg)
                if save is not None: a.vm = save
                a("s_mov_b64 exec, -1")
                self.st(f"f{u}")
            for n in range(b["full"] - 1, -1, -1):
                if any(e[1] == n for e in a.vm): a.wait_tag(n); break
            if cfg.bdiag: a.raw("    s_memtime s[12:13]")
            if early: a("s_cmp_eq_u32 s70, 1", f"s_cbranch_scc1 {early}")
            a("s_barrier")
            if early: a.label(early)
            if cfg.bdiag:
                for x_ in ("s_memtime s[14:15]", "s_waitcnt lgkmcnt(0)", f"v_writelane_b32 v46, s12, {bi}", f"v_writelane_b32 v47, s14, {bi}"): a.raw("    " + x_)
            freed = b["freed"]
            plan.append(f"{bi}:{b['step']}:d{b['dur']:.0f}:f{b['full']}:i{self.issued}:{','.join(acts)}" + (f":gate{b['gate']}" if b.get("gate") else ""))
        assert self.issued == len(it)
        print(f"plan {self.typ}:", " ".join(plan), file=sys.stderr)
        self.st("end")
        if cfg.diag: a.raw(f"    s_mov_b32 s{self.st.regs[self.st.n]}, {'s68' if os.environ.get('SITES') else sT}"); self.st.n += 1
        if cfg.bdiag:
            a("s_lshl_b32 s76, s2, 2", f"s_add_u32 s76, s76, {sW}", "s_lshl_b32 s76, s76, 9", f"s_add_u32 s76, s76, {WS_DIAG+0x100000:#x}", "v_lshlrev_b32 v45, 2, v0")
            a(f"buffer_store_dword v46, v45, {srd('ws')}, s76 offen", f"buffer_store_dword v47, v45, {srd('ws')}, s76 offen offset:256")
        self.plan = plan
        if cfg.diag: a(f"s_add_u32 {sW}, {sW}, 4")
        self.st.flush(130, 129)
        a("s_endpgm")

DOC = """;
; out = x + attn(LN(x)) + ffn(LN(x)) in one launch: 256 workgroups (one per CU) x 8 waves.  Straight-line code from my own generator.
; Waves 0-3 compute (MFMA 16x16x32 bf16), waves 4-7 stream weights into an LDS ring by LDS-DMA; s_barrier follows a static plan.
; Phase 1: a workgroup holds LN(x) of 128 tokens in registers and multiplies it with 5 x 64 weight columns.
;   silu(g)*u and the attention output go to d_ws as MFMA fragments (write-through stores, then a flag).
; Phase 2: [h | o] @ [w_down ; wo] + x, a 64x64 tile per workgroup; most of K is split over a pair of workgroups,
; Hand-offs carry a launch tag: workgroup 0 derives it from the word an earlier launch (or anything else) left at d_ws[0] and
;   publishes it in d_debug.  The tag only tells this launch's hand-offs from stale ones; no result depends on it.
; Workgroup ids choose L2-friendly work sets and prefetch shares; any placement gives the same result.
"""
NPAD = 8
def touch_code(cfg):
    if not cfg.pads: return []
    o = ["s_cmp_ge_u32 s2, 128", "s_cbranch_scc1 L_tF"]
    for typ in "AF":
        o += [f"L_t{typ}:"]
        for w in range(4):
            if w < 3: o += [f"s_cmp_lg_u32 {sW}, {w}", f"s_cbranch_scc1 L_t{typ}{w+1}"]
            o += [f"s_call_b64 s[30:31], L_pad{typ}{k}" for k in range(w, NPAD, 4)] + ["s_branch L_tdone"]
            if w < 3: o += [f"L_t{typ}{w+1}:"]
    return [x if x.endswith(":") else "    " + x for x in o[:-1] + ["L_tdone:"]]
def place(lines, cfg):
    import subprocess, tempfile
    ins = [l for l in lines if not l.strip().startswith(".")]
    labels = set(re.findall(r"\bL_\w+", "\n".join(ins))) - {l[:-1] for l in ins if l.endswith(":")}
    with tempfile.TemporaryDirectory() as d:
        open(d + "/x.s", "w").write(".text\n" + "\n".join(ins) + "\n" + "".join(x + ":\n" for x in labels) + "s_endpgm\n")
        subprocess.run(["clang", "-x", "assembler", "-target", "amdgcn-amd-amdhsa", "-mcpu=gfx950", "-c", d + "/x.s", "-o", d + "/x.o"], check=True)
        dis = subprocess.run(["llvm-objdump", "-d", "--mcpu=gfx950", d + "/x.o"], capture_output=True, text=True, check=True).stdout
    ad = [int(m, 16) for m in re.findall(r"// ([0-9A-F]{12}):", dis)]
    size = iter([y - x for x, y in zip(ad, ad[1:])])
    out = []; pos = 0; page = 1; typ = "S"; pads = dict(S=[], A=[], F=[]); prev = ""; live = True
    for l in lines:
        t = l.strip()
        if t == ".p2align 3":
            if pos % 8: out.append("    s_nop 0"); pos += 4
            continue
        if t == "L_compA:": typ = "A"
        if t == "L_compF:":
            while pos % 64: out.append("    s_nop 0"); pos += 4
            typ = "F"; live = True; n = f"L_pg{len(out)}"; pads["F"].append(n)
            out += [n + ":", "    s_setpc_b64 s[30:31]", "    s_nop 0"]; pos += 8; page = pos // 4096 + 1
        if t.endswith(":"): out.append(l); continue
        if pos >= 4096 * page - 4 and (prev.startswith("v_mfma") or pos >= 4096 * page + 40):
            if live and cfg.pads:
                n = f"L_pg{len(out)}"; pads[typ].append(n)
                out += [f"    s_branch {n}x", n + ":", "    s_setpc_b64 s[30:31]", n + "x:"]; pos += 8
            page += 1
        out.append(l); pos += next(size); prev = t
        if t == "s_endpgm": live = False
    for ty in "AF":
        p = pads["S"] + pads[ty]; assert len(p) <= NPAD, p
        if not cfg.pads: continue
        for k in range(NPAD): out = [re.sub(rf"\bL_pad{ty}{k}\b", p[min(k, len(p) - 1)], x) for x in out]
    return out

def set_type(cfg, typ):
    global STG, STAGES, MIXU, NSPL, NDEF, NKEEP
    NKEEP = cfg.nkeep
    MIXU = cfg.mixu; NSPL = cfg.nspl if typ == 'A' else cfg.nsplF; NDEF = cfg.ndef if typ == 'A' else cfg.ndefF
    STG = ((0, 0, 8), (8, 24, 4), (12, 16, 8), (20, 8, 8), (28, 28, 8)) if MIXU == 2 else ((0, 0, 8), (8, 16, 8), (16, 8, 8), (24, 24, 4), (28, 28, 8))
    if NSPL in (22, 24, 26): STG = STG[:4] + ((NSPL, NSPL - 12, 8),) + STG[4:]
    STAGES = tuple(x[0] for x in STG)
    cfg.ex_ld = cfg.ex_ldA if typ == 'A' else cfg.ex_ldF

def generate(cfg):
    a = Asm()
    if os.environ.get("ENTRY"): a.raw("    s_memrealtime s[14:15]")
    a("s_cmp_ge_u32 s2, 256", "s_cbranch_scc1 L_end")
    a("s_load_dwordx16 s[16:31], s[0:1], 0", "s_load_dwordx4 s[32:35], s[0:1], 64")
    a("v_lshrrev_b32 v1, 6, v0")
    if cfg.pf_code:
        a("s_getpc_b64 s[98:99]"); a.label("L_pc")
        a("s_lshr_b32 s96, s2, 3", "s_mul_i32 s96, s96, 0x900", "v_mul_u32_u24 v2, 9, v0", "v_lshrrev_b32 v2, 1, v2", "v_and_b32 v2, 0xf80, v2", "v_add_u32 v2, s96, v2", "v_min_u32 v2, L_last-L_pc, v2")
        a.raw(f"    global_load_dword v{vNM}, v2, s[98:99]")
    a(f"v_readfirstlane_b32 {sW}, v1")
    if cfg.grid == 24:
        a("s_and_b32 s8, s2, 1", "s_bfe_u32 s9, s2, 0x20001", "s_bfe_u32 s10, s2, 0x30003", "s_lshr_b32 s11, s2, 6")
        a(f"s_lshl_b32 {sC}, s8, 3", f"s_add_u32 {sC}, {sC}, s10")
        a("s_and_b32 s12, s11, 1", f"s_lshl_b32 {sI}, s9, 1", f"s_lshl_b32 {sROT}, s8, 2", f"s_add_u32 {sROT}, {sROT}, {sI}", f"s_add_u32 {sI}, {sI}, s12")
        a(f"s_lshl_b32 {sTB}, s8, 2", f"s_add_u32 {sTB}, {sTB}, s9", f"s_lshl_b32 {sTB}, {sTB}, 2", f"s_add_u32 {sROT}, {sROT}, {cfg.rotadd}")
        if cfg.cbmap: a("s_and_b32 s12, s10, 3", f"s_add_u32 {sTB}, {sTB}, s12", f"s_bfe_u32 {sCB}, s2, 0x20005", f"s_lshl_b32 {sCB}, {sCB}, 1", "s_lshr_b32 s12, s2, 7", f"s_add_u32 {sCB}, {sCB}, s12")
        else: a(f"s_add_u32 {sTB}, {sTB}, s11", f"s_mov_b32 {sCB}, s10")
    else:
        a("s_and_b32 s8, s2, 3", "s_and_b32 s9, s2, 4", "s_bfe_u32 s10, s2, 0x20003", "s_bfe_u32 s11, s2, 0x20005")
        a(f"s_lshl_b32 {sC}, s8, 2", f"s_add_u32 {sC}, {sC}, s10", f"s_add_u32 {sI}, s9, s11")
        a("s_and_b32 s12, s11, 1", "s_lshl_b32 s12, s12, 1", f"s_add_u32 {sROT}, s9, s12")
        a(f"s_lshl_b32 {sTB}, s8, 3", f"s_add_u32 {sTB}, {sTB}, s9", f"s_add_u32 {sTB}, {sTB}, s10", f"s_lshl_b32 {sCB}, s11, 1", "s_lshr_b32 s12, s2, 7", f"s_add_u32 {sCB}, {sCB}, s12")
    a(f"s_mov_b32 {sT}, {cfg.timeout}")
    a(f"s_cmp_lt_u32 {sW}, 4", "s_cbranch_scc1 L_compute")
    info = {}
    progs = {}
    for typ in "AF":
        b = Asm(); b.uid = 1000 if typ == "A" else 2000
        set_type(cfg, typ)
        c = Compute(b, cfg, typ)
        (c.typeA if typ == "A" else c.typeF)()
        progs[typ] = (b, c); info["c" + typ] = c.st.names
    lds_ = {}
    for typ in "AF":
        b = Asm(); b.uid = 3000 if typ == "A" else 4000
        set_type(cfg, typ)
        l = Loader(b, cfg, progs[typ][1]); l.run()
        lds_[typ] = (b, l); info["l" + typ] = l.st.names; info["plan" + typ] = l.plan; info["bdiag"] = cfg.bdiag
        nb = lambda o: sum(x.strip() == "s_barrier" for x in o)
        assert nb(b.out) == nb(progs[typ][0].out) == len(progs[typ][1].bars)
        print(f"loader {typ}: {b.count} instrs, {b.nops} nop states; compute: {progs[typ][0].count} instrs, {progs[typ][0].nops} nop states", file=sys.stderr)
    def shared(d):
        (ba, oa), (bf, of) = d["A"], d["F"]
        assert oa.split == of.split and ba.out[:oa.split] == bf.out[:of.split]
        return ba.out[:oa.split]
    Loader(a, cfg, progs["A"][1]).prologue()
    a.out += shared(lds_)
    a("s_cmp_ge_u32 s2, 128", "s_cbranch_scc1 L_loadF")
    for typ in "AF":
        b, l = lds_[typ]
        a.label("L_load" + typ); a.out += b.out[l.split:]
    a.label("L_end"); a.raw("    s_endpgm")
    c = Asm(); c.uid = 5000
    c.label("L_compute")
    Compute(c, cfg, "A").prologue()
    c.out += shared(progs)
    c("s_cmp_ge_u32 s2, 128", "s_cbranch_scc1 L_compF")
    for typ in "AF":
        b, p = progs[typ]
        c.label("L_comp" + typ); c.out += b.out[p.split:] + b.stubs
    a.raw("    .p2align 12"); a.out += place(c.out, cfg)
    a.label("L_last"); a.raw("    s_endpgm")
    head = open("cdna_kernels/" + NAME + ".s.ref").read().split("; Override launch")[0]
    txt = head + f"; @launch grid=(256,1,1) block=(512,1,1) lds={LDS_BYTES}\n"
    txt += DOC
    txt += f""".amdgcn_target "amdgcn-amd-amdhsa--gfx950"
.text
.globl {NAME}_kernel
.p2align 8
.type {NAME}_kernel,@function
{NAME}_kernel:
""" + a.text() + f"""
.section .rodata,"a"
.p2align 6
.amdhsa_kernel {NAME}_kernel
  .amdhsa_next_free_vgpr 256
  .amdhsa_next_free_sgpr 102
  .amdhsa_accum_offset 256
  .amdhsa_group_segment_fixed_size 0
  .amdhsa_kernarg_size 80
  .amdhsa_user_sgpr_count 2
  .amdhsa_user_sgpr_kernarg_segment_ptr 1
  .amdhsa_system_sgpr_workgroup_id_x 1
.end_amdhsa_kernel
"""
    return txt, info

if __name__ == "__main__":
    cfg = Cfg()
    out = sys.argv[1]
    for kv in sys.argv[2:]:
        k, v = kv.split("="); setattr(cfg, k, type(getattr(Cfg, k))(v))
    txt, info = generate(cfg)
    open(out, "w").write(txt)
    info["mode"] = cfg.diag
    import json; json.dump(info, open(out + ".json", "w"))
```
